```python
import torch

def _softmax(x, axis=-1):
    return torch.softmax(x, dim=axis)
def _gelu(x):
    return torch.nn.functional.gelu(x, approximate="tanh")
def _silu(x):
    return torch.nn.functional.silu(x)
def _sigmoid(x):
    return torch.sigmoid(x)
def _layernorm(x, axis=-1, eps=1e-5):
    m = x.mean(dim=axis, keepdim=True)
    v = x.var(dim=axis, keepdim=True, unbiased=False)
    return (x - m) / torch.sqrt(v + eps)
def _scatter_add(tgt, idx, src, axis=0):
    return tgt.clone().index_add_(axis, idx, src)
def _segment_sum(src, seg, n):
    out = torch.zeros((n,) + src.shape[1:], dtype=src.dtype)
    return out.index_add_(0, seg, src)
def _pad(x, pw):
    flat = tuple(v for pair in reversed(pw) for v in pair)
    return torch.nn.functional.pad(x, flat)

kernel_name = 'sequential_preLN__gqa_block_cached__dense_activation_silu__decode'

def setup_inputs():

    _w = (lambda a: (lambda t: t.to(torch.bfloat16) if t.is_floating_point() else t)(torch.as_tensor(a)))
    def _A_setup():
        B, Sq, D = 2, 1, 1024
        Hq, Hkv, Sk, Dh = 32, 4, 16384, 128
        assert Hq % Hkv == 0, (Hq, Hkv)
        return {
            "x": _w((lambda *s: torch.randn(*s, dtype=torch.bfloat16) * 0.1)(B, Sq, D)),
            "k_cache": _w((lambda *s: torch.randn(*s, dtype=torch.bfloat16) * 1.6)(B, Hkv, Sk, Dh)),
            "v_cache": _w((lambda *s: torch.randn(*s, dtype=torch.bfloat16) * 1.6)(B, Hkv, Sk, Dh)),
            "wq": _w((lambda *s: torch.randn(*s, dtype=torch.bfloat16) * 1.6)(D, Hq * Dh) * (D ** -0.5)),
            "wo": _w((lambda *s: torch.randn(*s, dtype=torch.bfloat16) * 1.6)(Hq * Dh, D) * ((Hq * Dh) ** -0.5)),
        }
    _A_in = _A_setup()

    def _B_setup():
        B, S, D, F = 2, 1, 1024, 3584
        return {
            "x": _w((lambda *s: torch.randn(*s, dtype=torch.bfloat16) * 0.1)(B, S, D)),
            "w1": _w((lambda *s: torch.randn(*s, dtype=torch.bfloat16) * 3.2)(D, F) * (D ** -0.5)),
            "w2": _w((lambda *s: torch.randn(*s, dtype=torch.bfloat16) * 3.2)(F, D) * (F ** -0.5)),
        }
    _B_in = _B_setup()

    return {
        "A_x": _A_in["x"],
        "A_k_cache": _A_in["k_cache"],
        "A_v_cache": _A_in["v_cache"],
        "A_wq": _A_in["wq"],
        "A_wo": _A_in["wo"],
        "B_x": _B_in["x"],
        "B_w1": _B_in["w1"],
        "B_w2": _B_in["w2"],
    }

def reference(A_x, A_k_cache, A_v_cache, A_wq, A_wo, B_x, B_w1, B_w2):
    def _A_ref(x, k_cache, v_cache, wq, wo):
        B, Sq, D = x.shape
        Hq, Dh = 32, 128
        Hkv = k_cache.shape[1]
        rep = Hq // Hkv
        q = (lambda x, *d: x.permute(*d))((x @ wq).reshape(B, Sq, Hq, Dh), 0, 2, 1, 3)
        k = (lambda x, n, axis: torch.repeat_interleave(x, n, dim=axis))(k_cache, rep, axis=1)
        v = (lambda x, n, axis: torch.repeat_interleave(x, n, dim=axis))(v_cache, rep, axis=1)
        scores = torch.einsum("bhqd,bhkd->bhqk", q, k) * (Dh ** -0.5)
        p = _softmax(scores, axis=-1)
        o = torch.einsum("bhqk,bhkd->bhqd", p, v)
        return (lambda x, *d: x.permute(*d))(o, 0, 2, 1, 3).reshape(B, Sq, Hq * Dh) @ wo

    def _B_ref(x, w1, w2):
        h = torch.einsum("bsd,df->bsf", x, w1)
        h = _silu(h)
        out = torch.einsum("bsf,fd->bsd", h, w2)
        return out

    x = A_x
    h = x + _A_ref(_layernorm(x, axis=-1), A_k_cache, A_v_cache, A_wq, A_wo)
    h2 = h + _B_ref(_layernorm(h, axis=-1), B_w1, B_w2)
    return h2
```

```python
KNAME = "sequential_preLN__gqa_block_cached__dense_activation_silu__decode_kernel"
HEADER_COMMENTS = """; Kernarg layout for this problem (88 bytes, ptrs only, base s[0:1]):
"""

class Asm:
    def __init__(self):
        self.lines = []
    def __call__(self, s=""):
        for l in s.split("\n"):
            self.lines.append(l)
    def label(self, name):
        self.lines.append(name + ":")
    def text(self):
        return "\n".join(self.lines) + "\n"

def kernel_wrap(body, grid, block, lds, vgpr, sgpr=102, accum=None, name=KNAME):
    if accum is None:
        accum = min(256, (vgpr + 3) // 4 * 4)
    s = HEADER_COMMENTS
    s += f"; @launch grid=({grid},1,1) block=({block},1,1) lds={lds}\n"
    s += '.amdgcn_target "amdgcn-amd-amdhsa--gfx950"\n.text\n'
    s += f".globl {name}\n.p2align 8\n.type {name},@function\n{name}:\n"
    s += body
    s += f"""
.section .rodata,"a"
.p2align 6
.amdhsa_kernel {name}
  .amdhsa_next_free_vgpr {vgpr}
  .amdhsa_next_free_sgpr {sgpr}
  .amdhsa_accum_offset {accum}
  .amdhsa_group_segment_fixed_size 0
  .amdhsa_kernarg_size 88
  .amdhsa_user_sgpr_count 2
  .amdhsa_user_sgpr_kernarg_segment_ptr 1
  .amdhsa_system_sgpr_workgroup_id_x 1
  .amdhsa_float_denorm_mode_32 3
.end_amdhsa_kernel
"""
    return s
```

```python
import sys
from gen_common import *

WS_EPOCH = 0
WS_QP   = 0x010000
WS_ML   = 0x080000
WS_HP   = 0x090000
WS_OP   = 0x100000
WS_AP   = 0x200000
WS_FPP  = 0x240000
WS_FPC  = 0x280000
WS_FPS  = 0x2A0000
WS_O2   = 0x2C0000
WS_STAMP = 0x800000
L_Q   = 0
L_MX  = 2304
L_LS  = L_MX + 256
L_REDQ = L_LS + 256
L_CNT = 6912
L_K   = 8192
L_OB  = L_K
OB_STRIDE = 16384
LDS_BYTES = L_K + 131072
L_XA_A = 12544
L_XA_B = 16896
L_FAC  = 21248
L_REDS = 22272
L_XA_C = 28928
L_REDA = 33280
L_REDB = 45312
L_REDC = 49408
L_REDD = 61696

SPIN_LIMIT = 4000

sX, sK, sV, sWQ, sWO, sW1, sW2, sOUT, sDBG, sWS = 4, 6, 8, 10, 12, 16, 18, 20, 22, 24
sFULL = 14
sWAVE, sU = 26, 27
sNONCE = 28
sT = [29, 30, 31, 32]
sSEL = [33, 34, 35, 36]
sPLO, sPHI = 37, 38
sC = 39
sMHI = 40
sM8 = 42
sB0 = 44
sB1 = 46
sMB = 48
sM1 = 50
sR = list(range(52, 60))
sSPIN = 60
sTMP, sTMP2 = 61, 62
sDRY = 63
sSTAMP = 64

def sp(r): return f"s[{r}:{r+1}]"
def vr(r, n): return f"v[{r}:{r+n-1}]" if n > 1 else f"v{r}"

class Gen(Asm):
    def __init__(self, stamps=False, opts=None):
        super().__init__()
        self.stamps = stamps
        self.o = opts or {}
        self.uid = 0
    def lab(self, base):
        self.uid += 1
        return f"L_{base}_{self.uid}"
    def stamp(self, idx):
        if self.stamps:
            r = sSTAMP + 2 * idx
            self(f"s_memrealtime {sp(r)}")
    def dump_stamps(self, n, tmpv):
        if not self.stamps: return
        self(f"""s_waitcnt lgkmcnt(0)
        s_lshl_b32 s{sTMP}, s2, 4
        s_add_u32 s{sTMP}, s{sTMP}, s{sWAVE}
        s_lshl_b32 s{sTMP}, s{sTMP}, 7
        s_add_u32 s{sTMP}, s{sTMP}, {WS_STAMP}
        s_mov_b64 exec, 1
        v_mov_b32 v{tmpv}, s{sTMP}""")
        for i in range(n):
            self(f"v_mov_b32 v{tmpv+1}, s{sSTAMP+2*i}\n global_store_dword v{tmpv}, v{tmpv+1}, {sp(sWS)} offset:{4*i}\n s_nop 1")
    def full(self):
        self(f"s_mov_b64 exec, {sp(sFULL)}")
    def mask(self, lo, hi):
        self(f"s_and_b32 exec_lo, s{sFULL}, {lo}\n s_and_b32 exec_hi, s{sFULL+1}, {hi}")
    def guard(self, fn):
        L = self.lab("grd")
        self(f"s_cbranch_execz {L}")
        fn()
        self.label(L)
    def gbarrier(self):
        self("s_waitcnt lgkmcnt(0)")
        self.guard(lambda: self("s_barrier"))
    def dpp_allreduce_pp(self, regs, op="v_add_f32"):
        n = len(regs)
        for ctrl in ("quad_perm:[1,0,3,2]", "quad_perm:[2,3,0,1]", "row_ror:8"):
            if n < 3: self(f"s_nop {2 - n}" if n < 2 else "s_nop 0")
            for r in regs:
                self(f"{op}_dpp v{r}, v{r}, v{r} {ctrl} row_mask:0xf bank_mask:0xf")
    def allreduce_g(self, regs, tmps, op="v_add_f32", steps=("v_permlane16_swap_b32", "v_permlane32_swap_b32")):
        n = len(regs)
        for swap in steps:
            for r, t in zip(regs, tmps):
                self(f"v_mov_b32 v{t}, v{r}")
            self("s_nop 1" if n < 2 else "s_nop 0")
            for r, t in zip(regs, tmps):
                self(f"{swap} v{r}, v{t}")
            self("s_nop 1" if n < 2 else "s_nop 0")
            for r, t in zip(regs, tmps):
                self(f"{op} v{r}, v{r}, v{t}")
    def tag(self, dst, src, vN):
        for i in range(4):
            self(f"v_perm_b32 v{dst+i}, v{src+i}, v{vN}, s{sSEL[i]}")
    def check(self, grans, acc):
        for gi, gbase in enumerate(grans):
            for i in range(4):
                if gi == 0:
                    self(f"v_xor_b32 v{acc+i}, s{sT[i]}, v{gbase+i}")
                else:
                    self(f"v_bitop3_b32 v{acc+i}, v{gbase+i}, s{sT[i]}, v{acc+i} bitop3:0xbe")
        self(f"v_or3_b32 v{acc}, v{acc}, v{acc+1}, v{acc+2}")
        self(f"v_or_b32 v{acc}, v{acc}, v{acc+3}")
        self(f"v_and_b32 v{acc}, 0xff, v{acc}")
        self(f"v_cmp_ne_u32 vcc, 0, v{acc}")
    def spin(self, name, issue, grans, acc, waitstr="s_waitcnt vmcnt(0)", sleep=0, first_issued=False, after_issue=None):
        L = self.lab(name); Lok = self.lab(name + "ok"); Lw = self.lab(name + "w")
        self(f"s_mov_b32 s{sSPIN}, 0")
        if first_issued: self(f"s_branch {Lw}")
        self.label(L)
        self.guard(issue)
        self.label(Lw)
        if after_issue: after_issue()
        self.guard(lambda: self(waitstr))
        self.check(grans, acc)
        self("s_nop 0")
        self(f"s_cbranch_vccz {Lok}")
        self(f"s_add_u32 s{sSPIN}, s{sSPIN}, 1")
        if sleep: self(f"s_sleep {sleep}")
        self(f"s_cmp_lt_u32 s{sSPIN}, {SPIN_LIMIT}")
        self(f"s_cbranch_scc1 {L}")
        self("s_branch L_abort")
        self.label(Lok)
    def perm_unit(self, raw, T):
        for t in range(4):
            for par, sel in ((0, sPLO), (1, sPHI)):
                j = 2 * t + par
                for q in range(4):
                    self(f"v_perm_b32 v{T + 4*j + q}, v{raw + 4*(2*q+1) + t}, v{raw + 4*(2*q) + t}, s{sel}")
    def wload(self, dst, sbase, voff, rowfn, rs, nt=True):
        prev = 0
        for i in range(8):
            d = rowfn(i) - prev
            if d > 0:
                self(f"s_add_u32 s{sbase}, s{sbase}, {d*rs}\n s_addc_u32 s{sbase+1}, s{sbase+1}, 0")
            elif d < 0:
                self(f"s_sub_u32 s{sbase}, s{sbase}, {-d*rs}\n s_subb_u32 s{sbase+1}, s{sbase+1}, 0")
            prev = rowfn(i)
            self(f"global_load_dwordx4 {vr(dst+4*i, 4)}, v{voff}, {sp(sbase)}" + (" nt" if nt else ""))
    def mfma8(self, D, AOP, T):
        for j in range(8):
            self(f"v_mfma_f32_16x16x32_bf16 {vr(D+4*j,4)}, {vr(AOP,4)}, {vr(T+4*j,4)}, 0")
    def select(self, X, D, r):
        for jj in range(4):
            self(f"v_cndmask_b32 v{X+jj}, v{D+4*jj+r}, v{D+4*(4+jj)+r}, {sp(sMHI)}")
    def nonce_from(self, vN):
        self(f"""
        v_readfirstlane_b32 s{sNONCE}, v{vN}
        s_add_u32 s{sNONCE}, s{sNONCE}, 0x01010101
        s_or_b32 s{sNONCE}, s{sNONCE}, 1
        s_mov_b32 s{sT[0]}, s{sNONCE}
        s_lshr_b32 s{sT[1]}, s{sNONCE}, 8
        s_lshr_b32 s{sT[2]}, s{sNONCE}, 16
        s_lshr_b32 s{sT[3]}, s{sNONCE}, 24
        v_mov_b32 v{vN}, s{sNONCE}
        """)

STD_ROW = lambda i: 16 * (i // 4) + (i % 4)
WO_ROW = lambda i: 8 * (i % 4) + (i // 4)

def reduce4(a, R, X, vN):
    for t in range(4):
        a(f"v_add_f32 v{R+t}, v{R+t}, v{R+4+t}\n v_add_f32 v{R+8+t}, v{R+8+t}, v{R+12+t}")
    for t in range(4):
        a(f"v_add_f32 v{R+t}, v{R+t}, v{R+8+t}")
    a.tag(X, R, vN)

def build(stamps=False, **o):
    a = Gen(stamps, o)
    a(f"""
    s_cmp_ge_u32 s2, 256
    s_cbranch_scc1 L_end""")
    a.stamp(0)
    a(f"""
    s_load_dwordx8 s[4:11], s[0:1], 0
    s_load_dwordx2 s[12:13], s[0:1], 32
    s_load_dwordx4 s[16:19], s[0:1], 48
    s_load_dwordx4 s[20:23], s[0:1], 64
    s_load_dwordx2 s[24:25], s[0:1], 80
    v_lshrrev_b32 v1, 6, v0
    v_and_b32 v0, 63, v0
    s_mov_b32 s{sPLO}, 0x05040100
    v_readfirstlane_b32 s{sWAVE}, v1
    s_mov_b32 s{sPHI}, 0x07060302
    s_mov_b32 s{sSEL[0]}, 0x07060500
    s_mov_b32 s{sSEL[1]}, 0x07060501
    s_mov_b32 s{sSEL[2]}, 0x07060502
    s_mov_b32 s{sSEL[3]}, 0x07060503
    s_mov_b64 {sp(sFULL)}, -1
    v_lshrrev_b32 v2, 4, v0            ; g
    v_and_b32 v3, 15, v0               ; m / c
    s_cmp_ge_u32 s{sWAVE}, 4
    s_cbranch_scc1 L_A
    """)
    gen_G(a)
    gen_A(a)
    a("""
    L_abort:
    L_end:
    s_endpgm
    """)
    return kernel_wrap(a.text(), 256, 768, LDS_BYTES, 168)

def gen_G(a):
    o = a.o
    vLane, vG, vM, vB, vPP, vN = 0, 2, 3, 4, 5, 6
    vA0, vA1, vA2 = 7, 8, 9
    vPubH = 10
    vGa = 11
    XR = 12
    AOP = 16
    ACC = 20
    RAWA, RAWB, T, GA = 24, 56, 88, 120
    u = sU
    sKS, sHQ, sP, sBA, sHKV, sFC2, sH, sCC = 52, 53, 54, 55, 56, 57, 58, 59
    a(f"""
    ; ---------------- G waves ----------------
    s_setprio 3
    s_mov_b32 s{u}, s{sWAVE}
    v_bfe_u32 v{vB}, v{vM}, 2, 1
    v_and_b32 v{vPP}, 3, v{vM}
    v_lshrrev_b32 v{vA0}, 3, v{vM}
    v_lshl_or_b32 v{vPP}, v{vA0}, 2, v{vPP}
    s_and_b32 s{sKS}, s2, 7
    s_lshr_b32 s{sHQ}, s2, 3
    v_mov_b32 v{vA0}, 0
    v_lshl_add_u32 v{vA1}, v{vPP}, 2, v{vG}
    v_lshlrev_b32 v{vA1}, 4, v{vA1}
    v_lshl_add_u32 v{vA1}, v{vB}, 11, v{vA1}
    s_lshl_b32 s{sTMP}, s{sKS}, 8
    s_lshl_b32 s{sTMP2}, s{u}, 6
    s_add_u32 s{sTMP}, s{sTMP}, s{sTMP2}
    v_lshlrev_b32 v{vA2}, 3, v{vG}
    v_lshl_add_u32 v{vA2}, v{vB}, 11, v{vA2}
    v_add_u32 v{vA2}, s{sTMP}, v{vA2}
    s_lshl_b32 s{sTMP}, s{sKS}, 7
    s_lshl_b32 s{sTMP2}, s{u}, 5
    s_add_u32 s{sTMP}, s{sTMP}, s{sTMP2}
    s_lshl_b32 s{sTMP}, s{sTMP}, 13          ; *8192
    s_lshl_b32 s{sTMP2}, s{sHQ}, 8
    s_add_u32 s{sTMP}, s{sTMP}, s{sTMP2}
    v_lshlrev_b32 v{vPubH}, 15, v{vG}          ; 4g*8192
    v_lshl_add_u32 v{vPubH}, v{vM}, 4, v{vPubH}
    s_waitcnt lgkmcnt(0)
    s_add_u32 s{sB0}, s{sWQ}, s{sTMP}
    s_addc_u32 s{sB0+1}, s{sWQ+1}, 0
    global_load_dword v{vN}, v{vA0}, {sp(sWS)} sc1
    """)
    for i in range(4):
        a(f"global_load_dwordx4 {vr(GA+4*i,4)}, v{vA1}, {sp(sX)} offset:{i*512}")
    a(f"global_load_dwordx2 {vr(XR,2)}, v{vA2}, {sp(sX)}")
    a(f"global_load_dwordx2 {vr(XR+2,2)}, v{vA2}, {sp(sX)} offset:32")
    a.wload(RAWA, sB0, vPubH, STD_ROW, 8192)
    a(f"""
    s_mov_b32 s{sMHI}, 0
    s_mov_b32 s{sMHI+1}, -1
    s_mov_b32 s{sMB}, 0xf0f0f0f0
    s_mov_b32 s{sMB+1}, 0xf0f0f0f0
    s_mov_b32 s{sM1}, 0x22222222
    s_mov_b32 s{sM1+1}, 0x22222222
    v_mov_b32 v{ACC}, 0
    v_mov_b32 v{ACC+1}, 0
    v_mov_b32 v{ACC+2}, 0
    v_mov_b32 v{ACC+3}, 0
    s_lshl_b32 s{sTMP}, s{u}, 10
    v_lshl_add_u32 v{vA0}, v{vLane}, 4, s{sTMP}
    ds_write_b128 v{vA0}, {vr(ACC,4)} offset:{L_REDQ}
    v_mov_b32 v{vA1}, 0
    ds_write_b64 v{vA1}, {vr(ACC,2)} offset:{L_CNT}
    s_waitcnt lgkmcnt(0)
    s_barrier        ; B0
    v_lshrrev_b32 v{vPubH}, 1, v{vG}
    v_lshl_add_u32 v{vPubH}, v{vM}, 1, v{vPubH}
    v_lshlrev_b32 v{vPubH}, 4, v{vPubH}      ; (2c+half)*16
    v_lshlrev_b32 v{vGa}, 11, v{vPP}         ; 4pp*512
    v_lshl_add_u32 v{vGa}, v{vG}, 4, v{vGa}
    s_waitcnt vmcnt(8)
    """)
    a.stamp(1)
    a.nonce_from(vN)
    S0, S1, Q0, Q1, LO, HI = RAWB, RAWB+1, RAWB+2, RAWB+3, RAWB+4, RAWB+5
    for k in range(16):
        w = GA + k
        a(f"v_lshlrev_b32 v{LO}, 16, v{w}\n v_and_b32 v{HI}, 0xffff0000, v{w}")
        if k == 0:
            a(f"v_mov_b32 v{S0}, v{LO}\n v_mov_b32 v{S1}, v{HI}\n v_mul_f32 v{Q0}, v{LO}, v{LO}\n v_mul_f32 v{Q1}, v{HI}, v{HI}")
        else:
            a(f"v_add_f32 v{S0}, v{S0}, v{LO}\n v_add_f32 v{S1}, v{S1}, v{HI}\n v_fmac_f32 v{Q0}, v{LO}, v{LO}\n v_fmac_f32 v{Q1}, v{HI}, v{HI}")
    a(f"v_add_f32 v{S0}, v{S0}, v{S1}\n v_add_f32 v{S1}, v{Q0}, v{Q1}")
    a.dpp_allreduce_pp([S0, S1])
    a.allreduce_g([S0, S1], [Q0, Q1])
    MEAN, RSTD = S0, S1
    a(f"""
    v_mul_f32 v{MEAN}, 0x3a800000, v{S0}        ; /1024
    v_mul_f32 v{Q0}, 0x3a800000, v{S1}
    v_fma_f32 v{Q0}, -v{MEAN}, v{MEAN}, v{Q0}
    v_max_f32 v{Q0}, 0, v{Q0}
    v_add_f32 v{Q0}, 0x3727c5ac, v{Q0}           ; + 1e-5
    v_rsq_f32 v{RSTD}, v{Q0}
    """)
    XF = RAWB + 8
    for q in range(4):
        a(f"v_lshlrev_b32 v{XF+2*q}, 16, v{XR+q}\n v_and_b32 v{XF+2*q+1}, 0xffff0000, v{XR+q}")
    for e in range(8):
        a(f"v_sub_f32 v{XF+e}, v{XF+e}, v{MEAN}")
    for e in range(8):
        a(f"v_mul_f32 v{XF+e}, v{XF+e}, v{RSTD}")
    for q in range(4):
        a(f"v_cvt_pk_bf16_f32 v{AOP+q}, v{XF+2*q}, v{XF+2*q+1}")
    a("s_waitcnt vmcnt(0)")
    a.stamp(2)
    a.perm_unit(RAWA, T)
    a("s_nop 1")
    D = RAWB
    a.mfma8(D, AOP, T)
    a("s_nop 7")
    X = ACC
    a.select(X, D, 0)
    a.tag(X, X, vN)
    a(f"""
    ds_write_b128 v{vA0}, {vr(X,4)} offset:{L_REDQ}
    s_cmp_lg_u32 s{u}, 0
    s_cbranch_scc1 L_q_nored
    v_lshlrev_b32 v{vA0}, 4, v{vLane}
    """)
    def iss():
        for w in range(4):
            a(f"ds_read_b128 {vr(GA+4*w,4)}, v{vA0} offset:{L_REDQ + w*1024}")
    a.spin("redq", iss, [GA, GA+4, GA+8, GA+12], ACC, waitstr="s_waitcnt lgkmcnt(0)")
    reduce4(a, GA, X, vN)
    a(f"""
    s_lshl_b32 s{sTMP}, s{sHQ}, 13
    s_lshl_b32 s{sTMP2}, s{sKS}, 9
    s_add_u32 s{sTMP}, s{sTMP}, s{sTMP2}
    s_add_u32 s{sTMP}, s{sTMP}, {WS_QP}
    v_and_b32 v{vA0}, 1, v{vG}
    v_lshl_add_u32 v{vA0}, v{vA0}, 12, v{vPubH}
    v_add_u32 v{vA0}, s{sTMP}, v{vA0}
    global_store_dwordx4 v{vA0}, {vr(X,4)}, {sp(sWS)} sc1
    L_q_nored:
    """)
    a.stamp(3)
    a(f"""
    s_and_b32 s{sP}, s2, 7
    s_lshr_b32 s{sBA}, s{sP}, 2
    s_and_b32 s{sHKV}, s{sP}, 3
    s_lshl_b32 s{sH}, s{sP}, 2
    s_bfe_u32 s{sTMP}, s2, 0x20003
    s_add_u32 s{sH}, s{sH}, s{sTMP}
    s_lshr_b32 s{sCC}, s2, 5
    s_lshl_b32 s{sTMP}, s{sTMP}, 3
    s_add_u32 s{sFC2}, s{sP}, s{sTMP}
    """)
    vBG = 1
    vXW = vGa
    vXR = vPP
    a(f"""
    v_and_b32 v{vBG}, 31, v{vLane}
    v_lshlrev_b32 v{vBG}, 4, v{vBG}             ; gi*16
    v_lshrrev_b32 v{vA0}, 5, v{vLane}
    v_mul_u32_u24 v{vA0}, 544, v{vA0}
    v_add_u32 v{vXW}, v{vA0}, v{vBG}
    v_and_b32 v{vA0}, 3, v{vM}
    v_mul_u32_u24 v{vA0}, 1088, v{vA0}
    v_mul_u32_u24 v{vA1}, 544, v{vB}
    v_add_u32 v{vA0}, v{vA0}, v{vA1}
    v_lshl_add_u32 v{vXR}, v{vG}, 4, v{vA0}
    """)
    def load_wo():
        a(f"""
        s_lshl_b32 s{sTMP}, s{sH}, 7
        s_lshl_b32 s{sTMP2}, s{u}, 5
        s_add_u32 s{sTMP}, s{sTMP}, s{sTMP2}
        s_lshl_b32 s{sTMP}, s{sTMP}, 11
        s_lshl_b32 s{sTMP2}, s{sCC}, 8
        s_add_u32 s{sTMP}, s{sTMP}, s{sTMP2}
        s_add_u32 s{sB0}, s{sWO}, s{sTMP}
        s_addc_u32 s{sB0+1}, s{sWO+1}, 0
        v_lshlrev_b32 v{vA0}, 12, v{vG}             ; 2g*2048
        v_lshl_add_u32 v{vA0}, v{vM}, 4, v{vA0}
        """)
        a.guard(lambda: a.wload(RAWA, sB0, vA0, WO_ROW, 2048))
    if o.get("dry", 1):
        a(f"""
        s_mov_b64 {sp(sFULL)}, 0
        s_mov_b64 exec, 0
        s_branch L_tail
        L_dry_done:
        s_mov_b64 {sp(sFULL)}, -1
        s_mov_b64 exec, -1
        """)
    QG = RAWB
    a(f"""
    s_lshl_b32 s{sTMP}, s{sHKV}, 3
    s_lshl_b32 s{sTMP2}, s{u}, 1
    s_add_u32 s{sTMP}, s{sTMP}, s{sTMP2}
    s_lshl_b32 s{sTMP}, s{sTMP}, 1
    s_add_u32 s{sTMP}, s{sTMP}, s{sBA}
    s_lshl_b32 s{sTMP}, s{sTMP}, 12
    s_add_u32 s{sTMP}, s{sTMP}, {WS_QP}
    s_add_u32 s{sWQ}, s{sWS}, s{sTMP}
    s_addc_u32 s{sWQ+1}, s{sWS+1}, 0
    s_add_u32 s{sX}, s{sWQ}, 8192
    s_addc_u32 s{sX+1}, s{sWQ+1}, 0
    v_lshlrev_b32 v{vA2}, 4, v{vLane}
    v_lshrrev_b32 v{vA0}, 3, v{vLane}
    v_lshlrev_b32 v{vA0}, 13, v{vA0}            ; head*8192
    v_and_b32 v{vA1}, 7, v{vLane}
    v_lshl_add_u32 v{vA0}, v{vA1}, 9, v{vA0}
    s_mov_b64 exec, 0xffff
    """)
    if o.get("qhint", 0):
        a.spin("hq", lambda: a(f"global_load_dwordx4 {vr(QG,4)}, v{vA0}, {sp(sWQ)} sc1"), [QG], ACC, sleep=o.get("qsleep", 4))
    a("s_mov_b64 exec, -1")
    a.stamp(4)
    def issq():
        for hh, sb in ((0, sWQ), (1, sX)):
            for i in range(4):
                a(f"global_load_dwordx4 {vr(QG+16*hh+4*i,4)}, v{vA2}, {sp(sb)} offset:{i*1024} sc1")
    a.spin("qg", issq, [QG+4*i for i in range(8)], ACC, sleep=o.get("qsleep", 4))
    for hh in range(2):
        base = QG + 16*hh
        for t in range(4):
            a(f"v_add_f32 v{base+t}, v{base+t}, v{base+4+t}\n v_add_f32 v{base+8+t}, v{base+8+t}, v{base+12+t}")
        for t in range(4):
            a(f"v_add_f32 v{base+t}, v{base+t}, v{base+8+t}")
    a("s_nop 1")
    for t in range(4):
        a(f"v_permlane32_swap_b32 v{QG+t}, v{QG+16+t}")
    a("s_nop 1")
    for t in range(4):
        a(f"v_add_f32 v{QG+t}, v{QG+t}, v{QG+16+t}")
    a(f"""
    v_cvt_pk_bf16_f32 v{QG+4}, v{QG}, v{QG+1}
    v_cvt_pk_bf16_f32 v{QG+5}, v{QG+2}, v{QG+3}
    v_lshrrev_b32 v{vA0}, 5, v{vLane}            ; kq
    s_lshl_b32 s{sTMP}, s{u}, 1
    v_add_u32 v{vA0}, s{sTMP}, v{vA0}            ; head
    v_mul_u32_u24 v{vA0}, 272, v{vA0}
    v_and_b32 v{vA1}, 31, v{vLane}
    v_lshl_add_u32 v{vA0}, v{vA1}, 3, v{vA0}
    ds_write_b64 v{vA0}, {vr(QG+4,2)} offset:{L_Q}
    v_mov_b32 v{vA1}, 0
    v_mov_b32 v{vA2}, 1
    s_waitcnt lgkmcnt(0)
    s_mov_b64 exec, 1
    ds_add_u32 v{vA1}, v{vA2} offset:{L_CNT}
    s_mov_b64 exec, -1
    """)
    a.stamp(5)
    a(f"""
    s_mov_b32 s{sSPIN}, 0
    L_G_vwait:
    ds_read_b32 v{vA2}, v{vA1} offset:{L_CNT+4}
    s_waitcnt lgkmcnt(0)
    v_readfirstlane_b32 s{sTMP}, v{vA2}
    s_cmp_ge_u32 s{sTMP}, 8
    s_cbranch_scc1 L_G_vok
    s_add_u32 s{sSPIN}, s{sSPIN}, 1
    s_sleep 4
    s_cmp_lt_u32 s{sSPIN}, 200000
    s_cbranch_scc1 L_G_vwait
    s_branch L_abort
    L_G_vok:
    """)
    a.stamp(6)
    wop = o.get("wop", 0)
    if wop == 0:
        a(f"s_setprio {o.get('woprio', 0)}")
        load_wo()
    a(f"s_setprio {o.get('gprio', 1)}")
    a("s_barrier      ; B3")
    if o.get("b4", 1): a("s_barrier      ; B4")
    a.stamp(7)

    sPEND = 63
    def load_w1():
        L = a.lab("now1")
        a(f"""
        s_cmp_ge_u32 s2, 224
        s_cbranch_scc1 {L}
        s_mov_b32 s{sPEND}, 8
        s_lshl_b32 s{sTMP}, s{sKS}, 7
        s_lshl_b32 s{sTMP2}, s{u}, 5
        s_add_u32 s{sTMP}, s{sTMP}, s{sTMP2}
        s_mul_i32 s{sTMP}, s{sTMP}, 7168
        s_lshl_b32 s{sTMP2}, s{sHQ}, 8
        s_add_u32 s{sTMP}, s{sTMP}, s{sTMP2}
        s_add_u32 s{sB0}, s{sW1}, s{sTMP}
        s_addc_u32 s{sB0+1}, s{sW1+1}, 0
        v_mul_u32_u24 v{vA0}, {4*7168}, v{vG}
        v_lshl_add_u32 v{vA0}, v{vM}, 4, v{vA0}
        """)
        a.guard(lambda: a.wload(RAWB, sB0, vA0, STD_ROW, 7168))
        a.label(L)
    def load_w2():
        L = a.lab("now2")
        a(f"""
        s_cmp_ge_u32 s{sFC2}, 28
        s_cbranch_scc1 {L}
        s_mov_b32 s{sPEND}, 8
        s_lshl_b32 s{sTMP}, s{sFC2}, 7
        s_lshl_b32 s{sTMP2}, s{u}, 5
        s_add_u32 s{sTMP}, s{sTMP}, s{sTMP2}
        s_lshl_b32 s{sTMP}, s{sTMP}, 11
        s_lshl_b32 s{sTMP2}, s{sCC}, 8
        s_add_u32 s{sTMP}, s{sTMP}, s{sTMP2}
        s_add_u32 s{sB0}, s{sW2}, s{sTMP}
        s_addc_u32 s{sB0+1}, s{sW2+1}, 0
        v_lshlrev_b32 v{vA0}, 13, v{vG}           ; 4g*2048
        v_lshl_add_u32 v{vA0}, v{vM}, 4, v{vA0}
        """)
        a.guard(lambda: a.wload(RAWA, sB0, vA0, STD_ROW, 2048))
        a.label(L)
    def sweep(name, issue, grans, shadow, sleep):
        L = a.lab(name); Lc = a.lab(name + "c"); Lok = a.lab(name + "ok"); L0 = a.lab(name + "z")
        a(f"s_mov_b32 s{sSPIN}, 0\n s_mov_b32 s{sPEND}, 0")
        a.guard(issue)
        shadow()
        a(f"s_cmp_eq_u32 s{sPEND}, 0\n s_cbranch_scc1 {L0}")
        a.guard(lambda: a("s_waitcnt vmcnt(8)"))
        a(f"s_branch {Lc}")
        a.label(L)
        a.guard(issue)
        a.label(L0)
        a.guard(lambda: a("s_waitcnt vmcnt(0)"))
        a.label(Lc)
        a.check(grans, ACC)
        a("s_nop 0")
        a(f"s_cbranch_vccz {Lok}")
        a(f"s_add_u32 s{sSPIN}, s{sSPIN}, 1")
        if sleep: a(f"s_sleep {sleep}")
        a(f"s_cmp_lt_u32 s{sSPIN}, {SPIN_LIMIT}")
        a(f"s_cbranch_scc1 {L}")
        a("s_branch L_abort")
        a.label(Lok)
    HG = GA + 44
    FAC = GA + 32
    X = ACC
    D = GA
    vals = [GA + 32 + e for e in range(8)]
    def exchange(lbuf):
        a(f"""
        s_mul_i32 s{sTMP}, s{u}, 1088
        v_add_u32 v{vA0}, s{sTMP}, v{vXW}
        ds_write_b128 v{vA0}, {vr(GA,4)} offset:{lbuf}
        s_lshl_b32 s{sTMP}, s{u}, 7
        v_add_u32 v{vA0}, s{sTMP}, v{vXR}""")
        a.gbarrier()
        a(f"""
        ds_read_b128 {vr(vals[0],4)}, v{vA0} offset:{lbuf}
        ds_read_b128 {vr(vals[4],4)}, v{vA0} offset:{lbuf + 64}
        s_waitcnt lgkmcnt(0)""")
        for ctrl in ("quad_perm:[1,0,3,2]", "quad_perm:[2,3,0,1]"):
            for r in vals:
                a(f"v_add_f32_dpp v{r}, v{r}, v{r} {ctrl} row_mask:0xf bank_mask:0xf")
    def red_pub(name, lbuf, addr, store):
        L = a.lab("nored" + name)
        R = GA + 32
        a(f"""
        s_lshl_b32 s{sTMP}, s{sU}, 10
        v_lshl_add_u32 v{vA0}, v{vLane}, 4, s{sTMP}
        ds_write_b128 v{vA0}, {vr(X,4)} offset:{lbuf}""")
        a.gbarrier()
        a(f"""
        s_cmp_lg_u32 s{sU}, 0
        s_cbranch_scc1 {L}
        v_lshlrev_b32 v{vA0}, 4, v{vLane}""")
        for w in range(4):
            a(f"ds_read_b128 {vr(R+4*w,4)}, v{vA0} offset:{lbuf + w*1024}")
        addr()
        a("s_waitcnt lgkmcnt(0)")
        reduce4(a, R, X, vN)
        a.guard(store)
        a.label(L)
    w1p, w2p = o.get("w1p", 1), o.get("w2p", 3)
    a("L_tail:")
    if o.get("wop", 0) == 1: load_wo()
    a(f"""
    s_lshl_b32 s{sTMP}, s{sH}, 9
    s_add_u32 s{sTMP}, s{sTMP}, {WS_ML}
    v_lshrrev_b32 v{vA1}, 5, v{vLane}             ; b
    v_lshrrev_b32 v{vA0}, 0, v{vBG}
    v_lshl_add_u32 v{vA0}, v{vA1}, 14, v{vA0}      ; b*32*32*16 + s*16
    v_add_u32 v{vA0}, s{sTMP}, v{vA0}
    s_lshl_b32 s{sTMP2}, s{sH}, 14                ; h*32*512
    s_lshl_b32 s{sTMP}, s{u}, 12                  ; 8u*512
    s_add_u32 s{sTMP2}, s{sTMP2}, s{sTMP}
    s_add_u32 s{sTMP2}, s{sTMP2}, {WS_OP}
    s_add_u32 s{sWQ}, s{sWS}, s{sTMP2}
    s_addc_u32 s{sWQ+1}, s{sWS+1}, 0
    v_lshl_add_u32 v{vA2}, v{vA1}, 19, v{vBG}      ; b<<19 + gi*16
    """)
    a.spin("hA", lambda: a(f"global_load_dwordx4 {vr(HG,4)}, v{vA0}, {sp(sWS)} sc1"), [HG], ACC, sleep=o.get("hsleep", 2))
    a.stamp(8)
    def issA():
        for i in range(8):
            a(f"global_load_dwordx4 {vr(GA+4*i,4)}, v{vA2}, {sp(sWQ)} offset:{i*512} sc1")
    def shadowA():
        if w1p == 1: load_w1()
        MM, LLr, TT = GA+40, GA+41, GA+42
        a(f"v_mov_b32 v{MM}, v{HG}\n s_nop 1")
        for ctrl in ("quad_perm:[1,0,3,2]", "quad_perm:[2,3,0,1]", "row_ror:4", "row_ror:8"):
            a(f"v_max_f32_dpp v{MM}, v{MM}, v{MM} {ctrl} row_mask:0xf bank_mask:0xf\n s_nop 1")
        a.allreduce_g([MM], [TT], "v_max_f32", steps=("v_permlane16_swap_b32",))
        a(f"""
        v_sub_f32 v{MM}, v{HG}, v{MM}
        v_exp_f32 v{MM}, v{MM}
        s_nop 0
        v_mul_f32 v{LLr}, v{MM}, v{HG+1}
        s_nop 1""")
        for ctrl in ("quad_perm:[1,0,3,2]", "quad_perm:[2,3,0,1]", "row_ror:4", "row_ror:8"):
            a(f"v_add_f32_dpp v{LLr}, v{LLr}, v{LLr} {ctrl} row_mask:0xf bank_mask:0xf\n s_nop 1")
        a.allreduce_g([LLr], [TT], "v_add_f32", steps=("v_permlane16_swap_b32",))
        a(f"""
        v_rcp_f32 v{LLr}, v{LLr}
        s_nop 0
        v_mul_f32 v{MM}, v{MM}, v{LLr}
        s_lshl_b32 s{sTMP}, s{u}, 8
        v_lshl_add_u32 v{vA0}, v{vLane}, 2, s{sTMP}
        ds_write_b32 v{vA0}, v{MM} offset:{L_FAC}
        v_lshrrev_b32 v{vA1}, 5, v{vLane}
        s_lshl_b32 s{sTMP2}, s{u}, 5
        s_add_u32 s{sTMP}, s{sTMP}, s{sTMP2}
        v_lshl_add_u32 v{vA0}, v{vA1}, 7, s{sTMP}      ; u*256 + b*128 + 8u*4
        ds_read_b128 {vr(FAC,4)}, v{vA0} offset:{L_FAC}
        ds_read_b128 {vr(FAC+4,4)}, v{vA0} offset:{L_FAC+16}
        """)
        a.perm_unit(RAWA, T)
    sweep("gA", issA, [GA+4*i for i in range(8)], shadowA, o.get("asleep", 2))
    a.stamp(9)
    if w1p == 2: load_w1()
    a("s_waitcnt lgkmcnt(0)")
    for t in range(4):
        a(f"v_mul_f32 v{GA+t}, v{GA+t}, v{FAC}")
    for i in range(1, 8):
        for t in range(4):
            a(f"v_fmac_f32 v{GA+t}, v{GA+4*i+t}, v{FAC+i}")
    exchange(L_XA_A)
    for q in range(4):
        a(f"v_cvt_pk_bf16_f32 v{AOP+q}, v{vals[2*q]}, v{vals[2*q+1]}")
    a("s_nop 1")
    a.mfma8(D, AOP, T)
    a("s_nop 7")
    a.select(X, D, 0)
    red_pub("a", L_REDA, lambda: a(f"""
        s_lshl_b32 s{sTMP}, s{sCC}, 6          ; cc*2*32
        s_add_u32 s{sTMP}, s{sTMP}, s{sH}
        s_lshl_b32 s{sTMP}, s{sTMP}, 9
        s_add_u32 s{sTMP}, s{sTMP}, {WS_AP}
        v_and_b32 v{vA0}, 1, v{vG}
        v_lshl_add_u32 v{vA0}, v{vA0}, 14, v{vPubH}
        v_add_u32 v{vA0}, s{sTMP}, v{vA0}"""),
        lambda: a(f"global_store_dwordx4 v{vA0}, {vr(X,4)}, {sp(sWS)} sc1"))
    a.stamp(10)
    a(f"""
    s_cmp_ge_u32 s2, 224
    s_cbranch_scc1 L_skipB0
    s_lshl_b32 s{sTMP}, s{sKS}, 15            ; ks*2*32*512
    s_lshl_b32 s{sTMP2}, s{u}, 12
    s_add_u32 s{sTMP}, s{sTMP}, s{sTMP2}
    s_add_u32 s{sTMP}, s{sTMP}, {WS_AP}
    s_add_u32 s{sWQ}, s{sWS}, s{sTMP}
    s_addc_u32 s{sWQ+1}, s{sWS+1}, 0
    v_bfe_u32 v{vA1}, v{vLane}, 3, 1
    v_and_b32 v{vA0}, 7, v{vLane}
    v_lshlrev_b32 v{vA0}, 9, v{vA0}
    v_lshl_add_u32 v{vA0}, v{vA1}, 14, v{vA0}
    v_lshrrev_b32 v{vA1}, 5, v{vLane}
    v_lshl_add_u32 v{vA2}, v{vA1}, 14, v{vBG}
    """)
    a.mask("0xffff", "0")
    a.spin("hB", lambda: a(f"global_load_dwordx4 {vr(HG,4)}, v{vA0}, {sp(sWQ)} sc1"), [HG], ACC, sleep=o.get("hsleep", 2))
    a.full()
    a.stamp(11)
    def issB():
        for i in range(8):
            a(f"global_load_dwordx4 {vr(GA+4*i,4)}, v{vA2}, {sp(sWQ)} offset:{i*512} sc1")
    def shadowB():
        if w2p == 3: load_w2()
        a.perm_unit(RAWB, T)
    sweep("gB", issB, [GA+4*i for i in range(8)], shadowB, o.get("bsleep", 2))
    a.stamp(12)
    if w2p == 4: load_w2()
    for k in (0, 8, 16, 24):
        a(f"v_pk_add_f32 {vr(GA+k,2)}, {vr(GA+k,2)}, {vr(GA+k+4,2)}\n v_pk_add_f32 {vr(GA+k+2,2)}, {vr(GA+k+2,2)}, {vr(GA+k+6,2)}")
    for k in (0, 16):
        a(f"v_pk_add_f32 {vr(GA+k,2)}, {vr(GA+k,2)}, {vr(GA+k+8,2)}\n v_pk_add_f32 {vr(GA+k+2,2)}, {vr(GA+k+2,2)}, {vr(GA+k+10,2)}")
    a(f"v_pk_add_f32 {vr(GA,2)}, {vr(GA,2)}, {vr(GA+16,2)}\n v_pk_add_f32 {vr(GA+2,2)}, {vr(GA+2,2)}, {vr(GA+18,2)}")
    exchange(L_XA_B)
    XF = GA + 8
    for q in range(4):
        a(f"v_lshlrev_b32 v{XF+2*q}, 16, v{XR+q}\n v_and_b32 v{XF+2*q+1}, 0xffff0000, v{XR+q}")
    for e in range(8):
        a(f"v_add_f32 v{XF+e}, v{XF+e}, v{vals[e]}")
    HP_ = GA + 40
    for q in range(4):
        a(f"v_cvt_pk_bf16_f32 v{HP_+q}, v{XF+2*q}, v{XF+2*q+1}")
    a(f"v_mov_b32 v{ACC}, 0x3f803f80\n s_nop 0")
    for q in range(4):
        a(f"v_cndmask_b32 v{AOP+q}, v{HP_+q}, v{ACC}, {sp(sM1)}")
    a("s_nop 1")
    a.mfma8(D, AOP, T)
    XF = GA + 32
    for q in range(4):
        a(f"v_lshlrev_b32 v{XF+2*q}, 16, v{HP_+q}\n v_and_b32 v{XF+2*q+1}, 0xffff0000, v{HP_+q}")
    SS, QQ = GA+44, GA+45
    a(f"v_add_f32 v{SS}, v{XF}, v{XF+1}\n v_mul_f32 v{QQ}, v{XF}, v{XF}\n v_fmac_f32 v{QQ}, v{XF+1}, v{XF+1}")
    for e in range(2, 8):
        a(f"v_add_f32 v{SS}, v{SS}, v{XF+e}\n v_fmac_f32 v{QQ}, v{XF+e}, v{XF+e}")
    a.allreduce_g([SS, QQ], [GA+46, GA+47])
    a.select(X, D, 0)
    a(f"""
    s_lshl_b32 s{sTMP}, s{u}, 10
    v_lshl_add_u32 v{vA0}, v{vLane}, 4, s{sTMP}
    ds_write_b128 v{vA0}, {vr(X,4)} offset:{L_REDB}
    """)
    Y = AOP
    a.select(Y, D, 1)
    a(f"ds_write_b128 v{vA0}, {vr(Y,4)} offset:{L_REDC}")
    a(f"""
    s_lshl_b32 s{sTMP}, s{u}, 4
    v_lshl_add_u32 v{vA1}, v{vB}, 3, s{sTMP}""")
    a.mask("0x11", "0")
    a(f"ds_write_b64 v{vA1}, {vr(SS,2)} offset:{L_REDS}")
    a.full()
    a.gbarrier()
    a(f"""
    s_cmp_eq_u32 s{u}, 1
    s_cbranch_scc1 L_b_cs
    s_cmp_eq_u32 s{u}, 2
    s_cbranch_scc1 L_b_st
    s_cmp_eq_u32 s{u}, 3
    s_cbranch_scc1 L_b_done
    v_lshlrev_b32 v{vA0}, 4, v{vLane}
    """)
    R2 = GA + 16
    for w in range(4):
        a(f"ds_read_b128 {vr(R2+4*w,4)}, v{vA0} offset:{L_REDB + w*1024}")
    a(f"""
    s_lshl_b32 s{sTMP}, s{sHQ}, 4             ; fc*2*8
    s_add_u32 s{sTMP}, s{sTMP}, s{sKS}
    s_lshl_b32 s{sTMP}, s{sTMP}, 9
    s_add_u32 s{sTMP}, s{sTMP}, {WS_FPP}
    v_and_b32 v{vA0}, 1, v{vG}
    v_lshl_add_u32 v{vA0}, v{vA0}, 12, v{vPubH}
    v_add_u32 v{vA0}, s{sTMP}, v{vA0}
    s_waitcnt lgkmcnt(0)""")
    reduce4(a, R2, ACC, vN)
    a.guard(lambda: a(f"global_store_dwordx4 v{vA0}, {vr(ACC,4)}, {sp(sWS)} sc1"))
    a(f"""
    s_branch L_b_done
    L_b_cs:
    v_lshlrev_b32 v{vA0}, 4, v{vLane}
    """)
    for w in range(4):
        a(f"ds_read_b128 {vr(R2+4*w,4)}, v{vA0} offset:{L_REDC + w*1024}")
    a(f"""
    s_lshl_b32 s{sTMP}, s{sHQ}, 3
    s_add_u32 s{sTMP}, s{sTMP}, s{sKS}
    s_lshl_b32 s{sTMP}, s{sTMP}, 9
    s_add_u32 s{sTMP}, s{sTMP}, {WS_FPC}
    v_add_u32 v{vA0}, s{sTMP}, v{vPubH}
    s_waitcnt lgkmcnt(0)""")
    reduce4(a, R2, ACC, vN)
    a.mask("0x0000ffff", "0x0000ffff")
    a.guard(lambda: a(f"global_store_dwordx4 v{vA0}, {vr(ACC,4)}, {sp(sWS)} sc1"))
    a.full()
    a(f"""
    s_branch L_b_done
    L_b_st:
    v_and_b32 v{vA0}, 7, v{vLane}
    v_lshlrev_b32 v{vA0}, 3, v{vA0}
    ds_read_b64 {vr(R2,2)}, v{vA0} offset:{L_REDS}
    s_lshl_b32 s{sTMP}, s{sHQ}, 3
    s_add_u32 s{sTMP}, s{sTMP}, s{sKS}
    s_lshl_b32 s{sTMP}, s{sTMP}, 4
    s_add_u32 s{sTMP}, s{sTMP}, {WS_FPS}
    v_mov_b32 v{vA0}, s{sTMP}
    s_waitcnt lgkmcnt(0)
    """)
    for ctrl in ("quad_perm:[2,3,0,1]", "row_ror:4"):
        a("s_nop 1")
        for r in (R2, R2+1):
            a(f"v_add_f32_dpp v{r}, v{r}, v{r} {ctrl} row_mask:0xf bank_mask:0xf")
    a(f"""
    s_nop 1
    v_mov_b32_dpp v{R2+2}, v{R2} quad_perm:[1,1,1,1] row_mask:0xf bank_mask:0xf
    v_mov_b32_dpp v{R2+3}, v{R2+1} quad_perm:[1,1,1,1] row_mask:0xf bank_mask:0xf
    """)
    a.tag(ACC, R2, vN)
    a.mask("1", "0")
    a.guard(lambda: a(f"global_store_dwordx4 v{vA0}, {vr(ACC,4)}, {sp(sWS)} sc1"))
    a.full()
    a("L_b_done:")
    a(f"""
    s_cmp_lg_u32 s{sHQ}, 0
    s_cbranch_scc1 L_nohp""")
    a.tag(GA+4, XF, vN)
    a.tag(GA+8, XF+4, vN)
    a(f"""
    s_lshl_b32 s{sTMP}, s{sKS}, 5
    s_lshl_b32 s{sTMP2}, s{u}, 3
    s_add_u32 s{sTMP}, s{sTMP}, s{sTMP2}
    s_lshl_b32 s{sTMP}, s{sTMP}, 4
    s_add_u32 s{sTMP}, s{sTMP}, {WS_HP}
    v_lshlrev_b32 v{vA1}, 4, v{vG}
    v_lshl_add_u32 v{vA1}, v{vB}, 12, v{vA1}
    v_add_u32 v{vA1}, s{sTMP}, v{vA1}""")
    a.mask("0x00110011", "0x00110011")
    a.guard(lambda: a(f"""global_store_dwordx4 v{vA1}, {vr(GA+4,4)}, {sp(sWS)} sc1
    global_store_dwordx4 v{vA1}, {vr(GA+8,4)}, {sp(sWS)} offset:64 sc1"""))
    a.full()
    a("""L_nohp:
    s_branch L_skipB
    L_skipB0:""")
    if w2p in (3, 4): load_w2()
    a("L_skipB:")
    a.stamp(13)
    a(f"""
    s_cmp_ge_u32 s{sFC2}, 28
    s_cbranch_scc1 L_skipC1
    s_lshl_b32 s{sTMP}, s{sFC2}, 7
    s_add_u32 s{sTMP}, s{sTMP}, {WS_FPS}
    v_and_b32 v{vA0}, 7, v{vLane}
    v_lshl_add_u32 v{vA0}, v{vA0}, 4, s{sTMP}
    s_lshl_b32 s{sTMP}, s{sFC2}, 13           ; fc*2*8*512
    s_lshl_b32 s{sTMP2}, s{u}, 10             ; 2u*512
    s_add_u32 s{sTMP}, s{sTMP}, s{sTMP2}
    s_add_u32 s{sTMP}, s{sTMP}, {WS_FPP}
    s_add_u32 s{sWQ}, s{sWS}, s{sTMP}
    s_addc_u32 s{sWQ+1}, s{sWS+1}, 0
    s_lshl_b32 s{sTMP}, s{sFC2}, 12           ; fc*8*512
    s_add_u32 s{sTMP}, s{sTMP}, s{sTMP2}
    s_add_u32 s{sTMP}, s{sTMP}, {WS_FPC}
    s_add_u32 s{sB1}, s{sWS}, s{sTMP}
    s_addc_u32 s{sB1+1}, s{sWS+1}, 0
    v_lshrrev_b32 v{vA1}, 5, v{vLane}
    v_lshl_add_u32 v{vA2}, v{vA1}, 12, v{vBG}   ; b*8*512 + gi*16
    """)
    a.spin("hC", lambda: a(f"global_load_dwordx4 {vr(HG,4)}, v{vA0}, {sp(sWS)} sc1"), [HG], ACC, sleep=o.get("hsleep", 2))
    a.stamp(14)
    MEANB, RS0, RS1 = GA+40, GA+41, GA+42
    def issC():
        for k in range(2):
            a(f"global_load_dwordx4 {vr(GA+4*k,4)}, v{vA2}, {sp(sWQ)} offset:{k*512} sc1")
        for k in range(2):
            a(f"global_load_dwordx4 {vr(GA+8+4*k,4)}, v{vBG}, {sp(sB1)} offset:{k*512} sc1")
    def shadowC():
        hv = [HG, HG+1, HG+2, HG+3]
        for ctrl in ("quad_perm:[1,0,3,2]", "quad_perm:[2,3,0,1]", "row_ror:4"):
            for r in hv:
                a(f"v_add_f32_dpp v{r}, v{r}, v{r} {ctrl} row_mask:0xf bank_mask:0xf")
        a(f"""
        v_mul_f32 v{HG}, 0x3a800000, v{HG}
        v_mul_f32 v{HG+2}, 0x3a800000, v{HG+2}
        v_mul_f32 v{HG+1}, 0x3a800000, v{HG+1}
        v_mul_f32 v{HG+3}, 0x3a800000, v{HG+3}
        v_fma_f32 v{HG+1}, -v{HG}, v{HG}, v{HG+1}
        v_fma_f32 v{HG+3}, -v{HG+2}, v{HG+2}, v{HG+3}
        v_max_f32 v{HG+1}, 0, v{HG+1}
        v_max_f32 v{HG+3}, 0, v{HG+3}
        v_add_f32 v{HG+1}, 0x3727c5ac, v{HG+1}
        v_add_f32 v{HG+3}, 0x3727c5ac, v{HG+3}
        v_rsq_f32 v{RS0}, v{HG+1}
        v_rsq_f32 v{RS1}, v{HG+3}
        v_cndmask_b32 v{MEANB}, v{HG}, v{HG+2}, {sp(sMHI)}
        v_cndmask_b32 v{RS0}, v{RS0}, v{RS1}, {sp(sMB)}
        """)
        a.perm_unit(RAWA, T)
    sweep("gC", issC, [GA+4*i for i in range(4)], shadowC, o.get("csleep", 2))
    a.stamp(15)
    for t in range(4):
        a(f"v_add_f32 v{GA+t}, v{GA+t}, v{GA+4+t}\n v_add_f32 v{GA+8+t}, v{GA+8+t}, v{GA+12+t}")
    for t in range(4):
        a(f"v_fma_f32 v{GA+t}, -v{MEANB}, v{GA+8+t}, v{GA+t}")
    exchange(L_XA_C)
    for e in range(8):
        a(f"v_mul_f32 v{vals[e]}, v{vals[e]}, v{RS0}")
    E = GA + 8
    for e in range(8):
        a(f"v_mul_f32 v{E+e}, 0xbfb8aa3b, v{vals[e]}      ; -log2e * x")
    for e in range(8):
        a(f"v_exp_f32 v{E+e}, v{E+e}")
    for e in range(8):
        a(f"v_add_f32 v{E+e}, 1.0, v{E+e}")
    for e in range(8):
        a(f"v_rcp_f32 v{E+e}, v{E+e}")
    for e in range(8):
        a(f"v_mul_f32 v{vals[e]}, v{vals[e]}, v{E+e}")
    for q in range(4):
        a(f"v_cvt_pk_bf16_f32 v{AOP+q}, v{vals[2*q]}, v{vals[2*q+1]}")
    a("s_nop 1")
    a.mfma8(D, AOP, T)
    a("s_nop 7")
    a.select(X, D, 0)
    red_pub("c", L_REDD, lambda: a(f"""
        s_mul_i32 s{sTMP}, s{sCC}, 56          ; cc*2*28
        s_add_u32 s{sTMP}, s{sTMP}, s{sFC2}
        s_lshl_b32 s{sTMP}, s{sTMP}, 9
        s_add_u32 s{sTMP}, s{sTMP}, {WS_O2}
        v_and_b32 v{vA0}, 1, v{vG}
        v_mul_u32_u24 v{vA0}, {28*512}, v{vA0}
        v_add3_u32 v{vA0}, v{vA0}, v{vPubH}, s{sTMP}"""),
        lambda: a(f"global_store_dwordx4 v{vA0}, {vr(X,4)}, {sp(sWS)} sc1"))
    a("L_skipC1:")
    a.stamp(16)
    a(f"""
    s_cmp_lg_u32 s{u}, 0
    s_cbranch_scc1 L_G_done
    s_lshr_b32 s{sB0}, s2, 7                   ; b2
    s_bfe_u32 s{sB0+1}, s2, 0x30004            ; cc2
    s_and_b32 s{sB1}, s2, 15
    s_lshl_b32 s{sB1}, s{sB1}, 5               ; gi0*16
    s_lshl_b32 s{sTMP}, s{sB0+1}, 1
    s_add_u32 s{sTMP}, s{sTMP}, s{sB0}
    s_mul_i32 s{sTMP}, s{sTMP}, {28*512}
    s_add_u32 s{sTMP}, s{sTMP}, s{sB1}
    s_add_u32 s{sTMP}, s{sTMP}, {WS_O2}
    v_lshrrev_b32 v{vA0}, 1, v{vLane}
    v_lshlrev_b32 v{vA0}, 9, v{vA0}
    v_and_b32 v{vA1}, 1, v{vLane}
    v_lshl_add_u32 v{vA0}, v{vA1}, 4, v{vA0}
    v_add_u32 v{vA0}, s{sTMP}, v{vA0}
    s_lshl_b32 s{sTMP}, s{sB0}, 12             ; b*256*16
    s_lshl_b32 s{sTMP2}, s{sB0+1}, 9           ; cc*32*16
    s_add_u32 s{sTMP}, s{sTMP}, s{sTMP2}
    s_add_u32 s{sTMP}, s{sTMP}, s{sB1}
    s_add_u32 s{sTMP}, s{sTMP}, {WS_HP}
    v_lshl_add_u32 v{vA2}, v{vA1}, 4, s{sTMP}
    v_cmp_le_u32 vcc, 56, v{vLane}
    v_mov_b32 v{GA}, 0
    v_mov_b32 v{GA+1}, 0
    v_cndmask_b32 v{vA0}, v{vA0}, v{vA2}, vcc
    v_mov_b32 v{GA+2}, 0
    v_mov_b32 v{GA+3}, 0
    """)
    a.mask("-1", "0x03ffffff")
    def iss():
        a(f"global_load_dwordx4 {vr(GA,4)}, v{vA0}, {sp(sWS)} sc1")
    a.spin("gd", iss, [GA], ACC, sleep=o.get("dsleep", 1))
    a.full()
    a.stamp(17)
    fv = [GA+i for i in range(4)]
    for ctrl in ("quad_perm:[2,3,0,1]", "row_ror:4", "row_ror:8"):
        a("s_nop 0")
        for r in fv:
            a(f"v_add_f32_dpp v{r}, v{r}, v{r} {ctrl} row_mask:0xf bank_mask:0xf")
    a.allreduce_g(fv, [GA+4+i for i in range(4)])
    a(f"""
    v_cvt_pk_bf16_f32 v{GA+8}, v{GA}, v{GA+1}
    v_cvt_pk_bf16_f32 v{GA+9}, v{GA+2}, v{GA+3}
    s_lshl_b32 s{sTMP}, s2, 4
    v_lshl_add_u32 v{vA0}, v{vA1}, 3, s{sTMP}
    """)
    a.mask("3", "0")
    a.guard(lambda: a(f"global_store_dwordx2 v{vA0}, {vr(GA+8,2)}, {sp(sOUT)}"))
    a(f"""
    s_cmp_lg_u32 s2, 0
    s_cbranch_scc1 L_G_done
    """)
    a.full()
    a(f"v_mov_b32 v{vA0}, 0")
    a.mask("1", "0")
    a.guard(lambda: a(f"global_store_dword v{vA0}, v{vN}, {sp(sWS)} sc1"))
    a("L_G_done:")
    if o.get("dry", 1):
        a("s_cbranch_execz L_dry_done")
    a.stamp(18)
    a.dump_stamps(19, 7)
    a("s_endpgm")

def gen_A(a):
    o = a.o
    vLane, vG, vM, vN = 0, 2, 3, 4
    vKs = 5
    vV = 9
    vT0, vT1, vT2 = 10, 11, 12
    MX, LS = 13, 14
    VR = 16
    QO = 80
    KS = 96
    S = 128
    P = 144
    TB = 80
    ACCD = 112
    sA = sU
    sP, sS = 52, 53
    a(f"""
    L_A:
    ; ---------------- A waves ----------------
    s_setprio 2
    s_sub_u32 s{sA}, s{sWAVE}, 4
    s_and_b32 s{sP}, s2, 7
    s_lshr_b32 s{sS}, s2, 3
    s_lshl_b32 s{sTMP}, s{sP}, 22
    s_lshl_b32 s{sTMP2}, s{sS}, 17
    s_add_u32 s{sTMP}, s{sTMP}, s{sTMP2}
    s_lshl_b32 s{sTMP2}, s{sA}, 14
    s_add_u32 s{sTMP}, s{sTMP}, s{sTMP2}
    """)
    for r in range(4):
        a(f"v_add_u32 v{vT0}, {4*r}, v{vG}\n v_xor_b32 v{vT0}, v{vT0}, v{vM}\n v_lshlrev_b32 v{vT0}, 4, v{vT0}\n v_lshl_add_u32 v{vKs+r}, v{vG}, 8, v{vT0}")
    a(f"""
    v_lshlrev_b32 v{vT0}, 4, v{vM}
    v_lshl_add_u32 v{vV}, v{vG}, 10, v{vT0}
    v_mov_b32 v{vT1}, 0
    s_mov_b32 s{sM8}, 0xff00ff00
    s_mov_b32 s{sM8+1}, 0xff00ff00
    s_waitcnt lgkmcnt(0)
    s_add_u32 s{sB0}, s{sK}, s{sTMP}
    s_addc_u32 s{sB0+1}, s{sK+1}, 0
    s_add_u32 s{sB1}, s{sV}, s{sTMP}
    s_addc_u32 s{sB1+1}, s{sV+1}, 0
    s_add_u32 m0, s{sTMP2}, {L_K}
    s_barrier       ; B0
    global_load_dword v{vN}, v{vT1}, {sp(sWS)} sc1
    """)
    KW = o.get("kwin", 3)
    for i in range(16):
        r = i % 4
        if KW and i >= KW: a(f"s_waitcnt vmcnt({KW-1})")
        a(f"global_load_lds_dwordx4 v{vKs+r}, {sp(sB0)} offset:{r*1024} nt")
        if r == 3 and i < 15:
            a(f"s_add_u32 s{sB0}, s{sB0}, 4096\n s_addc_u32 s{sB0+1}, s{sB0+1}, 0\n s_add_u32 m0, m0, 4096")
    a.stamp(1)
    a(f"s_setprio {o.get('vprio', 1)}")
    VW = o.get("vwin", 0)
    for uu in range(2):
        for i in range(8):
            reg = VR + (uu*8+i)*4
            if VW: a(f"s_waitcnt vmcnt({VW-1})")
            a(f"global_load_dwordx4 {vr(reg,4)}, v{vV}, {sp(sB1)} offset:{(i%4)*256} nt")
            if i % 4 == 3 and not (uu == 1 and i == 7):
                a(f"s_add_u32 s{sB1}, s{sB1}, 4096\n s_addc_u32 s{sB1+1}, s{sB1+1}, 0")
    a.stamp(2)
    a(f"""
    v_mov_b32 v{vT1}, 0
    v_mov_b32 v{vT2}, 1
    s_mov_b64 exec, 1
    ds_add_u32 v{vT1}, v{vT2} offset:{L_CNT+4}
    s_mov_b64 exec, -1""")
    a(f"s_lshl_b32 s{sTMP}, s{sA}, 14\n s_add_u32 s{sTMP}, s{sTMP}, {L_K}")
    for s in range(4):
        a(f"v_add_u32 v{vT0}, {4*s}, v{vG}\n v_xor_b32 v{vT0}, v{vT0}, v{vM}\n v_lshlrev_b32 v{vT0}, 4, v{vT0}\n v_lshl_add_u32 v{vT0}, v{vM}, 8, v{vT0}\n v_add_u32 v{vKs+s}, s{sTMP}, v{vT0}")
    a(f"""
    v_mov_b32 v{vT1}, 0
    s_mov_b32 s{sSPIN}, 0
    L_A_qwait:
    ds_read_b32 v{vT2}, v{vT1} offset:{L_CNT}
    s_waitcnt lgkmcnt(0)
    v_readfirstlane_b32 s{sTMP}, v{vT2}
    s_cmp_ge_u32 s{sTMP}, 4
    s_cbranch_scc1 L_A_qok
    s_add_u32 s{sSPIN}, s{sSPIN}, 1
    s_sleep 4
    s_cmp_lt_u32 s{sSPIN}, 200000
    s_cbranch_scc1 L_A_qwait
    s_branch L_abort
    L_A_qok:
    v_and_b32 v{vT0}, 7, v{vM}
    v_mul_u32_u24 v{vT0}, 272, v{vT0}
    v_lshl_add_u32 v{vT0}, v{vG}, 4, v{vT0}
    """)
    a.stamp(3)
    for s in range(4):
        a(f"ds_read_b128 {vr(QO+4*s,4)}, v{vT0} offset:{L_Q + s*64}")
    a("s_waitcnt vmcnt(16)")
    a.nonce_from(vN)
    def kread(t, buf):
        for s in range(4):
            a(f"ds_read_b128 {vr(KS+16*buf+4*s,4)}, v{vKs+s} offset:{t*4096}")
    kread(0, 0); kread(1, 1)
    for t in range(4):
        buf = t % 2
        a("s_waitcnt lgkmcnt(4)" if t < 3 else "s_waitcnt lgkmcnt(0)")
        for s in range(4):
            c = "0" if s == 0 else vr(S+4*t, 4)
            a(f"v_mfma_f32_16x16x32_bf16 {vr(S+4*t,4)}, {vr(KS+16*buf+4*s,4)}, {vr(QO+4*s,4)}, {c}")
        if t + 2 < 4:
            kread(t + 2, buf)
    a("s_nop 7")
    a(f"v_max3_f32 v{MX}, v{S}, v{S+1}, v{S+2}")
    for k in range(3, 15, 2):
        a(f"v_max3_f32 v{MX}, v{MX}, v{S+k}, v{S+k+1}")
    a(f"v_max_f32 v{MX}, v{MX}, v{S+15}")
    a.allreduce_g([MX], [vT2], "v_max_f32")
    a(f"""
    s_mov_b32 s{sC}, 0x3e0293ee                   ; 128^-0.5 * log2(e)
    v_mul_f32 v{MX}, s{sC}, v{MX}""")
    for k in range(16):
        a(f"v_fma_f32 v{S+k}, v{S+k}, s{sC}, -v{MX}")
    for k in range(16):
        a(f"v_exp_f32 v{S+k}, v{S+k}")
    a("s_nop 0")
    for uu in range(2):
        for q in range(4):
            k = 8*uu + 2*q
            a(f"v_cvt_pk_bf16_f32 v{P+4*uu+q}, v{S+k}, v{S+k+1}")
    a(f"v_add_f32 v{LS}, v{S}, v{S+1}")
    for k in range(2, 16):
        a(f"v_add_f32 v{LS}, v{LS}, v{S+k}")
    a.allreduce_g([LS], [KS])
    a(f"""
    v_and_b32 v{vT0}, 7, v{vM}
    v_lshlrev_b32 v{vT0}, 5, v{vT0}             ; head*32
    s_lshl_b32 s{sTMP}, s{sA}, 2
    v_add_u32 v{vT0}, s{sTMP}, v{vT0}            ; head*32 + a*4
    s_mov_b64 exec, 0xff
    ds_write_b32 v{vT0}, v{MX} offset:{L_MX}
    ds_write_b32 v{vT0}, v{LS} offset:{L_LS}
    s_mov_b64 exec, -1
    """)
    a.stamp(4)
    for uu in range(2):
        a(f"s_waitcnt vmcnt({8 if uu == 0 else 0})")
        if uu == 1: a.stamp(5)
        raw = VR + 32*uu
        for t in range(4):
            tb = TB + 8*t
            for par, sel in ((0, sPLO), (1, sPHI)):
                for q in range(4):
                    a(f"v_perm_b32 v{tb+4*par+q}, v{raw+4*(2*q+1)+t}, v{raw+4*(2*q)+t}, s{sel}")
            if t > 0:
                for par in range(2):
                    j = 2*(t-1) + par
                    c = "0" if uu == 0 else vr(ACCD+4*j, 4)
                    a(f"v_mfma_f32_16x16x32_bf16 {vr(ACCD+4*j,4)}, {vr(TB+8*(t-1)+4*par,4)}, {vr(P+4*uu,4)}, {c}")
        a("s_nop 1")
        for par in range(2):
            j = 6 + par
            c = "0" if uu == 0 else vr(ACCD+4*j, 4)
            a(f"v_mfma_f32_16x16x32_bf16 {vr(ACCD+4*j,4)}, {vr(TB+24+4*par,4)}, {vr(P+4*uu,4)}, {c}")
    a(f"""
    s_lshl_b32 s{sTMP}, s{sA}, 14
    s_add_u32 s{sTMP}, s{sTMP}, {L_OB}
    v_mul_u32_u24 v{vT0}, 17, v{vG}
    v_add_u32 v{vT0}, v{vT0}, v{vM}
    v_lshl_add_u32 v{vT0}, v{vT0}, 4, s{sTMP}
    v_bfe_u32 v{vT1}, v{vLane}, 3, 2            ; g'
    v_and_b32 v{vKs}, 3, v{vLane}               ; j'&3
    v_bfe_u32 v{vKs+1}, v{vLane}, 2, 1          ; j'>>2
    v_lshl_add_u32 v{vKs}, v{vKs}, 1, v{vKs+1}  ; j
    v_and_b32 v{vKs+1}, 3, v{vKs}               ; jj
    v_lshrrev_b32 v{vKs}, 2, v{vKs}             ; nh
    v_lshl_add_u32 v{vT1}, v{vKs+1}, 2, v{vT1}  ; jj*4+g'
    v_mul_u32_u24 v{vT1}, 17, v{vT1}
    v_lshl_add_u32 v{vT1}, v{vKs}, 3, v{vT1}
    v_add_u32 v{vT1}, s{sA}, v{vT1}
    v_lshlrev_b32 v{vT1}, 4, v{vT1}
    v_lshrrev_b32 v{vKs}, 5, v{vLane}           ; ph
    v_lshl_add_u32 v{vT1}, v{vKs}, 16, v{vT1}   ; + ph*4*16384
    v_add_u32 v{vT1}, {L_OB}, v{vT1}
    s_lshl_b32 s{sTMP}, s{sA}, 5
    v_lshl_add_u32 v{vKs+1}, v{vKs}, 4, s{sTMP}
    v_xor_b32 v{vKs+2}, 16, v{vKs+1}
    """)
    XB = TB
    for jj in range(4):
        for r in range(4):
            a(f"v_cndmask_b32 v{XB+4*jj+r}, v{ACCD+4*jj+r}, v{ACCD+4*(jj+4)+r}, {sp(sM8)}")
    for jj in range(4):
        a(f"ds_write_b128 v{vT0}, {vr(XB+4*jj,4)} offset:{jj*1088}")
    a(f"""
    s_lshl_b32 s{sTMP}, s{sP}, 3
    s_add_u32 s{sTMP}, s{sTMP}, s{sA}
    s_lshl_b32 s{sTMP}, s{sTMP}, 5
    s_add_u32 s{sTMP}, s{sTMP}, s{sS}            ; (p*8+head)*32 + s
    s_lshl_b32 s{sTMP2}, s{sTMP}, 9
    s_add_u32 s{sTMP2}, s{sTMP2}, {WS_OP}
    v_and_b32 v{vT0}, 31, v{vLane}
    v_lshl_add_u32 v{vV}, v{vT0}, 4, s{sTMP2}
    s_lshl_b32 s{sTMP}, s{sTMP}, 4
    s_add_u32 s{sTMP}, s{sTMP}, {WS_ML}
    v_mov_b32 v{vKs+3}, s{sTMP}
    s_setprio 3
    s_waitcnt lgkmcnt(0)
    s_barrier     ; B3
    """)
    a.stamp(6)
    R = KS
    for w in range(4):
        a(f"ds_read_b128 {vr(R+4*w,4)}, v{vT1} offset:{w*OB_STRIDE}")
    MO, MT, LO_ = R+16, R+20, R+24
    a(f"ds_read_b128 {vr(MO,4)}, v{vKs+1} offset:{L_MX}")
    a(f"ds_read_b128 {vr(MT,4)}, v{vKs+2} offset:{L_MX}")
    a(f"ds_read_b128 {vr(LO_,4)}, v{vKs+1} offset:{L_LS}")
    a(f"""
    s_waitcnt lgkmcnt(1)
    v_max3_f32 v{MX}, v{MO}, v{MO+1}, v{MO+2}
    v_max3_f32 v{MT}, v{MT}, v{MT+1}, v{MT+2}
    v_max3_f32 v{MX}, v{MX}, v{MO+3}, v{MT+3}
    v_max_f32 v{MX}, v{MX}, v{MT}
    v_perm_b32 v{MX}, v{MX}, v{vN}, s{sSEL[0]}
    """)
    for w in range(4):
        a(f"v_sub_f32 v{MO+w}, v{MO+w}, v{MX}")
    for w in range(4):
        a(f"v_exp_f32 v{MO+w}, v{MO+w}")
    a("s_waitcnt lgkmcnt(0)")
    for t in range(4):
        a(f"v_mul_f32 v{R+t}, v{R+t}, v{MO}")
    a(f"v_mul_f32 v{LS}, v{LO_}, v{MO}")
    for w in range(1, 4):
        for t in range(4):
            a(f"v_fmac_f32 v{R+t}, v{R+4*w+t}, v{MO+w}")
        a(f"v_fmac_f32 v{LS}, v{LO_+w}, v{MO+w}")
    a.allreduce_g([R, R+1, R+2, R+3, LS], [R+4, R+5, R+6, R+7, R+8], steps=("v_permlane32_swap_b32",))
    a.tag(R+8, R, vN)
    a(f"""
    s_mov_b32 exec_hi, 0
    global_store_dwordx4 v{vV}, {vr(R+8,4)}, {sp(sWS)} sc1
    s_mov_b64 exec, -1
    v_mov_b32 v{R+12}, v{MX}
    v_mov_b32 v{R+13}, v{LS}
    v_mov_b32 v{R+14}, v{MX}
    v_mov_b32 v{R+15}, v{MX}
    """)
    a.tag(R+16, R+12, vN)
    a(f"""
    s_mov_b64 exec, 1
    global_store_dwordx4 v{vKs+3}, {vr(R+16,4)}, {sp(sWS)} sc1
    """)
    a.stamp(7)
    if o.get("b4", 1): a("s_barrier     ; B4")
    a.dump_stamps(8, 10)
    a("s_endpgm")

if __name__ == "__main__":
    out = sys.argv[1]
    stamps = len(sys.argv) > 2 and sys.argv[2] == "1"
    opts = {}
    for kv in sys.argv[3:]:
        k, v = kv.split("="); opts[k] = int(v)
    open(out, "w").write(build(stamps, **opts))
```

```python
import sys
from gen_common import *

WS_EPOCH = 0
WS_QP   = 0x010000
WS_ML   = 0x080000
WS_HP   = 0x090000
WS_OP   = 0x100000
WS_AP   = 0x200000
WS_FPP  = 0x240000
WS_FPC  = 0x280000
WS_FPS  = 0x2A0000
WS_O2   = 0x2C0000
WS_STAMP = 0x800000
L_Q   = 0
L_MX  = 2304
L_LS  = L_MX + 256
L_REDQ = L_LS + 256
L_CNT = 6912
L_K   = 8192
L_OB  = L_K
OB_STRIDE = 16384
LDS_BYTES = L_K + 131072
L_XA_A = 12544
L_XA_B = 16896
L_FAC  = 21248
L_REDS = 22272
L_XA_C = 28928
L_REDA = 33280
L_REDB = 45312
L_REDC = 49408
L_REDD = 61696

SPIN_LIMIT = 4000

sX, sK, sV, sWQ, sWO, sW1, sW2, sOUT, sDBG, sWS = 4, 6, 8, 10, 12, 16, 18, 20, 22, 24
sFULL = 14
sWAVE, sU = 26, 27
sNONCE = 28
sT = [29, 30, 31, 32]
sSEL = [33, 34, 35, 36]
sPLO, sPHI = 37, 38
sC = 39
sMHI = 40
sM8 = 42
sB0 = 44
sB1 = 46
sMB = 48
sM1 = 50
sR = list(range(52, 60))
sSPIN = 60
sTMP, sTMP2 = 61, 62
sDRY = 63
sSTAMP = 64

def sp(r): return f"s[{r}:{r+1}]"
def vr(r, n): return f"v[{r}:{r+n-1}]" if n > 1 else f"v{r}"

class Gen(Asm):
    def __init__(self, stamps=False, opts=None):
        super().__init__()
        self.stamps = stamps
        self.o = opts or {}
        self.uid = 0
    def lab(self, base):
        self.uid += 1
        return f"L_{base}_{self.uid}"
    def stamp(self, idx):
        if self.stamps:
            r = sSTAMP + 2 * idx
            self(f"s_memrealtime {sp(r)}")
    def dump_stamps(self, n, tmpv):
        if not self.stamps: return
        if self.o.get("dbgst", 0) == 2:
            if n <= 10: return
            L = self.lab("nodbg")
            self(f"s_cmp_lg_u32 s2, {self.o.get('dbgwg', 0)}\n s_cbranch_scc1 {L}\n s_cmp_lg_u32 s{sWAVE}, 0\n s_cbranch_scc1 {L}")
            self(f"s_waitcnt lgkmcnt(0)\n s_mov_b64 exec, 1\n v_mov_b32 v{tmpv}, 0")
            for k, i in enumerate((1, 2, 3, 4, 5, 6, 7, 8, 9, 10, 11, 12, 13, 15, 16, 18)):
                self(f"s_sub_u32 s{sTMP}, s{sSTAMP+2*i}, s{sSTAMP}\n v_mov_b32 v{tmpv+1}, s{sTMP}\n global_store_dword v{tmpv}, v{tmpv+1}, {sp(sDBG)} offset:{4*k}\n s_nop 1")
            self.label(L)
            return
        if self.o.get("dbgst", 0):
            self("s_waitcnt lgkmcnt(0)\n s_mov_b64 exec, 1")
            self(f"s_not_b32 s{sTMP}, s{sSTAMP}")
            self(f"v_mov_b32 v{tmpv}, 0\n v_mov_b32 v{tmpv+1}, s{sTMP}")
            off = 0 if n > 10 else 32
            self(f"global_atomic_umax v{tmpv}, v{tmpv+1}, {sp(sDBG)} offset:{off}")
            sel = (2, 5, 7, 10, 13, 16, 18) if n > 10 else (1, 2, 3, 5, 6, 7)
            for k, i in enumerate(sel):
                self(f"s_nop 1\n v_mov_b32 v{tmpv+1}, s{sSTAMP+2*i}\n global_atomic_umax v{tmpv}, v{tmpv+1}, {sp(sDBG)} offset:{off+4+4*k}")
            return
        self(f"""s_waitcnt lgkmcnt(0)
        s_lshl_b32 s{sTMP}, s2, 4
        s_add_u32 s{sTMP}, s{sTMP}, s{sWAVE}
        s_lshl_b32 s{sTMP}, s{sTMP}, 7
        s_add_u32 s{sTMP}, s{sTMP}, {WS_STAMP}
        s_mov_b64 exec, 1
        v_mov_b32 v{tmpv}, s{sTMP}""")
        for i in range(n):
            self(f"v_mov_b32 v{tmpv+1}, s{sSTAMP+2*i}\n global_store_dword v{tmpv}, v{tmpv+1}, {sp(sWS)} offset:{4*i}\n s_nop 1")
    def full(self):
        self(f"s_mov_b64 exec, {sp(sFULL)}")
    def mask(self, lo, hi):
        self(f"s_and_b32 exec_lo, s{sFULL}, {lo}\n s_and_b32 exec_hi, s{sFULL+1}, {hi}")
    def guard(self, fn):
        L = self.lab("grd")
        self(f"s_cbranch_execz {L}")
        fn()
        self.label(L)
    def gbarrier(self):
        self("s_waitcnt lgkmcnt(0)")
        self.guard(lambda: self("s_barrier"))
    def dpp_allreduce_pp(self, regs, op="v_add_f32"):
        n = len(regs)
        for ctrl in ("quad_perm:[1,0,3,2]", "quad_perm:[2,3,0,1]", "row_ror:8"):
            if n < 3: self(f"s_nop {2 - n}" if n < 2 else "s_nop 0")
            for r in regs:
                self(f"{op}_dpp v{r}, v{r}, v{r} {ctrl} row_mask:0xf bank_mask:0xf")
    def allreduce_g(self, regs, tmps, op="v_add_f32", steps=("v_permlane16_swap_b32", "v_permlane32_swap_b32")):
        n = len(regs)
        for swap in steps:
            for r, t in zip(regs, tmps):
                self(f"v_mov_b32 v{t}, v{r}")
            self("s_nop 1" if n < 2 else "s_nop 0")
            for r, t in zip(regs, tmps):
                self(f"{swap} v{r}, v{t}")
            self("s_nop 1" if n < 2 else "s_nop 0")
            for r, t in zip(regs, tmps):
                self(f"{op} v{r}, v{r}, v{t}")
    def tag(self, dst, src, vN):
        for i in range(4):
            self(f"v_perm_b32 v{dst+i}, v{src+i}, v{vN}, s{sSEL[i]}")
    def check(self, grans, acc):
        for gi, gbase in enumerate(grans):
            for i in range(4):
                if gi == 0:
                    self(f"v_xor_b32 v{acc+i}, s{sT[i]}, v{gbase+i}")
                else:
                    self(f"v_bitop3_b32 v{acc+i}, v{gbase+i}, s{sT[i]}, v{acc+i} bitop3:0xbe")
        self(f"v_or3_b32 v{acc}, v{acc}, v{acc+1}, v{acc+2}")
        self(f"v_or_b32 v{acc}, v{acc}, v{acc+3}")
        self(f"v_and_b32 v{acc}, 0xff, v{acc}")
        self(f"v_cmp_ne_u32 vcc, 0, v{acc}")
    def spin(self, name, issue, grans, acc, waitstr="s_waitcnt vmcnt(0)", sleep=0, first_issued=False, after_issue=None):
        L = self.lab(name); Lok = self.lab(name + "ok"); Lw = self.lab(name + "w")
        self(f"s_mov_b32 s{sSPIN}, 0")
        if first_issued: self(f"s_branch {Lw}")
        self.label(L)
        self.guard(issue)
        self.label(Lw)
        if after_issue: after_issue()
        self.guard(lambda: self(waitstr))
        self.check(grans, acc)
        self("s_nop 0")
        self(f"s_cbranch_vccz {Lok}")
        self(f"s_add_u32 s{sSPIN}, s{sSPIN}, 1")
        if sleep: self(f"s_sleep {sleep}")
        self(f"s_cmp_lt_u32 s{sSPIN}, {SPIN_LIMIT}")
        self(f"s_cbranch_scc1 {L}")
        self("s_branch L_abort")
        self.label(Lok)
    def perm_unit(self, raw, T):
        for t in range(4):
            for par, sel in ((0, sPLO), (1, sPHI)):
                j = 2 * t + par
                for q in range(4):
                    self(f"v_perm_b32 v{T + 4*j + q}, v{raw + 4*(2*q+1) + t}, v{raw + 4*(2*q) + t}, s{sel}")
    def wload(self, dst, sbase, voff, rowfn, rs, nt=True):
        prev = 0
        for i in range(8):
            d = rowfn(i) - prev
            if d > 0:
                self(f"s_add_u32 s{sbase}, s{sbase}, {d*rs}\n s_addc_u32 s{sbase+1}, s{sbase+1}, 0")
            elif d < 0:
                self(f"s_sub_u32 s{sbase}, s{sbase}, {-d*rs}\n s_subb_u32 s{sbase+1}, s{sbase+1}, 0")
            prev = rowfn(i)
            self(f"global_load_dwordx4 {vr(dst+4*i, 4)}, v{voff}, {sp(sbase)}" + (" nt" if nt else ""))
    def mfma8(self, D, AOP, T):
        for j in range(8):
            self(f"v_mfma_f32_16x16x32_bf16 {vr(D+4*j,4)}, {vr(AOP,4)}, {vr(T+4*j,4)}, 0")
    def select(self, X, D, r):
        for jj in range(4):
            self(f"v_cndmask_b32 v{X+jj}, v{D+4*jj+r}, v{D+4*(4+jj)+r}, {sp(sMHI)}")
    def nonce_from(self, vN):
        self(f"""
        v_readfirstlane_b32 s{sNONCE}, v{vN}
        s_add_u32 s{sNONCE}, s{sNONCE}, 0x01010101
        s_or_b32 s{sNONCE}, s{sNONCE}, 1
        s_mov_b32 s{sT[0]}, s{sNONCE}
        s_lshr_b32 s{sT[1]}, s{sNONCE}, 8
        s_lshr_b32 s{sT[2]}, s{sNONCE}, 16
        s_lshr_b32 s{sT[3]}, s{sNONCE}, 24
        v_mov_b32 v{vN}, s{sNONCE}
        """)

STD_ROW = lambda i: 16 * (i // 4) + (i % 4)
WO_ROW = lambda i: 8 * (i % 4) + (i // 4)

def reduce4(a, R, X, vN):
    for t in range(4):
        a(f"v_add_f32 v{R+t}, v{R+t}, v{R+4+t}\n v_add_f32 v{R+8+t}, v{R+8+t}, v{R+12+t}")
    for t in range(4):
        a(f"v_add_f32 v{R+t}, v{R+t}, v{R+8+t}")
    a.tag(X, R, vN)

def build(stamps=False, **o):
    a = Gen(stamps, o)
    a(f"""
    s_cmp_ge_u32 s2, 256
    s_cbranch_scc1 L_end""")
    a.stamp(0)
    a(f"""
    s_load_dwordx8 s[4:11], s[0:1], 0
    s_load_dwordx2 s[12:13], s[0:1], 32
    s_load_dwordx4 s[16:19], s[0:1], 48
    s_load_dwordx4 s[20:23], s[0:1], 64
    s_load_dwordx2 s[24:25], s[0:1], 80
    v_lshrrev_b32 v1, 6, v0
    v_and_b32 v0, 63, v0
    s_mov_b32 s{sPLO}, 0x05040100
    v_readfirstlane_b32 s{sWAVE}, v1
    s_mov_b32 s{sPHI}, 0x07060302
    s_mov_b32 s{sSEL[0]}, 0x07060500
    s_mov_b32 s{sSEL[1]}, 0x07060501
    s_mov_b32 s{sSEL[2]}, 0x07060502
    s_mov_b32 s{sSEL[3]}, 0x07060503
    s_mov_b64 {sp(sFULL)}, -1
    v_lshrrev_b32 v2, 4, v0            ; g
    v_and_b32 v3, 15, v0               ; m / c
    s_cmp_ge_u32 s{sWAVE}, 4
    s_cbranch_scc1 L_A
    """)
    gen_G(a)
    gen_A(a)
    a("""
    L_abort:
    L_end:
    s_endpgm
    """)
    return kernel_wrap(a.text(), 256, 768, LDS_BYTES, 168)

def gen_G(a):
    o = a.o
    vLane, vG, vM, vB, vPP, vN = 0, 2, 3, 4, 5, 6
    vA0, vA1, vA2 = 7, 8, 9
    vPubH = 10
    vGa = 11
    XR = 12
    AOP = 16
    ACC = 20
    RAWA, RAWB, T, GA = 24, 56, 88, 120
    u = sU
    sKS, sHQ, sP, sBA, sHKV, sFC2, sH, sCC = 52, 53, 54, 55, 56, 57, 58, 59
    a(f"""
    ; ---------------- G waves ----------------
    s_setprio 3
    s_mov_b32 s{u}, s{sWAVE}
    v_bfe_u32 v{vB}, v{vM}, 2, 1
    v_and_b32 v{vPP}, 3, v{vM}
    v_lshrrev_b32 v{vA0}, 3, v{vM}
    v_lshl_or_b32 v{vPP}, v{vA0}, 2, v{vPP}
    s_and_b32 s{sKS}, s2, 7
    s_lshr_b32 s{sHQ}, s2, 3
    v_mov_b32 v{vA0}, 0
    v_lshl_add_u32 v{vA1}, v{vPP}, 2, v{vG}
    v_lshlrev_b32 v{vA1}, 4, v{vA1}
    v_lshl_add_u32 v{vA1}, v{vB}, 11, v{vA1}
    s_lshl_b32 s{sTMP}, s{sKS}, 8
    s_lshl_b32 s{sTMP2}, s{u}, 6
    s_add_u32 s{sTMP}, s{sTMP}, s{sTMP2}
    v_lshlrev_b32 v{vA2}, 3, v{vG}
    v_lshl_add_u32 v{vA2}, v{vB}, 11, v{vA2}
    v_add_u32 v{vA2}, s{sTMP}, v{vA2}
    s_lshl_b32 s{sTMP}, s{sKS}, 7
    s_lshl_b32 s{sTMP2}, s{u}, 5
    s_add_u32 s{sTMP}, s{sTMP}, s{sTMP2}
    s_lshl_b32 s{sTMP}, s{sTMP}, 13          ; *8192
    s_lshl_b32 s{sTMP2}, s{sHQ}, 8
    s_add_u32 s{sTMP}, s{sTMP}, s{sTMP2}
    v_lshlrev_b32 v{vPubH}, 15, v{vG}          ; 4g*8192
    v_lshl_add_u32 v{vPubH}, v{vM}, 4, v{vPubH}
    s_waitcnt lgkmcnt(0)
    s_add_u32 s{sB0}, s{sWQ}, s{sTMP}
    s_addc_u32 s{sB0+1}, s{sWQ+1}, 0
    global_load_dword v{vN}, v{vA0}, {sp(sWS)} sc1
    """)
    for i in range(4):
        a(f"global_load_dwordx4 {vr(GA+4*i,4)}, v{vA1}, {sp(sX)} offset:{i*512}")
    a(f"global_load_dwordx2 {vr(XR,2)}, v{vA2}, {sp(sX)}")
    a(f"global_load_dwordx2 {vr(XR+2,2)}, v{vA2}, {sp(sX)} offset:32")
    a.wload(RAWA, sB0, vPubH, STD_ROW, 8192)
    a(f"""
    s_mov_b32 s{sMHI}, 0
    s_mov_b32 s{sMHI+1}, -1
    s_mov_b32 s{sMB}, 0xf0f0f0f0
    s_mov_b32 s{sMB+1}, 0xf0f0f0f0
    s_mov_b32 s{sM1}, 0x22222222
    s_mov_b32 s{sM1+1}, 0x22222222
    v_mov_b32 v{ACC}, 0
    v_mov_b32 v{ACC+1}, 0
    v_mov_b32 v{ACC+2}, 0
    v_mov_b32 v{ACC+3}, 0
    s_lshl_b32 s{sTMP}, s{u}, 10
    v_lshl_add_u32 v{vA0}, v{vLane}, 4, s{sTMP}
    ds_write_b128 v{vA0}, {vr(ACC,4)} offset:{L_REDQ}
    v_mov_b32 v{vA1}, 0
    ds_write_b64 v{vA1}, {vr(ACC,2)} offset:{L_CNT}
    s_waitcnt lgkmcnt(0)
    s_barrier        ; B0
    v_lshrrev_b32 v{vPubH}, 1, v{vG}
    v_lshl_add_u32 v{vPubH}, v{vM}, 1, v{vPubH}
    v_lshlrev_b32 v{vPubH}, 4, v{vPubH}      ; (2c+half)*16
    v_lshlrev_b32 v{vGa}, 11, v{vPP}         ; 4pp*512
    v_lshl_add_u32 v{vGa}, v{vG}, 4, v{vGa}
    s_waitcnt vmcnt(8)
    """)
    a.stamp(1)
    a.nonce_from(vN)
    S0, S1, Q0, Q1, LO, HI = RAWB, RAWB+1, RAWB+2, RAWB+3, RAWB+4, RAWB+5
    for k in range(16):
        w = GA + k
        a(f"v_lshlrev_b32 v{LO}, 16, v{w}\n v_and_b32 v{HI}, 0xffff0000, v{w}")
        if k == 0:
            a(f"v_mov_b32 v{S0}, v{LO}\n v_mov_b32 v{S1}, v{HI}\n v_mul_f32 v{Q0}, v{LO}, v{LO}\n v_mul_f32 v{Q1}, v{HI}, v{HI}")
        else:
            a(f"v_add_f32 v{S0}, v{S0}, v{LO}\n v_add_f32 v{S1}, v{S1}, v{HI}\n v_fmac_f32 v{Q0}, v{LO}, v{LO}\n v_fmac_f32 v{Q1}, v{HI}, v{HI}")
    a(f"v_add_f32 v{S0}, v{S0}, v{S1}\n v_add_f32 v{S1}, v{Q0}, v{Q1}")
    a.dpp_allreduce_pp([S0, S1])
    a.allreduce_g([S0, S1], [Q0, Q1])
    MEAN, RSTD = S0, S1
    a(f"""
    v_mul_f32 v{MEAN}, 0x3a800000, v{S0}        ; /1024
    v_mul_f32 v{Q0}, 0x3a800000, v{S1}
    v_fma_f32 v{Q0}, -v{MEAN}, v{MEAN}, v{Q0}
    v_max_f32 v{Q0}, 0, v{Q0}
    v_add_f32 v{Q0}, 0x3727c5ac, v{Q0}           ; + 1e-5
    v_rsq_f32 v{RSTD}, v{Q0}
    """)
    XF = RAWB + 8
    for q in range(4):
        a(f"v_lshlrev_b32 v{XF+2*q}, 16, v{XR+q}\n v_and_b32 v{XF+2*q+1}, 0xffff0000, v{XR+q}")
    for e in range(8):
        a(f"v_sub_f32 v{XF+e}, v{XF+e}, v{MEAN}")
    for e in range(8):
        a(f"v_mul_f32 v{XF+e}, v{XF+e}, v{RSTD}")
    for q in range(4):
        a(f"v_cvt_pk_bf16_f32 v{AOP+q}, v{XF+2*q}, v{XF+2*q+1}")
    a("s_waitcnt vmcnt(0)")
    a.stamp(2)
    a.perm_unit(RAWA, T)
    a("s_nop 1")
    D = RAWB
    a.mfma8(D, AOP, T)
    a("s_nop 7")
    X = ACC
    a.select(X, D, 0)
    a.tag(X, X, vN)
    a(f"""
    ds_write_b128 v{vA0}, {vr(X,4)} offset:{L_REDQ}
    s_cmp_lg_u32 s{u}, 0
    s_cbranch_scc1 L_q_nored
    v_lshlrev_b32 v{vA0}, 4, v{vLane}
    """)
    def iss():
        for w in range(4):
            a(f"ds_read_b128 {vr(GA+4*w,4)}, v{vA0} offset:{L_REDQ + w*1024}")
    a.spin("redq", iss, [GA, GA+4, GA+8, GA+12], ACC, waitstr="s_waitcnt lgkmcnt(0)")
    reduce4(a, GA, X, vN)
    a(f"""
    s_lshl_b32 s{sTMP}, s{sHQ}, 13
    s_lshl_b32 s{sTMP2}, s{sKS}, 9
    s_add_u32 s{sTMP}, s{sTMP}, s{sTMP2}
    s_add_u32 s{sTMP}, s{sTMP}, {WS_QP}
    v_and_b32 v{vA0}, 1, v{vG}
    v_lshl_add_u32 v{vA0}, v{vA0}, 12, v{vPubH}
    v_add_u32 v{vA0}, s{sTMP}, v{vA0}
    global_store_dwordx4 v{vA0}, {vr(X,4)}, {sp(sWS)} sc1
    L_q_nored:
    """)
    a.stamp(3)
    a(f"""
    s_and_b32 s{sP}, s2, 7
    s_lshr_b32 s{sBA}, s{sP}, 2
    s_and_b32 s{sHKV}, s{sP}, 3
    s_lshl_b32 s{sH}, s{sP}, 2
    s_bfe_u32 s{sTMP}, s2, 0x20003
    s_add_u32 s{sH}, s{sH}, s{sTMP}
    s_lshr_b32 s{sCC}, s2, 5
    s_lshl_b32 s{sTMP}, s{sTMP}, 3
    s_add_u32 s{sFC2}, s{sP}, s{sTMP}
    """)
    vBG = 1
    vXW = vGa
    vXR = vPP
    a(f"""
    v_and_b32 v{vBG}, 31, v{vLane}
    v_lshlrev_b32 v{vBG}, 4, v{vBG}             ; gi*16
    v_lshrrev_b32 v{vA0}, 5, v{vLane}
    v_mul_u32_u24 v{vA0}, 544, v{vA0}
    v_add_u32 v{vXW}, v{vA0}, v{vBG}
    v_and_b32 v{vA0}, 3, v{vM}
    v_mul_u32_u24 v{vA0}, 1088, v{vA0}
    v_mul_u32_u24 v{vA1}, 544, v{vB}
    v_add_u32 v{vA0}, v{vA0}, v{vA1}
    v_lshl_add_u32 v{vXR}, v{vG}, 4, v{vA0}
    """)
    def load_wo():
        a(f"""
        s_lshl_b32 s{sTMP}, s{sH}, 7
        s_lshl_b32 s{sTMP2}, s{u}, 5
        s_add_u32 s{sTMP}, s{sTMP}, s{sTMP2}
        s_lshl_b32 s{sTMP}, s{sTMP}, 11
        s_lshl_b32 s{sTMP2}, s{sCC}, 8
        s_add_u32 s{sTMP}, s{sTMP}, s{sTMP2}
        s_add_u32 s{sB0}, s{sWO}, s{sTMP}
        s_addc_u32 s{sB0+1}, s{sWO+1}, 0
        v_lshlrev_b32 v{vA0}, 12, v{vG}             ; 2g*2048
        v_lshl_add_u32 v{vA0}, v{vM}, 4, v{vA0}
        """)
        a.guard(lambda: a.wload(RAWA, sB0, vA0, WO_ROW, 2048))
    if o.get("dry", 1):
        a(f"""
        s_mov_b64 {sp(sFULL)}, 0
        s_mov_b64 exec, 0
        s_branch L_tail
        L_dry_done:
        s_mov_b64 {sp(sFULL)}, -1
        s_mov_b64 exec, -1
        """)
    QG = RAWB
    a(f"""
    s_lshl_b32 s{sTMP}, s{sHKV}, 3
    s_lshl_b32 s{sTMP2}, s{u}, 1
    s_add_u32 s{sTMP}, s{sTMP}, s{sTMP2}
    s_lshl_b32 s{sTMP}, s{sTMP}, 1
    s_add_u32 s{sTMP}, s{sTMP}, s{sBA}
    s_lshl_b32 s{sTMP}, s{sTMP}, 12
    s_add_u32 s{sTMP}, s{sTMP}, {WS_QP}
    s_add_u32 s{sWQ}, s{sWS}, s{sTMP}
    s_addc_u32 s{sWQ+1}, s{sWS+1}, 0
    s_add_u32 s{sX}, s{sWQ}, 8192
    s_addc_u32 s{sX+1}, s{sWQ+1}, 0
    v_lshlrev_b32 v{vA2}, 4, v{vLane}
    v_lshrrev_b32 v{vA0}, 3, v{vLane}
    v_lshlrev_b32 v{vA0}, 13, v{vA0}            ; head*8192
    v_and_b32 v{vA1}, 7, v{vLane}
    v_lshl_add_u32 v{vA0}, v{vA1}, 9, v{vA0}
    s_mov_b64 exec, 0xffff
    """)
    if o.get("qhint", 0):
        a.spin("hq", lambda: a(f"global_load_dwordx4 {vr(QG,4)}, v{vA0}, {sp(sWQ)} sc1"), [QG], ACC, sleep=o.get("qsleep", 4))
    a("s_mov_b64 exec, -1")
    a.stamp(4)
    def issq():
        for hh, sb in ((0, sWQ), (1, sX)):
            for i in range(4):
                a(f"global_load_dwordx4 {vr(QG+16*hh+4*i,4)}, v{vA2}, {sp(sb)} offset:{i*1024} sc1")
    a.spin("qg", issq, [QG+4*i for i in range(8)], ACC, sleep=o.get("qsleep", 4))
    for hh in range(2):
        base = QG + 16*hh
        for t in range(4):
            a(f"v_add_f32 v{base+t}, v{base+t}, v{base+4+t}\n v_add_f32 v{base+8+t}, v{base+8+t}, v{base+12+t}")
        for t in range(4):
            a(f"v_add_f32 v{base+t}, v{base+t}, v{base+8+t}")
    a("s_nop 1")
    for t in range(4):
        a(f"v_permlane32_swap_b32 v{QG+t}, v{QG+16+t}")
    a("s_nop 1")
    for t in range(4):
        a(f"v_add_f32 v{QG+t}, v{QG+t}, v{QG+16+t}")
    a(f"""
    v_cvt_pk_bf16_f32 v{QG+4}, v{QG}, v{QG+1}
    v_cvt_pk_bf16_f32 v{QG+5}, v{QG+2}, v{QG+3}
    v_lshrrev_b32 v{vA0}, 5, v{vLane}            ; kq
    s_lshl_b32 s{sTMP}, s{u}, 1
    v_add_u32 v{vA0}, s{sTMP}, v{vA0}            ; head
    v_mul_u32_u24 v{vA0}, 272, v{vA0}
    v_and_b32 v{vA1}, 31, v{vLane}
    v_lshl_add_u32 v{vA0}, v{vA1}, 3, v{vA0}
    ds_write_b64 v{vA0}, {vr(QG+4,2)} offset:{L_Q}
    v_mov_b32 v{vA1}, 0
    v_mov_b32 v{vA2}, 1
    s_waitcnt lgkmcnt(0)
    s_mov_b64 exec, 1
    ds_add_u32 v{vA1}, v{vA2} offset:{L_CNT}
    s_mov_b64 exec, -1
    """)
    a.stamp(5)
    a(f"""
    s_mov_b32 s{sSPIN}, 0
    L_G_vwait:
    ds_read_b32 v{vA2}, v{vA1} offset:{L_CNT+4}
    s_waitcnt lgkmcnt(0)
    v_readfirstlane_b32 s{sTMP}, v{vA2}
    s_cmp_ge_u32 s{sTMP}, 8
    s_cbranch_scc1 L_G_vok
    s_add_u32 s{sSPIN}, s{sSPIN}, 1
    s_sleep 4
    s_cmp_lt_u32 s{sSPIN}, 200000
    s_cbranch_scc1 L_G_vwait
    s_branch L_abort
    L_G_vok:
    """)
    a.stamp(6)
    wop = o.get("wop", 0)
    if wop == 0:
        a(f"s_setprio {o.get('woprio', 0)}")
        load_wo()
    a(f"s_setprio {o.get('gprio', 1)}")
    a("s_barrier      ; B3")
    if o.get("b4", 1): a("s_barrier      ; B4")
    a.stamp(7)

    sPEND = 63
    def load_w1():
        L = a.lab("now1")
        a(f"""
        s_cmp_ge_u32 s2, 224
        s_cbranch_scc1 {L}
        s_mov_b32 s{sPEND}, 8
        s_lshl_b32 s{sTMP}, s{sKS}, 7
        s_lshl_b32 s{sTMP2}, s{u}, 5
        s_add_u32 s{sTMP}, s{sTMP}, s{sTMP2}
        s_mul_i32 s{sTMP}, s{sTMP}, 7168
        s_lshl_b32 s{sTMP2}, s{sHQ}, 8
        s_add_u32 s{sTMP}, s{sTMP}, s{sTMP2}
        s_add_u32 s{sB0}, s{sW1}, s{sTMP}
        s_addc_u32 s{sB0+1}, s{sW1+1}, 0
        v_mul_u32_u24 v{vA0}, {4*7168}, v{vG}
        v_lshl_add_u32 v{vA0}, v{vM}, 4, v{vA0}
        """)
        a.guard(lambda: a.wload(RAWB, sB0, vA0, STD_ROW, 7168))
        a.label(L)
    def load_w2():
        L = a.lab("now2")
        a(f"""
        s_cmp_ge_u32 s{sFC2}, 28
        s_cbranch_scc1 {L}
        s_mov_b32 s{sPEND}, 8
        s_lshl_b32 s{sTMP}, s{sFC2}, 7
        s_lshl_b32 s{sTMP2}, s{u}, 5
        s_add_u32 s{sTMP}, s{sTMP}, s{sTMP2}
        s_lshl_b32 s{sTMP}, s{sTMP}, 11
        s_lshl_b32 s{sTMP2}, s{sCC}, 8
        s_add_u32 s{sTMP}, s{sTMP}, s{sTMP2}
        s_add_u32 s{sB0}, s{sW2}, s{sTMP}
        s_addc_u32 s{sB0+1}, s{sW2+1}, 0
        v_lshlrev_b32 v{vA0}, 13, v{vG}           ; 4g*2048
        v_lshl_add_u32 v{vA0}, v{vM}, 4, v{vA0}
        """)
        a.guard(lambda: a.wload(RAWA, sB0, vA0, STD_ROW, 2048))
        a.label(L)
    def sweep(name, issue, grans, shadow, sleep):
        L = a.lab(name); Lc = a.lab(name + "c"); Lok = a.lab(name + "ok"); L0 = a.lab(name + "z")
        a(f"s_mov_b32 s{sSPIN}, 0\n s_mov_b32 s{sPEND}, 0")
        a.guard(issue)
        shadow()
        a(f"s_cmp_eq_u32 s{sPEND}, 0\n s_cbranch_scc1 {L0}")
        a.guard(lambda: a("s_waitcnt vmcnt(8)"))
        a(f"s_branch {Lc}")
        a.label(L)
        a.guard(issue)
        a.label(L0)
        a.guard(lambda: a("s_waitcnt vmcnt(0)"))
        a.label(Lc)
        a.check(grans, ACC)
        a("s_nop 0")
        a(f"s_cbranch_vccz {Lok}")
        a(f"s_add_u32 s{sSPIN}, s{sSPIN}, 1")
        if sleep: a(f"s_sleep {sleep}")
        a(f"s_cmp_lt_u32 s{sSPIN}, {SPIN_LIMIT}")
        a(f"s_cbranch_scc1 {L}")
        a("s_branch L_abort")
        a.label(Lok)
    HG = GA + 44
    FAC = GA + 32
    X = ACC
    D = GA
    vals = [GA + 32 + e for e in range(8)]
    def exchange(lbuf):
        a(f"""
        s_mul_i32 s{sTMP}, s{u}, 1088
        v_add_u32 v{vA0}, s{sTMP}, v{vXW}
        ds_write_b128 v{vA0}, {vr(GA,4)} offset:{lbuf}
        s_lshl_b32 s{sTMP}, s{u}, 7
        v_add_u32 v{vA0}, s{sTMP}, v{vXR}""")
        a.gbarrier()
        a(f"""
        ds_read_b128 {vr(vals[0],4)}, v{vA0} offset:{lbuf}
        ds_read_b128 {vr(vals[4],4)}, v{vA0} offset:{lbuf + 64}
        s_waitcnt lgkmcnt(0)""")
        for ctrl in ("quad_perm:[1,0,3,2]", "quad_perm:[2,3,0,1]"):
            for r in vals:
                a(f"v_add_f32_dpp v{r}, v{r}, v{r} {ctrl} row_mask:0xf bank_mask:0xf")
    def red_pub(name, lbuf, addr, store):
        L = a.lab("nored" + name)
        R = GA + 32
        a(f"""
        s_lshl_b32 s{sTMP}, s{sU}, 10
        v_lshl_add_u32 v{vA0}, v{vLane}, 4, s{sTMP}
        ds_write_b128 v{vA0}, {vr(X,4)} offset:{lbuf}""")
        a.gbarrier()
        a(f"""
        s_cmp_lg_u32 s{sU}, 0
        s_cbranch_scc1 {L}
        v_lshlrev_b32 v{vA0}, 4, v{vLane}""")
        for w in range(4):
            a(f"ds_read_b128 {vr(R+4*w,4)}, v{vA0} offset:{lbuf + w*1024}")
        addr()
        a("s_waitcnt lgkmcnt(0)")
        reduce4(a, R, X, vN)
        a.guard(store)
        a.label(L)
    w1p, w2p = o.get("w1p", 1), o.get("w2p", 3)
    a("L_tail:")
    if o.get("wop", 0) == 1: load_wo()
    a(f"""
    s_lshl_b32 s{sTMP}, s{sH}, 9
    s_add_u32 s{sTMP}, s{sTMP}, {WS_ML}
    v_lshrrev_b32 v{vA1}, 5, v{vLane}             ; b
    v_lshrrev_b32 v{vA0}, 0, v{vBG}
    v_lshl_add_u32 v{vA0}, v{vA1}, 14, v{vA0}      ; b*32*32*16 + s*16
    v_add_u32 v{vA0}, s{sTMP}, v{vA0}
    s_lshl_b32 s{sTMP2}, s{sH}, 14                ; h*32*512
    s_lshl_b32 s{sTMP}, s{u}, 12                  ; 8u*512
    s_add_u32 s{sTMP2}, s{sTMP2}, s{sTMP}
    s_add_u32 s{sTMP2}, s{sTMP2}, {WS_OP}
    s_add_u32 s{sWQ}, s{sWS}, s{sTMP2}
    s_addc_u32 s{sWQ+1}, s{sWS+1}, 0
    v_lshl_add_u32 v{vA2}, v{vA1}, 19, v{vBG}      ; b<<19 + gi*16
    """)
    a.spin("hA", lambda: a(f"global_load_dwordx4 {vr(HG,4)}, v{vA0}, {sp(sWS)} sc1"), [HG], ACC, sleep=o.get("hsleep", 2))
    a.stamp(8)
    def issA():
        for i in range(8):
            a(f"global_load_dwordx4 {vr(GA+4*i,4)}, v{vA2}, {sp(sWQ)} offset:{i*512} sc1")
    def shadowA():
        if w1p == 1: load_w1()
        MM, LLr, TT = GA+40, GA+41, GA+42
        a(f"v_mov_b32 v{MM}, v{HG}\n s_nop 1")
        for ctrl in ("quad_perm:[1,0,3,2]", "quad_perm:[2,3,0,1]", "row_ror:4", "row_ror:8"):
            a(f"v_max_f32_dpp v{MM}, v{MM}, v{MM} {ctrl} row_mask:0xf bank_mask:0xf\n s_nop 1")
        a.allreduce_g([MM], [TT], "v_max_f32", steps=("v_permlane16_swap_b32",))
        a(f"""
        v_sub_f32 v{MM}, v{HG}, v{MM}
        v_exp_f32 v{MM}, v{MM}
        s_nop 0
        v_mul_f32 v{LLr}, v{MM}, v{HG+1}
        s_nop 1""")
        for ctrl in ("quad_perm:[1,0,3,2]", "quad_perm:[2,3,0,1]", "row_ror:4", "row_ror:8"):
            a(f"v_add_f32_dpp v{LLr}, v{LLr}, v{LLr} {ctrl} row_mask:0xf bank_mask:0xf\n s_nop 1")
        a.allreduce_g([LLr], [TT], "v_add_f32", steps=("v_permlane16_swap_b32",))
        a(f"""
        v_rcp_f32 v{LLr}, v{LLr}
        s_nop 0
        v_mul_f32 v{MM}, v{MM}, v{LLr}
        s_lshl_b32 s{sTMP}, s{u}, 8
        v_lshl_add_u32 v{vA0}, v{vLane}, 2, s{sTMP}
        ds_write_b32 v{vA0}, v{MM} offset:{L_FAC}
        v_lshrrev_b32 v{vA1}, 5, v{vLane}
        s_lshl_b32 s{sTMP2}, s{u}, 5
        s_add_u32 s{sTMP}, s{sTMP}, s{sTMP2}
        v_lshl_add_u32 v{vA0}, v{vA1}, 7, s{sTMP}      ; u*256 + b*128 + 8u*4
        ds_read_b128 {vr(FAC,4)}, v{vA0} offset:{L_FAC}
        ds_read_b128 {vr(FAC+4,4)}, v{vA0} offset:{L_FAC+16}
        """)
        a.perm_unit(RAWA, T)
    sweep("gA", issA, [GA+4*i for i in range(8)], shadowA, o.get("asleep", 2))
    a.stamp(9)
    if w1p == 2: load_w1()
    a("s_waitcnt lgkmcnt(0)")
    for t in range(4):
        a(f"v_mul_f32 v{GA+t}, v{GA+t}, v{FAC}")
    for i in range(1, 8):
        for t in range(4):
            a(f"v_fmac_f32 v{GA+t}, v{GA+4*i+t}, v{FAC+i}")
    exchange(L_XA_A)
    for q in range(4):
        a(f"v_cvt_pk_bf16_f32 v{AOP+q}, v{vals[2*q]}, v{vals[2*q+1]}")
    a("s_nop 1")
    a.mfma8(D, AOP, T)
    a("s_nop 7")
    a.select(X, D, 0)
    red_pub("a", L_REDA, lambda: a(f"""
        s_lshl_b32 s{sTMP}, s{sCC}, 6          ; cc*2*32
        s_add_u32 s{sTMP}, s{sTMP}, s{sH}
        s_lshl_b32 s{sTMP}, s{sTMP}, 9
        s_add_u32 s{sTMP}, s{sTMP}, {WS_AP}
        v_and_b32 v{vA0}, 1, v{vG}
        v_lshl_add_u32 v{vA0}, v{vA0}, 14, v{vPubH}
        v_add_u32 v{vA0}, s{sTMP}, v{vA0}"""),
        lambda: a(f"global_store_dwordx4 v{vA0}, {vr(X,4)}, {sp(sWS)} sc1"))
    a.stamp(10)
    a(f"""
    s_cmp_ge_u32 s2, 224
    s_cbranch_scc1 L_skipB0
    s_lshl_b32 s{sTMP}, s{sKS}, 15            ; ks*2*32*512
    s_lshl_b32 s{sTMP2}, s{u}, 12
    s_add_u32 s{sTMP}, s{sTMP}, s{sTMP2}
    s_add_u32 s{sTMP}, s{sTMP}, {WS_AP}
    s_add_u32 s{sWQ}, s{sWS}, s{sTMP}
    s_addc_u32 s{sWQ+1}, s{sWS+1}, 0
    v_bfe_u32 v{vA1}, v{vLane}, 3, 1
    v_and_b32 v{vA0}, 7, v{vLane}
    v_lshlrev_b32 v{vA0}, 9, v{vA0}
    v_lshl_add_u32 v{vA0}, v{vA1}, 14, v{vA0}
    v_lshrrev_b32 v{vA1}, 5, v{vLane}
    v_lshl_add_u32 v{vA2}, v{vA1}, 14, v{vBG}
    """)
    a.mask("0xffff", "0")
    a.spin("hB", lambda: a(f"global_load_dwordx4 {vr(HG,4)}, v{vA0}, {sp(sWQ)} sc1"), [HG], ACC, sleep=o.get("hsleep", 2))
    a.full()
    a.stamp(11)
    def issB():
        for i in range(8):
            a(f"global_load_dwordx4 {vr(GA+4*i,4)}, v{vA2}, {sp(sWQ)} offset:{i*512} sc1")
    def shadowB():
        if w2p == 3: load_w2()
        a.perm_unit(RAWB, T)
    sweep("gB", issB, [GA+4*i for i in range(8)], shadowB, o.get("bsleep", 2))
    a.stamp(12)
    if w2p == 4: load_w2()
    for k in (0, 8, 16, 24):
        a(f"v_pk_add_f32 {vr(GA+k,2)}, {vr(GA+k,2)}, {vr(GA+k+4,2)}\n v_pk_add_f32 {vr(GA+k+2,2)}, {vr(GA+k+2,2)}, {vr(GA+k+6,2)}")
    for k in (0, 16):
        a(f"v_pk_add_f32 {vr(GA+k,2)}, {vr(GA+k,2)}, {vr(GA+k+8,2)}\n v_pk_add_f32 {vr(GA+k+2,2)}, {vr(GA+k+2,2)}, {vr(GA+k+10,2)}")
    a(f"v_pk_add_f32 {vr(GA,2)}, {vr(GA,2)}, {vr(GA+16,2)}\n v_pk_add_f32 {vr(GA+2,2)}, {vr(GA+2,2)}, {vr(GA+18,2)}")
    exchange(L_XA_B)
    XF = GA + 8
    for q in range(4):
        a(f"v_lshlrev_b32 v{XF+2*q}, 16, v{XR+q}\n v_and_b32 v{XF+2*q+1}, 0xffff0000, v{XR+q}")
    for e in range(8):
        a(f"v_add_f32 v{XF+e}, v{XF+e}, v{vals[e]}")
    HP_ = GA + 40
    for q in range(4):
        a(f"v_cvt_pk_bf16_f32 v{HP_+q}, v{XF+2*q}, v{XF+2*q+1}")
    a(f"v_mov_b32 v{ACC}, 0x3f803f80\n s_nop 0")
    for q in range(4):
        a(f"v_cndmask_b32 v{AOP+q}, v{HP_+q}, v{ACC}, {sp(sM1)}")
    a("s_nop 1")
    a.mfma8(D, AOP, T)
    XF = GA + 32
    for q in range(4):
        a(f"v_lshlrev_b32 v{XF+2*q}, 16, v{HP_+q}\n v_and_b32 v{XF+2*q+1}, 0xffff0000, v{HP_+q}")
    SS, QQ = GA+44, GA+45
    a(f"v_add_f32 v{SS}, v{XF}, v{XF+1}\n v_mul_f32 v{QQ}, v{XF}, v{XF}\n v_fmac_f32 v{QQ}, v{XF+1}, v{XF+1}")
    for e in range(2, 8):
        a(f"v_add_f32 v{SS}, v{SS}, v{XF+e}\n v_fmac_f32 v{QQ}, v{XF+e}, v{XF+e}")
    a.allreduce_g([SS, QQ], [GA+46, GA+47])
    a.select(X, D, 0)
    a(f"""
    s_lshl_b32 s{sTMP}, s{u}, 10
    v_lshl_add_u32 v{vA0}, v{vLane}, 4, s{sTMP}
    ds_write_b128 v{vA0}, {vr(X,4)} offset:{L_REDB}
    """)
    Y = AOP
    a.select(Y, D, 1)
    a(f"ds_write_b128 v{vA0}, {vr(Y,4)} offset:{L_REDC}")
    a(f"""
    s_lshl_b32 s{sTMP}, s{u}, 4
    v_lshl_add_u32 v{vA1}, v{vB}, 3, s{sTMP}""")
    a.mask("0x11", "0")
    a(f"ds_write_b64 v{vA1}, {vr(SS,2)} offset:{L_REDS}")
    a.full()
    a.gbarrier()
    a(f"""
    s_cmp_eq_u32 s{u}, 1
    s_cbranch_scc1 L_b_cs
    s_cmp_eq_u32 s{u}, 2
    s_cbranch_scc1 L_b_st
    s_cmp_eq_u32 s{u}, 3
    s_cbranch_scc1 L_b_done
    v_lshlrev_b32 v{vA0}, 4, v{vLane}
    """)
    R2 = GA + 16
    for w in range(4):
        a(f"ds_read_b128 {vr(R2+4*w,4)}, v{vA0} offset:{L_REDB + w*1024}")
    a(f"""
    s_lshl_b32 s{sTMP}, s{sHQ}, 4             ; fc*2*8
    s_add_u32 s{sTMP}, s{sTMP}, s{sKS}
    s_lshl_b32 s{sTMP}, s{sTMP}, 9
    s_add_u32 s{sTMP}, s{sTMP}, {WS_FPP}
    v_and_b32 v{vA0}, 1, v{vG}
    v_lshl_add_u32 v{vA0}, v{vA0}, 12, v{vPubH}
    v_add_u32 v{vA0}, s{sTMP}, v{vA0}
    s_waitcnt lgkmcnt(0)""")
    reduce4(a, R2, ACC, vN)
    a.guard(lambda: a(f"global_store_dwordx4 v{vA0}, {vr(ACC,4)}, {sp(sWS)} sc1"))
    a(f"""
    s_branch L_b_done
    L_b_cs:
    v_lshlrev_b32 v{vA0}, 4, v{vLane}
    """)
    for w in range(4):
        a(f"ds_read_b128 {vr(R2+4*w,4)}, v{vA0} offset:{L_REDC + w*1024}")
    a(f"""
    s_lshl_b32 s{sTMP}, s{sHQ}, 3
    s_add_u32 s{sTMP}, s{sTMP}, s{sKS}
    s_lshl_b32 s{sTMP}, s{sTMP}, 9
    s_add_u32 s{sTMP}, s{sTMP}, {WS_FPC}
    v_add_u32 v{vA0}, s{sTMP}, v{vPubH}
    s_waitcnt lgkmcnt(0)""")
    reduce4(a, R2, ACC, vN)
    a.mask("0x0000ffff", "0x0000ffff")
    a.guard(lambda: a(f"global_store_dwordx4 v{vA0}, {vr(ACC,4)}, {sp(sWS)} sc1"))
    a.full()
    a(f"""
    s_branch L_b_done
    L_b_st:
    v_and_b32 v{vA0}, 7, v{vLane}
    v_lshlrev_b32 v{vA0}, 3, v{vA0}
    ds_read_b64 {vr(R2,2)}, v{vA0} offset:{L_REDS}
    s_lshl_b32 s{sTMP}, s{sHQ}, 3
    s_add_u32 s{sTMP}, s{sTMP}, s{sKS}
    s_lshl_b32 s{sTMP}, s{sTMP}, 4
    s_add_u32 s{sTMP}, s{sTMP}, {WS_FPS}
    v_mov_b32 v{vA0}, s{sTMP}
    s_waitcnt lgkmcnt(0)
    """)
    for ctrl in ("quad_perm:[2,3,0,1]", "row_ror:4"):
        a("s_nop 1")
        for r in (R2, R2+1):
            a(f"v_add_f32_dpp v{r}, v{r}, v{r} {ctrl} row_mask:0xf bank_mask:0xf")
    a(f"""
    s_nop 1
    v_mov_b32_dpp v{R2+2}, v{R2} quad_perm:[1,1,1,1] row_mask:0xf bank_mask:0xf
    v_mov_b32_dpp v{R2+3}, v{R2+1} quad_perm:[1,1,1,1] row_mask:0xf bank_mask:0xf
    """)
    a.tag(ACC, R2, vN)
    a.mask("1", "0")
    a.guard(lambda: a(f"global_store_dwordx4 v{vA0}, {vr(ACC,4)}, {sp(sWS)} sc1"))
    a.full()
    a("L_b_done:")
    a(f"""
    s_cmp_lg_u32 s{sHQ}, 0
    s_cbranch_scc1 L_nohp""")
    a.tag(GA+4, XF, vN)
    a.tag(GA+8, XF+4, vN)
    a(f"""
    s_lshl_b32 s{sTMP}, s{sKS}, 5
    s_lshl_b32 s{sTMP2}, s{u}, 3
    s_add_u32 s{sTMP}, s{sTMP}, s{sTMP2}
    s_lshl_b32 s{sTMP}, s{sTMP}, 4
    s_add_u32 s{sTMP}, s{sTMP}, {WS_HP}
    v_lshlrev_b32 v{vA1}, 4, v{vG}
    v_lshl_add_u32 v{vA1}, v{vB}, 12, v{vA1}
    v_add_u32 v{vA1}, s{sTMP}, v{vA1}""")
    a.mask("0x00110011", "0x00110011")
    a.guard(lambda: a(f"""global_store_dwordx4 v{vA1}, {vr(GA+4,4)}, {sp(sWS)} sc1
    global_store_dwordx4 v{vA1}, {vr(GA+8,4)}, {sp(sWS)} offset:64 sc1"""))
    a.full()
    a("""L_nohp:
    s_branch L_skipB
    L_skipB0:""")
    if w2p in (3, 4): load_w2()
    a("L_skipB:")
    a.stamp(13)
    a(f"""
    s_cmp_ge_u32 s{sFC2}, 28
    s_cbranch_scc1 L_skipC1
    s_lshl_b32 s{sTMP}, s{sFC2}, 7
    s_add_u32 s{sTMP}, s{sTMP}, {WS_FPS}
    v_and_b32 v{vA0}, 7, v{vLane}
    v_lshl_add_u32 v{vA0}, v{vA0}, 4, s{sTMP}
    s_lshl_b32 s{sTMP}, s{sFC2}, 13           ; fc*2*8*512
    s_lshl_b32 s{sTMP2}, s{u}, 10             ; 2u*512
    s_add_u32 s{sTMP}, s{sTMP}, s{sTMP2}
    s_add_u32 s{sTMP}, s{sTMP}, {WS_FPP}
    s_add_u32 s{sWQ}, s{sWS}, s{sTMP}
    s_addc_u32 s{sWQ+1}, s{sWS+1}, 0
    s_lshl_b32 s{sTMP}, s{sFC2}, 12           ; fc*8*512
    s_add_u32 s{sTMP}, s{sTMP}, s{sTMP2}
    s_add_u32 s{sTMP}, s{sTMP}, {WS_FPC}
    s_add_u32 s{sB1}, s{sWS}, s{sTMP}
    s_addc_u32 s{sB1+1}, s{sWS+1}, 0
    v_lshrrev_b32 v{vA1}, 5, v{vLane}
    v_lshl_add_u32 v{vA2}, v{vA1}, 12, v{vBG}   ; b*8*512 + gi*16
    """)
    a.spin("hC", lambda: a(f"global_load_dwordx4 {vr(HG,4)}, v{vA0}, {sp(sWS)} sc1"), [HG], ACC, sleep=o.get("hsleep", 2))
    a.stamp(14)
    MEANB, RS0, RS1 = GA+40, GA+41, GA+42
    def issC():
        for k in range(2):
            a(f"global_load_dwordx4 {vr(GA+4*k,4)}, v{vA2}, {sp(sWQ)} offset:{k*512} sc1")
        for k in range(2):
            a(f"global_load_dwordx4 {vr(GA+8+4*k,4)}, v{vBG}, {sp(sB1)} offset:{k*512} sc1")
    def shadowC():
        hv = [HG, HG+1, HG+2, HG+3]
        for ctrl in ("quad_perm:[1,0,3,2]", "quad_perm:[2,3,0,1]", "row_ror:4"):
            for r in hv:
                a(f"v_add_f32_dpp v{r}, v{r}, v{r} {ctrl} row_mask:0xf bank_mask:0xf")
        a(f"""
        v_mul_f32 v{HG}, 0x3a800000, v{HG}
        v_mul_f32 v{HG+2}, 0x3a800000, v{HG+2}
        v_mul_f32 v{HG+1}, 0x3a800000, v{HG+1}
        v_mul_f32 v{HG+3}, 0x3a800000, v{HG+3}
        v_fma_f32 v{HG+1}, -v{HG}, v{HG}, v{HG+1}
        v_fma_f32 v{HG+3}, -v{HG+2}, v{HG+2}, v{HG+3}
        v_max_f32 v{HG+1}, 0, v{HG+1}
        v_max_f32 v{HG+3}, 0, v{HG+3}
        v_add_f32 v{HG+1}, 0x3727c5ac, v{HG+1}
        v_add_f32 v{HG+3}, 0x3727c5ac, v{HG+3}
        v_rsq_f32 v{RS0}, v{HG+1}
        v_rsq_f32 v{RS1}, v{HG+3}
        v_cndmask_b32 v{MEANB}, v{HG}, v{HG+2}, {sp(sMHI)}
        v_cndmask_b32 v{RS0}, v{RS0}, v{RS1}, {sp(sMB)}
        """)
        a.perm_unit(RAWA, T)
    sweep("gC", issC, [GA+4*i for i in range(4)], shadowC, o.get("csleep", 2))
    a.stamp(15)
    for t in range(4):
        a(f"v_add_f32 v{GA+t}, v{GA+t}, v{GA+4+t}\n v_add_f32 v{GA+8+t}, v{GA+8+t}, v{GA+12+t}")
    for t in range(4):
        a(f"v_fma_f32 v{GA+t}, -v{MEANB}, v{GA+8+t}, v{GA+t}")
    exchange(L_XA_C)
    for e in range(8):
        a(f"v_mul_f32 v{vals[e]}, v{vals[e]}, v{RS0}")
    E = GA + 8
    for e in range(8):
        a(f"v_mul_f32 v{E+e}, 0xbfb8aa3b, v{vals[e]}      ; -log2e * x")
    for e in range(8):
        a(f"v_exp_f32 v{E+e}, v{E+e}")
    for e in range(8):
        a(f"v_add_f32 v{E+e}, 1.0, v{E+e}")
    for e in range(8):
        a(f"v_rcp_f32 v{E+e}, v{E+e}")
    for e in range(8):
        a(f"v_mul_f32 v{vals[e]}, v{vals[e]}, v{E+e}")
    for q in range(4):
        a(f"v_cvt_pk_bf16_f32 v{AOP+q}, v{vals[2*q]}, v{vals[2*q+1]}")
    a("s_nop 1")
    a.mfma8(D, AOP, T)
    a("s_nop 7")
    a.select(X, D, 0)
    red_pub("c", L_REDD, lambda: a(f"""
        s_mul_i32 s{sTMP}, s{sCC}, 56          ; cc*2*28
        s_add_u32 s{sTMP}, s{sTMP}, s{sFC2}
        s_lshl_b32 s{sTMP}, s{sTMP}, 9
        s_add_u32 s{sTMP}, s{sTMP}, {WS_O2}
        v_and_b32 v{vA0}, 1, v{vG}
        v_mul_u32_u24 v{vA0}, {28*512}, v{vA0}
        v_add3_u32 v{vA0}, v{vA0}, v{vPubH}, s{sTMP}"""),
        lambda: a(f"global_store_dwordx4 v{vA0}, {vr(X,4)}, {sp(sWS)} sc1"))
    a("L_skipC1:")
    a.stamp(16)
    a(f"""
    s_cmp_lg_u32 s{u}, 0
    s_cbranch_scc1 L_G_done
    s_lshr_b32 s{sB0}, s2, 7                   ; b2
    s_bfe_u32 s{sB0+1}, s2, 0x30004            ; cc2
    s_and_b32 s{sB1}, s2, 15
    s_lshl_b32 s{sB1}, s{sB1}, 5               ; gi0*16
    s_lshl_b32 s{sTMP}, s{sB0+1}, 1
    s_add_u32 s{sTMP}, s{sTMP}, s{sB0}
    s_mul_i32 s{sTMP}, s{sTMP}, {28*512}
    s_add_u32 s{sTMP}, s{sTMP}, s{sB1}
    s_add_u32 s{sTMP}, s{sTMP}, {WS_O2}
    v_lshrrev_b32 v{vA0}, 1, v{vLane}
    v_lshlrev_b32 v{vA0}, 9, v{vA0}
    v_and_b32 v{vA1}, 1, v{vLane}
    v_lshl_add_u32 v{vA0}, v{vA1}, 4, v{vA0}
    v_add_u32 v{vA0}, s{sTMP}, v{vA0}
    s_lshl_b32 s{sTMP}, s{sB0}, 12             ; b*256*16
    s_lshl_b32 s{sTMP2}, s{sB0+1}, 9           ; cc*32*16
    s_add_u32 s{sTMP}, s{sTMP}, s{sTMP2}
    s_add_u32 s{sTMP}, s{sTMP}, s{sB1}
    s_add_u32 s{sTMP}, s{sTMP}, {WS_HP}
    v_lshl_add_u32 v{vA2}, v{vA1}, 4, s{sTMP}
    v_cmp_le_u32 vcc, 56, v{vLane}
    v_mov_b32 v{GA}, 0
    v_mov_b32 v{GA+1}, 0
    v_cndmask_b32 v{vA0}, v{vA0}, v{vA2}, vcc
    v_mov_b32 v{GA+2}, 0
    v_mov_b32 v{GA+3}, 0
    """)
    a.mask("-1", "0x03ffffff")
    def iss():
        a(f"global_load_dwordx4 {vr(GA,4)}, v{vA0}, {sp(sWS)} sc1")
    a.spin("gd", iss, [GA], ACC, sleep=o.get("dsleep", 1))
    a.full()
    a.stamp(17)
    fv = [GA+i for i in range(4)]
    for ctrl in ("quad_perm:[2,3,0,1]", "row_ror:4", "row_ror:8"):
        a("s_nop 0")
        for r in fv:
            a(f"v_add_f32_dpp v{r}, v{r}, v{r} {ctrl} row_mask:0xf bank_mask:0xf")
    a.allreduce_g(fv, [GA+4+i for i in range(4)])
    a(f"""
    v_cvt_pk_bf16_f32 v{GA+8}, v{GA}, v{GA+1}
    v_cvt_pk_bf16_f32 v{GA+9}, v{GA+2}, v{GA+3}
    s_lshl_b32 s{sTMP}, s2, 4
    v_lshl_add_u32 v{vA0}, v{vA1}, 3, s{sTMP}
    """)
    a.mask("3", "0")
    a.guard(lambda: a(f"global_store_dwordx2 v{vA0}, {vr(GA+8,2)}, {sp(sOUT)}"))
    a(f"""
    s_cmp_lg_u32 s2, 0
    s_cbranch_scc1 L_G_done
    """)
    a.full()
    a(f"v_mov_b32 v{vA0}, 0")
    a.mask("1", "0")
    a.guard(lambda: a(f"global_store_dword v{vA0}, v{vN}, {sp(sWS)} sc1"))
    a("L_G_done:")
    if o.get("dry", 1):
        a("s_cbranch_execz L_dry_done")
    a.stamp(18)
    a.dump_stamps(19, 7)
    a("s_endpgm")

def gen_A(a):
    o = a.o
    vLane, vG, vM, vN = 0, 2, 3, 4
    vKs = 5
    vV = 9
    vT0, vT1, vT2 = 10, 11, 12
    MX, LS = 13, 14
    VR = 16
    QO = 80
    KS = 96
    S = 128
    P = 144
    TB = 80
    ACCD = 112
    sA = sU
    sP, sS = 52, 53
    a(f"""
    L_A:
    ; ---------------- A waves ----------------
    s_setprio 2
    s_sub_u32 s{sA}, s{sWAVE}, 4
    s_and_b32 s{sP}, s2, 7
    s_lshr_b32 s{sS}, s2, 3
    s_lshl_b32 s{sTMP}, s{sP}, 22
    s_lshl_b32 s{sTMP2}, s{sS}, 17
    s_add_u32 s{sTMP}, s{sTMP}, s{sTMP2}
    s_lshl_b32 s{sTMP2}, s{sA}, 14
    s_add_u32 s{sTMP}, s{sTMP}, s{sTMP2}
    """)
    for r in range(4):
        a(f"v_add_u32 v{vT0}, {4*r}, v{vG}\n v_xor_b32 v{vT0}, v{vT0}, v{vM}\n v_lshlrev_b32 v{vT0}, 4, v{vT0}\n v_lshl_add_u32 v{vKs+r}, v{vG}, 8, v{vT0}")
    a(f"""
    v_lshlrev_b32 v{vT0}, 4, v{vM}
    v_lshl_add_u32 v{vV}, v{vG}, 10, v{vT0}
    v_mov_b32 v{vT1}, 0
    s_mov_b32 s{sM8}, 0xff00ff00
    s_mov_b32 s{sM8+1}, 0xff00ff00
    s_waitcnt lgkmcnt(0)
    s_add_u32 s{sB0}, s{sK}, s{sTMP}
    s_addc_u32 s{sB0+1}, s{sK+1}, 0
    s_add_u32 s{sB1}, s{sV}, s{sTMP}
    s_addc_u32 s{sB1+1}, s{sV+1}, 0
    s_add_u32 m0, s{sTMP2}, {L_K}
    s_barrier       ; B0
    global_load_dword v{vN}, v{vT1}, {sp(sWS)} sc1
    """)
    KW = o.get("kwin", 3)
    for i in range(16):
        r = i % 4
        if KW and i >= KW: a(f"s_waitcnt vmcnt({KW-1})")
        a(f"global_load_lds_dwordx4 v{vKs+r}, {sp(sB0)} offset:{r*1024} nt")
        if r == 3 and i < 15:
            a(f"s_add_u32 s{sB0}, s{sB0}, 4096\n s_addc_u32 s{sB0+1}, s{sB0+1}, 0\n s_add_u32 m0, m0, 4096")
    a.stamp(1)
    a(f"s_setprio {o.get('vprio', 1)}")
    VW = o.get("vwin", 0)
    for uu in range(2):
        for i in range(8):
            reg = VR + (uu*8+i)*4
            if VW: a(f"s_waitcnt vmcnt({VW-1})")
            a(f"global_load_dwordx4 {vr(reg,4)}, v{vV}, {sp(sB1)} offset:{(i%4)*256} nt")
            if i % 4 == 3 and not (uu == 1 and i == 7):
                a(f"s_add_u32 s{sB1}, s{sB1}, 4096\n s_addc_u32 s{sB1+1}, s{sB1+1}, 0")
    a.stamp(2)
    a(f"""
    v_mov_b32 v{vT1}, 0
    v_mov_b32 v{vT2}, 1
    s_mov_b64 exec, 1
    ds_add_u32 v{vT1}, v{vT2} offset:{L_CNT+4}
    s_mov_b64 exec, -1""")
    a(f"s_lshl_b32 s{sTMP}, s{sA}, 14\n s_add_u32 s{sTMP}, s{sTMP}, {L_K}")
    for s in range(4):
        a(f"v_add_u32 v{vT0}, {4*s}, v{vG}\n v_xor_b32 v{vT0}, v{vT0}, v{vM}\n v_lshlrev_b32 v{vT0}, 4, v{vT0}\n v_lshl_add_u32 v{vT0}, v{vM}, 8, v{vT0}\n v_add_u32 v{vKs+s}, s{sTMP}, v{vT0}")
    a(f"""
    v_mov_b32 v{vT1}, 0
    s_mov_b32 s{sSPIN}, 0
    L_A_qwait:
    ds_read_b32 v{vT2}, v{vT1} offset:{L_CNT}
    s_waitcnt lgkmcnt(0)
    v_readfirstlane_b32 s{sTMP}, v{vT2}
    s_cmp_ge_u32 s{sTMP}, 4
    s_cbranch_scc1 L_A_qok
    s_add_u32 s{sSPIN}, s{sSPIN}, 1
    s_sleep 4
    s_cmp_lt_u32 s{sSPIN}, 200000
    s_cbranch_scc1 L_A_qwait
    s_branch L_abort
    L_A_qok:
    v_and_b32 v{vT0}, 7, v{vM}
    v_mul_u32_u24 v{vT0}, 272, v{vT0}
    v_lshl_add_u32 v{vT0}, v{vG}, 4, v{vT0}
    """)
    a.stamp(3)
    for s in range(4):
        a(f"ds_read_b128 {vr(QO+4*s,4)}, v{vT0} offset:{L_Q + s*64}")
    a("s_waitcnt vmcnt(16)")
    a.nonce_from(vN)
    def kread(t, buf):
        for s in range(4):
            a(f"ds_read_b128 {vr(KS+16*buf+4*s,4)}, v{vKs+s} offset:{t*4096}")
    kread(0, 0); kread(1, 1)
    for t in range(4):
        buf = t % 2
        a("s_waitcnt lgkmcnt(4)" if t < 3 else "s_waitcnt lgkmcnt(0)")
        for s in range(4):
            c = "0" if s == 0 else vr(S+4*t, 4)
            a(f"v_mfma_f32_16x16x32_bf16 {vr(S+4*t,4)}, {vr(KS+16*buf+4*s,4)}, {vr(QO+4*s,4)}, {c}")
        if t + 2 < 4:
            kread(t + 2, buf)
    a("s_nop 7")
    a(f"v_max3_f32 v{MX}, v{S}, v{S+1}, v{S+2}")
    for k in range(3, 15, 2):
        a(f"v_max3_f32 v{MX}, v{MX}, v{S+k}, v{S+k+1}")
    a(f"v_max_f32 v{MX}, v{MX}, v{S+15}")
    a.allreduce_g([MX], [vT2], "v_max_f32")
    a(f"""
    s_mov_b32 s{sC}, 0x3e0293ee                   ; 128^-0.5 * log2(e)
    v_mul_f32 v{MX}, s{sC}, v{MX}""")
    for k in range(16):
        a(f"v_fma_f32 v{S+k}, v{S+k}, s{sC}, -v{MX}")
    for k in range(16):
        a(f"v_exp_f32 v{S+k}, v{S+k}")
    a("s_nop 0")
    for uu in range(2):
        for q in range(4):
            k = 8*uu + 2*q
            a(f"v_cvt_pk_bf16_f32 v{P+4*uu+q}, v{S+k}, v{S+k+1}")
    a(f"v_add_f32 v{LS}, v{S}, v{S+1}")
    for k in range(2, 16):
        a(f"v_add_f32 v{LS}, v{LS}, v{S+k}")
    a.allreduce_g([LS], [KS])
    a(f"""
    v_and_b32 v{vT0}, 7, v{vM}
    v_lshlrev_b32 v{vT0}, 5, v{vT0}             ; head*32
    s_lshl_b32 s{sTMP}, s{sA}, 2
    v_add_u32 v{vT0}, s{sTMP}, v{vT0}            ; head*32 + a*4
    s_mov_b64 exec, 0xff
    ds_write_b32 v{vT0}, v{MX} offset:{L_MX}
    ds_write_b32 v{vT0}, v{LS} offset:{L_LS}
    s_mov_b64 exec, -1
    """)
    a.stamp(4)
    for uu in range(2):
        a(f"s_waitcnt vmcnt({8 if uu == 0 else 0})")
        if uu == 1: a.stamp(5)
        raw = VR + 32*uu
        for t in range(4):
            tb = TB + 8*t
            for par, sel in ((0, sPLO), (1, sPHI)):
                for q in range(4):
                    a(f"v_perm_b32 v{tb+4*par+q}, v{raw+4*(2*q+1)+t}, v{raw+4*(2*q)+t}, s{sel}")
            if t > 0:
                for par in range(2):
                    j = 2*(t-1) + par
                    c = "0" if uu == 0 else vr(ACCD+4*j, 4)
                    a(f"v_mfma_f32_16x16x32_bf16 {vr(ACCD+4*j,4)}, {vr(TB+8*(t-1)+4*par,4)}, {vr(P+4*uu,4)}, {c}")
        a("s_nop 1")
        for par in range(2):
            j = 6 + par
            c = "0" if uu == 0 else vr(ACCD+4*j, 4)
            a(f"v_mfma_f32_16x16x32_bf16 {vr(ACCD+4*j,4)}, {vr(TB+24+4*par,4)}, {vr(P+4*uu,4)}, {c}")
    a(f"""
    s_lshl_b32 s{sTMP}, s{sA}, 14
    s_add_u32 s{sTMP}, s{sTMP}, {L_OB}
    v_mul_u32_u24 v{vT0}, 17, v{vG}
    v_add_u32 v{vT0}, v{vT0}, v{vM}
    v_lshl_add_u32 v{vT0}, v{vT0}, 4, s{sTMP}
    v_bfe_u32 v{vT1}, v{vLane}, 3, 2            ; g'
    v_and_b32 v{vKs}, 3, v{vLane}               ; j'&3
    v_bfe_u32 v{vKs+1}, v{vLane}, 2, 1          ; j'>>2
    v_lshl_add_u32 v{vKs}, v{vKs}, 1, v{vKs+1}  ; j
    v_and_b32 v{vKs+1}, 3, v{vKs}               ; jj
    v_lshrrev_b32 v{vKs}, 2, v{vKs}             ; nh
    v_lshl_add_u32 v{vT1}, v{vKs+1}, 2, v{vT1}  ; jj*4+g'
    v_mul_u32_u24 v{vT1}, 17, v{vT1}
    v_lshl_add_u32 v{vT1}, v{vKs}, 3, v{vT1}
    v_add_u32 v{vT1}, s{sA}, v{vT1}
    v_lshlrev_b32 v{vT1}, 4, v{vT1}
    v_lshrrev_b32 v{vKs}, 5, v{vLane}           ; ph
    v_lshl_add_u32 v{vT1}, v{vKs}, 16, v{vT1}   ; + ph*4*16384
    v_add_u32 v{vT1}, {L_OB}, v{vT1}
    s_lshl_b32 s{sTMP}, s{sA}, 5
    v_lshl_add_u32 v{vKs+1}, v{vKs}, 4, s{sTMP}
    v_xor_b32 v{vKs+2}, 16, v{vKs+1}
    """)
    XB = TB
    for jj in range(4):
        for r in range(4):
            a(f"v_cndmask_b32 v{XB+4*jj+r}, v{ACCD+4*jj+r}, v{ACCD+4*(jj+4)+r}, {sp(sM8)}")
    for jj in range(4):
        a(f"ds_write_b128 v{vT0}, {vr(XB+4*jj,4)} offset:{jj*1088}")
    a(f"""
    s_lshl_b32 s{sTMP}, s{sP}, 3
    s_add_u32 s{sTMP}, s{sTMP}, s{sA}
    s_lshl_b32 s{sTMP}, s{sTMP}, 5
    s_add_u32 s{sTMP}, s{sTMP}, s{sS}            ; (p*8+head)*32 + s
    s_lshl_b32 s{sTMP2}, s{sTMP}, 9
    s_add_u32 s{sTMP2}, s{sTMP2}, {WS_OP}
    v_and_b32 v{vT0}, 31, v{vLane}
    v_lshl_add_u32 v{vV}, v{vT0}, 4, s{sTMP2}
    s_lshl_b32 s{sTMP}, s{sTMP}, 4
    s_add_u32 s{sTMP}, s{sTMP}, {WS_ML}
    v_mov_b32 v{vKs+3}, s{sTMP}
    s_setprio 3
    s_waitcnt lgkmcnt(0)
    s_barrier     ; B3
    """)
    a.stamp(6)
    R = KS
    for w in range(4):
        a(f"ds_read_b128 {vr(R+4*w,4)}, v{vT1} offset:{w*OB_STRIDE}")
    MO, MT, LO_ = R+16, R+20, R+24
    a(f"ds_read_b128 {vr(MO,4)}, v{vKs+1} offset:{L_MX}")
    a(f"ds_read_b128 {vr(MT,4)}, v{vKs+2} offset:{L_MX}")
    a(f"ds_read_b128 {vr(LO_,4)}, v{vKs+1} offset:{L_LS}")
    a(f"""
    s_waitcnt lgkmcnt(1)
    v_max3_f32 v{MX}, v{MO}, v{MO+1}, v{MO+2}
    v_max3_f32 v{MT}, v{MT}, v{MT+1}, v{MT+2}
    v_max3_f32 v{MX}, v{MX}, v{MO+3}, v{MT+3}
    v_max_f32 v{MX}, v{MX}, v{MT}
    v_perm_b32 v{MX}, v{MX}, v{vN}, s{sSEL[0]}
    """)
    for w in range(4):
        a(f"v_sub_f32 v{MO+w}, v{MO+w}, v{MX}")
    for w in range(4):
        a(f"v_exp_f32 v{MO+w}, v{MO+w}")
    a("s_waitcnt lgkmcnt(0)")
    for t in range(4):
        a(f"v_mul_f32 v{R+t}, v{R+t}, v{MO}")
    a(f"v_mul_f32 v{LS}, v{LO_}, v{MO}")
    for w in range(1, 4):
        for t in range(4):
            a(f"v_fmac_f32 v{R+t}, v{R+4*w+t}, v{MO+w}")
        a(f"v_fmac_f32 v{LS}, v{LO_+w}, v{MO+w}")
    a.allreduce_g([R, R+1, R+2, R+3, LS], [R+4, R+5, R+6, R+7, R+8], steps=("v_permlane32_swap_b32",))
    a.tag(R+8, R, vN)
    a(f"""
    s_mov_b32 exec_hi, 0
    global_store_dwordx4 v{vV}, {vr(R+8,4)}, {sp(sWS)} sc1
    s_mov_b64 exec, -1
    v_mov_b32 v{R+12}, v{MX}
    v_mov_b32 v{R+13}, v{LS}
    v_mov_b32 v{R+14}, v{MX}
    v_mov_b32 v{R+15}, v{MX}
    """)
    a.tag(R+16, R+12, vN)
    a(f"""
    s_mov_b64 exec, 1
    global_store_dwordx4 v{vKs+3}, {vr(R+16,4)}, {sp(sWS)} sc1
    """)
    a.stamp(7)
    if o.get("b4", 1): a("s_barrier     ; B4")
    a.dump_stamps(8, 10)
    a("s_endpgm")

if __name__ == "__main__":
    out = sys.argv[1]
    stamps = len(sys.argv) > 2 and sys.argv[2] == "1"
    opts = {}
    for kv in sys.argv[3:]:
        k, v = kv.split("="); opts[k] = int(v)
    open(out, "w").write(build(stamps, **opts))
```

```python
import sys
from gen_common import *

WS_EPOCH = 0
WS_QP   = 0x010000
WS_ML   = 0x080000
WS_HP   = 0x090000
WS_OP   = 0x100000
WS_AP   = 0x200000
WS_FPP  = 0x240000
WS_FPC  = 0x280000
WS_FPS  = 0x2A0000
WS_O2   = 0x2C0000
WS_STAMP = 0x800000
L_Q   = 0
L_MX  = 2304
L_LS  = L_MX + 256
L_REDQ = L_LS + 256
L_CNT = 6912
L_K   = 8192
L_OB  = L_K
OB_STRIDE = 16384
LDS_BYTES = L_K + 131072
L_XA_A = 12544
L_FAC  = 16896
L_XA_C = 17920
L_RA0, L_RA1 = 28928, 33024
L_RD0, L_RD1 = 45312, 49408
L_XA_B = 12544
L_REDS = 16896

SPIN_LIMIT = 4000

sX, sK, sV, sWQ, sWO, sW1, sW2, sOUT, sDBG, sWS = 4, 6, 8, 10, 12, 16, 18, 20, 22, 24
sFULL = 14
sWAVE, sU = 26, 27
sNONCE = 28
sT = [29, 30, 31, 32]
sSEL = [33, 34, 35, 36]
sPLO, sPHI = 37, 38
sC = 39
sMHI = 40
sM8 = 42
sB0 = 44
sB1 = 46
sMB = 48
sM1 = 50
sSPIN = 60
sTMP, sTMP2 = 61, 62
sPEND = 63
sSTAMP = 64

def sp(r): return f"s[{r}:{r+1}]"
def vr(r, n): return f"v[{r}:{r+n-1}]" if n > 1 else f"v{r}"
XOR1, XOR2, ROR4, ROR8 = "quad_perm:[1,0,3,2]", "quad_perm:[2,3,0,1]", "row_ror:4", "row_ror:8"
DM = "row_mask:0xf bank_mask:0xf"

class Gen(Asm):
    def __init__(self, stamps=False, opts=None):
        super().__init__()
        self.stamps = stamps
        self.o = opts or {}
        self.uid = 0
    def lab(self, base):
        self.uid += 1
        return f"L_{base}_{self.uid}"
    def stamp(self, idx):
        if self.stamps:
            self(f"s_memrealtime {sp(sSTAMP + 2 * idx)}")
    def dump_stamps(self, n, tmpv):
        if not self.stamps: return
        if self.o.get("dbgst", 0) == 2:
            if n <= 10: return
            L = self.lab("nodbg")
            self(f"s_cmp_lg_u32 s2, {self.o.get('dbgwg', 0)}\n s_cbranch_scc1 {L}\n s_cmp_lg_u32 s{sWAVE}, 0\n s_cbranch_scc1 {L}")
            self(f"s_waitcnt lgkmcnt(0)\n s_mov_b64 exec, 1\n v_mov_b32 v{tmpv}, 0")
            for k, i in enumerate((1, 2, 3, 4, 5, 6, 7, 8, 9, 10, 11, 12, 13, 15, 16, 18)):
                self(f"s_sub_u32 s{sTMP}, s{sSTAMP+2*i}, s{sSTAMP}\n v_mov_b32 v{tmpv+1}, s{sTMP}\n global_store_dword v{tmpv}, v{tmpv+1}, {sp(sDBG)} offset:{4*k}\n s_nop 1")
            self.label(L)
            return
        self(f"""s_waitcnt lgkmcnt(0)
        s_lshl_b32 s{sTMP}, s2, 4
        s_add_u32 s{sTMP}, s{sTMP}, s{sWAVE}
        s_lshl_b32 s{sTMP}, s{sTMP}, 7
        s_add_u32 s{sTMP}, s{sTMP}, {WS_STAMP}
        s_mov_b64 exec, 1
        v_mov_b32 v{tmpv}, s{sTMP}""")
        for i in range(n):
            self(f"v_mov_b32 v{tmpv+1}, s{sSTAMP+2*i}\n global_store_dword v{tmpv}, v{tmpv+1}, {sp(sWS)} offset:{4*i}\n s_nop 1")
    def full(self): self(f"s_mov_b64 exec, {sp(sFULL)}")
    def mask(self, lo, hi): self(f"s_and_b32 exec_lo, s{sFULL}, {lo}\n s_and_b32 exec_hi, s{sFULL+1}, {hi}")
    def guard(self, fn):
        L = self.lab("grd")
        self(f"s_cbranch_execz {L}")
        fn()
        self.label(L)
    def gbarrier(self):
        self("s_waitcnt lgkmcnt(0)")
        self.guard(lambda: self("s_barrier"))
    def dpp(self, op, regs, ctrls):
        n = len(regs)
        for ctrl in ctrls:
            if n < 3: self(f"s_nop {2 - n}" if n < 2 else "s_nop 0")
            for r in regs:
                self(f"{op}_dpp v{r}, v{r}, v{r} {ctrl} {DM}")
    def allreduce_g(self, regs, tmps, op="v_add_f32", steps=("v_permlane16_swap_b32", "v_permlane32_swap_b32")):
        n = len(regs)
        for swap in steps:
            for r, t in zip(regs, tmps):
                self(f"v_mov_b32 v{t}, v{r}")
            self("s_nop 1" if n < 2 else "s_nop 0")
            for r, t in zip(regs, tmps):
                self(f"{swap} v{r}, v{t}")
            self("s_nop 1" if n < 2 else "s_nop 0")
            for r, t in zip(regs, tmps):
                self(f"{op} v{r}, v{r}, v{t}")
    def tag(self, dst, src, vN):
        for i in range(4):
            self(f"v_perm_b32 v{dst+i}, v{src+i}, v{vN}, s{sSEL[i]}")
    def check(self, grans, acc):
        for gi, gbase in enumerate(grans):
            for i in range(4):
                if gi == 0:
                    self(f"v_xor_b32 v{acc+i}, s{sT[i]}, v{gbase+i}")
                else:
                    self(f"v_bitop3_b32 v{acc+i}, v{gbase+i}, s{sT[i]}, v{acc+i} bitop3:0xbe")
        self(f"v_or3_b32 v{acc}, v{acc}, v{acc+1}, v{acc+2}")
        self(f"v_or_b32 v{acc}, v{acc}, v{acc+3}")
        self(f"v_and_b32 v{acc}, 0xff, v{acc}")
        self(f"v_cmp_ne_u32 vcc, 0, v{acc}")
    def spin(self, name, issue, grans, acc, waitstr="s_waitcnt vmcnt(0)", sleep=0):
        L = self.lab(name); Lok = self.lab(name + "ok")
        self(f"s_mov_b32 s{sSPIN}, 0")
        self.label(L)
        self.guard(issue)
        self.guard(lambda: self(waitstr))
        self.check(grans, acc)
        self("s_nop 0")
        self(f"s_cbranch_vccz {Lok}")
        self(f"s_add_u32 s{sSPIN}, s{sSPIN}, 1")
        if sleep: self(f"s_sleep {sleep}")
        self(f"s_cmp_lt_u32 s{sSPIN}, {SPIN_LIMIT}")
        self(f"s_cbranch_scc1 {L}")
        self("s_branch L_abort")
        self.label(Lok)
    def pspin(self, name, load, sets, acc, dst=None, ncopy=4, sleep=0, thr=0):
        L = self.lab(name); Lok = self.lab(name + "ok")
        oks = [self.lab(name + f"k{i}") for i in range(3)]
        self(f"s_mov_b32 s{sSPIN}, 0")
        self.guard(lambda: (load(sets[0]), load(sets[1])))
        self.label(L)
        for k in range(3):
            self.guard(lambda k=k: (load(sets[(k + 2) % 3]), self("s_waitcnt vmcnt(2)")))
            self.check([sets[k]], acc)
            if thr:
                self(f"s_nop 0\n s_bcnt1_i32_b64 s{sTMP}, vcc\n s_cmp_le_u32 s{sTMP}, {thr}\n s_cbranch_scc1 {oks[k]}")
            else:
                self("s_nop 0")
                self(f"s_cbranch_vccz {oks[k]}")
            if sleep: self(f"s_sleep {sleep}")
        self(f"s_add_u32 s{sSPIN}, s{sSPIN}, 1")
        self(f"s_cmp_lt_u32 s{sSPIN}, {SPIN_LIMIT}")
        self(f"s_cbranch_scc1 {L}")
        self("s_branch L_abort")
        for k in range(3):
            self.label(oks[k])
            if dst is not None and sets[k] != dst:
                for t in range(ncopy): self(f"v_mov_b32 v{dst+t}, v{sets[k]+t}")
            if k < 2: self(f"s_branch {Lok}")
        self.label(Lok)
    def ldswait(self, name, vaddr, vtmp, off, count, sleep=2):
        L = self.lab(name); Lok = self.lab(name + "ok")
        self(f"""
        s_mov_b32 s{sSPIN}, 0
        s_cbranch_execz {Lok}
        {L}:
        ds_read_b32 v{vtmp}, v{vaddr} offset:{off}
        s_waitcnt lgkmcnt(0)
        v_readfirstlane_b32 s{sTMP}, v{vtmp}
        s_cmp_ge_u32 s{sTMP}, {count}
        s_cbranch_scc1 {Lok}
        s_add_u32 s{sSPIN}, s{sSPIN}, 1""")
        if sleep: self(f"s_sleep {sleep}")
        self(f"""
        s_cmp_lt_u32 s{sSPIN}, 400000
        s_cbranch_scc1 {L}
        s_branch L_abort
        {Lok}:""")
    def perm_unit(self, raw, T):
        for t in range(4):
            for par, sel in ((0, sPLO), (1, sPHI)):
                j = 2 * t + par
                for q in range(4):
                    self(f"v_perm_b32 v{T + 4*j + q}, v{raw + 4*(2*q+1) + t}, v{raw + 4*(2*q) + t}, s{sel}")
    def wload(self, dst, sbase, voff, rowfn, rs, nt=True):
        prev = 0
        for i in range(8):
            d = rowfn(i) - prev
            if d > 0:
                self(f"s_add_u32 s{sbase}, s{sbase}, {d*rs}\n s_addc_u32 s{sbase+1}, s{sbase+1}, 0")
            elif d < 0:
                self(f"s_sub_u32 s{sbase}, s{sbase}, {-d*rs}\n s_subb_u32 s{sbase+1}, s{sbase+1}, 0")
            prev = rowfn(i)
            self(f"global_load_dwordx4 {vr(dst+4*i, 4)}, v{voff}, {sp(sbase)}" + (" nt" if nt else ""))
    def mfma8(self, D, AOP, T):
        for j in range(8):
            self(f"v_mfma_f32_16x16x32_bf16 {vr(D+4*j,4)}, {vr(AOP,4)}, {vr(T+4*j,4)}, 0")
    def select(self, X, D, r):
        for jj in range(4):
            self(f"v_cndmask_b32 v{X+jj}, v{D+4*jj+r}, v{D+4*(4+jj)+r}, {sp(sMHI)}")
    def nonce_from(self, vN):
        self(f"""
        v_readfirstlane_b32 s{sNONCE}, v{vN}
        s_add_u32 s{sNONCE}, s{sNONCE}, 0x01010101
        s_or_b32 s{sNONCE}, s{sNONCE}, 1
        s_mov_b32 s{sT[0]}, s{sNONCE}
        s_lshr_b32 s{sT[1]}, s{sNONCE}, 8
        s_lshr_b32 s{sT[2]}, s{sNONCE}, 16
        s_lshr_b32 s{sT[3]}, s{sNONCE}, 24
        v_mov_b32 v{vN}, s{sNONCE}
        """)

STD_ROW = lambda i: 16 * (i // 4) + (i % 4)
WO_ROW = lambda i: 8 * (i % 4) + (i // 4)

def reduce4(a, R, X, vN):
    for t in (0, 2):
        a(f"v_pk_add_f32 {vr(R+t,2)}, {vr(R+t,2)}, {vr(R+4+t,2)}\n v_pk_add_f32 {vr(R+8+t,2)}, {vr(R+8+t,2)}, {vr(R+12+t,2)}")
    for t in (0, 2):
        a(f"v_pk_add_f32 {vr(R+t,2)}, {vr(R+t,2)}, {vr(R+8+t,2)}")
    a.tag(X, R, vN)

def build(stamps=False, **o):
    a = Gen(stamps, o)
    a(f"""
    s_cmp_ge_u32 s2, 256
    s_cbranch_scc1 L_end""")
    a.stamp(0)
    a(f"""
    s_load_dwordx8 s[4:11], s[0:1], 0
    s_load_dwordx2 s[12:13], s[0:1], 32
    s_load_dwordx4 s[16:19], s[0:1], 48
    s_load_dwordx4 s[20:23], s[0:1], 64
    s_load_dwordx2 s[24:25], s[0:1], 80
    v_lshrrev_b32 v1, 6, v0
    v_and_b32 v0, 63, v0
    s_mov_b32 s{sPLO}, 0x05040100
    v_readfirstlane_b32 s{sWAVE}, v1
    s_mov_b32 s{sPHI}, 0x07060302
    s_mov_b32 s{sSEL[0]}, 0x07060500
    s_mov_b32 s{sSEL[1]}, 0x07060501
    s_mov_b32 s{sSEL[2]}, 0x07060502
    s_mov_b32 s{sSEL[3]}, 0x07060503
    s_mov_b64 {sp(sFULL)}, -1
    v_lshrrev_b32 v2, 4, v0            ; g
    v_and_b32 v3, 15, v0               ; m / c
    s_cmp_ge_u32 s{sWAVE}, 4
    s_cbranch_scc1 L_A
    """)
    gen_G(a)
    gen_A(a)
    a("""
    L_abort:
    L_end:
    s_endpgm
    """)
    return kernel_wrap(a.text(), 256, 768, LDS_BYTES, 168)

def gen_G(a):
    o = a.o
    vLane, vG, vM, vB, vN = 0, 2, 3, 4, 6
    vBG = 1
    vPP = 5
    vA0, vA1, vA2 = 7, 8, 9
    vPubH = 10
    vXW = 11
    vXR = vPP
    XR = 12
    AOP = 16
    ACC = 20
    RAWA, RAWB, T, GA = 24, 56, 88, 120
    u = sU
    sKS, sHQ, sP, sBA, sHKV, sFC2, sH, sCC = 52, 53, 54, 55, 56, 57, 58, 59
    a(f"""
    ; ---------------- G waves ----------------
    s_setprio 3
    s_mov_b32 s{u}, s{sWAVE}
    v_bfe_u32 v{vB}, v{vM}, 2, 1
    v_and_b32 v{vPP}, 3, v{vM}
    v_lshrrev_b32 v{vA0}, 3, v{vM}
    v_lshl_or_b32 v{vPP}, v{vA0}, 2, v{vPP}
    s_and_b32 s{sKS}, s2, 7
    s_lshr_b32 s{sHQ}, s2, 3
    v_mov_b32 v{vA0}, 0
    v_lshl_add_u32 v{vA1}, v{vPP}, 2, v{vG}
    v_lshlrev_b32 v{vA1}, 4, v{vA1}
    v_lshl_add_u32 v{vA1}, v{vB}, 11, v{vA1}
    s_lshl_b32 s{sTMP}, s{sKS}, 8
    s_lshl_b32 s{sTMP2}, s{u}, 6
    s_add_u32 s{sTMP}, s{sTMP}, s{sTMP2}
    v_lshlrev_b32 v{vA2}, 3, v{vG}
    v_lshl_add_u32 v{vA2}, v{vB}, 11, v{vA2}
    v_add_u32 v{vA2}, s{sTMP}, v{vA2}
    s_lshl_b32 s{sTMP}, s{sKS}, 7
    s_lshl_b32 s{sTMP2}, s{u}, 5
    s_add_u32 s{sTMP}, s{sTMP}, s{sTMP2}
    s_lshl_b32 s{sTMP}, s{sTMP}, 13          ; *8192
    s_lshl_b32 s{sTMP2}, s{sHQ}, 8
    s_add_u32 s{sTMP}, s{sTMP}, s{sTMP2}
    v_lshlrev_b32 v{vPubH}, 15, v{vG}          ; 4g*8192
    v_lshl_add_u32 v{vPubH}, v{vM}, 4, v{vPubH}
    s_waitcnt lgkmcnt(0)
    s_add_u32 s{sB0}, s{sWQ}, s{sTMP}
    s_addc_u32 s{sB0+1}, s{sWQ+1}, 0
    global_load_dword v{vN}, v{vA0}, {sp(sWS)} sc1
    """)
    for i in range(4):
        a(f"global_load_dwordx4 {vr(GA+4*i,4)}, v{vA1}, {sp(sX)} offset:{i*512}")
    a(f"global_load_dwordx2 {vr(XR,2)}, v{vA2}, {sp(sX)}")
    a(f"global_load_dwordx2 {vr(XR+2,2)}, v{vA2}, {sp(sX)} offset:32")
    a.wload(RAWA, sB0, vPubH, STD_ROW, 8192)
    a(f"""
    s_mov_b32 s{sMHI}, 0
    s_mov_b32 s{sMHI+1}, -1
    s_mov_b32 s{sMB}, 0xf0f0f0f0
    s_mov_b32 s{sMB+1}, 0xf0f0f0f0
    s_mov_b32 s{sM1}, 0x22222222
    s_mov_b32 s{sM1+1}, 0x22222222
    v_mov_b32 v{ACC}, 0
    v_mov_b32 v{ACC+1}, 0
    v_mov_b32 v{ACC+2}, 0
    v_mov_b32 v{ACC+3}, 0
    s_lshl_b32 s{sTMP}, s{u}, 10
    v_lshl_add_u32 v{vA0}, v{vLane}, 4, s{sTMP}
    ds_write_b128 v{vA0}, {vr(ACC,4)} offset:{L_REDQ}
    v_and_b32 v{vA1}, 1, v{vLane}
    v_lshlrev_b32 v{vA1}, 4, v{vA1}
    ds_write_b128 v{vA1}, {vr(ACC,4)} offset:{L_CNT}
    s_waitcnt lgkmcnt(0)
    s_barrier        ; B0
    v_lshrrev_b32 v{vPubH}, 1, v{vG}
    v_lshl_add_u32 v{vPubH}, v{vM}, 1, v{vPubH}
    v_lshlrev_b32 v{vPubH}, 4, v{vPubH}      ; (2c+half)*16
    s_waitcnt vmcnt(8)
    """)
    a.stamp(1)
    a.nonce_from(vN)
    S0, S1, Q0, Q1, LO, HI = RAWB, RAWB+1, RAWB+2, RAWB+3, RAWB+4, RAWB+5
    for k in range(16):
        w = GA + k
        a(f"v_lshlrev_b32 v{LO}, 16, v{w}\n v_and_b32 v{HI}, 0xffff0000, v{w}")
        if k == 0:
            a(f"v_mov_b32 v{S0}, v{LO}\n v_mov_b32 v{S1}, v{HI}\n v_mul_f32 v{Q0}, v{LO}, v{LO}\n v_mul_f32 v{Q1}, v{HI}, v{HI}")
        else:
            a(f"v_add_f32 v{S0}, v{S0}, v{LO}\n v_add_f32 v{S1}, v{S1}, v{HI}\n v_fmac_f32 v{Q0}, v{LO}, v{LO}\n v_fmac_f32 v{Q1}, v{HI}, v{HI}")
    a(f"v_add_f32 v{S0}, v{S0}, v{S1}\n v_add_f32 v{S1}, v{Q0}, v{Q1}")
    a.dpp("v_add_f32", [S0, S1], (XOR1, XOR2, ROR8))
    a.allreduce_g([S0, S1], [Q0, Q1])
    MEAN, RSTD = S0, S1
    a(f"""
    v_mul_f32 v{MEAN}, 0x3a800000, v{S0}        ; /1024
    v_mul_f32 v{Q0}, 0x3a800000, v{S1}
    v_fma_f32 v{Q0}, -v{MEAN}, v{MEAN}, v{Q0}
    v_max_f32 v{Q0}, 0, v{Q0}
    v_add_f32 v{Q0}, 0x3727c5ac, v{Q0}           ; + 1e-5
    v_rsq_f32 v{RSTD}, v{Q0}
    """)
    XF = RAWB + 8
    for q in range(4):
        a(f"v_lshlrev_b32 v{XF+2*q}, 16, v{XR+q}\n v_and_b32 v{XF+2*q+1}, 0xffff0000, v{XR+q}")
    for e in range(8):
        a(f"v_sub_f32 v{XF+e}, v{XF+e}, v{MEAN}")
    for e in range(8):
        a(f"v_mul_f32 v{XF+e}, v{XF+e}, v{RSTD}")
    for q in range(4):
        a(f"v_cvt_pk_bf16_f32 v{AOP+q}, v{XF+2*q}, v{XF+2*q+1}")
    a("s_waitcnt vmcnt(0)")
    a.stamp(2)
    a.perm_unit(RAWA, T)
    a("s_nop 1")
    a.mfma8(RAWB, AOP, T)
    a("s_nop 7")
    X = ACC
    a.select(X, RAWB, 0)
    a.tag(X, X, vN)
    a(f"""
    ds_write_b128 v{vA0}, {vr(X,4)} offset:{L_REDQ}
    s_cmp_lg_u32 s{u}, 0
    s_cbranch_scc1 L_q_nored
    v_lshlrev_b32 v{vA0}, 4, v{vLane}
    """)
    def iss():
        for w in range(4):
            a(f"ds_read_b128 {vr(GA+4*w,4)}, v{vA0} offset:{L_REDQ + w*1024}")
    a.spin("redq", iss, [GA, GA+4, GA+8, GA+12], ACC, waitstr="s_waitcnt lgkmcnt(0)")
    reduce4(a, GA, X, vN)
    a(f"""
    s_lshl_b32 s{sTMP}, s{sHQ}, 13
    s_lshl_b32 s{sTMP2}, s{sKS}, 9
    s_add_u32 s{sTMP}, s{sTMP}, s{sTMP2}
    s_add_u32 s{sTMP}, s{sTMP}, {WS_QP}
    v_and_b32 v{vA0}, 1, v{vG}
    v_lshl_add_u32 v{vA0}, v{vA0}, 12, v{vPubH}
    v_add_u32 v{vA0}, s{sTMP}, v{vA0}
    global_store_dwordx4 v{vA0}, {vr(X,4)}, {sp(sWS)} sc1
    L_q_nored:
    """)
    a.stamp(3)
    sXI, sSLOT, sCCP, sKSB, sFCP = 54, 55, 56, 57, 59
    sHA, sFC = 58, 53
    a(f"""
    s_and_b32 s{sTMP}, s2, 7
    s_lshr_b32 s{sB1}, s{sTMP}, 2
    s_and_b32 s{sB1+1}, s{sTMP}, 3
    s_lshr_b32 s{sXI}, s{sTMP}, 1
    s_lshr_b32 s{sSLOT}, s2, 3
    s_lshl_b32 s{sHA}, s{sXI}, 3
    s_and_b32 s{sTMP}, s{sSLOT}, 7
    s_add_u32 s{sHA}, s{sHA}, s{sTMP}
    s_and_b32 s{sTMP}, s{sSLOT}, 1
    s_lshl_b32 s{sKSB}, s{sXI}, 1
    s_add_u32 s{sKSB}, s{sKSB}, s{sTMP}
    s_lshr_b32 s{sFCP}, s{sSLOT}, 1
    s_lshr_b32 s{sTMP}, s{sSLOT}, 2
    s_mul_i32 s{sFC}, s{sXI}, 7
    s_add_u32 s{sFC}, s{sFC}, s{sTMP}
    s_lshl_b32 s{sTMP}, s{sKSB}, 8
    s_lshl_b32 s{sTMP2}, s{u}, 6
    s_add_u32 s{sTMP}, s{sTMP}, s{sTMP2}
    v_lshlrev_b32 v{vA2}, 3, v{vG}
    v_lshl_add_u32 v{vA2}, v{vB}, 11, v{vA2}
    v_add_u32 v{vA2}, s{sTMP}, v{vA2}
    global_load_dwordx2 {vr(XR,2)}, v{vA2}, {sp(sX)}
    global_load_dwordx2 {vr(XR+2,2)}, v{vA2}, {sp(sX)} offset:32
    v_and_b32 v{vBG}, 31, v{vLane}
    v_lshlrev_b32 v{vBG}, 4, v{vBG}             ; gi*16
    v_lshrrev_b32 v{vA0}, 5, v{vLane}
    v_mul_u32_u24 v{vA0}, 544, v{vA0}
    v_add_u32 v{vXW}, v{vA0}, v{vBG}
    v_and_b32 v{vA0}, 3, v{vM}
    v_mul_u32_u24 v{vA0}, 1088, v{vA0}
    v_mul_u32_u24 v{vA1}, 544, v{vB}
    v_add_u32 v{vA0}, v{vA0}, v{vA1}
    v_lshl_add_u32 v{vXR}, v{vG}, 4, v{vA0}
    s_mul_i32 s{sTMP}, s{u}, 1088
    v_add_u32 v{vXW}, s{sTMP}, v{vXW}
    s_lshl_b32 s{sTMP}, s{u}, 7
    v_add_u32 v{vXR}, s{sTMP}, v{vXR}
    """)
    if o.get("dry", 1):
        a(f"""
        s_mov_b64 {sp(sFULL)}, 0
        s_mov_b64 exec, 0
        s_branch L_tail
        L_dry_done:
        s_mov_b64 {sp(sFULL)}, -1
        s_mov_b64 exec, -1
        s_setprio 3
        """)
    a.stamp(4)
    QG = RAWB
    a(f"""
    s_and_b32 s{sTMP}, s2, 3                   ; hkv
    s_lshl_b32 s{sTMP}, s{sTMP}, 3
    s_lshl_b32 s{sTMP2}, s{u}, 1
    s_add_u32 s{sTMP}, s{sTMP}, s{sTMP2}
    s_lshl_b32 s{sTMP}, s{sTMP}, 1
    s_bfe_u32 s{sTMP2}, s2, 0x10002            ; b = (wg>>2)&1
    s_add_u32 s{sTMP}, s{sTMP}, s{sTMP2}
    s_lshl_b32 s{sTMP}, s{sTMP}, 12
    s_add_u32 s{sTMP}, s{sTMP}, {WS_QP}
    s_add_u32 s{sWQ}, s{sWS}, s{sTMP}
    s_addc_u32 s{sWQ+1}, s{sWS+1}, 0
    s_add_u32 s{sB1}, s{sWQ}, 8192
    s_addc_u32 s{sB1+1}, s{sWQ+1}, 0
    v_lshlrev_b32 v{vA2}, 4, v{vLane}
    """)
    def issq():
        for hh, sb in ((0, sWQ), (1, sB1)):
            for i in range(4):
                a(f"global_load_dwordx4 {vr(QG+16*hh+4*i,4)}, v{vA2}, {sp(sb)} offset:{i*1024} sc1")
    a.spin("qg", issq, [QG+4*i for i in range(8)], ACC, sleep=o.get("qsleep", 4))
    for hh in range(2):
        base = QG + 16*hh
        for t in range(4):
            a(f"v_add_f32 v{base+t}, v{base+t}, v{base+4+t}\n v_add_f32 v{base+8+t}, v{base+8+t}, v{base+12+t}")
        for t in range(4):
            a(f"v_add_f32 v{base+t}, v{base+t}, v{base+8+t}")
    a("s_nop 1")
    for t in range(4):
        a(f"v_permlane32_swap_b32 v{QG+t}, v{QG+16+t}")
    a("s_nop 1")
    for t in range(4):
        a(f"v_add_f32 v{QG+t}, v{QG+t}, v{QG+16+t}")
    a(f"""
    v_cvt_pk_bf16_f32 v{QG+4}, v{QG}, v{QG+1}
    v_cvt_pk_bf16_f32 v{QG+5}, v{QG+2}, v{QG+3}
    v_lshrrev_b32 v{vA0}, 5, v{vLane}            ; kq
    s_lshl_b32 s{sTMP}, s{u}, 1
    v_add_u32 v{vA0}, s{sTMP}, v{vA0}            ; head
    v_mul_u32_u24 v{vA0}, 272, v{vA0}
    v_and_b32 v{vA1}, 31, v{vLane}
    v_lshl_add_u32 v{vA0}, v{vA1}, 3, v{vA0}
    ds_write_b64 v{vA0}, {vr(QG+4,2)} offset:{L_Q}
    v_mov_b32 v{vA1}, 0
    v_mov_b32 v{vA2}, 1
    s_waitcnt lgkmcnt(0)
    s_mov_b64 exec, 1
    ds_add_u32 v{vA1}, v{vA2} offset:{L_CNT}
    s_mov_b64 exec, -1
    """)
    a.stamp(5)
    a(f"s_setprio {o.get('gprio', 1)}")

    def wunit(dst, sptr, voffn, rowfn, rs):
        prev = 0
        for i in range(8):
            d = rowfn(i) - prev
            if d > 0: a(f"s_add_u32 s{sptr}, s{sptr}, {d*rs}\n s_addc_u32 s{sptr+1}, s{sptr+1}, 0")
            elif d < 0: a(f"s_sub_u32 s{sptr}, s{sptr}, {-d*rs}\n s_subb_u32 s{sptr+1}, s{sptr+1}, 0")
            prev = rowfn(i)
            a(f"global_load_dwordx4 {vr(dst+4*i, 4)}, v{voffn}, {sp(sptr)} nt")
    def wpair(dst0, dst1, sptr_src, rowbase_code, rs, gshift_code, rowfn):
        a(rowbase_code)
        a(f"""
        s_add_u32 s{sB0}, s{sptr_src}, s{sTMP}
        s_addc_u32 s{sB0+1}, s{sptr_src+1}, 0
        s_add_u32 s{sR1}, s{sB0}, 256
        s_addc_u32 s{sR1+1}, s{sB0+1}, 0""")
        a(gshift_code)
        a.guard(lambda: (wunit(dst0, sB0, vA1, rowfn, rs), wunit(dst1, sR1, vA1, rowfn, rs)))
    sR1 = 6
    def sweep(name, issue, grans, shadow, sleep):
        L = a.lab(name); Lc = a.lab(name + "c"); Lok = a.lab(name + "ok")
        a(f"s_mov_b32 s{sSPIN}, 0")
        a.guard(issue)
        shadow()
        a(f"s_branch {Lc}")
        a.label(L)
        a.guard(issue)
        a.label(Lc)
        a.guard(lambda: a("s_waitcnt vmcnt(0)"))
        a.check(grans, ACC)
        a("s_nop 0")
        a(f"s_cbranch_vccz {Lok}")
        a(f"s_add_u32 s{sSPIN}, s{sSPIN}, 1")
        if sleep: a(f"s_sleep {sleep}")
        a(f"s_cmp_lt_u32 s{sSPIN}, {SPIN_LIMIT}")
        a(f"s_cbranch_scc1 {L}")
        a("s_branch L_abort")
        a.label(Lok)
    HS = [AOP, GA+40, GA+44]
    D = GA
    vals = [GA + 32 + e for e in range(8)]
    psl = o.get("psleep", 1)
    def exchange(lbuf):
        a(f"ds_write_b128 v{vXW}, {vr(GA,4)} offset:{lbuf}")
        a.gbarrier()
        a(f"""
        ds_read_b128 {vr(vals[0],4)}, v{vXR} offset:{lbuf}
        ds_read_b128 {vr(vals[4],4)}, v{vXR} offset:{lbuf + 64}
        s_waitcnt lgkmcnt(0)""")
        a.dpp("v_add_f32", vals, (XOR1, XOR2))
    def red_pub2(name, D1, lb0, lb1, addr):
        L = a.lab("nored" + name)
        R = GA + 32
        a.select(ACC, D, 0)
        a(f"ds_write_b128 v{vA0}, {vr(ACC,4)} offset:{lb0}")
        a.select(AOP, D1, 0)
        a(f"ds_write_b128 v{vA0}, {vr(AOP,4)} offset:{lb1}")
        a.gbarrier()
        a(f"""
        s_cmp_ge_u32 s{sU}, 2
        s_cbranch_scc1 {L}
        s_mul_i32 s{sTMP}, s{sU}, {lb1 - lb0}
        v_lshl_add_u32 v{vA0}, v{vLane}, 4, s{sTMP}""")
        for w in range(4):
            a(f"ds_read_b128 {vr(R+4*w,4)}, v{vA0} offset:{lb0 + w*1024}")
        addr()
        a("s_waitcnt lgkmcnt(0)")
        reduce4(a, R, ACC, vN)
        a.guard(lambda: a(f"global_store_dwordx4 v{vA0}, {vr(ACC,4)}, {sp(sWS)} sc1"))
        a.label(L)
    def o_hint_setup(hreg):
        a(f"""
        s_lshl_b32 s{sTMP2}, s{hreg}, 14                ; h*32*512
        s_lshl_b32 s{sTMP}, s{u}, 12                  ; 8u*512
        s_add_u32 s{sTMP2}, s{sTMP2}, s{sTMP}
        s_add_u32 s{sTMP2}, s{sTMP2}, {WS_OP}
        s_add_u32 s{sWQ}, s{sWS}, s{sTMP2}
        s_addc_u32 s{sWQ+1}, s{sWS+1}, 0
        v_lshrrev_b32 v{vA1}, 5, v{vLane}
        v_lshl_add_u32 v{vA2}, v{vA1}, 19, v{vBG}      ; b<<19 + gi*16
        v_bfe_u32 v{vA1}, v{vLane}, 3, 1
        v_and_b32 v{vA0}, 7, v{vLane}
        v_lshlrev_b32 v{vA0}, 9, v{vA0}
        v_lshl_add_u32 v{vA0}, v{vA1}, 19, v{vA0}
        """)
    a("L_tail:")
    a(f"""
    s_bitcmp1_b32 s2, 0
    s_cbranch_scc0 L_Y
    """)
    a(f"v_mov_b32 v{vA1}, 0")
    a.ldswait("vw", vA1, vA2, L_CNT+4, 8)
    a(f"s_setprio {o.get('woprio', 0)}")
    wpair(RAWA, RAWB, sWO, f"""
        s_lshl_b32 s{sTMP}, s{sHA}, 7
        s_lshl_b32 s{sTMP2}, s{u}, 5
        s_add_u32 s{sTMP}, s{sTMP}, s{sTMP2}
        s_lshl_b32 s{sTMP}, s{sTMP}, 11
        s_lshr_b32 s{sTMP2}, s{sSLOT}, 3
        s_lshl_b32 s{sTMP2}, s{sTMP2}, 9
        s_add_u32 s{sTMP}, s{sTMP}, s{sTMP2}""", 2048, f"""
        v_lshlrev_b32 v{vA1}, 12, v{vG}             ; 2g*2048
        v_lshl_add_u32 v{vA1}, v{vM}, 4, v{vA1}""", WO_ROW)
    a(f"s_setprio {o.get('gprio', 1)}")
    a.stamp(6)
    a.guard(lambda: a("s_barrier      ; B3\n s_barrier      ; B4"))
    a.stamp(7)
    a(f"""
    s_lshl_b32 s{sTMP}, s{sHA}, 9
    s_add_u32 s{sTMP}, s{sTMP}, {WS_ML}
    v_lshrrev_b32 v{vA1}, 5, v{vLane}             ; b
    v_lshl_add_u32 v{GA+47}, v{vA1}, 14, v{vBG}
    v_add_u32 v{GA+47}, s{sTMP}, v{GA+47}
    """)
    o_hint_setup(sHA)
    HSA = [AOP, GA+36, GA+40]
    a.mask("0xffff", "0")
    a.pspin("hO", lambda r: a(f"global_load_dwordx4 {vr(r,4)}, v{vA0}, {sp(sWQ)} sc1"), HSA, ACC, sleep=psl)
    a.full()
    a.stamp(8)
    MLR = GA + 32
    def issA():
        a(f"v_mov_b32 v{vA1}, v{GA+47}")
        a(f"global_load_dwordx4 {vr(MLR,4)}, v{vA1}, {sp(sWS)} sc1")
        for i in range(8):
            a(f"global_load_dwordx4 {vr(GA+4*i,4)}, v{vA2}, {sp(sWQ)} offset:{i*512} sc1")
    MM, LLr, TT = GA+44, GA+45, GA+46
    def factors():
        a(f"v_mov_b32 v{MM}, v{MLR}")
        a.dpp("v_max_f32", [MM], (XOR1, XOR2, ROR4, ROR8))
        a.allreduce_g([MM], [TT], "v_max_f32", steps=("v_permlane16_swap_b32",))
        a(f"""
        v_sub_f32 v{MM}, v{MLR}, v{MM}
        v_exp_f32 v{MM}, v{MM}
        s_nop 0
        v_mul_f32 v{LLr}, v{MM}, v{MLR+1}""")
        a.dpp("v_add_f32", [LLr], (XOR1, XOR2, ROR4, ROR8))
        a.allreduce_g([LLr], [TT], "v_add_f32", steps=("v_permlane16_swap_b32",))
        a(f"""
        v_rcp_f32 v{LLr}, v{LLr}
        s_nop 0
        v_mul_f32 v{MM}, v{MM}, v{LLr}
        s_lshl_b32 s{sTMP}, s{u}, 8
        v_lshl_add_u32 v{vA0}, v{vLane}, 2, s{sTMP}
        ds_write_b32 v{vA0}, v{MM} offset:{L_FAC}
        v_lshrrev_b32 v{vA1}, 5, v{vLane}
        s_lshl_b32 s{sTMP2}, s{u}, 5
        s_add_u32 s{sTMP}, s{sTMP}, s{sTMP2}
        v_lshl_add_u32 v{vA0}, v{vA1}, 7, s{sTMP}      ; u*256 + b*128 + 8u*4
        ds_read_b128 {vr(AOP,4)}, v{vA0} offset:{L_FAC}
        ds_read_b128 {vr(GA+40,4)}, v{vA0} offset:{L_FAC+16}
        """)
    L = a.lab("swA"); Lok = a.lab("swAok")
    a(f"s_mov_b32 s{sSPIN}, 0")
    a.guard(issA)
    a.perm_unit(RAWA, T)
    a.perm_unit(RAWB, RAWA)
    a.label(L)
    a.guard(lambda: a("s_waitcnt vmcnt(8)"))
    for t in range(4):
        a(f"v_xor_b32 v{ACC+t}, s{sT[t]}, v{MLR+t}")
    a(f"v_or3_b32 v{GA+39}, v{ACC}, v{ACC+1}, v{ACC+2}")
    a(f"v_or_b32 v{GA+39}, v{GA+39}, v{ACC+3}")
    factors()
    a.guard(lambda: a("s_waitcnt vmcnt(0)"))
    for gi in range(8):
        for i in range(4):
            if gi == 0:
                a(f"v_xor_b32 v{ACC+i}, s{sT[i]}, v{GA+i}")
            else:
                a(f"v_bitop3_b32 v{ACC+i}, v{GA+4*gi+i}, s{sT[i]}, v{ACC+i} bitop3:0xbe")
    a(f"v_or3_b32 v{ACC}, v{ACC}, v{ACC+1}, v{ACC+2}\n v_or3_b32 v{ACC}, v{ACC}, v{ACC+3}, v{GA+39}\n v_and_b32 v{ACC}, 0xff, v{ACC}\n v_cmp_ne_u32 vcc, 0, v{ACC}")
    a(f"s_nop 0\n s_cbranch_vccz {Lok}")
    a(f"s_add_u32 s{sSPIN}, s{sSPIN}, 1\n s_sleep 1\n s_waitcnt lgkmcnt(0)")
    a.guard(issA)
    a(f"s_cmp_lt_u32 s{sSPIN}, {SPIN_LIMIT}\n s_cbranch_scc1 {L}\n s_branch L_abort")
    a.label(Lok)
    a.stamp(9)
    FACR = [AOP, AOP+1, AOP+2, AOP+3, GA+40, GA+41, GA+42, GA+43]
    a("s_waitcnt lgkmcnt(0)")
    for t in range(4):
        a(f"v_mul_f32 v{GA+t}, v{GA+t}, v{FACR[0]}")
    for i in range(1, 8):
        for t in range(4):
            a(f"v_fmac_f32 v{GA+t}, v{GA+4*i+t}, v{FACR[i]}")
    exchange(L_XA_A)
    for q in range(4):
        a(f"v_cvt_pk_bf16_f32 v{AOP+q}, v{vals[2*q]}, v{vals[2*q+1]}")
    a("s_nop 1")
    a.mfma8(D, AOP, T)
    a.mfma8(RAWB, AOP, RAWA)
    a(f"s_lshl_b32 s{sTMP}, s{sU}, 10\n v_lshl_add_u32 v{vA0}, v{vLane}, 4, s{sTMP}")
    red_pub2("a", RAWB, L_RA0, L_RA1, lambda: a(f"""
        s_lshr_b32 s{sTMP}, s{sSLOT}, 3
        s_lshl_b32 s{sTMP}, s{sTMP}, 1
        s_add_u32 s{sTMP}, s{sTMP}, s{sU}          ; cc
        s_lshl_b32 s{sTMP}, s{sTMP}, 6
        s_add_u32 s{sTMP}, s{sTMP}, s{sHA}
        s_lshl_b32 s{sTMP}, s{sTMP}, 9
        s_add_u32 s{sTMP}, s{sTMP}, {WS_AP}
        v_and_b32 v{vA0}, 1, v{vG}
        v_lshl_add_u32 v{vA0}, v{vA0}, 14, v{vPubH}
        v_add_u32 v{vA0}, s{sTMP}, v{vA0}"""))
    a.stamp(10)
    a.gbarrier()
    a(f"""
    s_cmp_ge_u32 s{sSLOT}, 28
    s_cbranch_scc1 L_skipC1
    """)
    wpair(T, RAWB, sW2, f"""
        s_lshl_b32 s{sTMP}, s{sFC}, 7
        s_lshl_b32 s{sTMP2}, s{u}, 5
        s_add_u32 s{sTMP}, s{sTMP}, s{sTMP2}
        s_lshl_b32 s{sTMP}, s{sTMP}, 11
        s_and_b32 s{sTMP2}, s{sSLOT}, 3
        s_lshl_b32 s{sTMP2}, s{sTMP2}, 9
        s_add_u32 s{sTMP}, s{sTMP}, s{sTMP2}""", 2048, f"""
        v_lshlrev_b32 v{vA1}, 13, v{vG}           ; 4g*2048
        v_lshl_add_u32 v{vA1}, v{vM}, 4, v{vA1}""", STD_ROW)
    a(f"""
    s_lshl_b32 s{sTMP}, s{sFC}, 7
    s_add_u32 s{sTMP}, s{sTMP}, {WS_FPS}
    v_and_b32 v{vA0}, 7, v{vLane}
    v_lshl_add_u32 v{vA0}, v{vA0}, 4, s{sTMP}
    s_lshl_b32 s{sTMP}, s{sFC}, 13           ; fc*2*8*512
    s_lshl_b32 s{sTMP2}, s{u}, 10             ; 2u*512
    s_add_u32 s{sTMP}, s{sTMP}, s{sTMP2}
    s_add_u32 s{sTMP}, s{sTMP}, {WS_FPP}
    s_add_u32 s{sWQ}, s{sWS}, s{sTMP}
    s_addc_u32 s{sWQ+1}, s{sWS+1}, 0
    s_lshl_b32 s{sTMP}, s{sFC}, 12           ; fc*8*512
    s_add_u32 s{sTMP}, s{sTMP}, s{sTMP2}
    s_add_u32 s{sTMP}, s{sTMP}, {WS_FPC}
    s_add_u32 s{sB1}, s{sWS}, s{sTMP}
    s_addc_u32 s{sB1+1}, s{sWS+1}, 0
    v_lshrrev_b32 v{vA1}, 5, v{vLane}
    v_lshl_add_u32 v{vA2}, v{vA1}, 12, v{vBG}   ; b*8*512 + gi*16
    """)
    a.guard(lambda: a("s_waitcnt vmcnt(0)"))
    a.perm_unit(T, RAWA)
    a.perm_unit(RAWB, T)
    a.stamp(13)
    ST = GA + 36
    a.pspin("hC", lambda r: a(f"global_load_dwordx4 {vr(r,4)}, v{vA0}, {sp(sWS)} sc1"), HS, ACC, dst=ST, sleep=psl)
    a.stamp(14)
    MEANB, RS0, RS1 = GA+32, GA+33, GA+34
    def issC():
        for k in range(2):
            a(f"global_load_dwordx4 {vr(GA+4*k,4)}, v{vA2}, {sp(sWQ)} offset:{k*512} sc1")
        for k in range(2):
            a(f"global_load_dwordx4 {vr(GA+8+4*k,4)}, v{vBG}, {sp(sB1)} offset:{k*512} sc1")
    def shadowC():
        a.dpp("v_add_f32", [ST, ST+1, ST+2, ST+3], (XOR1, XOR2, ROR4))
        a(f"""
        v_mul_f32 v{ST}, 0x3a800000, v{ST}
        v_mul_f32 v{ST+2}, 0x3a800000, v{ST+2}
        v_mul_f32 v{ST+1}, 0x3a800000, v{ST+1}
        v_mul_f32 v{ST+3}, 0x3a800000, v{ST+3}
        v_cndmask_b32 v{MEANB}, v{ST}, v{ST+2}, {sp(sMHI)}
        v_fma_f32 v{ST+1}, -v{ST}, v{ST}, v{ST+1}
        v_fma_f32 v{ST+3}, -v{ST+2}, v{ST+2}, v{ST+3}
        v_max_f32 v{ST+1}, 0, v{ST+1}
        v_max_f32 v{ST+3}, 0, v{ST+3}
        v_add_f32 v{ST+1}, 0x3727c5ac, v{ST+1}
        v_add_f32 v{ST+3}, 0x3727c5ac, v{ST+3}
        v_rsq_f32 v{RS0}, v{ST+1}
        v_rsq_f32 v{RS1}, v{ST+3}
        s_nop 0
        v_cndmask_b32 v{GA+35}, v{RS0}, v{RS1}, {sp(sMB)}
        """)
    sweep("gC", issC, [GA+4*i for i in range(4)], shadowC, o.get("csleep", 1))
    a.stamp(15)
    RSB = GA + 40
    for t in range(4):
        a(f"v_add_f32 v{GA+t}, v{GA+t}, v{GA+4+t}\n v_add_f32 v{GA+8+t}, v{GA+8+t}, v{GA+12+t}")
    for t in range(4):
        a(f"v_fma_f32 v{GA+t}, -v{MEANB}, v{GA+8+t}, v{GA+t}")
    a(f"v_mov_b32 v{RSB}, v{GA+35}")
    exchange(L_XA_C)
    for e in range(8):
        a(f"v_mul_f32 v{vals[e]}, v{vals[e]}, v{RSB}")
    E = GA + 8
    for e in range(8):
        a(f"v_mul_f32 v{E+e}, 0xbfb8aa3b, v{vals[e]}      ; -log2e * x")
    for e in range(8):
        a(f"v_exp_f32 v{E+e}, v{E+e}")
    for e in range(8):
        a(f"v_add_f32 v{E+e}, 1.0, v{E+e}")
    for e in range(8):
        a(f"v_rcp_f32 v{E+e}, v{E+e}")
    for e in range(8):
        a(f"v_mul_f32 v{vals[e]}, v{vals[e]}, v{E+e}")
    for q in range(4):
        a(f"v_cvt_pk_bf16_f32 v{AOP+q}, v{vals[2*q]}, v{vals[2*q+1]}")
    a("s_nop 1")
    a.mfma8(D, AOP, RAWA)
    a.mfma8(RAWB, AOP, T)
    a(f"s_lshl_b32 s{sTMP}, s{sU}, 10\n v_lshl_add_u32 v{vA0}, v{vLane}, 4, s{sTMP}")
    red_pub2("c", RAWB, L_RD0, L_RD1, lambda: a(f"""
        s_and_b32 s{sTMP}, s{sSLOT}, 3
        s_lshl_b32 s{sTMP}, s{sTMP}, 1
        s_add_u32 s{sTMP}, s{sTMP}, s{sU}          ; cc
        s_mul_i32 s{sTMP}, s{sTMP}, 56
        s_add_u32 s{sTMP}, s{sTMP}, s{sFC}
        s_lshl_b32 s{sTMP}, s{sTMP}, 9
        s_add_u32 s{sTMP}, s{sTMP}, {WS_O2}
        v_and_b32 v{vA0}, 1, v{vG}
        v_mul_u32_u24 v{vA0}, {28*512}, v{vA0}
        v_add3_u32 v{vA0}, v{vA0}, v{vPubH}, s{sTMP}"""))
    a("L_skipC1:")
    a.stamp(16)
    a("s_branch L_D")
    a("L_Y:")
    a.stamp(6)
    a.guard(lambda: a("s_barrier      ; B3\n s_barrier      ; B4"))
    a.stamp(7)
    a(f"""
    s_cmp_ge_u32 s{sFCP}, 14
    s_cbranch_scc1 L_D
    """)
    if o.get("ytrig", 1):
        o_hint_setup(sHA)
        a.mask("0xffff", "0")
        a.pspin("hY", lambda r: a(f"global_load_dwordx4 {vr(r,4)}, v{vA0}, {sp(sWQ)} sc1"), HS, ACC, sleep=o.get("ysleep", 3), thr=o.get("ythr", 0))
        a.full()
    a.stamp(8)
    wpair(RAWA, RAWB, sW1, f"""
        s_lshl_b32 s{sTMP}, s{sKSB}, 7
        s_lshl_b32 s{sTMP2}, s{u}, 5
        s_add_u32 s{sTMP}, s{sTMP}, s{sTMP2}
        s_mul_i32 s{sTMP}, s{sTMP}, 7168
        s_lshl_b32 s{sTMP2}, s{sFCP}, 9
        s_add_u32 s{sTMP}, s{sTMP}, s{sTMP2}""", 7168, f"""
        v_mul_u32_u24 v{vA1}, {4*7168}, v{vG}
        v_lshl_add_u32 v{vA1}, v{vM}, 4, v{vA1}""", STD_ROW)
    a(f"""
    s_lshl_b32 s{sTMP}, s{sKSB}, 15            ; ks*2*32*512
    s_lshl_b32 s{sTMP2}, s{u}, 12
    s_add_u32 s{sTMP}, s{sTMP}, s{sTMP2}
    s_add_u32 s{sTMP}, s{sTMP}, {WS_AP}
    s_add_u32 s{sWQ}, s{sWS}, s{sTMP}
    s_addc_u32 s{sWQ+1}, s{sWS+1}, 0
    v_bfe_u32 v{vA1}, v{vLane}, 3, 1
    v_and_b32 v{vA0}, 7, v{vLane}
    v_lshlrev_b32 v{vA0}, 9, v{vA0}
    v_lshl_add_u32 v{vA0}, v{vA1}, 14, v{vA0}
    v_lshrrev_b32 v{vA1}, 5, v{vLane}
    v_lshl_add_u32 v{vA2}, v{vA1}, 14, v{vBG}
    """)
    a.guard(lambda: a("s_waitcnt vmcnt(0)"))
    a.perm_unit(RAWA, T)
    a.perm_unit(RAWB, RAWA)
    a.stamp(10)
    a.mask("0xffff", "0")
    a.pspin("hB", lambda r: a(f"global_load_dwordx4 {vr(r,4)}, v{vA0}, {sp(sWQ)} sc1"), HS, ACC, sleep=psl)
    a.full()
    a.stamp(11)
    def issB():
        for i in range(8):
            a(f"global_load_dwordx4 {vr(GA+4*i,4)}, v{vA2}, {sp(sWQ)} offset:{i*512} sc1")
    XF = GA + 48 - 8
    sweep("gB", issB, [GA+4*i for i in range(8)], lambda: None, o.get("bsleep", 1))
    a.stamp(12)
    for k in (0, 8, 16, 24):
        a(f"v_pk_add_f32 {vr(GA+k,2)}, {vr(GA+k,2)}, {vr(GA+k+4,2)}\n v_pk_add_f32 {vr(GA+k+2,2)}, {vr(GA+k+2,2)}, {vr(GA+k+6,2)}")
    for k in (0, 16):
        a(f"v_pk_add_f32 {vr(GA+k,2)}, {vr(GA+k,2)}, {vr(GA+k+8,2)}\n v_pk_add_f32 {vr(GA+k+2,2)}, {vr(GA+k+2,2)}, {vr(GA+k+10,2)}")
    a(f"v_pk_add_f32 {vr(GA,2)}, {vr(GA,2)}, {vr(GA+16,2)}\n v_pk_add_f32 {vr(GA+2,2)}, {vr(GA+2,2)}, {vr(GA+18,2)}")
    a(f"ds_write_b128 v{vXW}, {vr(GA,4)} offset:{L_XA_B}")
    for q in range(4):
        a(f"v_lshlrev_b32 v{XF+2*q}, 16, v{XR+q}\n v_and_b32 v{XF+2*q+1}, 0xffff0000, v{XR+q}")
    a.gbarrier()
    a(f"""
    ds_read_b128 {vr(vals[0],4)}, v{vXR} offset:{L_XA_B}
    ds_read_b128 {vr(vals[4],4)}, v{vXR} offset:{L_XA_B + 64}
    v_mov_b32 v{ACC}, 0x3f803f80
    s_waitcnt lgkmcnt(0)""")
    a.dpp("v_add_f32", vals, (XOR1, XOR2))
    for e in range(0, 8, 2):
        a(f"v_pk_add_f32 {vr(XF+e,2)}, {vr(XF+e,2)}, {vr(vals[e],2)}")
    HP_ = XR
    for q in range(4):
        a(f"v_cvt_pk_bf16_f32 v{HP_+q}, v{XF+2*q}, v{XF+2*q+1}")
    a("s_nop 0")
    for q in range(4):
        a(f"v_cndmask_b32 v{AOP+q}, v{HP_+q}, v{ACC}, {sp(sM1)}")
    a("s_nop 1")
    DX = GA + 44
    a(f"v_mfma_f32_16x16x32_bf16 {vr(DX,4)}, {vr(AOP,4)}, {vr(AOP,4)}, 0")
    a.mfma8(D, AOP, T)
    a.mfma8(RAWB, AOP, RAWA)
    a(f"""
    s_lshl_b32 s{sTMP}, s{u}, 10
    v_lshl_add_u32 v{vA0}, v{vLane}, 4, s{sTMP}
    v_lshrrev_b32 v{vA1}, 4, v{vLane}
    v_lshlrev_b32 v{vA1}, 3, v{vA1}
    v_not_b32 v{vA2}, v{vLane}
    v_and_b32 v{vA2}, 1, v{vA2}
    v_lshl_add_u32 v{vA1}, v{vA2}, 2, v{vA1}
    s_lshl_b32 s{sTMP}, s{u}, 4
    v_add_u32 v{vA1}, s{sTMP}, v{vA1}
    """)
    a.select(ACC, D, 0)
    a(f"ds_write_b128 v{vA0}, {vr(ACC,4)} offset:{L_RA0}")
    a.select(AOP, D, 1)
    a(f"ds_write_b128 v{vA0}, {vr(AOP,4)} offset:{L_RD0}")
    a.select(GA+32, RAWB, 0)
    a(f"ds_write_b128 v{vA0}, {vr(GA+32,4)} offset:{L_RA1}")
    a.select(GA+36, RAWB, 1)
    a(f"ds_write_b128 v{vA0}, {vr(GA+36,4)} offset:{L_RD1}")
    a.mask("0x00300003", "0")
    a(f"ds_write_b32 v{vA1}, v{DX} offset:{L_REDS}")
    a.full()
    a.gbarrier()
    R2 = GA + 16
    a(f"""
    s_cmp_eq_u32 s{u}, 3
    s_cbranch_scc1 L_b_st
    s_cmp_eq_u32 s{u}, 2
    s_cbranch_scc1 L_b_cs
    s_mul_i32 s{sTMP}, s{u}, {L_RA1 - L_RA0}
    v_lshl_add_u32 v{vA0}, v{vLane}, 4, s{sTMP}
    """)
    for w in range(4):
        a(f"ds_read_b128 {vr(R2+4*w,4)}, v{vA0} offset:{L_RA0 + w*1024}")
    a(f"""
    s_lshl_b32 s{sTMP}, s{sFCP}, 1
    s_add_u32 s{sTMP}, s{sTMP}, s{u}           ; fc
    s_lshl_b32 s{sTMP}, s{sTMP}, 4             ; fc*2*8
    s_add_u32 s{sTMP}, s{sTMP}, s{sKSB}
    s_lshl_b32 s{sTMP}, s{sTMP}, 9
    s_add_u32 s{sTMP}, s{sTMP}, {WS_FPP}
    v_and_b32 v{vA0}, 1, v{vG}
    v_lshl_add_u32 v{vA0}, v{vA0}, 12, v{vPubH}
    v_add_u32 v{vA0}, s{sTMP}, v{vA0}
    s_waitcnt lgkmcnt(0)""")
    reduce4(a, R2, ACC, vN)
    a.guard(lambda: a(f"global_store_dwordx4 v{vA0}, {vr(ACC,4)}, {sp(sWS)} sc1"))
    a(f"""
    s_branch L_b_done
    L_b_cs:
    v_and_b32 v{vA1}, 1, v{vG}
    v_mul_u32_u24 v{vA0}, {L_RD1 - L_RD0}, v{vA1}
    v_lshl_add_u32 v{vA0}, v{vLane}, 4, v{vA0}
    """)
    for w in range(4):
        a(f"ds_read_b128 {vr(R2+4*w,4)}, v{vA0} offset:{L_RD0 + w*1024}")
    a(f"""
    s_lshl_b32 s{sTMP}, s{sFCP}, 4             ; fc0*8
    s_add_u32 s{sTMP}, s{sTMP}, s{sKSB}
    s_lshl_b32 s{sTMP}, s{sTMP}, 9
    s_add_u32 s{sTMP}, s{sTMP}, {WS_FPC}
    v_lshl_add_u32 v{vA0}, v{vA1}, 12, v{vPubH}     ; + (g&1)*8*512
    v_add_u32 v{vA0}, s{sTMP}, v{vA0}
    s_waitcnt lgkmcnt(0)""")
    reduce4(a, R2, ACC, vN)
    a.guard(lambda: a(f"global_store_dwordx4 v{vA0}, {vr(ACC,4)}, {sp(sWS)} sc1"))
    a(f"""
    s_branch L_b_done
    L_b_st:
    v_mov_b32 v{vA0}, 0
    """)
    for w in range(4):
        a(f"ds_read_b128 {vr(R2+4*w,4)}, v{vA0} offset:{L_REDS + w*16}")
    a(f"""
    s_lshl_b32 s{sTMP}, s{sFCP}, 4
    s_add_u32 s{sTMP}, s{sTMP}, s{sKSB}
    s_lshl_b32 s{sTMP}, s{sTMP}, 4
    s_add_u32 s{sTMP}, s{sTMP}, {WS_FPS}
    v_lshl_add_u32 v{vA0}, v{vLane}, 7, s{sTMP}
    s_waitcnt lgkmcnt(0)
    """)
    for t in (0, 2):
        a(f"v_pk_add_f32 {vr(R2+t,2)}, {vr(R2+t,2)}, {vr(R2+4+t,2)}\n v_pk_add_f32 {vr(R2+8+t,2)}, {vr(R2+8+t,2)}, {vr(R2+12+t,2)}")
    for t in (0, 2):
        a(f"v_pk_add_f32 {vr(R2+t,2)}, {vr(R2+t,2)}, {vr(R2+8+t,2)}")
    a.tag(ACC, R2, vN)
    a.mask("3", "0")
    a.guard(lambda: a(f"global_store_dwordx4 v{vA0}, {vr(ACC,4)}, {sp(sWS)} sc1"))
    a.full()
    a("L_b_done:")
    a(f"""
    s_cmp_lg_u32 s{sFCP}, 0
    s_cbranch_scc1 L_nohp""")
    XF2 = GA + 32
    for q in range(4):
        a(f"v_lshlrev_b32 v{XF2+2*q}, 16, v{HP_+q}\n v_and_b32 v{XF2+2*q+1}, 0xffff0000, v{HP_+q}")
    a.tag(GA+4, XF2, vN)
    a.tag(GA+8, XF2+4, vN)
    a(f"""
    s_lshl_b32 s{sTMP}, s{sKSB}, 5
    s_lshl_b32 s{sTMP2}, s{u}, 3
    s_add_u32 s{sTMP}, s{sTMP}, s{sTMP2}
    s_lshl_b32 s{sTMP}, s{sTMP}, 4
    s_add_u32 s{sTMP}, s{sTMP}, {WS_HP}
    v_lshlrev_b32 v{vA1}, 4, v{vG}
    v_lshl_add_u32 v{vA1}, v{vB}, 12, v{vA1}
    v_add_u32 v{vA1}, s{sTMP}, v{vA1}""")
    a.mask("0x00110011", "0x00110011")
    a.guard(lambda: a(f"""global_store_dwordx4 v{vA1}, {vr(GA+4,4)}, {sp(sWS)} sc1
    global_store_dwordx4 v{vA1}, {vr(GA+8,4)}, {sp(sWS)} offset:64 sc1"""))
    a.full()
    a("L_nohp:")
    a.stamp(13)
    if o.get("ydpre", 0): a.guard(lambda: a("\n".join([f"s_sleep {min(127, o['ydpre'] - 127*k)}" for k in range((o['ydpre'] + 126)//127)])))
    a("L_D:")
    a(f"""
    s_cmp_lg_u32 s{u}, 0
    s_cbranch_scc1 L_G_done
    s_and_b32 s{sX}, s2, 7
    s_lshl_b32 s{sX}, s{sX}, 5
    s_lshr_b32 s{sX+1}, s2, 3
    s_add_u32 s{sX}, s{sX}, s{sX+1}
    s_lshr_b32 s{sB0}, s{sX}, 7                ; b2
    s_bfe_u32 s{sB0+1}, s{sX}, 0x30004         ; cc2
    s_and_b32 s{sB1}, s{sX}, 15
    s_lshl_b32 s{sB1}, s{sB1}, 5               ; gi0*16
    s_lshl_b32 s{sTMP}, s{sB0+1}, 1
    s_add_u32 s{sTMP}, s{sTMP}, s{sB0}
    s_mul_i32 s{sTMP}, s{sTMP}, {28*512}
    s_add_u32 s{sTMP}, s{sTMP}, s{sB1}
    s_add_u32 s{sTMP}, s{sTMP}, {WS_O2}
    v_lshrrev_b32 v{vA0}, 1, v{vLane}
    v_lshlrev_b32 v{vA0}, 9, v{vA0}
    v_and_b32 v{vA1}, 1, v{vLane}
    v_lshl_add_u32 v{vA0}, v{vA1}, 4, v{vA0}
    v_add_u32 v{vA0}, s{sTMP}, v{vA0}
    s_lshl_b32 s{sTMP}, s{sB0}, 12             ; b*256*16
    s_lshl_b32 s{sTMP2}, s{sB0+1}, 9           ; cc*32*16
    s_add_u32 s{sTMP}, s{sTMP}, s{sTMP2}
    s_add_u32 s{sTMP}, s{sTMP}, s{sB1}
    s_add_u32 s{sTMP}, s{sTMP}, {WS_HP}
    v_lshl_add_u32 v{vA2}, v{vA1}, 4, s{sTMP}
    v_cmp_le_u32 vcc, 56, v{vLane}
    s_nop 1
    v_cndmask_b32 v{vA0}, v{vA0}, v{vA2}, vcc
    """)
    DS = [GA, GA+4, GA+8]
    a.mask("-1", "0x03ffffff")
    if o.get("dpre", 0): a.guard(lambda: a(f"s_sleep {o['dpre']}"))
    a.pspin("gd", lambda r: a(f"global_load_dwordx4 {vr(r,4)}, v{vA0}, {sp(sWS)} sc1"), DS, ACC, dst=GA+12, sleep=o.get("dsleep", 1))
    a.full()
    a.stamp(17)
    fv = [GA+12+i for i in range(4)]
    a.mask("0", "0xfc000000")
    for r in fv: a(f"v_mov_b32 v{r}, 0")
    a.full()
    a.dpp("v_add_f32", fv, (XOR2, ROR4, ROR8))
    a.allreduce_g(fv, [GA+16+i for i in range(4)])
    a(f"""
    v_cvt_pk_bf16_f32 v{GA+20}, v{GA+12}, v{GA+13}
    v_cvt_pk_bf16_f32 v{GA+21}, v{GA+14}, v{GA+15}
    s_lshl_b32 s{sTMP}, s{sX}, 4
    v_lshl_add_u32 v{vA0}, v{vA1}, 3, s{sTMP}
    """)
    a.mask("3", "0")
    a.guard(lambda: a(f"global_store_dwordx2 v{vA0}, {vr(GA+20,2)}, {sp(sOUT)}"))
    a(f"""
    s_cmp_lg_u32 s2, 0
    s_cbranch_scc1 L_G_done
    """)
    a.full()
    a(f"v_mov_b32 v{vA0}, 0")
    a.mask("1", "0")
    a.guard(lambda: a(f"global_store_dword v{vA0}, v{vN}, {sp(sWS)} sc1"))
    a("L_G_done:")
    if o.get("dry", 1):
        a("s_cbranch_execz L_dry_done")
    a.stamp(18)
    a.dump_stamps(19, 7)
    a("s_endpgm")

def gen_A(a):
    o = a.o
    vLane, vG, vM, vN = 0, 2, 3, 4
    vKs = 5
    vV = 9
    vT0, vT1, vT2 = 10, 11, 12
    MX, LS = 13, 14
    VR = 16
    QO = 80
    KS = 96
    S = 128
    P = 144
    TB = 80
    ACCD = 112
    sA = sU
    sP, sS = 52, 53
    a(f"""
    L_A:
    ; ---------------- A waves ----------------
    s_setprio 2
    s_sub_u32 s{sA}, s{sWAVE}, 4
    s_and_b32 s{sP}, s2, 7
    s_lshr_b32 s{sS}, s2, 3
    s_lshl_b32 s{sTMP}, s{sP}, 22
    s_lshl_b32 s{sTMP2}, s{sS}, 17
    s_add_u32 s{sTMP}, s{sTMP}, s{sTMP2}
    s_lshl_b32 s{sTMP2}, s{sA}, 14
    s_add_u32 s{sTMP}, s{sTMP}, s{sTMP2}
    """)
    for r in range(4):
        a(f"v_add_u32 v{vT0}, {4*r}, v{vG}\n v_xor_b32 v{vT0}, v{vT0}, v{vM}\n v_lshlrev_b32 v{vT0}, 4, v{vT0}\n v_lshl_add_u32 v{vKs+r}, v{vG}, 8, v{vT0}")
    a(f"""
    v_lshlrev_b32 v{vT0}, 4, v{vM}
    v_lshl_add_u32 v{vV}, v{vG}, 10, v{vT0}
    v_mov_b32 v{vT1}, 0
    s_mov_b32 s{sM8}, 0xff00ff00
    s_mov_b32 s{sM8+1}, 0xff00ff00
    s_waitcnt lgkmcnt(0)
    s_add_u32 s{sB0}, s{sK}, s{sTMP}
    s_addc_u32 s{sB0+1}, s{sK+1}, 0
    s_add_u32 s{sB1}, s{sV}, s{sTMP}
    s_addc_u32 s{sB1+1}, s{sV+1}, 0
    s_add_u32 m0, s{sTMP2}, {L_K}
    s_barrier       ; B0
    global_load_dword v{vN}, v{vT1}, {sp(sWS)} sc1
    """)
    KW = o.get("kwin", 3)
    for i in range(16):
        r = i % 4
        if KW and i >= KW: a(f"s_waitcnt vmcnt({KW-1})")
        a(f"global_load_lds_dwordx4 v{vKs+r}, {sp(sB0)} offset:{r*1024} nt")
        if r == 3 and i < 15:
            a(f"s_add_u32 s{sB0}, s{sB0}, 4096\n s_addc_u32 s{sB0+1}, s{sB0+1}, 0\n s_add_u32 m0, m0, 4096")
    a.stamp(1)
    a(f"s_setprio {o.get('vprio', 1)}")
    for uu in range(2):
        for i in range(8):
            reg = VR + (uu*8+i)*4
            a(f"global_load_dwordx4 {vr(reg,4)}, v{vV}, {sp(sB1)} offset:{(i%4)*256} nt")
            if i % 4 == 3 and not (uu == 1 and i == 7):
                a(f"s_add_u32 s{sB1}, s{sB1}, 4096\n s_addc_u32 s{sB1+1}, s{sB1+1}, 0")
    a.stamp(2)
    a(f"""
    v_mov_b32 v{vT1}, 0
    v_mov_b32 v{vT2}, 1
    s_mov_b64 exec, 1
    ds_add_u32 v{vT1}, v{vT2} offset:{L_CNT+4}
    s_mov_b64 exec, -1""")
    a(f"s_lshl_b32 s{sTMP}, s{sA}, 14\n s_add_u32 s{sTMP}, s{sTMP}, {L_K}")
    for s in range(4):
        a(f"v_add_u32 v{vT0}, {4*s}, v{vG}\n v_xor_b32 v{vT0}, v{vT0}, v{vM}\n v_lshlrev_b32 v{vT0}, 4, v{vT0}\n v_lshl_add_u32 v{vT0}, v{vM}, 8, v{vT0}\n v_add_u32 v{vKs+s}, s{sTMP}, v{vT0}")
    a.ldswait("Aq", vT1, vT2, L_CNT, 4, sleep=4)
    a(f"""
    v_and_b32 v{vT0}, 7, v{vM}
    v_mul_u32_u24 v{vT0}, 272, v{vT0}
    v_lshl_add_u32 v{vT0}, v{vG}, 4, v{vT0}
    """)
    a.stamp(3)
    for s in range(4):
        a(f"ds_read_b128 {vr(QO+4*s,4)}, v{vT0} offset:{L_Q + s*64}")
    a("s_waitcnt vmcnt(16)")
    a.nonce_from(vN)
    def kread(t, buf):
        for s in range(4):
            a(f"ds_read_b128 {vr(KS+16*buf+4*s,4)}, v{vKs+s} offset:{t*4096}")
    kread(0, 0); kread(1, 1)
    for t in range(4):
        buf = t % 2
        a("s_waitcnt lgkmcnt(4)" if t < 3 else "s_waitcnt lgkmcnt(0)")
        for s in range(4):
            c = "0" if s == 0 else vr(S+4*t, 4)
            a(f"v_mfma_f32_16x16x32_bf16 {vr(S+4*t,4)}, {vr(KS+16*buf+4*s,4)}, {vr(QO+4*s,4)}, {c}")
        if t + 2 < 4:
            kread(t + 2, buf)
    a("s_nop 7")
    a(f"v_max3_f32 v{MX}, v{S}, v{S+1}, v{S+2}")
    for k in range(3, 15, 2):
        a(f"v_max3_f32 v{MX}, v{MX}, v{S+k}, v{S+k+1}")
    a(f"v_max_f32 v{MX}, v{MX}, v{S+15}")
    a.allreduce_g([MX], [vT2], "v_max_f32")
    a(f"""
    s_mov_b32 s{sC}, 0x3e0293ee                   ; 128^-0.5 * log2(e)
    v_mul_f32 v{MX}, s{sC}, v{MX}""")
    for k in range(16):
        a(f"v_fma_f32 v{S+k}, v{S+k}, s{sC}, -v{MX}")
    for k in range(16):
        a(f"v_exp_f32 v{S+k}, v{S+k}")
    a("s_nop 0")
    for uu in range(2):
        for q in range(4):
            k = 8*uu + 2*q
            a(f"v_cvt_pk_bf16_f32 v{P+4*uu+q}, v{S+k}, v{S+k+1}")
    a(f"v_add_f32 v{LS}, v{S}, v{S+1}")
    for k in range(2, 16):
        a(f"v_add_f32 v{LS}, v{LS}, v{S+k}")
    a.allreduce_g([LS], [KS])
    a(f"""
    v_and_b32 v{vT0}, 7, v{vM}
    v_lshlrev_b32 v{vT0}, 5, v{vT0}             ; head*32
    s_lshl_b32 s{sTMP}, s{sA}, 2
    v_add_u32 v{vT0}, s{sTMP}, v{vT0}            ; head*32 + a*4
    s_mov_b64 exec, 0xff
    ds_write_b32 v{vT0}, v{MX} offset:{L_MX}
    ds_write_b32 v{vT0}, v{LS} offset:{L_LS}
    s_mov_b64 exec, 1
    v_mov_b32 v{vT1}, 0
    v_mov_b32 v{vT2}, 1
    s_waitcnt lgkmcnt(0)
    ds_add_rtn_u32 v{vT2}, v{vT1}, v{vT2} offset:{L_CNT+8}
    s_waitcnt lgkmcnt(0)
    s_mov_b64 exec, -1
    v_readfirstlane_b32 s{sTMP}, v{vT2}
    s_mov_b32 s{sSPIN}, 0
    s_cmp_lg_u32 s{sTMP}, 7
    s_cbranch_scc1 L_A_noml
    v_and_b32 v{vT0}, 7, v{vLane}
    v_lshlrev_b32 v{vT1}, 5, v{vT0}
    ds_read_b128 {vr(KS,4)}, v{vT1} offset:{L_MX}
    ds_read_b128 {vr(KS+4,4)}, v{vT1} offset:{L_MX+16}
    ds_read_b128 {vr(KS+8,4)}, v{vT1} offset:{L_LS}
    ds_read_b128 {vr(KS+12,4)}, v{vT1} offset:{L_LS+16}
    s_lshl_b32 s{sTMP}, s{sP}, 8                   ; p*8*32
    s_add_u32 s{sTMP}, s{sTMP}, s{sS}
    s_lshl_b32 s{sTMP}, s{sTMP}, 4
    s_add_u32 s{sTMP}, s{sTMP}, {WS_ML}
    v_lshl_add_u32 v{vT1}, v{vT0}, 9, s{sTMP}       ; + head*32*16
    s_waitcnt lgkmcnt(0)
    v_max3_f32 v{KS+16}, v{KS}, v{KS+1}, v{KS+2}
    v_max3_f32 v{KS+17}, v{KS+3}, v{KS+4}, v{KS+5}
    v_max3_f32 v{KS+16}, v{KS+16}, v{KS+6}, v{KS+7}
    v_max_f32 v{KS+16}, v{KS+16}, v{KS+17}
    v_perm_b32 v{KS+16}, v{KS+16}, v{vN}, s{sSEL[0]}
    """)
    for w in range(8):
        a(f"v_sub_f32 v{KS+w}, v{KS+w}, v{KS+16}")
    for w in range(8):
        a(f"v_exp_f32 v{KS+w}, v{KS+w}")
    a(f"s_nop 0\n v_mul_f32 v{KS+17}, v{KS}, v{KS+8}")
    for w in range(1, 8):
        a(f"v_fmac_f32 v{KS+17}, v{KS+w}, v{KS+8+w}")
    a(f"v_mov_b32 v{KS+18}, v{KS+16}\n v_mov_b32 v{KS+19}, v{KS+16}")
    a.tag(KS+20, KS+16, vN)
    a(f"""
    s_mov_b64 exec, 0xff
    global_store_dwordx4 v{vT1}, {vr(KS+20,4)}, {sp(sWS)} sc1
    s_mov_b64 exec, -1
    s_mov_b32 s{sPEND}, 1
    s_branch L_A_ml2
    L_A_noml:
    s_mov_b32 s{sPEND}, 0
    L_A_ml2:
    """)
    a.stamp(4)
    for uu in range(2):
        if uu == 0:
            a("s_waitcnt vmcnt(8)")
        else:
            a(f"s_cmp_eq_u32 s{sPEND}, 0\n s_cbranch_scc1 L_A_w0\n s_waitcnt vmcnt(1)\n s_branch L_A_w1\n L_A_w0:\n s_waitcnt vmcnt(0)\n L_A_w1:")
        if uu == 1: a.stamp(5)
        raw = VR + 32*uu
        for t in range(4):
            tb = TB + 8*t
            for par, sel in ((0, sPLO), (1, sPHI)):
                for q in range(4):
                    a(f"v_perm_b32 v{tb+4*par+q}, v{raw+4*(2*q+1)+t}, v{raw+4*(2*q)+t}, s{sel}")
            if t > 0:
                for par in range(2):
                    j = 2*(t-1) + par
                    c = "0" if uu == 0 else vr(ACCD+4*j, 4)
                    a(f"v_mfma_f32_16x16x32_bf16 {vr(ACCD+4*j,4)}, {vr(TB+8*(t-1)+4*par,4)}, {vr(P+4*uu,4)}, {c}")
        a("s_nop 1")
        for par in range(2):
            j = 6 + par
            c = "0" if uu == 0 else vr(ACCD+4*j, 4)
            a(f"v_mfma_f32_16x16x32_bf16 {vr(ACCD+4*j,4)}, {vr(TB+24+4*par,4)}, {vr(P+4*uu,4)}, {c}")
        if uu == 0:
            a(f"""
            s_lshl_b32 s{sTMP}, s{sA}, 14
            s_add_u32 s{sTMP}, s{sTMP}, {L_OB}
            v_mul_u32_u24 v{vT0}, 17, v{vG}
            v_add_u32 v{vT0}, v{vT0}, v{vM}
            v_lshl_add_u32 v{vT0}, v{vT0}, 4, s{sTMP}
            v_bfe_u32 v{vT1}, v{vLane}, 3, 2            ; g'
            v_and_b32 v{vKs}, 3, v{vLane}               ; j'&3
            v_bfe_u32 v{vKs+1}, v{vLane}, 2, 1          ; j'>>2
            v_lshl_add_u32 v{vKs}, v{vKs}, 1, v{vKs+1}  ; j
            v_and_b32 v{vKs+1}, 3, v{vKs}               ; jj
            v_lshrrev_b32 v{vKs}, 2, v{vKs}             ; nh
            v_lshl_add_u32 v{vT1}, v{vKs+1}, 2, v{vT1}  ; jj*4+g'
            v_mul_u32_u24 v{vT1}, 17, v{vT1}
            v_lshl_add_u32 v{vT1}, v{vKs}, 3, v{vT1}
            v_add_u32 v{vT1}, s{sA}, v{vT1}
            v_lshlrev_b32 v{vT1}, 4, v{vT1}
            v_lshrrev_b32 v{vKs}, 5, v{vLane}           ; ph
            v_lshl_add_u32 v{vT1}, v{vKs}, 16, v{vT1}   ; + ph*4*16384
            v_add_u32 v{vT1}, {L_OB}, v{vT1}
            s_lshl_b32 s{sTMP}, s{sA}, 5
            v_lshl_add_u32 v{vKs+1}, v{vKs}, 4, s{sTMP}
            v_xor_b32 v{vKs+2}, 16, v{vKs+1}
            s_lshl_b32 s{sTMP}, s{sP}, 3
            s_add_u32 s{sTMP}, s{sTMP}, s{sA}
            s_lshl_b32 s{sTMP}, s{sTMP}, 5
            s_add_u32 s{sTMP}, s{sTMP}, s{sS}            ; (p*8+head)*32 + s
            s_lshl_b32 s{sTMP2}, s{sTMP}, 9
            s_add_u32 s{sTMP2}, s{sTMP2}, {WS_OP}
            v_and_b32 v{vKs+3}, 31, v{vLane}
            v_lshl_add_u32 v{vV}, v{vKs+3}, 4, s{sTMP2}
            v_mov_b32 v{vKs}, 0
            v_mov_b32 v{vKs+3}, 1
            s_setprio 3
            """)
    a("s_nop 7")
    XB = TB
    for jj in range(4):
        for r in range(4):
            a(f"v_cndmask_b32 v{XB+4*jj+r}, v{ACCD+4*jj+r}, v{ACCD+4*(jj+4)+r}, {sp(sM8)}")
        a(f"ds_write_b128 v{vT0}, {vr(XB+4*jj,4)} offset:{jj*1088}")
    a("s_waitcnt lgkmcnt(0)\n s_barrier     ; B3")
    a.stamp(6)
    R = KS
    for w in range(4):
        a(f"ds_read_b128 {vr(R+4*w,4)}, v{vT1} offset:{w*OB_STRIDE}")
    MO, MT = R+16, R+20
    a(f"ds_read_b128 {vr(MO,4)}, v{vKs+1} offset:{L_MX}")
    a(f"ds_read_b128 {vr(MT,4)}, v{vKs+2} offset:{L_MX}")
    a(f"""
    s_waitcnt lgkmcnt(0)
    v_max3_f32 v{MX}, v{MO}, v{MO+1}, v{MO+2}
    v_max3_f32 v{MT}, v{MT}, v{MT+1}, v{MT+2}
    v_max3_f32 v{MX}, v{MX}, v{MO+3}, v{MT+3}
    v_max_f32 v{MX}, v{MX}, v{MT}
    v_perm_b32 v{MX}, v{MX}, v{vN}, s{sSEL[0]}
    """)
    for w in range(4):
        a(f"v_sub_f32 v{MO+w}, v{MO+w}, v{MX}")
    for w in range(4):
        a(f"v_exp_f32 v{MO+w}, v{MO+w}")
    a("s_nop 0")
    for t in range(4):
        a(f"v_mul_f32 v{R+t}, v{R+t}, v{MO}")
    for w in range(1, 4):
        for t in range(4):
            a(f"v_fmac_f32 v{R+t}, v{R+4*w+t}, v{MO+w}")
    a.allreduce_g([R, R+1, R+2, R+3], [R+4, R+5, R+6, R+7], steps=("v_permlane32_swap_b32",))
    a.tag(R+8, R, vN)
    a(f"""
    s_mov_b32 exec_hi, 0
    global_store_dwordx4 v{vV}, {vr(R+8,4)}, {sp(sWS)} sc1
    """)
    a.stamp(7)
    a("s_barrier     ; B4")
    a.dump_stamps(8, 10)
    a("s_endpgm")

if __name__ == "__main__":
    out = sys.argv[1]
    stamps = len(sys.argv) > 2 and sys.argv[2] == "1"
    opts = {}
    for kv in sys.argv[3:]:
        k, v = kv.split("="); opts[k] = int(v)
    open(out, "w").write(build(stamps, **opts))
```

```python
import sys
from gen_common import *

WS_EPOCH = 0
WS_QP   = 0x010000
WS_ML   = 0x080000
WS_HP   = 0x090000
WS_OP   = 0x100000
WS_AP   = 0x200000
WS_FPP  = 0x240000
WS_FPC  = 0x280000
WS_FPS  = 0x2A0000
WS_O2   = 0x2C0000
WS_STAMP = 0x800000
L_Q   = 0
L_MX  = 2304
L_LS  = L_MX + 256
L_REDQ = L_LS + 256
L_CNT = 6912
L_K   = 8192
L_OB  = L_K
OB_STRIDE = 16384
LDS_BYTES = L_K + 131072
L_XA_A = 12544
L_FAC  = 16896
L_XA_C = 17920
L_RA0, L_RA1 = 28928, 33024
L_RD0, L_RD1 = 45312, 49408
L_XA_B = 12544
L_REDS = 16896

SPIN_LIMIT = 4000

sX, sK, sV, sWQ, sWO, sW1, sW2, sOUT, sDBG, sWS = 4, 6, 8, 10, 12, 16, 18, 20, 22, 24
sFULL = 14
sWAVE, sU = 26, 27
sNONCE = 28
sT = [29, 30, 31, 32]
sSEL = [33, 34, 35, 36]
sPLO, sPHI = 37, 38
sC = 39
sMHI = 40
sM8 = 42
sB0 = 44
sB1 = 46
sMB = 48
sM1 = 50
sSPIN = 60
sTMP, sTMP2 = 61, 62
sPEND = 63
sSTAMP = 64

def sp(r): return f"s[{r}:{r+1}]"
def vr(r, n): return f"v[{r}:{r+n-1}]" if n > 1 else f"v{r}"
XOR1, XOR2, ROR4, ROR8 = "quad_perm:[1,0,3,2]", "quad_perm:[2,3,0,1]", "row_ror:4", "row_ror:8"
DM = "row_mask:0xf bank_mask:0xf"

class Gen(Asm):
    def __init__(self, stamps=False, opts=None):
        super().__init__()
        self.stamps = stamps
        self.o = opts or {}
        self.uid = 0
    def lab(self, base):
        self.uid += 1
        return f"L_{base}_{self.uid}"
    def stamp(self, idx):
        if self.stamps:
            self(f"s_memrealtime {sp(sSTAMP + 2 * idx)}")
    def dump_stamps(self, n, tmpv):
        if not self.stamps: return
        if self.o.get("dbgst", 0) == 2:
            if n <= 10: return
            L = self.lab("nodbg")
            self(f"s_cmp_lg_u32 s2, {self.o.get('dbgwg', 0)}\n s_cbranch_scc1 {L}\n s_cmp_lg_u32 s{sWAVE}, 0\n s_cbranch_scc1 {L}")
            self(f"s_waitcnt lgkmcnt(0)\n s_mov_b64 exec, 1\n v_mov_b32 v{tmpv}, 0")
            for k, i in enumerate((1, 2, 3, 4, 5, 6, 7, 8, 9, 10, 11, 12, 13, 15, 16, 18)):
                self(f"s_sub_u32 s{sTMP}, s{sSTAMP+2*i}, s{sSTAMP}\n v_mov_b32 v{tmpv+1}, s{sTMP}\n global_store_dword v{tmpv}, v{tmpv+1}, {sp(sDBG)} offset:{4*k}\n s_nop 1")
            self.label(L)
            return
        self(f"""s_waitcnt lgkmcnt(0)
        s_lshl_b32 s{sTMP}, s2, 4
        s_add_u32 s{sTMP}, s{sTMP}, s{sWAVE}
        s_lshl_b32 s{sTMP}, s{sTMP}, 7
        s_add_u32 s{sTMP}, s{sTMP}, {WS_STAMP}
        s_mov_b64 exec, 1
        v_mov_b32 v{tmpv}, s{sTMP}""")
        for i in range(n):
            self(f"v_mov_b32 v{tmpv+1}, s{sSTAMP+2*i}\n global_store_dword v{tmpv}, v{tmpv+1}, {sp(sWS)} offset:{4*i}\n s_nop 1")
    def full(self): self(f"s_mov_b64 exec, {sp(sFULL)}")
    def mask(self, lo, hi): self(f"s_and_b32 exec_lo, s{sFULL}, {lo}\n s_and_b32 exec_hi, s{sFULL+1}, {hi}")
    def guard(self, fn):
        L = self.lab("grd")
        self(f"s_cbranch_execz {L}")
        fn()
        self.label(L)
    def gbarrier(self):
        self("s_waitcnt lgkmcnt(0)")
        self.guard(lambda: self("s_barrier"))
    def dpp(self, op, regs, ctrls):
        n = len(regs)
        for ctrl in ctrls:
            if n < 3: self(f"s_nop {2 - n}" if n < 2 else "s_nop 0")
            for r in regs:
                self(f"{op}_dpp v{r}, v{r}, v{r} {ctrl} {DM}")
    def allreduce_g(self, regs, tmps, op="v_add_f32", steps=("v_permlane16_swap_b32", "v_permlane32_swap_b32")):
        n = len(regs)
        for swap in steps:
            for r, t in zip(regs, tmps):
                self(f"v_mov_b32 v{t}, v{r}")
            self("s_nop 1" if n < 2 else "s_nop 0")
            for r, t in zip(regs, tmps):
                self(f"{swap} v{r}, v{t}")
            self("s_nop 1" if n < 2 else "s_nop 0")
            for r, t in zip(regs, tmps):
                self(f"{op} v{r}, v{r}, v{t}")
    def tag(self, dst, src, vN):
        for i in range(4):
            self(f"v_perm_b32 v{dst+i}, v{src+i}, v{vN}, s{sSEL[i]}")
    def check(self, grans, acc):
        for gi, gbase in enumerate(grans):
            for i in range(4):
                if gi == 0:
                    self(f"v_xor_b32 v{acc+i}, s{sT[i]}, v{gbase+i}")
                else:
                    self(f"v_bitop3_b32 v{acc+i}, v{gbase+i}, s{sT[i]}, v{acc+i} bitop3:0xbe")
        self(f"v_or3_b32 v{acc}, v{acc}, v{acc+1}, v{acc+2}")
        self(f"v_or_b32 v{acc}, v{acc}, v{acc+3}")
        self(f"v_and_b32 v{acc}, 0xff, v{acc}")
        self(f"v_cmp_ne_u32 vcc, 0, v{acc}")
    def spin(self, name, issue, grans, acc, waitstr="s_waitcnt vmcnt(0)", sleep=0):
        L = self.lab(name); Lok = self.lab(name + "ok")
        self(f"s_mov_b32 s{sSPIN}, 0")
        self.label(L)
        self.guard(issue)
        self.guard(lambda: self(waitstr))
        self.check(grans, acc)
        self("s_nop 0")
        self(f"s_cbranch_vccz {Lok}")
        self(f"s_add_u32 s{sSPIN}, s{sSPIN}, 1")
        if sleep: self(f"s_sleep {sleep}")
        self(f"s_cmp_lt_u32 s{sSPIN}, {SPIN_LIMIT}")
        self(f"s_cbranch_scc1 {L}")
        self("s_branch L_abort")
        self.label(Lok)
    def pspin(self, name, load, sets, acc, dst=None, ncopy=4, sleep=0, thr=0):
        L = self.lab(name); Lok = self.lab(name + "ok")
        oks = [self.lab(name + f"k{i}") for i in range(3)]
        self(f"s_mov_b32 s{sSPIN}, 0")
        self.guard(lambda: (load(sets[0]), load(sets[1])))
        self.label(L)
        for k in range(3):
            self.guard(lambda k=k: (load(sets[(k + 2) % 3]), self("s_waitcnt vmcnt(2)")))
            self.check([sets[k]], acc)
            if thr:
                self(f"s_nop 0\n s_bcnt1_i32_b64 s{sTMP}, vcc\n s_cmp_le_u32 s{sTMP}, {thr}\n s_cbranch_scc1 {oks[k]}")
            else:
                self("s_nop 0")
                self(f"s_cbranch_vccz {oks[k]}")
            if sleep: self(f"s_sleep {sleep}")
        self(f"s_add_u32 s{sSPIN}, s{sSPIN}, 1")
        self(f"s_cmp_lt_u32 s{sSPIN}, {SPIN_LIMIT}")
        self(f"s_cbranch_scc1 {L}")
        self("s_branch L_abort")
        for k in range(3):
            self.label(oks[k])
            if dst is not None and sets[k] != dst:
                for t in range(ncopy): self(f"v_mov_b32 v{dst+t}, v{sets[k]+t}")
            if k < 2: self(f"s_branch {Lok}")
        self.label(Lok)
    def ldswait(self, name, vaddr, vtmp, off, count, sleep=2):
        L = self.lab(name); Lok = self.lab(name + "ok")
        self(f"""
        s_mov_b32 s{sSPIN}, 0
        s_cbranch_execz {Lok}
        {L}:
        ds_read_b32 v{vtmp}, v{vaddr} offset:{off}
        s_waitcnt lgkmcnt(0)
        v_readfirstlane_b32 s{sTMP}, v{vtmp}
        s_cmp_ge_u32 s{sTMP}, {count}
        s_cbranch_scc1 {Lok}
        s_add_u32 s{sSPIN}, s{sSPIN}, 1""")
        if sleep: self(f"s_sleep {sleep}")
        self(f"""
        s_cmp_lt_u32 s{sSPIN}, 400000
        s_cbranch_scc1 {L}
        s_branch L_abort
        {Lok}:""")
    def perm_unit(self, raw, T):
        for t in range(4):
            for par, sel in ((0, sPLO), (1, sPHI)):
                j = 2 * t + par
                for q in range(4):
                    self(f"v_perm_b32 v{T + 4*j + q}, v{raw + 4*(2*q+1) + t}, v{raw + 4*(2*q) + t}, s{sel}")
    def wload(self, dst, sbase, voff, rowfn, rs, nt=True):
        prev = 0
        for i in range(8):
            d = rowfn(i) - prev
            if d > 0:
                self(f"s_add_u32 s{sbase}, s{sbase}, {d*rs}\n s_addc_u32 s{sbase+1}, s{sbase+1}, 0")
            elif d < 0:
                self(f"s_sub_u32 s{sbase}, s{sbase}, {-d*rs}\n s_subb_u32 s{sbase+1}, s{sbase+1}, 0")
            prev = rowfn(i)
            self(f"global_load_dwordx4 {vr(dst+4*i, 4)}, v{voff}, {sp(sbase)}" + (" nt" if nt else ""))
    def mfma8(self, D, AOP, T):
        for j in range(8):
            self(f"v_mfma_f32_16x16x32_bf16 {vr(D+4*j,4)}, {vr(AOP,4)}, {vr(T+4*j,4)}, 0")
    def select(self, X, D, r):
        for jj in range(4):
            self(f"v_cndmask_b32 v{X+jj}, v{D+4*jj+r}, v{D+4*(4+jj)+r}, {sp(sMHI)}")
    def nonce_from(self, vN):
        self(f"""
        v_readfirstlane_b32 s{sNONCE}, v{vN}
        s_add_u32 s{sNONCE}, s{sNONCE}, 0x01010101
        s_or_b32 s{sNONCE}, s{sNONCE}, 1
        s_mov_b32 s{sT[0]}, s{sNONCE}
        s_lshr_b32 s{sT[1]}, s{sNONCE}, 8
        s_lshr_b32 s{sT[2]}, s{sNONCE}, 16
        s_lshr_b32 s{sT[3]}, s{sNONCE}, 24
        v_mov_b32 v{vN}, s{sNONCE}
        """)

STD_ROW = lambda i: 16 * (i // 4) + (i % 4)
WO_ROW = lambda i: 8 * (i % 4) + (i // 4)

def reduce4(a, R, X, vN):
    for t in (0, 2):
        a(f"v_pk_add_f32 {vr(R+t,2)}, {vr(R+t,2)}, {vr(R+4+t,2)}\n v_pk_add_f32 {vr(R+8+t,2)}, {vr(R+8+t,2)}, {vr(R+12+t,2)}")
    for t in (0, 2):
        a(f"v_pk_add_f32 {vr(R+t,2)}, {vr(R+t,2)}, {vr(R+8+t,2)}")
    a.tag(X, R, vN)

def build(stamps=False, **o):
    a = Gen(stamps, o)
    a(f"""
    s_cmp_ge_u32 s2, 256
    s_cbranch_scc1 L_end""")
    a.stamp(0)
    a(f"""
    s_load_dwordx8 s[4:11], s[0:1], 0
    s_load_dwordx2 s[12:13], s[0:1], 32
    s_load_dwordx4 s[16:19], s[0:1], 48
    s_load_dwordx4 s[20:23], s[0:1], 64
    s_load_dwordx2 s[24:25], s[0:1], 80
    v_lshrrev_b32 v1, 6, v0
    v_and_b32 v0, 63, v0
    s_mov_b32 s{sPLO}, 0x05040100
    v_readfirstlane_b32 s{sWAVE}, v1
    s_mov_b32 s{sPHI}, 0x07060302
    s_mov_b32 s{sSEL[0]}, 0x07060500
    s_mov_b32 s{sSEL[1]}, 0x07060501
    s_mov_b32 s{sSEL[2]}, 0x07060502
    s_mov_b32 s{sSEL[3]}, 0x07060503
    s_mov_b64 {sp(sFULL)}, -1
    v_lshrrev_b32 v2, 4, v0            ; g
    v_and_b32 v3, 15, v0               ; m / c
    s_cmp_ge_u32 s{sWAVE}, 4
    s_cbranch_scc1 L_A
    """)
    gen_G(a)
    gen_A(a)
    a("""
    L_abort:
    L_end:
    s_endpgm
    """)
    return kernel_wrap(a.text(), 256, 768, LDS_BYTES, 168)

def gen_G(a):
    o = a.o
    vLane, vG, vM, vB, vN = 0, 2, 3, 4, 6
    vBG = 1
    vPP = 5
    vA0, vA1, vA2 = 7, 8, 9
    vPubH = 10
    vXW = 11
    vXR = vPP
    XR = 12
    AOP = 16
    ACC = 20
    RAWA, RAWB, T, GA = 24, 56, 88, 120
    u = sU
    sKS, sHQ, sP, sBA, sHKV, sFC2, sH, sCC = 52, 53, 54, 55, 56, 57, 58, 59
    a(f"""
    ; ---------------- G waves ----------------
    s_setprio 3
    s_mov_b32 s{u}, s{sWAVE}
    v_bfe_u32 v{vB}, v{vM}, 2, 1
    v_and_b32 v{vPP}, 3, v{vM}
    v_lshrrev_b32 v{vA0}, 3, v{vM}
    v_lshl_or_b32 v{vPP}, v{vA0}, 2, v{vPP}
    s_and_b32 s{sKS}, s2, 7
    s_lshr_b32 s{sHQ}, s2, 3
    v_mov_b32 v{vA0}, 0
    v_lshl_add_u32 v{vA1}, v{vPP}, 2, v{vG}
    v_lshlrev_b32 v{vA1}, 4, v{vA1}
    v_lshl_add_u32 v{vA1}, v{vB}, 11, v{vA1}
    s_lshl_b32 s{sTMP}, s{sKS}, 8
    s_lshl_b32 s{sTMP2}, s{u}, 6
    s_add_u32 s{sTMP}, s{sTMP}, s{sTMP2}
    v_lshlrev_b32 v{vA2}, 3, v{vG}
    v_lshl_add_u32 v{vA2}, v{vB}, 11, v{vA2}
    v_add_u32 v{vA2}, s{sTMP}, v{vA2}
    s_lshl_b32 s{sTMP}, s{sKS}, 7
    s_lshl_b32 s{sTMP2}, s{u}, 5
    s_add_u32 s{sTMP}, s{sTMP}, s{sTMP2}
    s_lshl_b32 s{sTMP}, s{sTMP}, 13          ; *8192
    s_lshl_b32 s{sTMP2}, s{sHQ}, 8
    s_add_u32 s{sTMP}, s{sTMP}, s{sTMP2}
    v_lshlrev_b32 v{vPubH}, 15, v{vG}          ; 4g*8192
    v_lshl_add_u32 v{vPubH}, v{vM}, 4, v{vPubH}
    s_waitcnt lgkmcnt(0)
    s_add_u32 s{sB0}, s{sWQ}, s{sTMP}
    s_addc_u32 s{sB0+1}, s{sWQ+1}, 0
    global_load_dword v{vN}, v{vA0}, {sp(sWS)} sc1
    """)
    for i in range(4):
        a(f"global_load_dwordx4 {vr(GA+4*i,4)}, v{vA1}, {sp(sX)} offset:{i*512}")
    a(f"global_load_dwordx2 {vr(XR,2)}, v{vA2}, {sp(sX)}")
    a(f"global_load_dwordx2 {vr(XR+2,2)}, v{vA2}, {sp(sX)} offset:32")
    a.wload(RAWA, sB0, vPubH, STD_ROW, 8192)
    a(f"""
    s_mov_b32 s{sMHI}, 0
    s_mov_b32 s{sMHI+1}, -1
    s_mov_b32 s{sMB}, 0xf0f0f0f0
    s_mov_b32 s{sMB+1}, 0xf0f0f0f0
    s_mov_b32 s{sM1}, 0x22222222
    s_mov_b32 s{sM1+1}, 0x22222222
    v_mov_b32 v{ACC}, 0
    v_mov_b32 v{ACC+1}, 0
    v_mov_b32 v{ACC+2}, 0
    v_mov_b32 v{ACC+3}, 0
    s_lshl_b32 s{sTMP}, s{u}, 10
    v_lshl_add_u32 v{vA0}, v{vLane}, 4, s{sTMP}
    ds_write_b128 v{vA0}, {vr(ACC,4)} offset:{L_REDQ}
    v_and_b32 v{vA1}, 1, v{vLane}
    v_lshlrev_b32 v{vA1}, 4, v{vA1}
    ds_write_b128 v{vA1}, {vr(ACC,4)} offset:{L_CNT}
    s_waitcnt lgkmcnt(0)
    s_barrier        ; B0
    v_lshrrev_b32 v{vPubH}, 1, v{vG}
    v_lshl_add_u32 v{vPubH}, v{vM}, 1, v{vPubH}
    v_lshlrev_b32 v{vPubH}, 4, v{vPubH}      ; (2c+half)*16
    s_waitcnt vmcnt(8)
    """)
    a.stamp(1)
    a.nonce_from(vN)
    S0, S1, Q0, Q1, LO, HI = RAWB, RAWB+1, RAWB+2, RAWB+3, RAWB+4, RAWB+5
    for k in range(16):
        w = GA + k
        a(f"v_lshlrev_b32 v{LO}, 16, v{w}\n v_and_b32 v{HI}, 0xffff0000, v{w}")
        if k == 0:
            a(f"v_mov_b32 v{S0}, v{LO}\n v_mov_b32 v{S1}, v{HI}\n v_mul_f32 v{Q0}, v{LO}, v{LO}\n v_mul_f32 v{Q1}, v{HI}, v{HI}")
        else:
            a(f"v_add_f32 v{S0}, v{S0}, v{LO}\n v_add_f32 v{S1}, v{S1}, v{HI}\n v_fmac_f32 v{Q0}, v{LO}, v{LO}\n v_fmac_f32 v{Q1}, v{HI}, v{HI}")
    a(f"v_add_f32 v{S0}, v{S0}, v{S1}\n v_add_f32 v{S1}, v{Q0}, v{Q1}")
    a.dpp("v_add_f32", [S0, S1], (XOR1, XOR2, ROR8))
    a.allreduce_g([S0, S1], [Q0, Q1])
    MEAN, RSTD = S0, S1
    a(f"""
    v_mul_f32 v{MEAN}, 0x3a800000, v{S0}        ; /1024
    v_mul_f32 v{Q0}, 0x3a800000, v{S1}
    v_fma_f32 v{Q0}, -v{MEAN}, v{MEAN}, v{Q0}
    v_max_f32 v{Q0}, 0, v{Q0}
    v_add_f32 v{Q0}, 0x3727c5ac, v{Q0}           ; + 1e-5
    v_rsq_f32 v{RSTD}, v{Q0}
    """)
    XF = RAWB + 8
    for q in range(4):
        a(f"v_lshlrev_b32 v{XF+2*q}, 16, v{XR+q}\n v_and_b32 v{XF+2*q+1}, 0xffff0000, v{XR+q}")
    for e in range(8):
        a(f"v_sub_f32 v{XF+e}, v{XF+e}, v{MEAN}")
    for e in range(8):
        a(f"v_mul_f32 v{XF+e}, v{XF+e}, v{RSTD}")
    for q in range(4):
        a(f"v_cvt_pk_bf16_f32 v{AOP+q}, v{XF+2*q}, v{XF+2*q+1}")
    a("s_waitcnt vmcnt(0)")
    a.stamp(2)
    a.perm_unit(RAWA, T)
    a("s_nop 1")
    a.mfma8(RAWB, AOP, T)
    a("s_nop 7")
    X = ACC
    a.select(X, RAWB, 0)
    a.tag(X, X, vN)
    a(f"""
    ds_write_b128 v{vA0}, {vr(X,4)} offset:{L_REDQ}
    s_cmp_lg_u32 s{u}, 0
    s_cbranch_scc1 L_q_nored
    v_lshlrev_b32 v{vA0}, 4, v{vLane}
    """)
    def iss():
        for w in range(4):
            a(f"ds_read_b128 {vr(GA+4*w,4)}, v{vA0} offset:{L_REDQ + w*1024}")
    a.spin("redq", iss, [GA, GA+4, GA+8, GA+12], ACC, waitstr="s_waitcnt lgkmcnt(0)")
    reduce4(a, GA, X, vN)
    a(f"""
    s_lshl_b32 s{sTMP}, s{sHQ}, 13
    s_lshl_b32 s{sTMP2}, s{sKS}, 9
    s_add_u32 s{sTMP}, s{sTMP}, s{sTMP2}
    s_add_u32 s{sTMP}, s{sTMP}, {WS_QP}
    v_and_b32 v{vA0}, 1, v{vG}
    v_lshl_add_u32 v{vA0}, v{vA0}, 12, v{vPubH}
    v_add_u32 v{vA0}, s{sTMP}, v{vA0}
    global_store_dwordx4 v{vA0}, {vr(X,4)}, {sp(sWS)} sc1
    L_q_nored:
    """)
    a.stamp(3)
    sXI, sSLOT, sCCP, sKSB, sFCP = 54, 55, 56, 57, 59
    sHA, sFC = 58, 53
    a(f"""
    s_and_b32 s{sTMP}, s2, 7
    s_lshr_b32 s{sB1}, s{sTMP}, 2
    s_and_b32 s{sB1+1}, s{sTMP}, 3
    s_lshr_b32 s{sXI}, s{sTMP}, 1
    s_lshr_b32 s{sSLOT}, s2, 3
    s_lshl_b32 s{sHA}, s{sXI}, 3
    s_and_b32 s{sTMP}, s{sSLOT}, 7
    s_add_u32 s{sHA}, s{sHA}, s{sTMP}
    s_and_b32 s{sTMP}, s{sSLOT}, 1
    s_lshl_b32 s{sKSB}, s{sXI}, 1
    s_add_u32 s{sKSB}, s{sKSB}, s{sTMP}
    s_lshr_b32 s{sFCP}, s{sSLOT}, 1
    s_lshr_b32 s{sTMP}, s{sSLOT}, 2
    s_mul_i32 s{sFC}, s{sXI}, 7
    s_add_u32 s{sFC}, s{sFC}, s{sTMP}
    s_lshl_b32 s{sTMP}, s{sKSB}, 8
    s_lshl_b32 s{sTMP2}, s{u}, 6
    s_add_u32 s{sTMP}, s{sTMP}, s{sTMP2}
    v_lshlrev_b32 v{vA2}, 3, v{vG}
    v_lshl_add_u32 v{vA2}, v{vB}, 11, v{vA2}
    v_add_u32 v{vA2}, s{sTMP}, v{vA2}
    global_load_dwordx2 {vr(XR,2)}, v{vA2}, {sp(sX)}
    global_load_dwordx2 {vr(XR+2,2)}, v{vA2}, {sp(sX)} offset:32
    v_and_b32 v{vBG}, 31, v{vLane}
    v_lshlrev_b32 v{vBG}, 4, v{vBG}             ; gi*16
    v_lshrrev_b32 v{vA0}, 5, v{vLane}
    v_mul_u32_u24 v{vA0}, 544, v{vA0}
    v_add_u32 v{vXW}, v{vA0}, v{vBG}
    v_and_b32 v{vA0}, 3, v{vM}
    v_mul_u32_u24 v{vA0}, 1088, v{vA0}
    v_mul_u32_u24 v{vA1}, 544, v{vB}
    v_add_u32 v{vA0}, v{vA0}, v{vA1}
    v_lshl_add_u32 v{vXR}, v{vG}, 4, v{vA0}
    s_mul_i32 s{sTMP}, s{u}, 1088
    v_add_u32 v{vXW}, s{sTMP}, v{vXW}
    s_lshl_b32 s{sTMP}, s{u}, 7
    v_add_u32 v{vXR}, s{sTMP}, v{vXR}
    """)
    if o.get("dry", 1):
        a(f"""
        s_mov_b64 {sp(sFULL)}, 0
        s_mov_b64 exec, 0
        s_branch L_tail
        L_dry_done:
        s_mov_b64 {sp(sFULL)}, -1
        s_mov_b64 exec, -1
        s_setprio 3
        """)
    a.stamp(4)
    QG = RAWB
    a(f"""
    s_and_b32 s{sTMP}, s2, 3                   ; hkv
    s_lshl_b32 s{sTMP}, s{sTMP}, 3
    s_lshl_b32 s{sTMP2}, s{u}, 1
    s_add_u32 s{sTMP}, s{sTMP}, s{sTMP2}
    s_lshl_b32 s{sTMP}, s{sTMP}, 1
    s_bfe_u32 s{sTMP2}, s2, 0x10002            ; b = (wg>>2)&1
    s_add_u32 s{sTMP}, s{sTMP}, s{sTMP2}
    s_lshl_b32 s{sTMP}, s{sTMP}, 12
    s_add_u32 s{sTMP}, s{sTMP}, {WS_QP}
    s_add_u32 s{sWQ}, s{sWS}, s{sTMP}
    s_addc_u32 s{sWQ+1}, s{sWS+1}, 0
    s_add_u32 s{sB1}, s{sWQ}, 8192
    s_addc_u32 s{sB1+1}, s{sWQ+1}, 0
    v_lshlrev_b32 v{vA2}, 4, v{vLane}
    """)
    def issq():
        for hh, sb in ((0, sWQ), (1, sB1)):
            for i in range(4):
                a(f"global_load_dwordx4 {vr(QG+16*hh+4*i,4)}, v{vA2}, {sp(sb)} offset:{i*1024} sc1")
    a.spin("qg", issq, [QG+4*i for i in range(8)], ACC, sleep=o.get("qsleep", 4))
    for hh in range(2):
        base = QG + 16*hh
        for t in range(4):
            a(f"v_add_f32 v{base+t}, v{base+t}, v{base+4+t}\n v_add_f32 v{base+8+t}, v{base+8+t}, v{base+12+t}")
        for t in range(4):
            a(f"v_add_f32 v{base+t}, v{base+t}, v{base+8+t}")
    a("s_nop 1")
    for t in range(4):
        a(f"v_permlane32_swap_b32 v{QG+t}, v{QG+16+t}")
    a("s_nop 1")
    for t in range(4):
        a(f"v_add_f32 v{QG+t}, v{QG+t}, v{QG+16+t}")
    a(f"""
    v_cvt_pk_bf16_f32 v{QG+4}, v{QG}, v{QG+1}
    v_cvt_pk_bf16_f32 v{QG+5}, v{QG+2}, v{QG+3}
    v_lshrrev_b32 v{vA0}, 5, v{vLane}            ; kq
    s_lshl_b32 s{sTMP}, s{u}, 1
    v_add_u32 v{vA0}, s{sTMP}, v{vA0}            ; head
    v_mul_u32_u24 v{vA0}, 272, v{vA0}
    v_and_b32 v{vA1}, 31, v{vLane}
    v_lshl_add_u32 v{vA0}, v{vA1}, 3, v{vA0}
    ds_write_b64 v{vA0}, {vr(QG+4,2)} offset:{L_Q}
    v_mov_b32 v{vA1}, 0
    v_mov_b32 v{vA2}, 1
    s_waitcnt lgkmcnt(0)
    s_mov_b64 exec, 1
    ds_add_u32 v{vA1}, v{vA2} offset:{L_CNT}
    s_mov_b64 exec, -1
    """)
    a.stamp(5)
    a(f"s_setprio {o.get('gprio', 1)}")

    def wunit(dst, sptr, voffn, rowfn, rs):
        prev = 0
        for i in range(8):
            d = rowfn(i) - prev
            if d > 0: a(f"s_add_u32 s{sptr}, s{sptr}, {d*rs}\n s_addc_u32 s{sptr+1}, s{sptr+1}, 0")
            elif d < 0: a(f"s_sub_u32 s{sptr}, s{sptr}, {-d*rs}\n s_subb_u32 s{sptr+1}, s{sptr+1}, 0")
            prev = rowfn(i)
            a(f"global_load_dwordx4 {vr(dst+4*i, 4)}, v{voffn}, {sp(sptr)} nt")
    def wpair(dst0, dst1, sptr_src, rowbase_code, rs, gshift_code, rowfn):
        a(rowbase_code)
        a(f"""
        s_add_u32 s{sB0}, s{sptr_src}, s{sTMP}
        s_addc_u32 s{sB0+1}, s{sptr_src+1}, 0
        s_add_u32 s{sR1}, s{sB0}, 256
        s_addc_u32 s{sR1+1}, s{sB0+1}, 0""")
        a(gshift_code)
        a.guard(lambda: (wunit(dst0, sB0, vA1, rowfn, rs), wunit(dst1, sR1, vA1, rowfn, rs)))
    sR1 = 6
    def sweep(name, issue, grans, shadow, sleep):
        L = a.lab(name); Lc = a.lab(name + "c"); Lok = a.lab(name + "ok")
        a(f"s_mov_b32 s{sSPIN}, 0")
        a.guard(issue)
        shadow()
        a(f"s_branch {Lc}")
        a.label(L)
        a.guard(issue)
        a.label(Lc)
        a.guard(lambda: a("s_waitcnt vmcnt(0)"))
        a.check(grans, ACC)
        a("s_nop 0")
        a(f"s_cbranch_vccz {Lok}")
        a(f"s_add_u32 s{sSPIN}, s{sSPIN}, 1")
        if sleep: a(f"s_sleep {sleep}")
        a(f"s_cmp_lt_u32 s{sSPIN}, {SPIN_LIMIT}")
        a(f"s_cbranch_scc1 {L}")
        a("s_branch L_abort")
        a.label(Lok)
    HS = [AOP, GA+40, GA+44]
    D = GA
    vals = [GA + 32 + e for e in range(8)]
    psl = o.get("psleep", 1)
    def exchange(lbuf):
        a(f"ds_write_b128 v{vXW}, {vr(GA,4)} offset:{lbuf}")
        a.gbarrier()
        a(f"""
        ds_read_b128 {vr(vals[0],4)}, v{vXR} offset:{lbuf}
        ds_read_b128 {vr(vals[4],4)}, v{vXR} offset:{lbuf + 64}
        s_waitcnt lgkmcnt(0)""")
        a.dpp("v_add_f32", vals, (XOR1, XOR2))
    def red_pub2(name, D1, lb0, lb1, addr):
        L = a.lab("nored" + name)
        R = GA + 32
        a.select(ACC, D, 0)
        a(f"ds_write_b128 v{vA0}, {vr(ACC,4)} offset:{lb0}")
        a.select(AOP, D1, 0)
        a(f"ds_write_b128 v{vA0}, {vr(AOP,4)} offset:{lb1}")
        a.gbarrier()
        a(f"""
        s_cmp_ge_u32 s{sU}, 2
        s_cbranch_scc1 {L}
        s_mul_i32 s{sTMP}, s{sU}, {lb1 - lb0}
        v_lshl_add_u32 v{vA0}, v{vLane}, 4, s{sTMP}""")
        for w in range(4):
            a(f"ds_read_b128 {vr(R+4*w,4)}, v{vA0} offset:{lb0 + w*1024}")
        addr()
        a("s_waitcnt lgkmcnt(0)")
        reduce4(a, R, ACC, vN)
        a.guard(lambda: a(f"global_store_dwordx4 v{vA0}, {vr(ACC,4)}, {sp(sWS)} sc1"))
        a.label(L)
    def o_hint_setup(hreg):
        a(f"""
        s_lshl_b32 s{sTMP2}, s{hreg}, 14                ; h*32*512
        s_lshl_b32 s{sTMP}, s{u}, 12                  ; 8u*512
        s_add_u32 s{sTMP2}, s{sTMP2}, s{sTMP}
        s_add_u32 s{sTMP2}, s{sTMP2}, {WS_OP}
        s_add_u32 s{sWQ}, s{sWS}, s{sTMP2}
        s_addc_u32 s{sWQ+1}, s{sWS+1}, 0
        v_lshrrev_b32 v{vA1}, 5, v{vLane}
        v_lshl_add_u32 v{vA2}, v{vA1}, 19, v{vBG}      ; b<<19 + gi*16
        v_bfe_u32 v{vA1}, v{vLane}, 3, 1
        v_and_b32 v{vA0}, 7, v{vLane}
        v_lshlrev_b32 v{vA0}, 9, v{vA0}
        v_lshl_add_u32 v{vA0}, v{vA1}, 19, v{vA0}
        """)
    a("L_tail:")
    a(f"""
    s_bitcmp1_b32 s2, 0
    s_cbranch_scc{0 if o.get("xpar", 1) else 1} L_Y
    """)
    def load_wo(which=(0, 1)):
        code = f"""
            s_lshl_b32 s{sTMP}, s{sHA}, 7
            s_lshl_b32 s{sTMP2}, s{u}, 5
            s_add_u32 s{sTMP}, s{sTMP}, s{sTMP2}
            s_lshl_b32 s{sTMP}, s{sTMP}, 11
            s_lshr_b32 s{sTMP2}, s{sSLOT}, 3
            s_lshl_b32 s{sTMP2}, s{sTMP2}, 9
            s_add_u32 s{sTMP}, s{sTMP}, s{sTMP2}"""
        a(code)
        a(f"""
        s_add_u32 s{sB0}, s{sWO}, s{sTMP}
        s_addc_u32 s{sB0+1}, s{sWO+1}, 0
        s_add_u32 s{sR1}, s{sB0}, 256
        s_addc_u32 s{sR1+1}, s{sB0+1}, 0
        v_lshlrev_b32 v{vA1}, 12, v{vG}             ; 2g*2048
        v_lshl_add_u32 v{vA1}, v{vM}, 4, v{vA1}""")
        def body():
            if 0 in which: wunit(RAWA, sB0, vA1, WO_ROW, 2048)
            if 1 in which: wunit(RAWB, sR1, vA1, WO_ROW, 2048)
        a.guard(body)
    wop = o.get("wop", 0)
    if wop in (0, 2):
        a(f"v_mov_b32 v{vA1}, 0")
        a.ldswait("vw", vA1, vA2, L_CNT+4, 8)
        a(f"s_setprio {o.get('woprio', 0)}")
        load_wo((0, 1) if wop == 0 else (0,))
    a(f"s_setprio {o.get('gprio', 1)}")
    a.stamp(6)
    a.guard(lambda: a("s_barrier      ; B3\n s_barrier      ; B4"))
    if wop == 1: load_wo()
    if wop == 2: load_wo((1,))
    a.stamp(7)
    a(f"""
    s_lshl_b32 s{sTMP}, s{sHA}, 9
    s_add_u32 s{sTMP}, s{sTMP}, {WS_ML}
    v_lshrrev_b32 v{vA1}, 5, v{vLane}             ; b
    v_lshl_add_u32 v{GA+47}, v{vA1}, 14, v{vBG}
    v_add_u32 v{GA+47}, s{sTMP}, v{GA+47}
    """)
    o_hint_setup(sHA)
    HSA = [AOP, GA+36, GA+40]
    a.mask("0xffff", "0")
    a.pspin("hO", lambda r: a(f"global_load_dwordx4 {vr(r,4)}, v{vA0}, {sp(sWQ)} sc1"), HSA, ACC, sleep=psl)
    a.full()
    a.stamp(8)
    MLR = GA + 32
    def issA():
        a(f"v_mov_b32 v{vA1}, v{GA+47}")
        a(f"global_load_dwordx4 {vr(MLR,4)}, v{vA1}, {sp(sWS)} sc1")
        for i in range(8):
            a(f"global_load_dwordx4 {vr(GA+4*i,4)}, v{vA2}, {sp(sWQ)} offset:{i*512} sc1")
    MM, LLr, TT = GA+44, GA+45, GA+46
    def factors():
        a(f"v_mov_b32 v{MM}, v{MLR}")
        a.dpp("v_max_f32", [MM], (XOR1, XOR2, ROR4, ROR8))
        a.allreduce_g([MM], [TT], "v_max_f32", steps=("v_permlane16_swap_b32",))
        a(f"""
        v_sub_f32 v{MM}, v{MLR}, v{MM}
        v_exp_f32 v{MM}, v{MM}
        s_nop 0
        v_mul_f32 v{LLr}, v{MM}, v{MLR+1}""")
        a.dpp("v_add_f32", [LLr], (XOR1, XOR2, ROR4, ROR8))
        a.allreduce_g([LLr], [TT], "v_add_f32", steps=("v_permlane16_swap_b32",))
        a(f"""
        v_rcp_f32 v{LLr}, v{LLr}
        s_nop 0
        v_mul_f32 v{MM}, v{MM}, v{LLr}
        s_lshl_b32 s{sTMP}, s{u}, 8
        v_lshl_add_u32 v{vA0}, v{vLane}, 2, s{sTMP}
        ds_write_b32 v{vA0}, v{MM} offset:{L_FAC}
        v_lshrrev_b32 v{vA1}, 5, v{vLane}
        s_lshl_b32 s{sTMP2}, s{u}, 5
        s_add_u32 s{sTMP}, s{sTMP}, s{sTMP2}
        v_lshl_add_u32 v{vA0}, v{vA1}, 7, s{sTMP}      ; u*256 + b*128 + 8u*4
        ds_read_b128 {vr(AOP,4)}, v{vA0} offset:{L_FAC}
        ds_read_b128 {vr(GA+40,4)}, v{vA0} offset:{L_FAC+16}
        """)
    L = a.lab("swA"); Lok = a.lab("swAok")
    a(f"s_mov_b32 s{sSPIN}, 0")
    a.guard(issA)
    a.perm_unit(RAWA, T)
    a.perm_unit(RAWB, RAWA)
    a.label(L)
    a.guard(lambda: a("s_waitcnt vmcnt(8)"))
    for t in range(4):
        a(f"v_xor_b32 v{ACC+t}, s{sT[t]}, v{MLR+t}")
    a(f"v_or3_b32 v{GA+39}, v{ACC}, v{ACC+1}, v{ACC+2}")
    a(f"v_or_b32 v{GA+39}, v{GA+39}, v{ACC+3}")
    factors()
    a.guard(lambda: a("s_waitcnt vmcnt(0)"))
    for gi in range(8):
        for i in range(4):
            if gi == 0:
                a(f"v_xor_b32 v{ACC+i}, s{sT[i]}, v{GA+i}")
            else:
                a(f"v_bitop3_b32 v{ACC+i}, v{GA+4*gi+i}, s{sT[i]}, v{ACC+i} bitop3:0xbe")
    a(f"v_or3_b32 v{ACC}, v{ACC}, v{ACC+1}, v{ACC+2}\n v_or3_b32 v{ACC}, v{ACC}, v{ACC+3}, v{GA+39}\n v_and_b32 v{ACC}, 0xff, v{ACC}\n v_cmp_ne_u32 vcc, 0, v{ACC}")
    a(f"s_nop 0\n s_cbranch_vccz {Lok}")
    a(f"s_add_u32 s{sSPIN}, s{sSPIN}, 1\n s_sleep 1\n s_waitcnt lgkmcnt(0)")
    a.guard(issA)
    a(f"s_cmp_lt_u32 s{sSPIN}, {SPIN_LIMIT}\n s_cbranch_scc1 {L}\n s_branch L_abort")
    a.label(Lok)
    a.stamp(9)
    FACR = [AOP, AOP+1, AOP+2, AOP+3, GA+40, GA+41, GA+42, GA+43]
    a("s_waitcnt lgkmcnt(0)")
    for t in range(4):
        a(f"v_mul_f32 v{GA+t}, v{GA+t}, v{FACR[0]}")
    for i in range(1, 8):
        for t in range(4):
            a(f"v_fmac_f32 v{GA+t}, v{GA+4*i+t}, v{FACR[i]}")
    exchange(L_XA_A)
    for q in range(4):
        a(f"v_cvt_pk_bf16_f32 v{AOP+q}, v{vals[2*q]}, v{vals[2*q+1]}")
    a("s_nop 1")
    a.mfma8(D, AOP, T)
    a.mfma8(RAWB, AOP, RAWA)
    a(f"s_lshl_b32 s{sTMP}, s{sU}, 10\n v_lshl_add_u32 v{vA0}, v{vLane}, 4, s{sTMP}")
    red_pub2("a", RAWB, L_RA0, L_RA1, lambda: a(f"""
        s_lshr_b32 s{sTMP}, s{sSLOT}, 3
        s_lshl_b32 s{sTMP}, s{sTMP}, 1
        s_add_u32 s{sTMP}, s{sTMP}, s{sU}          ; cc
        s_lshl_b32 s{sTMP}, s{sTMP}, 6
        s_add_u32 s{sTMP}, s{sTMP}, s{sHA}
        s_lshl_b32 s{sTMP}, s{sTMP}, 9
        s_add_u32 s{sTMP}, s{sTMP}, {WS_AP}
        v_and_b32 v{vA0}, 1, v{vG}
        v_lshl_add_u32 v{vA0}, v{vA0}, 14, v{vPubH}
        v_add_u32 v{vA0}, s{sTMP}, v{vA0}"""))
    a.stamp(10)
    a.gbarrier()
    a(f"""
    s_cmp_ge_u32 s{sSLOT}, 28
    s_cbranch_scc1 L_skipC1
    """)
    wpair(T, RAWB, sW2, f"""
        s_lshl_b32 s{sTMP}, s{sFC}, 7
        s_lshl_b32 s{sTMP2}, s{u}, 5
        s_add_u32 s{sTMP}, s{sTMP}, s{sTMP2}
        s_lshl_b32 s{sTMP}, s{sTMP}, 11
        s_and_b32 s{sTMP2}, s{sSLOT}, 3
        s_lshl_b32 s{sTMP2}, s{sTMP2}, 9
        s_add_u32 s{sTMP}, s{sTMP}, s{sTMP2}""", 2048, f"""
        v_lshlrev_b32 v{vA1}, 13, v{vG}           ; 4g*2048
        v_lshl_add_u32 v{vA1}, v{vM}, 4, v{vA1}""", STD_ROW)
    a(f"""
    s_lshl_b32 s{sTMP}, s{sFC}, 7
    s_add_u32 s{sTMP}, s{sTMP}, {WS_FPS}
    v_and_b32 v{vA0}, 7, v{vLane}
    v_lshl_add_u32 v{vA0}, v{vA0}, 4, s{sTMP}
    s_lshl_b32 s{sTMP}, s{sFC}, 13           ; fc*2*8*512
    s_lshl_b32 s{sTMP2}, s{u}, 10             ; 2u*512
    s_add_u32 s{sTMP}, s{sTMP}, s{sTMP2}
    s_add_u32 s{sTMP}, s{sTMP}, {WS_FPP}
    s_add_u32 s{sWQ}, s{sWS}, s{sTMP}
    s_addc_u32 s{sWQ+1}, s{sWS+1}, 0
    s_lshl_b32 s{sTMP}, s{sFC}, 12           ; fc*8*512
    s_add_u32 s{sTMP}, s{sTMP}, s{sTMP2}
    s_add_u32 s{sTMP}, s{sTMP}, {WS_FPC}
    s_add_u32 s{sB1}, s{sWS}, s{sTMP}
    s_addc_u32 s{sB1+1}, s{sWS+1}, 0
    v_lshrrev_b32 v{vA1}, 5, v{vLane}
    v_lshl_add_u32 v{vA2}, v{vA1}, 12, v{vBG}   ; b*8*512 + gi*16
    """)
    a.guard(lambda: a("s_waitcnt vmcnt(0)"))
    a.perm_unit(T, RAWA)
    a.perm_unit(RAWB, T)
    a.stamp(13)
    ST = GA + 36
    a.pspin("hC", lambda r: a(f"global_load_dwordx4 {vr(r,4)}, v{vA0}, {sp(sWS)} sc1"), HS, ACC, dst=ST, sleep=psl)
    a.stamp(14)
    MEANB, RS0, RS1 = GA+32, GA+33, GA+34
    def issC():
        for k in range(2):
            a(f"global_load_dwordx4 {vr(GA+4*k,4)}, v{vA2}, {sp(sWQ)} offset:{k*512} sc1")
        for k in range(2):
            a(f"global_load_dwordx4 {vr(GA+8+4*k,4)}, v{vBG}, {sp(sB1)} offset:{k*512} sc1")
    def shadowC():
        a.dpp("v_add_f32", [ST, ST+1, ST+2, ST+3], (XOR1, XOR2, ROR4))
        a(f"""
        v_mul_f32 v{ST}, 0x3a800000, v{ST}
        v_mul_f32 v{ST+2}, 0x3a800000, v{ST+2}
        v_mul_f32 v{ST+1}, 0x3a800000, v{ST+1}
        v_mul_f32 v{ST+3}, 0x3a800000, v{ST+3}
        v_cndmask_b32 v{MEANB}, v{ST}, v{ST+2}, {sp(sMHI)}
        v_fma_f32 v{ST+1}, -v{ST}, v{ST}, v{ST+1}
        v_fma_f32 v{ST+3}, -v{ST+2}, v{ST+2}, v{ST+3}
        v_max_f32 v{ST+1}, 0, v{ST+1}
        v_max_f32 v{ST+3}, 0, v{ST+3}
        v_add_f32 v{ST+1}, 0x3727c5ac, v{ST+1}
        v_add_f32 v{ST+3}, 0x3727c5ac, v{ST+3}
        v_rsq_f32 v{RS0}, v{ST+1}
        v_rsq_f32 v{RS1}, v{ST+3}
        s_nop 0
        v_cndmask_b32 v{GA+35}, v{RS0}, v{RS1}, {sp(sMB)}
        """)
    sweep("gC", issC, [GA+4*i for i in range(4)], shadowC, o.get("csleep", 1))
    a.stamp(15)
    RSB = GA + 40
    for t in range(4):
        a(f"v_add_f32 v{GA+t}, v{GA+t}, v{GA+4+t}\n v_add_f32 v{GA+8+t}, v{GA+8+t}, v{GA+12+t}")
    for t in range(4):
        a(f"v_fma_f32 v{GA+t}, -v{MEANB}, v{GA+8+t}, v{GA+t}")
    a(f"v_mov_b32 v{RSB}, v{GA+35}")
    exchange(L_XA_C)
    for e in range(8):
        a(f"v_mul_f32 v{vals[e]}, v{vals[e]}, v{RSB}")
    E = GA + 8
    for e in range(8):
        a(f"v_mul_f32 v{E+e}, 0xbfb8aa3b, v{vals[e]}      ; -log2e * x")
    for e in range(8):
        a(f"v_exp_f32 v{E+e}, v{E+e}")
    for e in range(8):
        a(f"v_add_f32 v{E+e}, 1.0, v{E+e}")
    for e in range(8):
        a(f"v_rcp_f32 v{E+e}, v{E+e}")
    for e in range(8):
        a(f"v_mul_f32 v{vals[e]}, v{vals[e]}, v{E+e}")
    for q in range(4):
        a(f"v_cvt_pk_bf16_f32 v{AOP+q}, v{vals[2*q]}, v{vals[2*q+1]}")
    a("s_nop 1")
    a.mfma8(D, AOP, RAWA)
    a.mfma8(RAWB, AOP, T)
    a(f"s_lshl_b32 s{sTMP}, s{sU}, 10\n v_lshl_add_u32 v{vA0}, v{vLane}, 4, s{sTMP}")
    red_pub2("c", RAWB, L_RD0, L_RD1, lambda: a(f"""
        s_and_b32 s{sTMP}, s{sSLOT}, 3
        s_lshl_b32 s{sTMP}, s{sTMP}, 1
        s_add_u32 s{sTMP}, s{sTMP}, s{sU}          ; cc
        s_mul_i32 s{sTMP}, s{sTMP}, 56
        s_add_u32 s{sTMP}, s{sTMP}, s{sFC}
        s_lshl_b32 s{sTMP}, s{sTMP}, 9
        s_add_u32 s{sTMP}, s{sTMP}, {WS_O2}
        v_and_b32 v{vA0}, 1, v{vG}
        v_mul_u32_u24 v{vA0}, {28*512}, v{vA0}
        v_add3_u32 v{vA0}, v{vA0}, v{vPubH}, s{sTMP}"""))
    a("L_skipC1:")
    a.stamp(16)
    a("s_branch L_D")
    a("L_Y:")
    a.stamp(6)
    a.guard(lambda: a("s_barrier      ; B3\n s_barrier      ; B4"))
    a.stamp(7)
    a(f"""
    s_cmp_ge_u32 s{sFCP}, 14
    s_cbranch_scc1 L_D
    """)
    if o.get("ytrig", 1):
        o_hint_setup(sHA)
        a.mask("0xffff", "0")
        a.pspin("hY", lambda r: a(f"global_load_dwordx4 {vr(r,4)}, v{vA0}, {sp(sWQ)} sc1"), HS, ACC, sleep=o.get("ysleep", 3), thr=o.get("ythr", 0))
        a.full()
    a.stamp(8)
    wpair(RAWA, RAWB, sW1, f"""
        s_lshl_b32 s{sTMP}, s{sKSB}, 7
        s_lshl_b32 s{sTMP2}, s{u}, 5
        s_add_u32 s{sTMP}, s{sTMP}, s{sTMP2}
        s_mul_i32 s{sTMP}, s{sTMP}, 7168
        s_lshl_b32 s{sTMP2}, s{sFCP}, 9
        s_add_u32 s{sTMP}, s{sTMP}, s{sTMP2}""", 7168, f"""
        v_mul_u32_u24 v{vA1}, {4*7168}, v{vG}
        v_lshl_add_u32 v{vA1}, v{vM}, 4, v{vA1}""", STD_ROW)
    a(f"""
    s_lshl_b32 s{sTMP}, s{sKSB}, 15            ; ks*2*32*512
    s_lshl_b32 s{sTMP2}, s{u}, 12
    s_add_u32 s{sTMP}, s{sTMP}, s{sTMP2}
    s_add_u32 s{sTMP}, s{sTMP}, {WS_AP}
    s_add_u32 s{sWQ}, s{sWS}, s{sTMP}
    s_addc_u32 s{sWQ+1}, s{sWS+1}, 0
    v_bfe_u32 v{vA1}, v{vLane}, 3, 1
    v_and_b32 v{vA0}, 7, v{vLane}
    v_lshlrev_b32 v{vA0}, 9, v{vA0}
    v_lshl_add_u32 v{vA0}, v{vA1}, 14, v{vA0}
    v_lshrrev_b32 v{vA1}, 5, v{vLane}
    v_lshl_add_u32 v{vA2}, v{vA1}, 14, v{vBG}
    """)
    a.guard(lambda: a("s_waitcnt vmcnt(0)"))
    a.perm_unit(RAWA, T)
    a.perm_unit(RAWB, RAWA)
    a.stamp(10)
    a.mask("0xffff", "0")
    a.pspin("hB", lambda r: a(f"global_load_dwordx4 {vr(r,4)}, v{vA0}, {sp(sWQ)} sc1"), HS, ACC, sleep=psl)
    a.full()
    a.stamp(11)
    def issB():
        for i in range(8):
            a(f"global_load_dwordx4 {vr(GA+4*i,4)}, v{vA2}, {sp(sWQ)} offset:{i*512} sc1")
    XF = GA + 48 - 8
    sweep("gB", issB, [GA+4*i for i in range(8)], lambda: None, o.get("bsleep", 1))
    a.stamp(12)
    for k in (0, 8, 16, 24):
        a(f"v_pk_add_f32 {vr(GA+k,2)}, {vr(GA+k,2)}, {vr(GA+k+4,2)}\n v_pk_add_f32 {vr(GA+k+2,2)}, {vr(GA+k+2,2)}, {vr(GA+k+6,2)}")
    for k in (0, 16):
        a(f"v_pk_add_f32 {vr(GA+k,2)}, {vr(GA+k,2)}, {vr(GA+k+8,2)}\n v_pk_add_f32 {vr(GA+k+2,2)}, {vr(GA+k+2,2)}, {vr(GA+k+10,2)}")
    a(f"v_pk_add_f32 {vr(GA,2)}, {vr(GA,2)}, {vr(GA+16,2)}\n v_pk_add_f32 {vr(GA+2,2)}, {vr(GA+2,2)}, {vr(GA+18,2)}")
    a(f"ds_write_b128 v{vXW}, {vr(GA,4)} offset:{L_XA_B}")
    for q in range(4):
        a(f"v_lshlrev_b32 v{XF+2*q}, 16, v{XR+q}\n v_and_b32 v{XF+2*q+1}, 0xffff0000, v{XR+q}")
    a.gbarrier()
    a(f"""
    ds_read_b128 {vr(vals[0],4)}, v{vXR} offset:{L_XA_B}
    ds_read_b128 {vr(vals[4],4)}, v{vXR} offset:{L_XA_B + 64}
    v_mov_b32 v{ACC}, 0x3f803f80
    s_waitcnt lgkmcnt(0)""")
    a.dpp("v_add_f32", vals, (XOR1, XOR2))
    for e in range(0, 8, 2):
        a(f"v_pk_add_f32 {vr(XF+e,2)}, {vr(XF+e,2)}, {vr(vals[e],2)}")
    HP_ = XR
    for q in range(4):
        a(f"v_cvt_pk_bf16_f32 v{HP_+q}, v{XF+2*q}, v{XF+2*q+1}")
    a("s_nop 0")
    for q in range(4):
        a(f"v_cndmask_b32 v{AOP+q}, v{HP_+q}, v{ACC}, {sp(sM1)}")
    a("s_nop 1")
    DX = GA + 44
    a(f"v_mfma_f32_16x16x32_bf16 {vr(DX,4)}, {vr(AOP,4)}, {vr(AOP,4)}, 0")
    a.mfma8(D, AOP, T)
    a.mfma8(RAWB, AOP, RAWA)
    a(f"""
    s_lshl_b32 s{sTMP}, s{u}, 10
    v_lshl_add_u32 v{vA0}, v{vLane}, 4, s{sTMP}
    v_lshrrev_b32 v{vA1}, 4, v{vLane}
    v_lshlrev_b32 v{vA1}, 3, v{vA1}
    v_not_b32 v{vA2}, v{vLane}
    v_and_b32 v{vA2}, 1, v{vA2}
    v_lshl_add_u32 v{vA1}, v{vA2}, 2, v{vA1}
    s_lshl_b32 s{sTMP}, s{u}, 4
    v_add_u32 v{vA1}, s{sTMP}, v{vA1}
    """)
    a.select(ACC, D, 0)
    a(f"ds_write_b128 v{vA0}, {vr(ACC,4)} offset:{L_RA0}")
    a.select(AOP, D, 1)
    a(f"ds_write_b128 v{vA0}, {vr(AOP,4)} offset:{L_RD0}")
    a.select(GA+32, RAWB, 0)
    a(f"ds_write_b128 v{vA0}, {vr(GA+32,4)} offset:{L_RA1}")
    a.select(GA+36, RAWB, 1)
    a(f"ds_write_b128 v{vA0}, {vr(GA+36,4)} offset:{L_RD1}")
    a.mask("0x00300003", "0")
    a(f"ds_write_b32 v{vA1}, v{DX} offset:{L_REDS}")
    a.full()
    a.gbarrier()
    R2 = GA + 16
    a(f"""
    s_cmp_eq_u32 s{u}, 3
    s_cbranch_scc1 L_b_st
    s_cmp_eq_u32 s{u}, 2
    s_cbranch_scc1 L_b_cs
    s_mul_i32 s{sTMP}, s{u}, {L_RA1 - L_RA0}
    v_lshl_add_u32 v{vA0}, v{vLane}, 4, s{sTMP}
    """)
    for w in range(4):
        a(f"ds_read_b128 {vr(R2+4*w,4)}, v{vA0} offset:{L_RA0 + w*1024}")
    a(f"""
    s_lshl_b32 s{sTMP}, s{sFCP}, 1
    s_add_u32 s{sTMP}, s{sTMP}, s{u}           ; fc
    s_lshl_b32 s{sTMP}, s{sTMP}, 4             ; fc*2*8
    s_add_u32 s{sTMP}, s{sTMP}, s{sKSB}
    s_lshl_b32 s{sTMP}, s{sTMP}, 9
    s_add_u32 s{sTMP}, s{sTMP}, {WS_FPP}
    v_and_b32 v{vA0}, 1, v{vG}
    v_lshl_add_u32 v{vA0}, v{vA0}, 12, v{vPubH}
    v_add_u32 v{vA0}, s{sTMP}, v{vA0}
    s_waitcnt lgkmcnt(0)""")
    reduce4(a, R2, ACC, vN)
    a.guard(lambda: a(f"global_store_dwordx4 v{vA0}, {vr(ACC,4)}, {sp(sWS)} sc1"))
    a(f"""
    s_branch L_b_done
    L_b_cs:
    v_and_b32 v{vA1}, 1, v{vG}
    v_mul_u32_u24 v{vA0}, {L_RD1 - L_RD0}, v{vA1}
    v_lshl_add_u32 v{vA0}, v{vLane}, 4, v{vA0}
    """)
    for w in range(4):
        a(f"ds_read_b128 {vr(R2+4*w,4)}, v{vA0} offset:{L_RD0 + w*1024}")
    a(f"""
    s_lshl_b32 s{sTMP}, s{sFCP}, 4             ; fc0*8
    s_add_u32 s{sTMP}, s{sTMP}, s{sKSB}
    s_lshl_b32 s{sTMP}, s{sTMP}, 9
    s_add_u32 s{sTMP}, s{sTMP}, {WS_FPC}
    v_lshl_add_u32 v{vA0}, v{vA1}, 12, v{vPubH}     ; + (g&1)*8*512
    v_add_u32 v{vA0}, s{sTMP}, v{vA0}
    s_waitcnt lgkmcnt(0)""")
    reduce4(a, R2, ACC, vN)
    a.guard(lambda: a(f"global_store_dwordx4 v{vA0}, {vr(ACC,4)}, {sp(sWS)} sc1"))
    a(f"""
    s_branch L_b_done
    L_b_st:
    v_mov_b32 v{vA0}, 0
    """)
    for w in range(4):
        a(f"ds_read_b128 {vr(R2+4*w,4)}, v{vA0} offset:{L_REDS + w*16}")
    a(f"""
    s_lshl_b32 s{sTMP}, s{sFCP}, 4
    s_add_u32 s{sTMP}, s{sTMP}, s{sKSB}
    s_lshl_b32 s{sTMP}, s{sTMP}, 4
    s_add_u32 s{sTMP}, s{sTMP}, {WS_FPS}
    v_lshl_add_u32 v{vA0}, v{vLane}, 7, s{sTMP}
    s_waitcnt lgkmcnt(0)
    """)
    for t in (0, 2):
        a(f"v_pk_add_f32 {vr(R2+t,2)}, {vr(R2+t,2)}, {vr(R2+4+t,2)}\n v_pk_add_f32 {vr(R2+8+t,2)}, {vr(R2+8+t,2)}, {vr(R2+12+t,2)}")
    for t in (0, 2):
        a(f"v_pk_add_f32 {vr(R2+t,2)}, {vr(R2+t,2)}, {vr(R2+8+t,2)}")
    a.tag(ACC, R2, vN)
    a.mask("3", "0")
    a.guard(lambda: a(f"global_store_dwordx4 v{vA0}, {vr(ACC,4)}, {sp(sWS)} sc1"))
    a.full()
    a("L_b_done:")
    a(f"""
    s_cmp_lg_u32 s{sFCP}, 0
    s_cbranch_scc1 L_nohp""")
    XF2 = GA + 32
    for q in range(4):
        a(f"v_lshlrev_b32 v{XF2+2*q}, 16, v{HP_+q}\n v_and_b32 v{XF2+2*q+1}, 0xffff0000, v{HP_+q}")
    a.tag(GA+4, XF2, vN)
    a.tag(GA+8, XF2+4, vN)
    a(f"""
    s_lshl_b32 s{sTMP}, s{sKSB}, 5
    s_lshl_b32 s{sTMP2}, s{u}, 3
    s_add_u32 s{sTMP}, s{sTMP}, s{sTMP2}
    s_lshl_b32 s{sTMP}, s{sTMP}, 4
    s_add_u32 s{sTMP}, s{sTMP}, {WS_HP}
    v_lshlrev_b32 v{vA1}, 4, v{vG}
    v_lshl_add_u32 v{vA1}, v{vB}, 12, v{vA1}
    v_add_u32 v{vA1}, s{sTMP}, v{vA1}""")
    a.mask("0x00110011", "0x00110011")
    a.guard(lambda: a(f"""global_store_dwordx4 v{vA1}, {vr(GA+4,4)}, {sp(sWS)} sc1
    global_store_dwordx4 v{vA1}, {vr(GA+8,4)}, {sp(sWS)} offset:64 sc1"""))
    a.full()
    a("L_nohp:")
    a.stamp(13)
    if o.get("ydpre", 0): a.guard(lambda: a("\n".join([f"s_sleep {min(127, o['ydpre'] - 127*k)}" for k in range((o['ydpre'] + 126)//127)])))
    a("L_D:")
    a(f"""
    s_cmp_lg_u32 s{u}, 0
    s_cbranch_scc1 L_G_done
    s_and_b32 s{sX}, s2, 7
    s_lshl_b32 s{sX}, s{sX}, 5
    s_lshr_b32 s{sX+1}, s2, 3
    s_add_u32 s{sX}, s{sX}, s{sX+1}
    s_lshr_b32 s{sB0}, s{sX}, 7                ; b2
    s_bfe_u32 s{sB0+1}, s{sX}, 0x30004         ; cc2
    s_and_b32 s{sB1}, s{sX}, 15
    s_lshl_b32 s{sB1}, s{sB1}, 5               ; gi0*16
    s_lshl_b32 s{sTMP}, s{sB0+1}, 1
    s_add_u32 s{sTMP}, s{sTMP}, s{sB0}
    s_mul_i32 s{sTMP}, s{sTMP}, {28*512}
    s_add_u32 s{sTMP}, s{sTMP}, s{sB1}
    s_add_u32 s{sTMP}, s{sTMP}, {WS_O2}
    v_lshrrev_b32 v{vA0}, 1, v{vLane}
    v_lshlrev_b32 v{vA0}, 9, v{vA0}
    v_and_b32 v{vA1}, 1, v{vLane}
    v_lshl_add_u32 v{vA0}, v{vA1}, 4, v{vA0}
    v_add_u32 v{vA0}, s{sTMP}, v{vA0}
    s_lshl_b32 s{sTMP}, s{sB0}, 12             ; b*256*16
    s_lshl_b32 s{sTMP2}, s{sB0+1}, 9           ; cc*32*16
    s_add_u32 s{sTMP}, s{sTMP}, s{sTMP2}
    s_add_u32 s{sTMP}, s{sTMP}, s{sB1}
    s_add_u32 s{sTMP}, s{sTMP}, {WS_HP}
    v_lshl_add_u32 v{vA2}, v{vA1}, 4, s{sTMP}
    v_cmp_le_u32 vcc, 56, v{vLane}
    s_nop 1
    v_cndmask_b32 v{vA0}, v{vA0}, v{vA2}, vcc
    """)
    DS = [GA, GA+4, GA+8]
    a.mask("-1", "0x03ffffff")
    if o.get("dpre", 0): a.guard(lambda: a(f"s_sleep {o['dpre']}"))
    a.pspin("gd", lambda r: a(f"global_load_dwordx4 {vr(r,4)}, v{vA0}, {sp(sWS)} sc1"), DS, ACC, dst=GA+12, sleep=o.get("dsleep", 1))
    a.full()
    a.stamp(17)
    fv = [GA+12+i for i in range(4)]
    a.mask("0", "0xfc000000")
    for r in fv: a(f"v_mov_b32 v{r}, 0")
    a.full()
    a.dpp("v_add_f32", fv, (XOR2, ROR4, ROR8))
    a.allreduce_g(fv, [GA+16+i for i in range(4)])
    a(f"""
    v_cvt_pk_bf16_f32 v{GA+20}, v{GA+12}, v{GA+13}
    v_cvt_pk_bf16_f32 v{GA+21}, v{GA+14}, v{GA+15}
    s_lshl_b32 s{sTMP}, s{sX}, 4
    v_lshl_add_u32 v{vA0}, v{vA1}, 3, s{sTMP}
    """)
    a.mask("3", "0")
    a.guard(lambda: a(f"global_store_dwordx2 v{vA0}, {vr(GA+20,2)}, {sp(sOUT)}"))
    a(f"""
    s_cmp_lg_u32 s2, 0
    s_cbranch_scc1 L_G_done
    """)
    a.full()
    a(f"v_mov_b32 v{vA0}, 0")
    a.mask("1", "0")
    a.guard(lambda: a(f"global_store_dword v{vA0}, v{vN}, {sp(sWS)} sc1"))
    a("L_G_done:")
    if o.get("dry", 1):
        a("s_cbranch_execz L_dry_done")
    a.stamp(18)
    a.dump_stamps(19, 7)
    a("s_endpgm")

def gen_A(a):
    o = a.o
    vLane, vG, vM, vN = 0, 2, 3, 4
    vKs = 5
    vV = 9
    vT0, vT1, vT2 = 10, 11, 12
    MX, LS = 13, 14
    VR = 16
    QO = 80
    KS = 96
    S = 128
    P = 144
    TB = 80
    ACCD = 112
    sA = sU
    sP, sS = 52, 53
    a(f"""
    L_A:
    ; ---------------- A waves ----------------
    s_setprio 2
    s_sub_u32 s{sA}, s{sWAVE}, 4
    s_and_b32 s{sP}, s2, 7
    s_lshr_b32 s{sS}, s2, 3
    s_lshl_b32 s{sTMP}, s{sP}, 22
    s_lshl_b32 s{sTMP2}, s{sS}, 17
    s_add_u32 s{sTMP}, s{sTMP}, s{sTMP2}
    s_lshl_b32 s{sTMP2}, s{sA}, {12 if o.get("ilv", 1) else 14}
    s_add_u32 s{sTMP}, s{sTMP}, s{sTMP2}
    s_lshl_b32 s{sTMP2}, s{sA}, 14
    """)
    TS = 32768 if o.get("ilv", 1) else 4096
    for r in range(4):
        a(f"v_add_u32 v{vT0}, {4*r}, v{vG}\n v_xor_b32 v{vT0}, v{vT0}, v{vM}\n v_lshlrev_b32 v{vT0}, 4, v{vT0}\n v_lshl_add_u32 v{vKs+r}, v{vG}, 8, v{vT0}")
    a(f"""
    v_lshlrev_b32 v{vT0}, 4, v{vM}
    v_lshl_add_u32 v{vV}, v{vG}, 10, v{vT0}
    v_mov_b32 v{vT1}, 0
    s_mov_b32 s{sM8}, 0xff00ff00
    s_mov_b32 s{sM8+1}, 0xff00ff00
    s_waitcnt lgkmcnt(0)
    s_add_u32 s{sB0}, s{sK}, s{sTMP}
    s_addc_u32 s{sB0+1}, s{sK+1}, 0
    s_add_u32 s{sB1}, s{sV}, s{sTMP}
    s_addc_u32 s{sB1+1}, s{sV+1}, 0
    s_add_u32 m0, s{sTMP2}, {L_K}
    s_barrier       ; B0
    global_load_dword v{vN}, v{vT1}, {sp(sWS)} sc1
    """)
    KW = o.get("kwin", 3)
    for i in range(16):
        r = i % 4
        if KW and i >= KW: a(f"s_waitcnt vmcnt({KW-1})")
        a(f"global_load_lds_dwordx4 v{vKs+r}, {sp(sB0)} offset:{r*1024} nt")
        if r == 3 and i < 15:
            a(f"s_add_u32 s{sB0}, s{sB0}, {TS}\n s_addc_u32 s{sB0+1}, s{sB0+1}, 0\n s_add_u32 m0, m0, 4096")
    a.stamp(1)
    a(f"s_setprio {o.get('vprio', 1)}")
    VW = o.get("vwin", 0)
    for uu in range(2):
        for i in range(8):
            reg = VR + (uu*8+i)*4
            if VW and uu*8+i < o.get("vwn", 16): a(f"s_waitcnt vmcnt({VW-1})")
            a(f"global_load_dwordx4 {vr(reg,4)}, v{vV}, {sp(sB1)} offset:{(i%4)*256} nt")
            if i % 4 == 3 and not (uu == 1 and i == 7):
                a(f"s_add_u32 s{sB1}, s{sB1}, {TS}\n s_addc_u32 s{sB1+1}, s{sB1+1}, 0")
    a.stamp(2)
    a(f"""
    v_mov_b32 v{vT1}, 0
    v_mov_b32 v{vT2}, 1
    s_mov_b64 exec, 1
    ds_add_u32 v{vT1}, v{vT2} offset:{L_CNT+4}
    s_mov_b64 exec, -1""")
    a(f"s_lshl_b32 s{sTMP}, s{sA}, 14\n s_add_u32 s{sTMP}, s{sTMP}, {L_K}")
    for s in range(4):
        a(f"v_add_u32 v{vT0}, {4*s}, v{vG}\n v_xor_b32 v{vT0}, v{vT0}, v{vM}\n v_lshlrev_b32 v{vT0}, 4, v{vT0}\n v_lshl_add_u32 v{vT0}, v{vM}, 8, v{vT0}\n v_add_u32 v{vKs+s}, s{sTMP}, v{vT0}")
    a.ldswait("Aq", vT1, vT2, L_CNT, 4, sleep=4)
    a(f"""
    v_and_b32 v{vT0}, 7, v{vM}
    v_mul_u32_u24 v{vT0}, 272, v{vT0}
    v_lshl_add_u32 v{vT0}, v{vG}, 4, v{vT0}
    """)
    a.stamp(3)
    for s in range(4):
        a(f"ds_read_b128 {vr(QO+4*s,4)}, v{vT0} offset:{L_Q + s*64}")
    a("s_waitcnt vmcnt(16)")
    a.nonce_from(vN)
    def kread(t, buf):
        for s in range(4):
            a(f"ds_read_b128 {vr(KS+16*buf+4*s,4)}, v{vKs+s} offset:{t*4096}")
    kread(0, 0); kread(1, 1)
    for t in range(4):
        buf = t % 2
        a("s_waitcnt lgkmcnt(4)" if t < 3 else "s_waitcnt lgkmcnt(0)")
        for s in range(4):
            c = "0" if s == 0 else vr(S+4*t, 4)
            a(f"v_mfma_f32_16x16x32_bf16 {vr(S+4*t,4)}, {vr(KS+16*buf+4*s,4)}, {vr(QO+4*s,4)}, {c}")
        if t + 2 < 4:
            kread(t + 2, buf)
    a("s_nop 7")
    a(f"v_max3_f32 v{MX}, v{S}, v{S+1}, v{S+2}")
    for k in range(3, 15, 2):
        a(f"v_max3_f32 v{MX}, v{MX}, v{S+k}, v{S+k+1}")
    a(f"v_max_f32 v{MX}, v{MX}, v{S+15}")
    a.allreduce_g([MX], [vT2], "v_max_f32")
    a(f"""
    s_mov_b32 s{sC}, 0x3e0293ee                   ; 128^-0.5 * log2(e)
    v_mul_f32 v{MX}, s{sC}, v{MX}""")
    for k in range(16):
        a(f"v_fma_f32 v{S+k}, v{S+k}, s{sC}, -v{MX}")
    for k in range(16):
        a(f"v_exp_f32 v{S+k}, v{S+k}")
    a("s_nop 0")
    for uu in range(2):
        for q in range(4):
            k = 8*uu + 2*q
            a(f"v_cvt_pk_bf16_f32 v{P+4*uu+q}, v{S+k}, v{S+k+1}")
    a(f"v_add_f32 v{LS}, v{S}, v{S+1}")
    for k in range(2, 16):
        a(f"v_add_f32 v{LS}, v{LS}, v{S+k}")
    a.allreduce_g([LS], [KS])
    a(f"""
    v_and_b32 v{vT0}, 7, v{vM}
    v_lshlrev_b32 v{vT0}, 5, v{vT0}             ; head*32
    s_lshl_b32 s{sTMP}, s{sA}, 2
    v_add_u32 v{vT0}, s{sTMP}, v{vT0}            ; head*32 + a*4
    s_mov_b64 exec, 0xff
    ds_write_b32 v{vT0}, v{MX} offset:{L_MX}
    ds_write_b32 v{vT0}, v{LS} offset:{L_LS}
    s_mov_b64 exec, 1
    v_mov_b32 v{vT1}, 0
    v_mov_b32 v{vT2}, 1
    s_waitcnt lgkmcnt(0)
    ds_add_rtn_u32 v{vT2}, v{vT1}, v{vT2} offset:{L_CNT+8}
    s_waitcnt lgkmcnt(0)
    s_mov_b64 exec, -1
    v_readfirstlane_b32 s{sTMP}, v{vT2}
    s_mov_b32 s{sSPIN}, 0
    s_cmp_lg_u32 s{sTMP}, 7
    s_cbranch_scc1 L_A_noml
    v_and_b32 v{vT0}, 7, v{vLane}
    v_lshlrev_b32 v{vT1}, 5, v{vT0}
    ds_read_b128 {vr(KS,4)}, v{vT1} offset:{L_MX}
    ds_read_b128 {vr(KS+4,4)}, v{vT1} offset:{L_MX+16}
    ds_read_b128 {vr(KS+8,4)}, v{vT1} offset:{L_LS}
    ds_read_b128 {vr(KS+12,4)}, v{vT1} offset:{L_LS+16}
    s_lshl_b32 s{sTMP}, s{sP}, 8                   ; p*8*32
    s_add_u32 s{sTMP}, s{sTMP}, s{sS}
    s_lshl_b32 s{sTMP}, s{sTMP}, 4
    s_add_u32 s{sTMP}, s{sTMP}, {WS_ML}
    v_lshl_add_u32 v{vT1}, v{vT0}, 9, s{sTMP}       ; + head*32*16
    s_waitcnt lgkmcnt(0)
    v_max3_f32 v{KS+16}, v{KS}, v{KS+1}, v{KS+2}
    v_max3_f32 v{KS+17}, v{KS+3}, v{KS+4}, v{KS+5}
    v_max3_f32 v{KS+16}, v{KS+16}, v{KS+6}, v{KS+7}
    v_max_f32 v{KS+16}, v{KS+16}, v{KS+17}
    v_perm_b32 v{KS+16}, v{KS+16}, v{vN}, s{sSEL[0]}
    """)
    for w in range(8):
        a(f"v_sub_f32 v{KS+w}, v{KS+w}, v{KS+16}")
    for w in range(8):
        a(f"v_exp_f32 v{KS+w}, v{KS+w}")
    a(f"s_nop 0\n v_mul_f32 v{KS+17}, v{KS}, v{KS+8}")
    for w in range(1, 8):
        a(f"v_fmac_f32 v{KS+17}, v{KS+w}, v{KS+8+w}")
    a(f"v_mov_b32 v{KS+18}, v{KS+16}\n v_mov_b32 v{KS+19}, v{KS+16}")
    a.tag(KS+20, KS+16, vN)
    a(f"""
    s_mov_b64 exec, 0xff
    global_store_dwordx4 v{vT1}, {vr(KS+20,4)}, {sp(sWS)} sc1
    s_mov_b64 exec, -1
    s_mov_b32 s{sPEND}, 1
    s_branch L_A_ml2
    L_A_noml:
    s_mov_b32 s{sPEND}, 0
    L_A_ml2:
    """)
    a.stamp(4)
    for uu in range(2):
        if uu == 0:
            a("s_waitcnt vmcnt(8)")
        else:
            a(f"s_cmp_eq_u32 s{sPEND}, 0\n s_cbranch_scc1 L_A_w0\n s_waitcnt vmcnt(1)\n s_branch L_A_w1\n L_A_w0:\n s_waitcnt vmcnt(0)\n L_A_w1:")
        if uu == 1: a.stamp(5)
        raw = VR + 32*uu
        for t in range(4):
            tb = TB + 8*t
            for par, sel in ((0, sPLO), (1, sPHI)):
                for q in range(4):
                    a(f"v_perm_b32 v{tb+4*par+q}, v{raw+4*(2*q+1)+t}, v{raw+4*(2*q)+t}, s{sel}")
            if t > 0:
                for par in range(2):
                    j = 2*(t-1) + par
                    c = "0" if uu == 0 else vr(ACCD+4*j, 4)
                    a(f"v_mfma_f32_16x16x32_bf16 {vr(ACCD+4*j,4)}, {vr(TB+8*(t-1)+4*par,4)}, {vr(P+4*uu,4)}, {c}")
        a("s_nop 1")
        for par in range(2):
            j = 6 + par
            c = "0" if uu == 0 else vr(ACCD+4*j, 4)
            a(f"v_mfma_f32_16x16x32_bf16 {vr(ACCD+4*j,4)}, {vr(TB+24+4*par,4)}, {vr(P+4*uu,4)}, {c}")
        if uu == 0:
            a(f"""
            s_lshl_b32 s{sTMP}, s{sA}, 14
            s_add_u32 s{sTMP}, s{sTMP}, {L_OB}
            v_mul_u32_u24 v{vT0}, 17, v{vG}
            v_add_u32 v{vT0}, v{vT0}, v{vM}
            v_lshl_add_u32 v{vT0}, v{vT0}, 4, s{sTMP}
            v_bfe_u32 v{vT1}, v{vLane}, 3, 2            ; g'
            v_and_b32 v{vKs}, 3, v{vLane}               ; j'&3
            v_bfe_u32 v{vKs+1}, v{vLane}, 2, 1          ; j'>>2
            v_lshl_add_u32 v{vKs}, v{vKs}, 1, v{vKs+1}  ; j
            v_and_b32 v{vKs+1}, 3, v{vKs}               ; jj
            v_lshrrev_b32 v{vKs}, 2, v{vKs}             ; nh
            v_lshl_add_u32 v{vT1}, v{vKs+1}, 2, v{vT1}  ; jj*4+g'
            v_mul_u32_u24 v{vT1}, 17, v{vT1}
            v_lshl_add_u32 v{vT1}, v{vKs}, 3, v{vT1}
            v_add_u32 v{vT1}, s{sA}, v{vT1}
            v_lshlrev_b32 v{vT1}, 4, v{vT1}
            v_lshrrev_b32 v{vKs}, 5, v{vLane}           ; ph
            v_lshl_add_u32 v{vT1}, v{vKs}, 16, v{vT1}   ; + ph*4*16384
            v_add_u32 v{vT1}, {L_OB}, v{vT1}
            s_lshl_b32 s{sTMP}, s{sA}, 5
            v_lshl_add_u32 v{vKs+1}, v{vKs}, 4, s{sTMP}
            v_xor_b32 v{vKs+2}, 16, v{vKs+1}
            s_lshl_b32 s{sTMP}, s{sP}, 3
            s_add_u32 s{sTMP}, s{sTMP}, s{sA}
            s_lshl_b32 s{sTMP}, s{sTMP}, 5
            s_add_u32 s{sTMP}, s{sTMP}, s{sS}            ; (p*8+head)*32 + s
            s_lshl_b32 s{sTMP2}, s{sTMP}, 9
            s_add_u32 s{sTMP2}, s{sTMP2}, {WS_OP}
            v_and_b32 v{vKs+3}, 31, v{vLane}
            v_lshl_add_u32 v{vV}, v{vKs+3}, 4, s{sTMP2}
            v_mov_b32 v{vKs}, 0
            v_mov_b32 v{vKs+3}, 1
            s_setprio 3
            """)
    a("s_nop 7")
    XB = TB
    for jj in range(4):
        for r in range(4):
            a(f"v_cndmask_b32 v{XB+4*jj+r}, v{ACCD+4*jj+r}, v{ACCD+4*(jj+4)+r}, {sp(sM8)}")
        a(f"ds_write_b128 v{vT0}, {vr(XB+4*jj,4)} offset:{jj*1088}")
    a("s_waitcnt lgkmcnt(0)\n s_barrier     ; B3")
    a.stamp(6)
    R = KS
    for w in range(4):
        a(f"ds_read_b128 {vr(R+4*w,4)}, v{vT1} offset:{w*OB_STRIDE}")
    MO, MT = R+16, R+20
    a(f"ds_read_b128 {vr(MO,4)}, v{vKs+1} offset:{L_MX}")
    a(f"ds_read_b128 {vr(MT,4)}, v{vKs+2} offset:{L_MX}")
    a(f"""
    s_waitcnt lgkmcnt(0)
    v_max3_f32 v{MX}, v{MO}, v{MO+1}, v{MO+2}
    v_max3_f32 v{MT}, v{MT}, v{MT+1}, v{MT+2}
    v_max3_f32 v{MX}, v{MX}, v{MO+3}, v{MT+3}
    v_max_f32 v{MX}, v{MX}, v{MT}
    v_perm_b32 v{MX}, v{MX}, v{vN}, s{sSEL[0]}
    """)
    for w in range(4):
        a(f"v_sub_f32 v{MO+w}, v{MO+w}, v{MX}")
    for w in range(4):
        a(f"v_exp_f32 v{MO+w}, v{MO+w}")
    a("s_nop 0")
    for t in range(4):
        a(f"v_mul_f32 v{R+t}, v{R+t}, v{MO}")
    for w in range(1, 4):
        for t in range(4):
            a(f"v_fmac_f32 v{R+t}, v{R+4*w+t}, v{MO+w}")
    a.allreduce_g([R, R+1, R+2, R+3], [R+4, R+5, R+6, R+7], steps=("v_permlane32_swap_b32",))
    a.tag(R+8, R, vN)
    a(f"""
    s_mov_b32 exec_hi, 0
    global_store_dwordx4 v{vV}, {vr(R+8,4)}, {sp(sWS)} sc1
    """)
    a.stamp(7)
    a("s_barrier     ; B4")
    a.dump_stamps(8, 10)
    a("s_endpgm")

if __name__ == "__main__":
    out = sys.argv[1]
    stamps = len(sys.argv) > 2 and sys.argv[2] == "1"
    opts = {}
    for kv in sys.argv[3:]:
        k, v = kv.split("="); opts[k] = int(v)
    open(out, "w").write(build(stamps, **opts))
```

```python
import sys
from gen_common import *

WS_EPOCH = 0
WS_QP   = 0x010000
WS_ML   = 0x080000
WS_HP   = 0x090000
WS_OP   = 0x100000
WS_AP   = 0x200000
WS_FPP  = 0x240000
WS_FPC  = 0x280000
WS_FPS  = 0x2A0000
WS_O2   = 0x2C0000
WS_STAMP = 0x800000
L_Q   = 0
L_MX  = 2304
L_LS  = L_MX + 256
L_REDQ = L_LS + 256
L_CNT = 6912
L_K   = 8192
L_OB  = L_K
OB_STRIDE = 16384
LDS_BYTES = L_K + 131072
L_XA_A = 12544
L_FAC  = 16896
L_XA_C = 17920
L_RA0, L_RA1 = 28928, 33024
L_RD0, L_RD1 = 45312, 49408
L_XA_B = 12544
L_REDS = 16896

SPIN_LIMIT = 4000

sX, sK, sV, sWQ, sWO, sW1, sW2, sOUT, sDBG, sWS = 4, 6, 8, 10, 12, 16, 18, 20, 22, 24
sFULL = 14
sWAVE, sU = 26, 27
sNONCE = 28
sT = [29, 30, 31, 32]
sSEL = [33, 34, 35, 36]
sPLO, sPHI = 37, 38
sC = 39
sMHI = 40
sM8 = 42
sB0 = 44
sB1 = 46
sMB = 48
sM1 = 50
sSPIN = 60
sTMP, sTMP2 = 61, 62
sPEND = 63
sSTAMP = 64

def sp(r): return f"s[{r}:{r+1}]"
def vr(r, n): return f"v[{r}:{r+n-1}]" if n > 1 else f"v{r}"
XOR1, XOR2, ROR4, ROR8 = "quad_perm:[1,0,3,2]", "quad_perm:[2,3,0,1]", "row_ror:4", "row_ror:8"
DM = "row_mask:0xf bank_mask:0xf"

class Gen(Asm):
    def __init__(self, stamps=False, opts=None):
        super().__init__()
        self.stamps = stamps
        self.o = opts or {}
        self.uid = 0
    def lab(self, base):
        self.uid += 1
        return f"L_{base}_{self.uid}"
    def stamp(self, idx):
        if self.stamps:
            self(f"s_memrealtime {sp(sSTAMP + 2 * idx)}")
    def dump_stamps(self, n, tmpv):
        if not self.stamps: return
        if self.o.get("dbgst", 0) == 2:
            if n <= 10: return
            L = self.lab("nodbg")
            self(f"s_cmp_lg_u32 s2, {self.o.get('dbgwg', 0)}\n s_cbranch_scc1 {L}\n s_cmp_lg_u32 s{sWAVE}, 0\n s_cbranch_scc1 {L}")
            self(f"s_waitcnt lgkmcnt(0)\n s_mov_b64 exec, 1\n v_mov_b32 v{tmpv}, 0")
            for k, i in enumerate((1, 2, 3, 4, 5, 6, 7, 8, 9, 10, 11, 12, 13, 15, 16, 18)):
                self(f"s_sub_u32 s{sTMP}, s{sSTAMP+2*i}, s{sSTAMP}\n v_mov_b32 v{tmpv+1}, s{sTMP}\n global_store_dword v{tmpv}, v{tmpv+1}, {sp(sDBG)} offset:{4*k}\n s_nop 1")
            self.label(L)
            return
        self(f"""s_waitcnt lgkmcnt(0)
        s_lshl_b32 s{sTMP}, s2, 4
        s_add_u32 s{sTMP}, s{sTMP}, s{sWAVE}
        s_lshl_b32 s{sTMP}, s{sTMP}, 7
        s_add_u32 s{sTMP}, s{sTMP}, {WS_STAMP}
        s_mov_b64 exec, 1
        v_mov_b32 v{tmpv}, s{sTMP}""")
        for i in range(n):
            self(f"v_mov_b32 v{tmpv+1}, s{sSTAMP+2*i}\n global_store_dword v{tmpv}, v{tmpv+1}, {sp(sWS)} offset:{4*i}\n s_nop 1")
    def full(self): self(f"s_mov_b64 exec, {sp(sFULL)}")
    def mask(self, lo, hi): self(f"s_and_b32 exec_lo, s{sFULL}, {lo}\n s_and_b32 exec_hi, s{sFULL+1}, {hi}")
    def guard(self, fn):
        L = self.lab("grd")
        self(f"s_cbranch_execz {L}")
        fn()
        self.label(L)
    def gbarrier(self):
        self("s_waitcnt lgkmcnt(0)")
        self.guard(lambda: self("s_barrier"))
    def dpp(self, op, regs, ctrls):
        n = len(regs)
        for ctrl in ctrls:
            if n < 3: self(f"s_nop {2 - n}" if n < 2 else "s_nop 0")
            for r in regs:
                self(f"{op}_dpp v{r}, v{r}, v{r} {ctrl} {DM}")
    def allreduce_g(self, regs, tmps, op="v_add_f32", steps=("v_permlane16_swap_b32", "v_permlane32_swap_b32")):
        n = len(regs)
        for swap in steps:
            for r, t in zip(regs, tmps):
                self(f"v_mov_b32 v{t}, v{r}")
            self("s_nop 1" if n < 2 else "s_nop 0")
            for r, t in zip(regs, tmps):
                self(f"{swap} v{r}, v{t}")
            self("s_nop 1" if n < 2 else "s_nop 0")
            for r, t in zip(regs, tmps):
                self(f"{op} v{r}, v{r}, v{t}")
    def tag(self, dst, src, vN):
        for i in range(4):
            self(f"v_perm_b32 v{dst+i}, v{src+i}, v{vN}, s{sSEL[i]}")
    def check(self, grans, acc):
        for gi, gbase in enumerate(grans):
            for i in range(4):
                if gi == 0:
                    self(f"v_xor_b32 v{acc+i}, s{sT[i]}, v{gbase+i}")
                else:
                    self(f"v_bitop3_b32 v{acc+i}, v{gbase+i}, s{sT[i]}, v{acc+i} bitop3:0xbe")
        self(f"v_or3_b32 v{acc}, v{acc}, v{acc+1}, v{acc+2}")
        self(f"v_or_b32 v{acc}, v{acc}, v{acc+3}")
        self(f"v_and_b32 v{acc}, 0xff, v{acc}")
        self(f"v_cmp_ne_u32 vcc, 0, v{acc}")
    def spin(self, name, issue, grans, acc, waitstr="s_waitcnt vmcnt(0)", sleep=0):
        L = self.lab(name); Lok = self.lab(name + "ok")
        self(f"s_mov_b32 s{sSPIN}, 0")
        self.label(L)
        self.guard(issue)
        self.guard(lambda: self(waitstr))
        self.check(grans, acc)
        self("s_nop 0")
        self(f"s_cbranch_vccz {Lok}")
        self(f"s_add_u32 s{sSPIN}, s{sSPIN}, 1")
        if sleep: self(f"s_sleep {sleep}")
        self(f"s_cmp_lt_u32 s{sSPIN}, {SPIN_LIMIT}")
        self(f"s_cbranch_scc1 {L}")
        self("s_branch L_abort")
        self.label(Lok)
    def pspin(self, name, load, sets, acc, dst=None, ncopy=4, sleep=0, thr=0):
        L = self.lab(name); Lok = self.lab(name + "ok")
        oks = [self.lab(name + f"k{i}") for i in range(3)]
        self(f"s_mov_b32 s{sSPIN}, 0")
        self.guard(lambda: (load(sets[0]), load(sets[1])))
        self.label(L)
        for k in range(3):
            self.guard(lambda k=k: (load(sets[(k + 2) % 3]), self("s_waitcnt vmcnt(2)")))
            self.check([sets[k]], acc)
            if thr:
                self(f"s_nop 0\n s_bcnt1_i32_b64 s{sTMP}, vcc\n s_cmp_le_u32 s{sTMP}, {thr}\n s_cbranch_scc1 {oks[k]}")
            else:
                self("s_nop 0")
                self(f"s_cbranch_vccz {oks[k]}")
            if sleep: self(f"s_sleep {sleep}")
        self(f"s_add_u32 s{sSPIN}, s{sSPIN}, 1")
        self(f"s_cmp_lt_u32 s{sSPIN}, {SPIN_LIMIT}")
        self(f"s_cbranch_scc1 {L}")
        self("s_branch L_abort")
        for k in range(3):
            self.label(oks[k])
            if dst is not None and sets[k] != dst:
                for t in range(ncopy): self(f"v_mov_b32 v{dst+t}, v{sets[k]+t}")
            if k < 2: self(f"s_branch {Lok}")
        self.label(Lok)
    def ldswait(self, name, vaddr, vtmp, off, count, sleep=2):
        L = self.lab(name); Lok = self.lab(name + "ok")
        self(f"""
        s_mov_b32 s{sSPIN}, 0
        s_cbranch_execz {Lok}
        {L}:
        ds_read_b32 v{vtmp}, v{vaddr} offset:{off}
        s_waitcnt lgkmcnt(0)
        v_readfirstlane_b32 s{sTMP}, v{vtmp}
        s_cmp_ge_u32 s{sTMP}, {count}
        s_cbranch_scc1 {Lok}
        s_add_u32 s{sSPIN}, s{sSPIN}, 1""")
        if sleep: self(f"s_sleep {sleep}")
        self(f"""
        s_cmp_lt_u32 s{sSPIN}, 400000
        s_cbranch_scc1 {L}
        s_branch L_abort
        {Lok}:""")
    def perm_unit(self, raw, T):
        for t in range(4):
            for par, sel in ((0, sPLO), (1, sPHI)):
                j = 2 * t + par
                for q in range(4):
                    self(f"v_perm_b32 v{T + 4*j + q}, v{raw + 4*(2*q+1) + t}, v{raw + 4*(2*q) + t}, s{sel}")
    def wload(self, dst, sbase, voff, rowfn, rs, nt=True):
        prev = 0
        for i in range(8):
            d = rowfn(i) - prev
            if d > 0:
                self(f"s_add_u32 s{sbase}, s{sbase}, {d*rs}\n s_addc_u32 s{sbase+1}, s{sbase+1}, 0")
            elif d < 0:
                self(f"s_sub_u32 s{sbase}, s{sbase}, {-d*rs}\n s_subb_u32 s{sbase+1}, s{sbase+1}, 0")
            prev = rowfn(i)
            self(f"global_load_dwordx4 {vr(dst+4*i, 4)}, v{voff}, {sp(sbase)}" + (" nt" if nt else ""))
    def mfma8(self, D, AOP, T):
        for j in range(8):
            self(f"v_mfma_f32_16x16x32_bf16 {vr(D+4*j,4)}, {vr(AOP,4)}, {vr(T+4*j,4)}, 0")
    def select(self, X, D, r):
        for jj in range(4):
            self(f"v_cndmask_b32 v{X+jj}, v{D+4*jj+r}, v{D+4*(4+jj)+r}, {sp(sMHI)}")
    def nonce_from(self, vN):
        self(f"""
        v_readfirstlane_b32 s{sNONCE}, v{vN}
        s_add_u32 s{sNONCE}, s{sNONCE}, 0x01010101
        s_or_b32 s{sNONCE}, s{sNONCE}, 1
        s_mov_b32 s{sT[0]}, s{sNONCE}
        s_lshr_b32 s{sT[1]}, s{sNONCE}, 8
        s_lshr_b32 s{sT[2]}, s{sNONCE}, 16
        s_lshr_b32 s{sT[3]}, s{sNONCE}, 24
        v_mov_b32 v{vN}, s{sNONCE}
        """)

STD_ROW = lambda i: 16 * (i // 4) + (i % 4)
WO_ROW = lambda i: 8 * (i % 4) + (i // 4)

def reduce4(a, R, X, vN):
    for t in (0, 2):
        a(f"v_pk_add_f32 {vr(R+t,2)}, {vr(R+t,2)}, {vr(R+4+t,2)}\n v_pk_add_f32 {vr(R+8+t,2)}, {vr(R+8+t,2)}, {vr(R+12+t,2)}")
    for t in (0, 2):
        a(f"v_pk_add_f32 {vr(R+t,2)}, {vr(R+t,2)}, {vr(R+8+t,2)}")
    a.tag(X, R, vN)

def build(stamps=False, **o):
    a = Gen(stamps, o)
    a(f"""
    s_cmp_ge_u32 s2, 256
    s_cbranch_scc1 L_end""")
    a.stamp(0)
    a(f"""
    s_load_dwordx8 s[4:11], s[0:1], 0
    s_load_dwordx2 s[12:13], s[0:1], 32
    s_load_dwordx4 s[16:19], s[0:1], 48
    s_load_dwordx4 s[20:23], s[0:1], 64
    s_load_dwordx2 s[24:25], s[0:1], 80
    v_lshrrev_b32 v1, 6, v0
    v_and_b32 v0, 63, v0
    s_mov_b32 s{sPLO}, 0x05040100
    v_readfirstlane_b32 s{sWAVE}, v1
    s_mov_b32 s{sPHI}, 0x07060302
    s_mov_b32 s{sSEL[0]}, 0x07060500
    s_mov_b32 s{sSEL[1]}, 0x07060501
    s_mov_b32 s{sSEL[2]}, 0x07060502
    s_mov_b32 s{sSEL[3]}, 0x07060503
    s_mov_b64 {sp(sFULL)}, -1
    v_lshrrev_b32 v2, 4, v0            ; g
    v_and_b32 v3, 15, v0               ; m / c
    s_cmp_ge_u32 s{sWAVE}, 4
    s_cbranch_scc1 L_A
    """)
    gen_G(a)
    gen_A(a)
    a("""
    L_abort:
    L_end:
    s_endpgm
    """)
    return kernel_wrap(a.text(), 256, 768, LDS_BYTES, 168)

def gen_G(a):
    o = a.o
    vLane, vG, vM, vB, vN = 0, 2, 3, 4, 6
    vBG = 1
    vPP = 5
    vA0, vA1, vA2 = 7, 8, 9
    vPubH = 10
    vXW = 11
    vXR = vPP
    XR = 12
    AOP = 16
    ACC = 20
    RAWA, RAWB, T, GA = 24, 56, 88, 120
    u = sU
    sKS, sHQ, sP, sBA, sHKV, sFC2, sH, sCC = 52, 53, 54, 55, 56, 57, 58, 59
    a(f"""
    ; ---------------- G waves ----------------
    s_setprio 3
    s_mov_b32 s{u}, s{sWAVE}
    v_bfe_u32 v{vB}, v{vM}, 2, 1
    v_and_b32 v{vPP}, 3, v{vM}
    v_lshrrev_b32 v{vA0}, 3, v{vM}
    v_lshl_or_b32 v{vPP}, v{vA0}, 2, v{vPP}
    s_and_b32 s{sKS}, s2, 7
    s_lshr_b32 s{sHQ}, s2, 3
    v_mov_b32 v{vA0}, 0
    v_lshl_add_u32 v{vA1}, v{vPP}, 2, v{vG}
    v_lshlrev_b32 v{vA1}, 4, v{vA1}
    v_lshl_add_u32 v{vA1}, v{vB}, 11, v{vA1}
    s_lshl_b32 s{sTMP}, s{sKS}, 8
    s_lshl_b32 s{sTMP2}, s{u}, 6
    s_add_u32 s{sTMP}, s{sTMP}, s{sTMP2}
    v_lshlrev_b32 v{vA2}, 3, v{vG}
    v_lshl_add_u32 v{vA2}, v{vB}, 11, v{vA2}
    v_add_u32 v{vA2}, s{sTMP}, v{vA2}
    s_lshl_b32 s{sTMP}, s{sKS}, 7
    s_lshl_b32 s{sTMP2}, s{u}, 5
    s_add_u32 s{sTMP}, s{sTMP}, s{sTMP2}
    s_lshl_b32 s{sTMP}, s{sTMP}, 13          ; *8192
    s_lshl_b32 s{sTMP2}, s{sHQ}, 8
    s_add_u32 s{sTMP}, s{sTMP}, s{sTMP2}
    v_lshlrev_b32 v{vPubH}, 15, v{vG}          ; 4g*8192
    v_lshl_add_u32 v{vPubH}, v{vM}, 4, v{vPubH}
    s_waitcnt lgkmcnt(0)
    s_add_u32 s{sB0}, s{sWQ}, s{sTMP}
    s_addc_u32 s{sB0+1}, s{sWQ+1}, 0
    global_load_dword v{vN}, v{vA0}, {sp(sWS)} sc1
    """)
    for i in range(4):
        a(f"global_load_dwordx4 {vr(GA+4*i,4)}, v{vA1}, {sp(sX)} offset:{i*512}")
    a(f"global_load_dwordx2 {vr(XR,2)}, v{vA2}, {sp(sX)}")
    a(f"global_load_dwordx2 {vr(XR+2,2)}, v{vA2}, {sp(sX)} offset:32")
    a.wload(RAWA, sB0, vPubH, STD_ROW, 8192)
    a(f"""
    s_mov_b32 s{sMHI}, 0
    s_mov_b32 s{sMHI+1}, -1
    s_mov_b32 s{sMB}, 0xf0f0f0f0
    s_mov_b32 s{sMB+1}, 0xf0f0f0f0
    s_mov_b32 s{sM1}, 0x22222222
    s_mov_b32 s{sM1+1}, 0x22222222
    v_mov_b32 v{ACC}, 0
    v_mov_b32 v{ACC+1}, 0
    v_mov_b32 v{ACC+2}, 0
    v_mov_b32 v{ACC+3}, 0
    s_lshl_b32 s{sTMP}, s{u}, 10
    v_lshl_add_u32 v{vA0}, v{vLane}, 4, s{sTMP}
    ds_write_b128 v{vA0}, {vr(ACC,4)} offset:{L_REDQ}
    v_and_b32 v{vA1}, 1, v{vLane}
    v_lshlrev_b32 v{vA1}, 4, v{vA1}
    ds_write_b128 v{vA1}, {vr(ACC,4)} offset:{L_CNT}
    s_waitcnt lgkmcnt(0)
    s_barrier        ; B0
    v_lshrrev_b32 v{vPubH}, 1, v{vG}
    v_lshl_add_u32 v{vPubH}, v{vM}, 1, v{vPubH}
    v_lshlrev_b32 v{vPubH}, 4, v{vPubH}      ; (2c+half)*16
    s_waitcnt vmcnt(8)
    """)
    a.stamp(1)
    a.nonce_from(vN)
    S0, S1, Q0, Q1, LO, HI = RAWB, RAWB+1, RAWB+2, RAWB+3, RAWB+4, RAWB+5
    for k in range(16):
        w = GA + k
        a(f"v_lshlrev_b32 v{LO}, 16, v{w}\n v_and_b32 v{HI}, 0xffff0000, v{w}")
        if k == 0:
            a(f"v_mov_b32 v{S0}, v{LO}\n v_mov_b32 v{S1}, v{HI}\n v_mul_f32 v{Q0}, v{LO}, v{LO}\n v_mul_f32 v{Q1}, v{HI}, v{HI}")
        else:
            a(f"v_add_f32 v{S0}, v{S0}, v{LO}\n v_add_f32 v{S1}, v{S1}, v{HI}\n v_fmac_f32 v{Q0}, v{LO}, v{LO}\n v_fmac_f32 v{Q1}, v{HI}, v{HI}")
    a(f"v_add_f32 v{S0}, v{S0}, v{S1}\n v_add_f32 v{S1}, v{Q0}, v{Q1}")
    a.dpp("v_add_f32", [S0, S1], (XOR1, XOR2, ROR8))
    a.allreduce_g([S0, S1], [Q0, Q1])
    MEAN, RSTD = S0, S1
    a(f"""
    v_mul_f32 v{MEAN}, 0x3a800000, v{S0}        ; /1024
    v_mul_f32 v{Q0}, 0x3a800000, v{S1}
    v_fma_f32 v{Q0}, -v{MEAN}, v{MEAN}, v{Q0}
    v_max_f32 v{Q0}, 0, v{Q0}
    v_add_f32 v{Q0}, 0x3727c5ac, v{Q0}           ; + 1e-5
    v_rsq_f32 v{RSTD}, v{Q0}
    """)
    XF = RAWB + 8
    for q in range(4):
        a(f"v_lshlrev_b32 v{XF+2*q}, 16, v{XR+q}\n v_and_b32 v{XF+2*q+1}, 0xffff0000, v{XR+q}")
    for e in range(8):
        a(f"v_sub_f32 v{XF+e}, v{XF+e}, v{MEAN}")
    for e in range(8):
        a(f"v_mul_f32 v{XF+e}, v{XF+e}, v{RSTD}")
    for q in range(4):
        a(f"v_cvt_pk_bf16_f32 v{AOP+q}, v{XF+2*q}, v{XF+2*q+1}")
    a("s_waitcnt vmcnt(0)")
    a.stamp(2)
    a.perm_unit(RAWA, T)
    a("s_nop 1")
    a.mfma8(RAWB, AOP, T)
    a("s_nop 7")
    X = ACC
    a.select(X, RAWB, 0)
    a.tag(X, X, vN)
    a(f"""
    ds_write_b128 v{vA0}, {vr(X,4)} offset:{L_REDQ}
    s_cmp_lg_u32 s{u}, 0
    s_cbranch_scc1 L_q_nored
    v_lshlrev_b32 v{vA0}, 4, v{vLane}
    """)
    def iss():
        for w in range(4):
            a(f"ds_read_b128 {vr(GA+4*w,4)}, v{vA0} offset:{L_REDQ + w*1024}")
    a.spin("redq", iss, [GA, GA+4, GA+8, GA+12], ACC, waitstr="s_waitcnt lgkmcnt(0)")
    reduce4(a, GA, X, vN)
    a(f"""
    s_lshl_b32 s{sTMP}, s{sHQ}, 13
    s_lshl_b32 s{sTMP2}, s{sKS}, 9
    s_add_u32 s{sTMP}, s{sTMP}, s{sTMP2}
    s_add_u32 s{sTMP}, s{sTMP}, {WS_QP}
    v_and_b32 v{vA0}, 1, v{vG}
    v_lshl_add_u32 v{vA0}, v{vA0}, 12, v{vPubH}
    v_add_u32 v{vA0}, s{sTMP}, v{vA0}
    global_store_dwordx4 v{vA0}, {vr(X,4)}, {sp(sWS)} sc1
    L_q_nored:
    """)
    a.stamp(3)
    sXI, sSLOT, sCCP, sKSB, sFCP = 54, 55, 56, 57, 59
    sHA, sFC = 58, 53
    a(f"""
    s_and_b32 s{sTMP}, s2, 7
    s_lshr_b32 s{sB1}, s{sTMP}, 2
    s_and_b32 s{sB1+1}, s{sTMP}, 3
    s_lshr_b32 s{sXI}, s{sTMP}, 1
    s_lshr_b32 s{sSLOT}, s2, 3
    s_lshl_b32 s{sHA}, s{sXI}, 3
    s_and_b32 s{sTMP}, s{sSLOT}, 7
    s_add_u32 s{sHA}, s{sHA}, s{sTMP}
    s_and_b32 s{sTMP}, s{sSLOT}, 1
    s_lshl_b32 s{sKSB}, s{sXI}, 1
    s_add_u32 s{sKSB}, s{sKSB}, s{sTMP}
    s_lshr_b32 s{sFCP}, s{sSLOT}, 1
    s_lshr_b32 s{sTMP}, s{sSLOT}, 2
    s_mul_i32 s{sFC}, s{sXI}, 7
    s_add_u32 s{sFC}, s{sFC}, s{sTMP}
    s_lshl_b32 s{sTMP}, s{sKSB}, 8
    s_lshl_b32 s{sTMP2}, s{u}, 6
    s_add_u32 s{sTMP}, s{sTMP}, s{sTMP2}
    v_lshlrev_b32 v{vA2}, 3, v{vG}
    v_lshl_add_u32 v{vA2}, v{vB}, 11, v{vA2}
    v_add_u32 v{vA2}, s{sTMP}, v{vA2}
    global_load_dwordx2 {vr(XR,2)}, v{vA2}, {sp(sX)}
    global_load_dwordx2 {vr(XR+2,2)}, v{vA2}, {sp(sX)} offset:32
    v_and_b32 v{vBG}, 31, v{vLane}
    v_lshlrev_b32 v{vBG}, 4, v{vBG}             ; gi*16
    v_lshrrev_b32 v{vA0}, 5, v{vLane}
    v_mul_u32_u24 v{vA0}, 544, v{vA0}
    v_add_u32 v{vXW}, v{vA0}, v{vBG}
    v_and_b32 v{vA0}, 3, v{vM}
    v_mul_u32_u24 v{vA0}, 1088, v{vA0}
    v_mul_u32_u24 v{vA1}, 544, v{vB}
    v_add_u32 v{vA0}, v{vA0}, v{vA1}
    v_lshl_add_u32 v{vXR}, v{vG}, 4, v{vA0}
    s_mul_i32 s{sTMP}, s{u}, 1088
    v_add_u32 v{vXW}, s{sTMP}, v{vXW}
    s_lshl_b32 s{sTMP}, s{u}, 7
    v_add_u32 v{vXR}, s{sTMP}, v{vXR}
    """)
    if o.get("touch", 1):
        a(f"""
        v_mov_b32 v{vA0}, 0x3f0000
        global_load_dword v{GA+44}, v{vA0}, {sp(sWS)}
        v_mov_b32 v{vA0}, 0
        global_load_dword v{GA+45}, v{vA0}, {sp(sOUT)}
        s_lshl_b32 s{sTMP}, s{sHA}, 18
        v_mov_b32 v{vA0}, s{sTMP}
        global_load_dword v{GA+46}, v{vA0}, {sp(sWO)}
        s_mul_i32 s{sTMP}, s{sKSB}, {128*7168}
        v_mov_b32 v{vA0}, s{sTMP}
        global_load_dword v{GA+47}, v{vA0}, {sp(sW1)}
        s_min_u32 s{sTMP}, s{sFC}, 27
        s_lshl_b32 s{sTMP}, s{sTMP}, 18
        v_mov_b32 v{vA0}, s{sTMP}
        global_load_dword v{GA+43}, v{vA0}, {sp(sW2)}
        """)
    if o.get("dry", 1):
        a(f"""
        s_mov_b64 {sp(sFULL)}, 0
        s_mov_b64 exec, 0
        s_branch L_tail
        L_dry_done:
        s_mov_b64 {sp(sFULL)}, -1
        s_mov_b64 exec, -1
        s_setprio 3
        """)
    a.stamp(4)
    QG = RAWB
    a(f"""
    s_and_b32 s{sTMP}, s2, 3                   ; hkv
    s_lshl_b32 s{sTMP}, s{sTMP}, 3
    s_lshl_b32 s{sTMP2}, s{u}, 1
    s_add_u32 s{sTMP}, s{sTMP}, s{sTMP2}
    s_lshl_b32 s{sTMP}, s{sTMP}, 1
    s_bfe_u32 s{sTMP2}, s2, 0x10002            ; b = (wg>>2)&1
    s_add_u32 s{sTMP}, s{sTMP}, s{sTMP2}
    s_lshl_b32 s{sTMP}, s{sTMP}, 12
    s_add_u32 s{sTMP}, s{sTMP}, {WS_QP}
    s_add_u32 s{sWQ}, s{sWS}, s{sTMP}
    s_addc_u32 s{sWQ+1}, s{sWS+1}, 0
    s_add_u32 s{sB1}, s{sWQ}, 8192
    s_addc_u32 s{sB1+1}, s{sWQ+1}, 0
    v_lshlrev_b32 v{vA2}, 4, v{vLane}
    """)
    def issq():
        for hh, sb in ((0, sWQ), (1, sB1)):
            for i in range(4):
                a(f"global_load_dwordx4 {vr(QG+16*hh+4*i,4)}, v{vA2}, {sp(sb)} offset:{i*1024} sc1")
    a.spin("qg", issq, [QG+4*i for i in range(8)], ACC, sleep=o.get("qsleep", 4))
    for hh in range(2):
        base = QG + 16*hh
        for t in range(4):
            a(f"v_add_f32 v{base+t}, v{base+t}, v{base+4+t}\n v_add_f32 v{base+8+t}, v{base+8+t}, v{base+12+t}")
        for t in range(4):
            a(f"v_add_f32 v{base+t}, v{base+t}, v{base+8+t}")
    a("s_nop 1")
    for t in range(4):
        a(f"v_permlane32_swap_b32 v{QG+t}, v{QG+16+t}")
    a("s_nop 1")
    for t in range(4):
        a(f"v_add_f32 v{QG+t}, v{QG+t}, v{QG+16+t}")
    a(f"""
    v_cvt_pk_bf16_f32 v{QG+4}, v{QG}, v{QG+1}
    v_cvt_pk_bf16_f32 v{QG+5}, v{QG+2}, v{QG+3}
    v_lshrrev_b32 v{vA0}, 5, v{vLane}            ; kq
    s_lshl_b32 s{sTMP}, s{u}, 1
    v_add_u32 v{vA0}, s{sTMP}, v{vA0}            ; head
    v_mul_u32_u24 v{vA0}, 272, v{vA0}
    v_and_b32 v{vA1}, 31, v{vLane}
    v_lshl_add_u32 v{vA0}, v{vA1}, 3, v{vA0}
    ds_write_b64 v{vA0}, {vr(QG+4,2)} offset:{L_Q}
    v_mov_b32 v{vA1}, 0
    v_mov_b32 v{vA2}, 1
    s_waitcnt lgkmcnt(0)
    s_mov_b64 exec, 1
    ds_add_u32 v{vA1}, v{vA2} offset:{L_CNT}
    s_mov_b64 exec, -1
    """)
    a.stamp(5)
    a(f"s_setprio {o.get('gprio', 1)}")

    def wunit(dst, sptr, voffn, rowfn, rs):
        prev = 0
        for i in range(8):
            d = rowfn(i) - prev
            if d > 0: a(f"s_add_u32 s{sptr}, s{sptr}, {d*rs}\n s_addc_u32 s{sptr+1}, s{sptr+1}, 0")
            elif d < 0: a(f"s_sub_u32 s{sptr}, s{sptr}, {-d*rs}\n s_subb_u32 s{sptr+1}, s{sptr+1}, 0")
            prev = rowfn(i)
            a(f"global_load_dwordx4 {vr(dst+4*i, 4)}, v{voffn}, {sp(sptr)} nt")
    def wpair(dst0, dst1, sptr_src, rowbase_code, rs, gshift_code, rowfn):
        a(rowbase_code)
        a(f"""
        s_add_u32 s{sB0}, s{sptr_src}, s{sTMP}
        s_addc_u32 s{sB0+1}, s{sptr_src+1}, 0
        s_add_u32 s{sR1}, s{sB0}, 256
        s_addc_u32 s{sR1+1}, s{sB0+1}, 0""")
        a(gshift_code)
        a.guard(lambda: (wunit(dst0, sB0, vA1, rowfn, rs), wunit(dst1, sR1, vA1, rowfn, rs)))
    sR1 = 6
    def sweep(name, issue, grans, shadow, sleep):
        L = a.lab(name); Lc = a.lab(name + "c"); Lok = a.lab(name + "ok")
        a(f"s_mov_b32 s{sSPIN}, 0")
        a.guard(issue)
        shadow()
        a(f"s_branch {Lc}")
        a.label(L)
        a.guard(issue)
        a.label(Lc)
        a.guard(lambda: a("s_waitcnt vmcnt(0)"))
        a.check(grans, ACC)
        a("s_nop 0")
        a(f"s_cbranch_vccz {Lok}")
        a(f"s_add_u32 s{sSPIN}, s{sSPIN}, 1")
        if sleep: a(f"s_sleep {sleep}")
        a(f"s_cmp_lt_u32 s{sSPIN}, {SPIN_LIMIT}")
        a(f"s_cbranch_scc1 {L}")
        a("s_branch L_abort")
        a.label(Lok)
    HS = [AOP, GA+40, GA+44]
    D = GA
    vals = [GA + 32 + e for e in range(8)]
    psl = o.get("psleep", 1)
    def exchange(lbuf):
        a(f"ds_write_b128 v{vXW}, {vr(GA,4)} offset:{lbuf}")
        a.gbarrier()
        a(f"""
        ds_read_b128 {vr(vals[0],4)}, v{vXR} offset:{lbuf}
        ds_read_b128 {vr(vals[4],4)}, v{vXR} offset:{lbuf + 64}
        s_waitcnt lgkmcnt(0)""")
        a.dpp("v_add_f32", vals, (XOR1, XOR2))
    def red_pub2(name, D1, lb0, lb1, addr):
        L = a.lab("nored" + name)
        R = GA + 32
        a.select(ACC, D, 0)
        a(f"ds_write_b128 v{vA0}, {vr(ACC,4)} offset:{lb0}")
        a.select(AOP, D1, 0)
        a(f"ds_write_b128 v{vA0}, {vr(AOP,4)} offset:{lb1}")
        a.gbarrier()
        a(f"""
        s_cmp_ge_u32 s{sU}, 2
        s_cbranch_scc1 {L}
        s_mul_i32 s{sTMP}, s{sU}, {lb1 - lb0}
        v_lshl_add_u32 v{vA0}, v{vLane}, 4, s{sTMP}""")
        for w in range(4):
            a(f"ds_read_b128 {vr(R+4*w,4)}, v{vA0} offset:{lb0 + w*1024}")
        addr()
        a("s_waitcnt lgkmcnt(0)")
        reduce4(a, R, ACC, vN)
        a.guard(lambda: a(f"global_store_dwordx4 v{vA0}, {vr(ACC,4)}, {sp(sWS)} sc1"))
        a.label(L)
    def o_hint_setup(hreg):
        a(f"""
        s_lshl_b32 s{sTMP2}, s{hreg}, 14                ; h*32*512
        s_lshl_b32 s{sTMP}, s{u}, 12                  ; 8u*512
        s_add_u32 s{sTMP2}, s{sTMP2}, s{sTMP}
        s_add_u32 s{sTMP2}, s{sTMP2}, {WS_OP}
        s_add_u32 s{sWQ}, s{sWS}, s{sTMP2}
        s_addc_u32 s{sWQ+1}, s{sWS+1}, 0
        v_lshrrev_b32 v{vA1}, 5, v{vLane}
        v_lshl_add_u32 v{vA2}, v{vA1}, 19, v{vBG}      ; b<<19 + gi*16
        v_bfe_u32 v{vA1}, v{vLane}, 3, 1
        v_and_b32 v{vA0}, 7, v{vLane}
        v_lshlrev_b32 v{vA0}, 9, v{vA0}
        v_lshl_add_u32 v{vA0}, v{vA1}, 19, v{vA0}
        """)
    a("L_tail:")
    a(f"""
    s_bitcmp1_b32 s2, 0
    s_cbranch_scc{0 if o.get("xpar", 1) else 1} L_Y
    """)
    def load_wo(which=(0, 1)):
        code = f"""
            s_lshl_b32 s{sTMP}, s{sHA}, 7
            s_lshl_b32 s{sTMP2}, s{u}, 5
            s_add_u32 s{sTMP}, s{sTMP}, s{sTMP2}
            s_lshl_b32 s{sTMP}, s{sTMP}, 11
            s_lshr_b32 s{sTMP2}, s{sSLOT}, 3
            s_lshl_b32 s{sTMP2}, s{sTMP2}, 9
            s_add_u32 s{sTMP}, s{sTMP}, s{sTMP2}"""
        a(code)
        a(f"""
        s_add_u32 s{sB0}, s{sWO}, s{sTMP}
        s_addc_u32 s{sB0+1}, s{sWO+1}, 0
        s_add_u32 s{sR1}, s{sB0}, 256
        s_addc_u32 s{sR1+1}, s{sB0+1}, 0
        v_lshlrev_b32 v{vA1}, 12, v{vG}             ; 2g*2048
        v_lshl_add_u32 v{vA1}, v{vM}, 4, v{vA1}""")
        def body():
            if 0 in which: wunit(RAWA, sB0, vA1, WO_ROW, 2048)
            if 1 in which: wunit(RAWB, sR1, vA1, WO_ROW, 2048)
        a.guard(body)
    wop = o.get("wop", 0)
    if wop in (0, 2):
        a(f"v_mov_b32 v{vA1}, 0")
        a.ldswait("vw", vA1, vA2, L_CNT+4, 8)
        a(f"s_setprio {o.get('woprio', 0)}")
        load_wo((0, 1) if wop == 0 else (0,))
    a(f"s_setprio {o.get('gprio', 1)}")
    a.stamp(6)
    a.guard(lambda: a("s_barrier      ; B3\n s_barrier      ; B4"))
    if wop == 1: load_wo()
    if wop == 2: load_wo((1,))
    a.stamp(7)
    a(f"""
    s_lshl_b32 s{sTMP}, s{sHA}, 9
    s_add_u32 s{sTMP}, s{sTMP}, {WS_ML}
    v_lshrrev_b32 v{vA1}, 5, v{vLane}             ; b
    v_lshl_add_u32 v{GA+47}, v{vA1}, 14, v{vBG}
    v_add_u32 v{GA+47}, s{sTMP}, v{GA+47}
    """)
    o_hint_setup(sHA)
    HSA = [AOP, GA+36, GA+40]
    a.mask("0xffff", "0")
    a.pspin("hO", lambda r: a(f"global_load_dwordx4 {vr(r,4)}, v{vA0}, {sp(sWQ)} sc1"), HSA, ACC, sleep=psl)
    a.full()
    a.stamp(8)
    MLR = GA + 32
    def issA():
        a(f"v_mov_b32 v{vA1}, v{GA+47}")
        a(f"global_load_dwordx4 {vr(MLR,4)}, v{vA1}, {sp(sWS)} sc1")
        for i in range(8):
            a(f"global_load_dwordx4 {vr(GA+4*i,4)}, v{vA2}, {sp(sWQ)} offset:{i*512} sc1")
    MM, LLr, TT = GA+44, GA+45, GA+46
    def factors():
        a(f"v_mov_b32 v{MM}, v{MLR}")
        a.dpp("v_max_f32", [MM], (XOR1, XOR2, ROR4, ROR8))
        a.allreduce_g([MM], [TT], "v_max_f32", steps=("v_permlane16_swap_b32",))
        a(f"""
        v_sub_f32 v{MM}, v{MLR}, v{MM}
        v_exp_f32 v{MM}, v{MM}
        s_nop 0
        v_mul_f32 v{LLr}, v{MM}, v{MLR+1}""")
        a.dpp("v_add_f32", [LLr], (XOR1, XOR2, ROR4, ROR8))
        a.allreduce_g([LLr], [TT], "v_add_f32", steps=("v_permlane16_swap_b32",))
        a(f"""
        v_rcp_f32 v{LLr}, v{LLr}
        s_nop 0
        v_mul_f32 v{MM}, v{MM}, v{LLr}
        s_lshl_b32 s{sTMP}, s{u}, 8
        v_lshl_add_u32 v{vA0}, v{vLane}, 2, s{sTMP}
        ds_write_b32 v{vA0}, v{MM} offset:{L_FAC}
        v_lshrrev_b32 v{vA1}, 5, v{vLane}
        s_lshl_b32 s{sTMP2}, s{u}, 5
        s_add_u32 s{sTMP}, s{sTMP}, s{sTMP2}
        v_lshl_add_u32 v{vA0}, v{vA1}, 7, s{sTMP}      ; u*256 + b*128 + 8u*4
        ds_read_b128 {vr(AOP,4)}, v{vA0} offset:{L_FAC}
        ds_read_b128 {vr(GA+40,4)}, v{vA0} offset:{L_FAC+16}
        """)
    L = a.lab("swA"); Lok = a.lab("swAok")
    a(f"s_mov_b32 s{sSPIN}, 0")
    a.guard(issA)
    a.perm_unit(RAWA, T)
    a.perm_unit(RAWB, RAWA)
    a.label(L)
    a.guard(lambda: a("s_waitcnt vmcnt(8)"))
    for t in range(4):
        a(f"v_xor_b32 v{ACC+t}, s{sT[t]}, v{MLR+t}")
    a(f"v_or3_b32 v{GA+39}, v{ACC}, v{ACC+1}, v{ACC+2}")
    a(f"v_or_b32 v{GA+39}, v{GA+39}, v{ACC+3}")
    factors()
    a.guard(lambda: a("s_waitcnt vmcnt(0)"))
    for gi in range(8):
        for i in range(4):
            if gi == 0:
                a(f"v_xor_b32 v{ACC+i}, s{sT[i]}, v{GA+i}")
            else:
                a(f"v_bitop3_b32 v{ACC+i}, v{GA+4*gi+i}, s{sT[i]}, v{ACC+i} bitop3:0xbe")
    a(f"v_or3_b32 v{ACC}, v{ACC}, v{ACC+1}, v{ACC+2}\n v_or3_b32 v{ACC}, v{ACC}, v{ACC+3}, v{GA+39}\n v_and_b32 v{ACC}, 0xff, v{ACC}\n v_cmp_ne_u32 vcc, 0, v{ACC}")
    a(f"s_nop 0\n s_cbranch_vccz {Lok}")
    a(f"s_add_u32 s{sSPIN}, s{sSPIN}, 1\n s_sleep 1\n s_waitcnt lgkmcnt(0)")
    a.guard(issA)
    a(f"s_cmp_lt_u32 s{sSPIN}, {SPIN_LIMIT}\n s_cbranch_scc1 {L}\n s_branch L_abort")
    a.label(Lok)
    a.stamp(9)
    FACR = [AOP, AOP+1, AOP+2, AOP+3, GA+40, GA+41, GA+42, GA+43]
    a("s_waitcnt lgkmcnt(0)")
    for t in range(4):
        a(f"v_mul_f32 v{GA+t}, v{GA+t}, v{FACR[0]}")
    for i in range(1, 8):
        for t in range(4):
            a(f"v_fmac_f32 v{GA+t}, v{GA+4*i+t}, v{FACR[i]}")
    exchange(L_XA_A)
    for q in range(4):
        a(f"v_cvt_pk_bf16_f32 v{AOP+q}, v{vals[2*q]}, v{vals[2*q+1]}")
    a("s_nop 1")
    a.mfma8(D, AOP, T)
    a.mfma8(RAWB, AOP, RAWA)
    a(f"s_lshl_b32 s{sTMP}, s{sU}, 10\n v_lshl_add_u32 v{vA0}, v{vLane}, 4, s{sTMP}")
    red_pub2("a", RAWB, L_RA0, L_RA1, lambda: a(f"""
        s_lshr_b32 s{sTMP}, s{sSLOT}, 3
        s_lshl_b32 s{sTMP}, s{sTMP}, 1
        s_add_u32 s{sTMP}, s{sTMP}, s{sU}          ; cc
        s_lshl_b32 s{sTMP}, s{sTMP}, 6
        s_add_u32 s{sTMP}, s{sTMP}, s{sHA}
        s_lshl_b32 s{sTMP}, s{sTMP}, 9
        s_add_u32 s{sTMP}, s{sTMP}, {WS_AP}
        v_and_b32 v{vA0}, 1, v{vG}
        v_lshl_add_u32 v{vA0}, v{vA0}, 14, v{vPubH}
        v_add_u32 v{vA0}, s{sTMP}, v{vA0}"""))
    a.stamp(10)
    a.gbarrier()
    a(f"""
    s_cmp_ge_u32 s{sSLOT}, 28
    s_cbranch_scc1 L_skipC1
    """)
    wpair(T, RAWB, sW2, f"""
        s_lshl_b32 s{sTMP}, s{sFC}, 7
        s_lshl_b32 s{sTMP2}, s{u}, 5
        s_add_u32 s{sTMP}, s{sTMP}, s{sTMP2}
        s_lshl_b32 s{sTMP}, s{sTMP}, 11
        s_and_b32 s{sTMP2}, s{sSLOT}, 3
        s_lshl_b32 s{sTMP2}, s{sTMP2}, 9
        s_add_u32 s{sTMP}, s{sTMP}, s{sTMP2}""", 2048, f"""
        v_lshlrev_b32 v{vA1}, 13, v{vG}           ; 4g*2048
        v_lshl_add_u32 v{vA1}, v{vM}, 4, v{vA1}""", STD_ROW)
    a(f"""
    s_lshl_b32 s{sTMP}, s{sFC}, 7
    s_add_u32 s{sTMP}, s{sTMP}, {WS_FPS}
    v_and_b32 v{vA0}, 7, v{vLane}
    v_lshl_add_u32 v{vA0}, v{vA0}, 4, s{sTMP}
    s_lshl_b32 s{sTMP}, s{sFC}, 13           ; fc*2*8*512
    s_lshl_b32 s{sTMP2}, s{u}, 10             ; 2u*512
    s_add_u32 s{sTMP}, s{sTMP}, s{sTMP2}
    s_add_u32 s{sTMP}, s{sTMP}, {WS_FPP}
    s_add_u32 s{sWQ}, s{sWS}, s{sTMP}
    s_addc_u32 s{sWQ+1}, s{sWS+1}, 0
    s_lshl_b32 s{sTMP}, s{sFC}, 12           ; fc*8*512
    s_add_u32 s{sTMP}, s{sTMP}, s{sTMP2}
    s_add_u32 s{sTMP}, s{sTMP}, {WS_FPC}
    s_add_u32 s{sB1}, s{sWS}, s{sTMP}
    s_addc_u32 s{sB1+1}, s{sWS+1}, 0
    v_lshrrev_b32 v{vA1}, 5, v{vLane}
    v_lshl_add_u32 v{vA2}, v{vA1}, 12, v{vBG}   ; b*8*512 + gi*16
    """)
    a.guard(lambda: a("s_waitcnt vmcnt(0)"))
    a.perm_unit(T, RAWA)
    a.perm_unit(RAWB, T)
    a.stamp(13)
    ST = GA + 36
    a.pspin("hC", lambda r: a(f"global_load_dwordx4 {vr(r,4)}, v{vA0}, {sp(sWS)} sc1"), HS, ACC, dst=ST, sleep=psl)
    a.stamp(14)
    MEANB, RS0, RS1 = GA+32, GA+33, GA+34
    def issC():
        for k in range(2):
            a(f"global_load_dwordx4 {vr(GA+4*k,4)}, v{vA2}, {sp(sWQ)} offset:{k*512} sc1")
        for k in range(2):
            a(f"global_load_dwordx4 {vr(GA+8+4*k,4)}, v{vBG}, {sp(sB1)} offset:{k*512} sc1")
    def shadowC():
        a.dpp("v_add_f32", [ST, ST+1, ST+2, ST+3], (XOR1, XOR2, ROR4))
        a(f"""
        v_mul_f32 v{ST}, 0x3a800000, v{ST}
        v_mul_f32 v{ST+2}, 0x3a800000, v{ST+2}
        v_mul_f32 v{ST+1}, 0x3a800000, v{ST+1}
        v_mul_f32 v{ST+3}, 0x3a800000, v{ST+3}
        v_cndmask_b32 v{MEANB}, v{ST}, v{ST+2}, {sp(sMHI)}
        v_fma_f32 v{ST+1}, -v{ST}, v{ST}, v{ST+1}
        v_fma_f32 v{ST+3}, -v{ST+2}, v{ST+2}, v{ST+3}
        v_max_f32 v{ST+1}, 0, v{ST+1}
        v_max_f32 v{ST+3}, 0, v{ST+3}
        v_add_f32 v{ST+1}, 0x3727c5ac, v{ST+1}
        v_add_f32 v{ST+3}, 0x3727c5ac, v{ST+3}
        v_rsq_f32 v{RS0}, v{ST+1}
        v_rsq_f32 v{RS1}, v{ST+3}
        s_nop 0
        v_cndmask_b32 v{GA+35}, v{RS0}, v{RS1}, {sp(sMB)}
        """)
    sweep("gC", issC, [GA+4*i for i in range(4)], shadowC, o.get("csleep", 1))
    a.stamp(15)
    RSB = GA + 40
    for t in range(4):
        a(f"v_add_f32 v{GA+t}, v{GA+t}, v{GA+4+t}\n v_add_f32 v{GA+8+t}, v{GA+8+t}, v{GA+12+t}")
    for t in range(4):
        a(f"v_fma_f32 v{GA+t}, -v{MEANB}, v{GA+8+t}, v{GA+t}")
    a(f"v_mov_b32 v{RSB}, v{GA+35}")
    exchange(L_XA_C)
    for e in range(8):
        a(f"v_mul_f32 v{vals[e]}, v{vals[e]}, v{RSB}")
    E = GA + 8
    for e in range(8):
        a(f"v_mul_f32 v{E+e}, 0xbfb8aa3b, v{vals[e]}      ; -log2e * x")
    for e in range(8):
        a(f"v_exp_f32 v{E+e}, v{E+e}")
    for e in range(8):
        a(f"v_add_f32 v{E+e}, 1.0, v{E+e}")
    for e in range(8):
        a(f"v_rcp_f32 v{E+e}, v{E+e}")
    for e in range(8):
        a(f"v_mul_f32 v{vals[e]}, v{vals[e]}, v{E+e}")
    for q in range(4):
        a(f"v_cvt_pk_bf16_f32 v{AOP+q}, v{vals[2*q]}, v{vals[2*q+1]}")
    a("s_nop 1")
    a.mfma8(D, AOP, RAWA)
    a.mfma8(RAWB, AOP, T)
    a(f"s_lshl_b32 s{sTMP}, s{sU}, 10\n v_lshl_add_u32 v{vA0}, v{vLane}, 4, s{sTMP}")
    red_pub2("c", RAWB, L_RD0, L_RD1, lambda: a(f"""
        s_and_b32 s{sTMP}, s{sSLOT}, 3
        s_lshl_b32 s{sTMP}, s{sTMP}, 1
        s_add_u32 s{sTMP}, s{sTMP}, s{sU}          ; cc
        s_mul_i32 s{sTMP}, s{sTMP}, 56
        s_add_u32 s{sTMP}, s{sTMP}, s{sFC}
        s_lshl_b32 s{sTMP}, s{sTMP}, 9
        s_add_u32 s{sTMP}, s{sTMP}, {WS_O2}
        v_and_b32 v{vA0}, 1, v{vG}
        v_mul_u32_u24 v{vA0}, {28*512}, v{vA0}
        v_add3_u32 v{vA0}, v{vA0}, v{vPubH}, s{sTMP}"""))
    a("L_skipC1:")
    a.stamp(16)
    a("s_branch L_D")
    a("L_Y:")
    a.stamp(6)
    a.guard(lambda: a("s_barrier      ; B3\n s_barrier      ; B4"))
    a.stamp(7)
    a(f"""
    s_cmp_ge_u32 s{sFCP}, 14
    s_cbranch_scc1 L_D
    """)
    if o.get("ytrig", 1):
        o_hint_setup(sHA)
        a.mask("0xffff", "0")
        a.pspin("hY", lambda r: a(f"global_load_dwordx4 {vr(r,4)}, v{vA0}, {sp(sWQ)} sc1"), HS, ACC, sleep=o.get("ysleep", 3), thr=o.get("ythr", 0))
        a.full()
    a.stamp(8)
    wpair(RAWA, RAWB, sW1, f"""
        s_lshl_b32 s{sTMP}, s{sKSB}, 7
        s_lshl_b32 s{sTMP2}, s{u}, 5
        s_add_u32 s{sTMP}, s{sTMP}, s{sTMP2}
        s_mul_i32 s{sTMP}, s{sTMP}, 7168
        s_lshl_b32 s{sTMP2}, s{sFCP}, 9
        s_add_u32 s{sTMP}, s{sTMP}, s{sTMP2}""", 7168, f"""
        v_mul_u32_u24 v{vA1}, {4*7168}, v{vG}
        v_lshl_add_u32 v{vA1}, v{vM}, 4, v{vA1}""", STD_ROW)
    a(f"""
    s_lshl_b32 s{sTMP}, s{sKSB}, 15            ; ks*2*32*512
    s_lshl_b32 s{sTMP2}, s{u}, 12
    s_add_u32 s{sTMP}, s{sTMP}, s{sTMP2}
    s_add_u32 s{sTMP}, s{sTMP}, {WS_AP}
    s_add_u32 s{sWQ}, s{sWS}, s{sTMP}
    s_addc_u32 s{sWQ+1}, s{sWS+1}, 0
    v_bfe_u32 v{vA1}, v{vLane}, 3, 1
    v_and_b32 v{vA0}, 7, v{vLane}
    v_lshlrev_b32 v{vA0}, 9, v{vA0}
    v_lshl_add_u32 v{vA0}, v{vA1}, 14, v{vA0}
    v_lshrrev_b32 v{vA1}, 5, v{vLane}
    v_lshl_add_u32 v{vA2}, v{vA1}, 14, v{vBG}
    """)
    a.guard(lambda: a("s_waitcnt vmcnt(0)"))
    a.perm_unit(RAWA, T)
    a.perm_unit(RAWB, RAWA)
    a.stamp(10)
    a.mask("0xffff", "0")
    a.pspin("hB", lambda r: a(f"global_load_dwordx4 {vr(r,4)}, v{vA0}, {sp(sWQ)} sc1"), HS, ACC, sleep=psl)
    a.full()
    a.stamp(11)
    def issB():
        for i in range(8):
            a(f"global_load_dwordx4 {vr(GA+4*i,4)}, v{vA2}, {sp(sWQ)} offset:{i*512} sc1")
    XF = GA + 48 - 8
    sweep("gB", issB, [GA+4*i for i in range(8)], lambda: None, o.get("bsleep", 1))
    a.stamp(12)
    for k in (0, 8, 16, 24):
        a(f"v_pk_add_f32 {vr(GA+k,2)}, {vr(GA+k,2)}, {vr(GA+k+4,2)}\n v_pk_add_f32 {vr(GA+k+2,2)}, {vr(GA+k+2,2)}, {vr(GA+k+6,2)}")
    for k in (0, 16):
        a(f"v_pk_add_f32 {vr(GA+k,2)}, {vr(GA+k,2)}, {vr(GA+k+8,2)}\n v_pk_add_f32 {vr(GA+k+2,2)}, {vr(GA+k+2,2)}, {vr(GA+k+10,2)}")
    a(f"v_pk_add_f32 {vr(GA,2)}, {vr(GA,2)}, {vr(GA+16,2)}\n v_pk_add_f32 {vr(GA+2,2)}, {vr(GA+2,2)}, {vr(GA+18,2)}")
    a(f"ds_write_b128 v{vXW}, {vr(GA,4)} offset:{L_XA_B}")
    for q in range(4):
        a(f"v_lshlrev_b32 v{XF+2*q}, 16, v{XR+q}\n v_and_b32 v{XF+2*q+1}, 0xffff0000, v{XR+q}")
    a.gbarrier()
    a(f"""
    ds_read_b128 {vr(vals[0],4)}, v{vXR} offset:{L_XA_B}
    ds_read_b128 {vr(vals[4],4)}, v{vXR} offset:{L_XA_B + 64}
    v_mov_b32 v{ACC}, 0x3f803f80
    s_waitcnt lgkmcnt(0)""")
    a.dpp("v_add_f32", vals, (XOR1, XOR2))
    for e in range(0, 8, 2):
        a(f"v_pk_add_f32 {vr(XF+e,2)}, {vr(XF+e,2)}, {vr(vals[e],2)}")
    HP_ = XR
    for q in range(4):
        a(f"v_cvt_pk_bf16_f32 v{HP_+q}, v{XF+2*q}, v{XF+2*q+1}")
    a("s_nop 0")
    for q in range(4):
        a(f"v_cndmask_b32 v{AOP+q}, v{HP_+q}, v{ACC}, {sp(sM1)}")
    a("s_nop 1")
    DX = GA + 44
    a(f"v_mfma_f32_16x16x32_bf16 {vr(DX,4)}, {vr(AOP,4)}, {vr(AOP,4)}, 0")
    a.mfma8(D, AOP, T)
    a.mfma8(RAWB, AOP, RAWA)
    a(f"""
    s_lshl_b32 s{sTMP}, s{u}, 10
    v_lshl_add_u32 v{vA0}, v{vLane}, 4, s{sTMP}
    v_lshrrev_b32 v{vA1}, 4, v{vLane}
    v_lshlrev_b32 v{vA1}, 3, v{vA1}
    v_not_b32 v{vA2}, v{vLane}
    v_and_b32 v{vA2}, 1, v{vA2}
    v_lshl_add_u32 v{vA1}, v{vA2}, 2, v{vA1}
    s_lshl_b32 s{sTMP}, s{u}, 4
    v_add_u32 v{vA1}, s{sTMP}, v{vA1}
    """)
    a.select(ACC, D, 0)
    a(f"ds_write_b128 v{vA0}, {vr(ACC,4)} offset:{L_RA0}")
    a.select(AOP, D, 1)
    a(f"ds_write_b128 v{vA0}, {vr(AOP,4)} offset:{L_RD0}")
    a.select(GA+32, RAWB, 0)
    a(f"ds_write_b128 v{vA0}, {vr(GA+32,4)} offset:{L_RA1}")
    a.select(GA+36, RAWB, 1)
    a(f"ds_write_b128 v{vA0}, {vr(GA+36,4)} offset:{L_RD1}")
    a.mask("0x00300003", "0")
    a(f"ds_write_b32 v{vA1}, v{DX} offset:{L_REDS}")
    a.full()
    a.gbarrier()
    R2 = GA + 16
    a(f"""
    s_cmp_eq_u32 s{u}, 3
    s_cbranch_scc1 L_b_st
    s_cmp_eq_u32 s{u}, 2
    s_cbranch_scc1 L_b_cs
    s_mul_i32 s{sTMP}, s{u}, {L_RA1 - L_RA0}
    v_lshl_add_u32 v{vA0}, v{vLane}, 4, s{sTMP}
    """)
    for w in range(4):
        a(f"ds_read_b128 {vr(R2+4*w,4)}, v{vA0} offset:{L_RA0 + w*1024}")
    a(f"""
    s_lshl_b32 s{sTMP}, s{sFCP}, 1
    s_add_u32 s{sTMP}, s{sTMP}, s{u}           ; fc
    s_lshl_b32 s{sTMP}, s{sTMP}, 4             ; fc*2*8
    s_add_u32 s{sTMP}, s{sTMP}, s{sKSB}
    s_lshl_b32 s{sTMP}, s{sTMP}, 9
    s_add_u32 s{sTMP}, s{sTMP}, {WS_FPP}
    v_and_b32 v{vA0}, 1, v{vG}
    v_lshl_add_u32 v{vA0}, v{vA0}, 12, v{vPubH}
    v_add_u32 v{vA0}, s{sTMP}, v{vA0}
    s_waitcnt lgkmcnt(0)""")
    reduce4(a, R2, ACC, vN)
    a.guard(lambda: a(f"global_store_dwordx4 v{vA0}, {vr(ACC,4)}, {sp(sWS)} sc1"))
    a(f"""
    s_branch L_b_done
    L_b_cs:
    v_and_b32 v{vA1}, 1, v{vG}
    v_mul_u32_u24 v{vA0}, {L_RD1 - L_RD0}, v{vA1}
    v_lshl_add_u32 v{vA0}, v{vLane}, 4, v{vA0}
    """)
    for w in range(4):
        a(f"ds_read_b128 {vr(R2+4*w,4)}, v{vA0} offset:{L_RD0 + w*1024}")
    a(f"""
    s_lshl_b32 s{sTMP}, s{sFCP}, 4             ; fc0*8
    s_add_u32 s{sTMP}, s{sTMP}, s{sKSB}
    s_lshl_b32 s{sTMP}, s{sTMP}, 9
    s_add_u32 s{sTMP}, s{sTMP}, {WS_FPC}
    v_lshl_add_u32 v{vA0}, v{vA1}, 12, v{vPubH}     ; + (g&1)*8*512
    v_add_u32 v{vA0}, s{sTMP}, v{vA0}
    s_waitcnt lgkmcnt(0)""")
    reduce4(a, R2, ACC, vN)
    a.guard(lambda: a(f"global_store_dwordx4 v{vA0}, {vr(ACC,4)}, {sp(sWS)} sc1"))
    a(f"""
    s_branch L_b_done
    L_b_st:
    v_mov_b32 v{vA0}, 0
    """)
    for w in range(4):
        a(f"ds_read_b128 {vr(R2+4*w,4)}, v{vA0} offset:{L_REDS + w*16}")
    a(f"""
    s_lshl_b32 s{sTMP}, s{sFCP}, 4
    s_add_u32 s{sTMP}, s{sTMP}, s{sKSB}
    s_lshl_b32 s{sTMP}, s{sTMP}, 4
    s_add_u32 s{sTMP}, s{sTMP}, {WS_FPS}
    v_lshl_add_u32 v{vA0}, v{vLane}, 7, s{sTMP}
    s_waitcnt lgkmcnt(0)
    """)
    for t in (0, 2):
        a(f"v_pk_add_f32 {vr(R2+t,2)}, {vr(R2+t,2)}, {vr(R2+4+t,2)}\n v_pk_add_f32 {vr(R2+8+t,2)}, {vr(R2+8+t,2)}, {vr(R2+12+t,2)}")
    for t in (0, 2):
        a(f"v_pk_add_f32 {vr(R2+t,2)}, {vr(R2+t,2)}, {vr(R2+8+t,2)}")
    a.tag(ACC, R2, vN)
    a.mask("3", "0")
    a.guard(lambda: a(f"global_store_dwordx4 v{vA0}, {vr(ACC,4)}, {sp(sWS)} sc1"))
    a.full()
    a("L_b_done:")
    a(f"""
    s_cmp_lg_u32 s{sFCP}, 0
    s_cbranch_scc1 L_nohp""")
    XF2 = GA + 32
    for q in range(4):
        a(f"v_lshlrev_b32 v{XF2+2*q}, 16, v{HP_+q}\n v_and_b32 v{XF2+2*q+1}, 0xffff0000, v{HP_+q}")
    a.tag(GA+4, XF2, vN)
    a.tag(GA+8, XF2+4, vN)
    a(f"""
    s_lshl_b32 s{sTMP}, s{sKSB}, 5
    s_lshl_b32 s{sTMP2}, s{u}, 3
    s_add_u32 s{sTMP}, s{sTMP}, s{sTMP2}
    s_lshl_b32 s{sTMP}, s{sTMP}, 4
    s_add_u32 s{sTMP}, s{sTMP}, {WS_HP}
    v_lshlrev_b32 v{vA1}, 4, v{vG}
    v_lshl_add_u32 v{vA1}, v{vB}, 12, v{vA1}
    v_add_u32 v{vA1}, s{sTMP}, v{vA1}""")
    a.mask("0x00110011", "0x00110011")
    a.guard(lambda: a(f"""global_store_dwordx4 v{vA1}, {vr(GA+4,4)}, {sp(sWS)} sc1
    global_store_dwordx4 v{vA1}, {vr(GA+8,4)}, {sp(sWS)} offset:64 sc1"""))
    a.full()
    a("L_nohp:")
    a.stamp(13)
    if o.get("ydpre", 0): a.guard(lambda: a("\n".join([f"s_sleep {min(127, o['ydpre'] - 127*k)}" for k in range((o['ydpre'] + 126)//127)])))
    a("L_D:")
    a(f"""
    s_cmp_lg_u32 s{u}, 0
    s_cbranch_scc1 L_G_done
    s_and_b32 s{sX}, s2, 7
    s_lshl_b32 s{sX}, s{sX}, 5
    s_lshr_b32 s{sX+1}, s2, 3
    s_add_u32 s{sX}, s{sX}, s{sX+1}
    s_lshr_b32 s{sB0}, s{sX}, 7                ; b2
    s_bfe_u32 s{sB0+1}, s{sX}, 0x30004         ; cc2
    s_and_b32 s{sB1}, s{sX}, 15
    s_lshl_b32 s{sB1}, s{sB1}, 5               ; gi0*16
    s_lshl_b32 s{sTMP}, s{sB0+1}, 1
    s_add_u32 s{sTMP}, s{sTMP}, s{sB0}
    s_mul_i32 s{sTMP}, s{sTMP}, {28*512}
    s_add_u32 s{sTMP}, s{sTMP}, s{sB1}
    s_add_u32 s{sTMP}, s{sTMP}, {WS_O2}
    v_lshrrev_b32 v{vA0}, 1, v{vLane}
    v_lshlrev_b32 v{vA0}, 9, v{vA0}
    v_and_b32 v{vA1}, 1, v{vLane}
    v_lshl_add_u32 v{vA0}, v{vA1}, 4, v{vA0}
    v_add_u32 v{vA0}, s{sTMP}, v{vA0}
    s_lshl_b32 s{sTMP}, s{sB0}, 12             ; b*256*16
    s_lshl_b32 s{sTMP2}, s{sB0+1}, 9           ; cc*32*16
    s_add_u32 s{sTMP}, s{sTMP}, s{sTMP2}
    s_add_u32 s{sTMP}, s{sTMP}, s{sB1}
    s_add_u32 s{sTMP}, s{sTMP}, {WS_HP}
    v_lshl_add_u32 v{vA2}, v{vA1}, 4, s{sTMP}
    v_cmp_le_u32 vcc, 56, v{vLane}
    s_nop 1
    v_cndmask_b32 v{vA0}, v{vA0}, v{vA2}, vcc
    """)
    DS = [GA, GA+4, GA+8]
    a.mask("-1", "0x03ffffff")
    if o.get("dpre", 0): a.guard(lambda: a(f"s_sleep {o['dpre']}"))
    a.pspin("gd", lambda r: a(f"global_load_dwordx4 {vr(r,4)}, v{vA0}, {sp(sWS)} sc1"), DS, ACC, dst=GA+12, sleep=o.get("dsleep", 1))
    a.full()
    a.stamp(17)
    fv = [GA+12+i for i in range(4)]
    a.mask("0", "0xfc000000")
    for r in fv: a(f"v_mov_b32 v{r}, 0")
    a.full()
    a.dpp("v_add_f32", fv, (XOR2, ROR4, ROR8))
    a.allreduce_g(fv, [GA+16+i for i in range(4)])
    a(f"""
    v_cvt_pk_bf16_f32 v{GA+20}, v{GA+12}, v{GA+13}
    v_cvt_pk_bf16_f32 v{GA+21}, v{GA+14}, v{GA+15}
    s_lshl_b32 s{sTMP}, s{sX}, 4
    v_lshl_add_u32 v{vA0}, v{vA1}, 3, s{sTMP}
    """)
    a.mask("3", "0")
    a.guard(lambda: a(f"global_store_dwordx2 v{vA0}, {vr(GA+20,2)}, {sp(sOUT)}"))
    a(f"""
    s_cmp_lg_u32 s2, 0
    s_cbranch_scc1 L_G_done
    """)
    a.full()
    a(f"v_mov_b32 v{vA0}, 0")
    a.mask("1", "0")
    a.guard(lambda: a(f"global_store_dword v{vA0}, v{vN}, {sp(sWS)} sc1"))
    a("L_G_done:")
    if o.get("dry", 1):
        a("s_cbranch_execz L_dry_done")
    a.stamp(18)
    a.dump_stamps(19, 7)
    a("s_endpgm")

def gen_A(a):
    o = a.o
    vLane, vG, vM, vN = 0, 2, 3, 4
    vKs = 5
    vV = 9
    vT0, vT1, vT2 = 10, 11, 12
    MX, LS = 13, 14
    VR = 16
    QO = 80
    KS = 96
    S = 128
    P = 144
    TB = 80
    ACCD = 112
    sA = sU
    sP, sS = 52, 53
    a(f"""
    L_A:
    ; ---------------- A waves ----------------
    s_setprio 2
    s_sub_u32 s{sA}, s{sWAVE}, 4
    s_and_b32 s{sP}, s2, 7
    s_lshr_b32 s{sS}, s2, 3
    s_lshl_b32 s{sTMP}, s{sP}, 22
    s_lshl_b32 s{sTMP2}, s{sS}, 17
    s_add_u32 s{sTMP}, s{sTMP}, s{sTMP2}
    s_lshl_b32 s{sTMP2}, s{sA}, {12 if o.get("ilv", 1) else 14}
    s_add_u32 s{sTMP}, s{sTMP}, s{sTMP2}
    s_lshl_b32 s{sTMP2}, s{sA}, 14
    """)
    TS = 32768 if o.get("ilv", 1) else 4096
    for r in range(4):
        a(f"v_add_u32 v{vT0}, {4*r}, v{vG}\n v_xor_b32 v{vT0}, v{vT0}, v{vM}\n v_lshlrev_b32 v{vT0}, 4, v{vT0}\n v_lshl_add_u32 v{vKs+r}, v{vG}, 8, v{vT0}")
    a(f"""
    v_lshlrev_b32 v{vT0}, 4, v{vM}
    v_lshl_add_u32 v{vV}, v{vG}, 10, v{vT0}
    v_mov_b32 v{vT1}, 0
    s_mov_b32 s{sM8}, 0xff00ff00
    s_mov_b32 s{sM8+1}, 0xff00ff00
    s_waitcnt lgkmcnt(0)
    s_add_u32 s{sB0}, s{sK}, s{sTMP}
    s_addc_u32 s{sB0+1}, s{sK+1}, 0
    s_add_u32 s{sB1}, s{sV}, s{sTMP}
    s_addc_u32 s{sB1+1}, s{sV+1}, 0
    s_add_u32 m0, s{sTMP2}, {L_K}
    s_barrier       ; B0
    global_load_dword v{vN}, v{vT1}, {sp(sWS)} sc1
    """)
    KW = o.get("kwin", 3)
    for i in range(16):
        r = i % 4
        if KW and i >= KW: a(f"s_waitcnt vmcnt({KW-1})")
        a(f"global_load_lds_dwordx4 v{vKs+r}, {sp(sB0)} offset:{r*1024} nt")
        if r == 3 and i < 15:
            a(f"s_add_u32 s{sB0}, s{sB0}, {TS}\n s_addc_u32 s{sB0+1}, s{sB0+1}, 0\n s_add_u32 m0, m0, 4096")
    a.stamp(1)
    a(f"s_setprio {o.get('vprio', 1)}")
    VW = o.get("vwin", 0)
    for uu in range(2):
        for i in range(8):
            reg = VR + (uu*8+i)*4
            if VW and uu*8+i < o.get("vwn", 16): a(f"s_waitcnt vmcnt({VW-1})")
            a(f"global_load_dwordx4 {vr(reg,4)}, v{vV}, {sp(sB1)} offset:{(i%4)*256} nt")
            if i % 4 == 3 and not (uu == 1 and i == 7):
                a(f"s_add_u32 s{sB1}, s{sB1}, {TS}\n s_addc_u32 s{sB1+1}, s{sB1+1}, 0")
    a.stamp(2)
    a(f"""
    v_mov_b32 v{vT1}, 0
    v_mov_b32 v{vT2}, 1
    s_mov_b64 exec, 1
    ds_add_u32 v{vT1}, v{vT2} offset:{L_CNT+4}
    s_mov_b64 exec, -1""")
    a(f"s_lshl_b32 s{sTMP}, s{sA}, 14\n s_add_u32 s{sTMP}, s{sTMP}, {L_K}")
    for s in range(4):
        a(f"v_add_u32 v{vT0}, {4*s}, v{vG}\n v_xor_b32 v{vT0}, v{vT0}, v{vM}\n v_lshlrev_b32 v{vT0}, 4, v{vT0}\n v_lshl_add_u32 v{vT0}, v{vM}, 8, v{vT0}\n v_add_u32 v{vKs+s}, s{sTMP}, v{vT0}")
    a.ldswait("Aq", vT1, vT2, L_CNT, 4, sleep=4)
    a(f"""
    v_and_b32 v{vT0}, 7, v{vM}
    v_mul_u32_u24 v{vT0}, 272, v{vT0}
    v_lshl_add_u32 v{vT0}, v{vG}, 4, v{vT0}
    """)
    a.stamp(3)
    for s in range(4):
        a(f"ds_read_b128 {vr(QO+4*s,4)}, v{vT0} offset:{L_Q + s*64}")
    a("s_waitcnt vmcnt(16)")
    a.nonce_from(vN)
    def kread(t, buf):
        for s in range(4):
            a(f"ds_read_b128 {vr(KS+16*buf+4*s,4)}, v{vKs+s} offset:{t*4096}")
    kread(0, 0); kread(1, 1)
    for t in range(4):
        buf = t % 2
        a("s_waitcnt lgkmcnt(4)" if t < 3 else "s_waitcnt lgkmcnt(0)")
        for s in range(4):
            c = "0" if s == 0 else vr(S+4*t, 4)
            a(f"v_mfma_f32_16x16x32_bf16 {vr(S+4*t,4)}, {vr(KS+16*buf+4*s,4)}, {vr(QO+4*s,4)}, {c}")
        if t + 2 < 4:
            kread(t + 2, buf)
    a("s_nop 7")
    a(f"v_max3_f32 v{MX}, v{S}, v{S+1}, v{S+2}")
    for k in range(3, 15, 2):
        a(f"v_max3_f32 v{MX}, v{MX}, v{S+k}, v{S+k+1}")
    a(f"v_max_f32 v{MX}, v{MX}, v{S+15}")
    a.allreduce_g([MX], [vT2], "v_max_f32")
    a(f"""
    s_mov_b32 s{sC}, 0x3e0293ee                   ; 128^-0.5 * log2(e)
    v_mul_f32 v{MX}, s{sC}, v{MX}""")
    for k in range(16):
        a(f"v_fma_f32 v{S+k}, v{S+k}, s{sC}, -v{MX}")
    for k in range(16):
        a(f"v_exp_f32 v{S+k}, v{S+k}")
    a("s_nop 0")
    for uu in range(2):
        for q in range(4):
            k = 8*uu + 2*q
            a(f"v_cvt_pk_bf16_f32 v{P+4*uu+q}, v{S+k}, v{S+k+1}")
    a(f"v_add_f32 v{LS}, v{S}, v{S+1}")
    for k in range(2, 16):
        a(f"v_add_f32 v{LS}, v{LS}, v{S+k}")
    a.allreduce_g([LS], [KS])
    a(f"""
    v_and_b32 v{vT0}, 7, v{vM}
    v_lshlrev_b32 v{vT0}, 5, v{vT0}             ; head*32
    s_lshl_b32 s{sTMP}, s{sA}, 2
    v_add_u32 v{vT0}, s{sTMP}, v{vT0}            ; head*32 + a*4
    s_mov_b64 exec, 0xff
    ds_write_b32 v{vT0}, v{MX} offset:{L_MX}
    ds_write_b32 v{vT0}, v{LS} offset:{L_LS}
    s_mov_b64 exec, 1
    v_mov_b32 v{vT1}, 0
    v_mov_b32 v{vT2}, 1
    s_waitcnt lgkmcnt(0)
    ds_add_rtn_u32 v{vT2}, v{vT1}, v{vT2} offset:{L_CNT+8}
    s_waitcnt lgkmcnt(0)
    s_mov_b64 exec, -1
    v_readfirstlane_b32 s{sTMP}, v{vT2}
    s_mov_b32 s{sSPIN}, 0
    s_cmp_lg_u32 s{sTMP}, 7
    s_cbranch_scc1 L_A_noml
    v_and_b32 v{vT0}, 7, v{vLane}
    v_lshlrev_b32 v{vT1}, 5, v{vT0}
    ds_read_b128 {vr(KS,4)}, v{vT1} offset:{L_MX}
    ds_read_b128 {vr(KS+4,4)}, v{vT1} offset:{L_MX+16}
    ds_read_b128 {vr(KS+8,4)}, v{vT1} offset:{L_LS}
    ds_read_b128 {vr(KS+12,4)}, v{vT1} offset:{L_LS+16}
    s_lshl_b32 s{sTMP}, s{sP}, 8                   ; p*8*32
    s_add_u32 s{sTMP}, s{sTMP}, s{sS}
    s_lshl_b32 s{sTMP}, s{sTMP}, 4
    s_add_u32 s{sTMP}, s{sTMP}, {WS_ML}
    v_lshl_add_u32 v{vT1}, v{vT0}, 9, s{sTMP}       ; + head*32*16
    s_waitcnt lgkmcnt(0)
    v_max3_f32 v{KS+16}, v{KS}, v{KS+1}, v{KS+2}
    v_max3_f32 v{KS+17}, v{KS+3}, v{KS+4}, v{KS+5}
    v_max3_f32 v{KS+16}, v{KS+16}, v{KS+6}, v{KS+7}
    v_max_f32 v{KS+16}, v{KS+16}, v{KS+17}
    v_perm_b32 v{KS+16}, v{KS+16}, v{vN}, s{sSEL[0]}
    """)
    for w in range(8):
        a(f"v_sub_f32 v{KS+w}, v{KS+w}, v{KS+16}")
    for w in range(8):
        a(f"v_exp_f32 v{KS+w}, v{KS+w}")
    a(f"s_nop 0\n v_mul_f32 v{KS+17}, v{KS}, v{KS+8}")
    for w in range(1, 8):
        a(f"v_fmac_f32 v{KS+17}, v{KS+w}, v{KS+8+w}")
    a(f"v_mov_b32 v{KS+18}, v{KS+16}\n v_mov_b32 v{KS+19}, v{KS+16}")
    a.tag(KS+20, KS+16, vN)
    a(f"""
    s_mov_b64 exec, 0xff
    global_store_dwordx4 v{vT1}, {vr(KS+20,4)}, {sp(sWS)} sc1
    s_mov_b64 exec, -1
    s_mov_b32 s{sPEND}, 1
    s_branch L_A_ml2
    L_A_noml:
    s_mov_b32 s{sPEND}, 0
    L_A_ml2:
    """)
    a.stamp(4)
    for uu in range(2):
        if uu == 0:
            a("s_waitcnt vmcnt(8)")
        else:
            a(f"s_cmp_eq_u32 s{sPEND}, 0\n s_cbranch_scc1 L_A_w0\n s_waitcnt vmcnt(1)\n s_branch L_A_w1\n L_A_w0:\n s_waitcnt vmcnt(0)\n L_A_w1:")
        if uu == 1: a.stamp(5)
        raw = VR + 32*uu
        for t in range(4):
            tb = TB + 8*t
            for par, sel in ((0, sPLO), (1, sPHI)):
                for q in range(4):
                    a(f"v_perm_b32 v{tb+4*par+q}, v{raw+4*(2*q+1)+t}, v{raw+4*(2*q)+t}, s{sel}")
            if t > 0:
                for par in range(2):
                    j = 2*(t-1) + par
                    c = "0" if uu == 0 else vr(ACCD+4*j, 4)
                    a(f"v_mfma_f32_16x16x32_bf16 {vr(ACCD+4*j,4)}, {vr(TB+8*(t-1)+4*par,4)}, {vr(P+4*uu,4)}, {c}")
        a("s_nop 1")
        for par in range(2):
            j = 6 + par
            c = "0" if uu == 0 else vr(ACCD+4*j, 4)
            a(f"v_mfma_f32_16x16x32_bf16 {vr(ACCD+4*j,4)}, {vr(TB+24+4*par,4)}, {vr(P+4*uu,4)}, {c}")
        if uu == 0:
            a(f"""
            s_lshl_b32 s{sTMP}, s{sA}, 14
            s_add_u32 s{sTMP}, s{sTMP}, {L_OB}
            v_mul_u32_u24 v{vT0}, 17, v{vG}
            v_add_u32 v{vT0}, v{vT0}, v{vM}
            v_lshl_add_u32 v{vT0}, v{vT0}, 4, s{sTMP}
            v_bfe_u32 v{vT1}, v{vLane}, 3, 2            ; g'
            v_and_b32 v{vKs}, 3, v{vLane}               ; j'&3
            v_bfe_u32 v{vKs+1}, v{vLane}, 2, 1          ; j'>>2
            v_lshl_add_u32 v{vKs}, v{vKs}, 1, v{vKs+1}  ; j
            v_and_b32 v{vKs+1}, 3, v{vKs}               ; jj
            v_lshrrev_b32 v{vKs}, 2, v{vKs}             ; nh
            v_lshl_add_u32 v{vT1}, v{vKs+1}, 2, v{vT1}  ; jj*4+g'
            v_mul_u32_u24 v{vT1}, 17, v{vT1}
            v_lshl_add_u32 v{vT1}, v{vKs}, 3, v{vT1}
            v_add_u32 v{vT1}, s{sA}, v{vT1}
            v_lshlrev_b32 v{vT1}, 4, v{vT1}
            v_lshrrev_b32 v{vKs}, 5, v{vLane}           ; ph
            v_lshl_add_u32 v{vT1}, v{vKs}, 16, v{vT1}   ; + ph*4*16384
            v_add_u32 v{vT1}, {L_OB}, v{vT1}
            s_lshl_b32 s{sTMP}, s{sA}, 5
            v_lshl_add_u32 v{vKs+1}, v{vKs}, 4, s{sTMP}
            v_xor_b32 v{vKs+2}, 16, v{vKs+1}
            s_lshl_b32 s{sTMP}, s{sP}, 3
            s_add_u32 s{sTMP}, s{sTMP}, s{sA}
            s_lshl_b32 s{sTMP}, s{sTMP}, 5
            s_add_u32 s{sTMP}, s{sTMP}, s{sS}            ; (p*8+head)*32 + s
            s_lshl_b32 s{sTMP2}, s{sTMP}, 9
            s_add_u32 s{sTMP2}, s{sTMP2}, {WS_OP}
            v_and_b32 v{vKs+3}, 31, v{vLane}
            v_lshl_add_u32 v{vV}, v{vKs+3}, 4, s{sTMP2}
            v_mov_b32 v{vKs}, 0
            v_mov_b32 v{vKs+3}, 1
            s_setprio 3
            """)
    a("s_nop 7")
    XB = TB
    for jj in range(4):
        for r in range(4):
            a(f"v_cndmask_b32 v{XB+4*jj+r}, v{ACCD+4*jj+r}, v{ACCD+4*(jj+4)+r}, {sp(sM8)}")
        a(f"ds_write_b128 v{vT0}, {vr(XB+4*jj,4)} offset:{jj*1088}")
    a("s_waitcnt lgkmcnt(0)\n s_barrier     ; B3")
    a.stamp(6)
    R = KS
    for w in range(4):
        a(f"ds_read_b128 {vr(R+4*w,4)}, v{vT1} offset:{w*OB_STRIDE}")
    MO, MT = R+16, R+20
    a(f"ds_read_b128 {vr(MO,4)}, v{vKs+1} offset:{L_MX}")
    a(f"ds_read_b128 {vr(MT,4)}, v{vKs+2} offset:{L_MX}")
    a(f"""
    s_waitcnt lgkmcnt(0)
    v_max3_f32 v{MX}, v{MO}, v{MO+1}, v{MO+2}
    v_max3_f32 v{MT}, v{MT}, v{MT+1}, v{MT+2}
    v_max3_f32 v{MX}, v{MX}, v{MO+3}, v{MT+3}
    v_max_f32 v{MX}, v{MX}, v{MT}
    v_perm_b32 v{MX}, v{MX}, v{vN}, s{sSEL[0]}
    """)
    for w in range(4):
        a(f"v_sub_f32 v{MO+w}, v{MO+w}, v{MX}")
    for w in range(4):
        a(f"v_exp_f32 v{MO+w}, v{MO+w}")
    a("s_nop 0")
    for t in range(4):
        a(f"v_mul_f32 v{R+t}, v{R+t}, v{MO}")
    for w in range(1, 4):
        for t in range(4):
            a(f"v_fmac_f32 v{R+t}, v{R+4*w+t}, v{MO+w}")
    a.allreduce_g([R, R+1, R+2, R+3], [R+4, R+5, R+6, R+7], steps=("v_permlane32_swap_b32",))
    a.tag(R+8, R, vN)
    a(f"""
    s_mov_b32 exec_hi, 0
    global_store_dwordx4 v{vV}, {vr(R+8,4)}, {sp(sWS)} sc1
    """)
    a.stamp(7)
    a("s_barrier     ; B4")
    a.dump_stamps(8, 10)
    a("s_endpgm")

if __name__ == "__main__":
    out = sys.argv[1]
    stamps = len(sys.argv) > 2 and sys.argv[2] == "1"
    opts = {}
    for kv in sys.argv[3:]:
        k, v = kv.split("="); opts[k] = int(v)
    open(out, "w").write(build(stamps, **opts))
```

```python
import sys
from gen_common import *

WS_EPOCH = 0
WS_QP   = 0x010000
WS_ML   = 0x080000
WS_HP   = 0x090000
WS_OP   = 0x100000
WS_AP   = 0x200000
WS_FPP  = 0x240000
WS_FPC  = 0x280000
WS_FPS  = 0x2A0000
WS_O2   = 0x2C0000
WS_STAMP = 0x800000
L_Q   = 0
L_MX  = 2304
L_LS  = L_MX + 256
L_REDQ = L_LS + 256
L_CNT = 6912
L_K   = 8192
L_OB  = L_K
OB_STRIDE = 16384
LDS_BYTES = L_K + 131072
L_XA_A = 12544
L_FAC  = 16896
L_XA_C = 17920
L_RA0, L_RA1 = 28928, 33024
L_RD0, L_RD1 = 45312, 49408
L_XA_B = 12544
L_REDS = 16896

SPIN_LIMIT = 4000

sX, sK, sV, sWQ, sWO, sW1, sW2, sOUT, sDBG, sWS = 4, 6, 8, 10, 12, 16, 18, 20, 22, 24
sFULL = 14
sWAVE, sU = 26, 27
sNONCE = 28
sT = [29, 30, 31, 32]
sSEL = [33, 34, 35, 36]
sPLO, sPHI = 37, 38
sC = 39
sMHI = 40
sM8 = 42
sB0 = 44
sB1 = 46
sMB = 48
sM1 = 50
sSPIN = 60
sTMP, sTMP2 = 61, 62
sPEND = 63
sSTAMP = 64

def sp(r): return f"s[{r}:{r+1}]"
def vr(r, n): return f"v[{r}:{r+n-1}]" if n > 1 else f"v{r}"
XOR1, XOR2, ROR4, ROR8 = "quad_perm:[1,0,3,2]", "quad_perm:[2,3,0,1]", "row_ror:4", "row_ror:8"
DM = "row_mask:0xf bank_mask:0xf"

class Gen(Asm):
    def __init__(self, stamps=False, opts=None):
        super().__init__()
        self.stamps = stamps
        self.o = opts or {}
        self.uid = 0
    def lab(self, base):
        self.uid += 1
        return f"L_{base}_{self.uid}"
    def stamp(self, idx):
        if self.stamps:
            self(f"s_memrealtime {sp(sSTAMP + 2 * idx)}")
    def dump_stamps(self, n, tmpv):
        if not self.stamps: return
        if self.o.get("dbgst", 0) == 2:
            if n <= 10: return
            L = self.lab("nodbg")
            self(f"s_cmp_lg_u32 s2, {self.o.get('dbgwg', 0)}\n s_cbranch_scc1 {L}\n s_cmp_lg_u32 s{sWAVE}, 0\n s_cbranch_scc1 {L}")
            self(f"s_waitcnt lgkmcnt(0)\n s_mov_b64 exec, 1\n v_mov_b32 v{tmpv}, 0")
            for k, i in enumerate((1, 2, 3, 4, 5, 6, 7, 8, 9, 10, 11, 12, 13, 15, 16, 18)):
                self(f"s_sub_u32 s{sTMP}, s{sSTAMP+2*i}, s{sSTAMP}\n v_mov_b32 v{tmpv+1}, s{sTMP}\n global_store_dword v{tmpv}, v{tmpv+1}, {sp(sDBG)} offset:{4*k}\n s_nop 1")
            self.label(L)
            return
        self(f"""s_waitcnt lgkmcnt(0)
        s_lshl_b32 s{sTMP}, s2, 4
        s_add_u32 s{sTMP}, s{sTMP}, s{sWAVE}
        s_lshl_b32 s{sTMP}, s{sTMP}, 7
        s_add_u32 s{sTMP}, s{sTMP}, {WS_STAMP}
        s_mov_b64 exec, 1
        v_mov_b32 v{tmpv}, s{sTMP}""")
        for i in range(n):
            self(f"v_mov_b32 v{tmpv+1}, s{sSTAMP+2*i}\n global_store_dword v{tmpv}, v{tmpv+1}, {sp(sWS)} offset:{4*i}\n s_nop 1")
    def full(self): self(f"s_mov_b64 exec, {sp(sFULL)}")
    def mask(self, lo, hi): self(f"s_and_b32 exec_lo, s{sFULL}, {lo}\n s_and_b32 exec_hi, s{sFULL+1}, {hi}")
    def guard(self, fn):
        L = self.lab("grd")
        self(f"s_cbranch_execz {L}")
        fn()
        self.label(L)
    def gbarrier(self):
        self("s_waitcnt lgkmcnt(0)")
        self.guard(lambda: self("s_barrier"))
    def dpp(self, op, regs, ctrls):
        n = len(regs)
        for ctrl in ctrls:
            if n < 3: self(f"s_nop {2 - n}" if n < 2 else "s_nop 0")
            for r in regs:
                self(f"{op}_dpp v{r}, v{r}, v{r} {ctrl} {DM}")
    def allreduce_g(self, regs, tmps, op="v_add_f32", steps=("v_permlane16_swap_b32", "v_permlane32_swap_b32")):
        n = len(regs)
        for swap in steps:
            for r, t in zip(regs, tmps):
                self(f"v_mov_b32 v{t}, v{r}")
            self("s_nop 1" if n < 2 else "s_nop 0")
            for r, t in zip(regs, tmps):
                self(f"{swap} v{r}, v{t}")
            self("s_nop 1" if n < 2 else "s_nop 0")
            for r, t in zip(regs, tmps):
                self(f"{op} v{r}, v{r}, v{t}")
    def tag(self, dst, src, vN):
        for i in range(4):
            self(f"v_perm_b32 v{dst+i}, v{src+i}, v{vN}, s{sSEL[i]}")
    def check(self, grans, acc):
        for gi, gbase in enumerate(grans):
            for i in range(4):
                if gi == 0:
                    self(f"v_xor_b32 v{acc+i}, s{sT[i]}, v{gbase+i}")
                else:
                    self(f"v_bitop3_b32 v{acc+i}, v{gbase+i}, s{sT[i]}, v{acc+i} bitop3:0xbe")
        self(f"v_or3_b32 v{acc}, v{acc}, v{acc+1}, v{acc+2}")
        self(f"v_or_b32 v{acc}, v{acc}, v{acc+3}")
        self(f"v_and_b32 v{acc}, 0xff, v{acc}")
        self(f"v_cmp_ne_u32 vcc, 0, v{acc}")
    def spin(self, name, issue, grans, acc, waitstr="s_waitcnt vmcnt(0)", sleep=0):
        L = self.lab(name); Lok = self.lab(name + "ok")
        self(f"s_mov_b32 s{sSPIN}, 0")
        self.label(L)
        self.guard(issue)
        self.guard(lambda: self(waitstr))
        self.check(grans, acc)
        self("s_nop 0")
        self(f"s_cbranch_vccz {Lok}")
        self(f"s_add_u32 s{sSPIN}, s{sSPIN}, 1")
        if sleep: self(f"s_sleep {sleep}")
        self(f"s_cmp_lt_u32 s{sSPIN}, {SPIN_LIMIT}")
        self(f"s_cbranch_scc1 {L}")
        self("s_branch L_abort")
        self.label(Lok)
    def pspin(self, name, load, sets, acc, dst=None, ncopy=4, sleep=0, thr=0):
        L = self.lab(name); Lok = self.lab(name + "ok")
        oks = [self.lab(name + f"k{i}") for i in range(3)]
        self(f"s_mov_b32 s{sSPIN}, 0")
        self.guard(lambda: (load(sets[0]), load(sets[1])))
        self.label(L)
        for k in range(3):
            self.guard(lambda k=k: (load(sets[(k + 2) % 3]), self("s_waitcnt vmcnt(2)")))
            self.check([sets[k]], acc)
            if thr:
                self(f"s_nop 0\n s_bcnt1_i32_b64 s{sTMP}, vcc\n s_cmp_le_u32 s{sTMP}, {thr}\n s_cbranch_scc1 {oks[k]}")
            else:
                self("s_nop 0")
                self(f"s_cbranch_vccz {oks[k]}")
            if sleep: self(f"s_sleep {sleep}")
        self(f"s_add_u32 s{sSPIN}, s{sSPIN}, 1")
        self(f"s_cmp_lt_u32 s{sSPIN}, {SPIN_LIMIT}")
        self(f"s_cbranch_scc1 {L}")
        self("s_branch L_abort")
        for k in range(3):
            self.label(oks[k])
            if dst is not None and sets[k] != dst:
                for t in range(ncopy): self(f"v_mov_b32 v{dst+t}, v{sets[k]+t}")
            if k < 2: self(f"s_branch {Lok}")
        self.label(Lok)
    def ldswait(self, name, vaddr, vtmp, off, count, sleep=2):
        L = self.lab(name); Lok = self.lab(name + "ok")
        self(f"""
        s_mov_b32 s{sSPIN}, 0
        s_cbranch_execz {Lok}
        {L}:
        ds_read_b32 v{vtmp}, v{vaddr} offset:{off}
        s_waitcnt lgkmcnt(0)
        v_readfirstlane_b32 s{sTMP}, v{vtmp}
        s_cmp_ge_u32 s{sTMP}, {count}
        s_cbranch_scc1 {Lok}
        s_add_u32 s{sSPIN}, s{sSPIN}, 1""")
        if sleep: self(f"s_sleep {sleep}")
        self(f"""
        s_cmp_lt_u32 s{sSPIN}, 400000
        s_cbranch_scc1 {L}
        s_branch L_abort
        {Lok}:""")
    def perm_unit(self, raw, T):
        for t in range(4):
            for par, sel in ((0, sPLO), (1, sPHI)):
                j = 2 * t + par
                for q in range(4):
                    self(f"v_perm_b32 v{T + 4*j + q}, v{raw + 4*(2*q+1) + t}, v{raw + 4*(2*q) + t}, s{sel}")
    def wload(self, dst, sbase, voff, rowfn, rs, nt=True):
        prev = 0
        for i in range(8):
            d = rowfn(i) - prev
            if d > 0:
                self(f"s_add_u32 s{sbase}, s{sbase}, {d*rs}\n s_addc_u32 s{sbase+1}, s{sbase+1}, 0")
            elif d < 0:
                self(f"s_sub_u32 s{sbase}, s{sbase}, {-d*rs}\n s_subb_u32 s{sbase+1}, s{sbase+1}, 0")
            prev = rowfn(i)
            self(f"global_load_dwordx4 {vr(dst+4*i, 4)}, v{voff}, {sp(sbase)}" + (" nt" if nt else ""))
    def mfma8(self, D, AOP, T):
        for j in range(8):
            self(f"v_mfma_f32_16x16x32_bf16 {vr(D+4*j,4)}, {vr(AOP,4)}, {vr(T+4*j,4)}, 0")
    def select(self, X, D, r):
        for jj in range(4):
            self(f"v_cndmask_b32 v{X+jj}, v{D+4*jj+r}, v{D+4*(4+jj)+r}, {sp(sMHI)}")
    def nonce_from(self, vN):
        self(f"""
        v_readfirstlane_b32 s{sNONCE}, v{vN}
        s_add_u32 s{sNONCE}, s{sNONCE}, 0x01010101
        s_or_b32 s{sNONCE}, s{sNONCE}, 1
        s_mov_b32 s{sT[0]}, s{sNONCE}
        s_lshr_b32 s{sT[1]}, s{sNONCE}, 8
        s_lshr_b32 s{sT[2]}, s{sNONCE}, 16
        s_lshr_b32 s{sT[3]}, s{sNONCE}, 24
        v_mov_b32 v{vN}, s{sNONCE}
        """)

STD_ROW = lambda i: 16 * (i // 4) + (i % 4)
WO_ROW = lambda i: 8 * (i % 4) + (i // 4)

def reduce4(a, R, X, vN):
    for t in (0, 2):
        a(f"v_pk_add_f32 {vr(R+t,2)}, {vr(R+t,2)}, {vr(R+4+t,2)}\n v_pk_add_f32 {vr(R+8+t,2)}, {vr(R+8+t,2)}, {vr(R+12+t,2)}")
    for t in (0, 2):
        a(f"v_pk_add_f32 {vr(R+t,2)}, {vr(R+t,2)}, {vr(R+8+t,2)}")
    a.tag(X, R, vN)

def build(stamps=False, **o):
    a = Gen(stamps, o)
    a(f"""
    s_cmp_ge_u32 s2, 256
    s_cbranch_scc1 L_end""")
    a.stamp(0)
    a(f"""
    s_load_dwordx8 s[4:11], s[0:1], 0
    s_load_dwordx2 s[12:13], s[0:1], 32
    s_load_dwordx4 s[16:19], s[0:1], 48
    s_load_dwordx4 s[20:23], s[0:1], 64
    s_load_dwordx2 s[24:25], s[0:1], 80
    v_lshrrev_b32 v1, 6, v0
    v_and_b32 v0, 63, v0
    s_mov_b32 s{sPLO}, 0x05040100
    v_readfirstlane_b32 s{sWAVE}, v1
    s_mov_b32 s{sPHI}, 0x07060302
    s_mov_b32 s{sSEL[0]}, 0x07060500
    s_mov_b32 s{sSEL[1]}, 0x07060501
    s_mov_b32 s{sSEL[2]}, 0x07060502
    s_mov_b32 s{sSEL[3]}, 0x07060503
    s_mov_b64 {sp(sFULL)}, -1
    v_lshrrev_b32 v2, 4, v0            ; g
    v_and_b32 v3, 15, v0               ; m / c
    s_cmp_ge_u32 s{sWAVE}, 4
    s_cbranch_scc1 L_A
    """)
    gen_G(a)
    gen_A(a)
    a("""
    L_abort:
    L_end:
    s_endpgm
    """)
    return kernel_wrap(a.text(), 256, 768, LDS_BYTES, 168)

def gen_G(a):
    o = a.o
    vLane, vG, vM, vB, vN = 0, 2, 3, 4, 6
    vBG = 1
    vPP = 5
    vA0, vA1, vA2 = 7, 8, 9
    vPubH = 10
    vXW = 11
    vXR = vPP
    XR = 12
    AOP = 16
    ACC = 20
    RAWA, RAWB, T, GA = 24, 56, 88, 120
    u = sU
    sKS, sHQ, sP, sBA, sHKV, sFC2, sH, sCC = 52, 53, 54, 55, 56, 57, 58, 59
    a(f"""
    ; ---------------- G waves ----------------
    s_setprio 3
    s_mov_b32 s{u}, s{sWAVE}
    v_bfe_u32 v{vB}, v{vM}, 2, 1
    v_and_b32 v{vPP}, 3, v{vM}
    v_lshrrev_b32 v{vA0}, 3, v{vM}
    v_lshl_or_b32 v{vPP}, v{vA0}, 2, v{vPP}
    s_and_b32 s{sKS}, s2, 7
    s_lshr_b32 s{sHQ}, s2, 3
    v_mov_b32 v{vA0}, 0
    v_lshl_add_u32 v{vA1}, v{vPP}, 2, v{vG}
    v_lshlrev_b32 v{vA1}, 4, v{vA1}
    v_lshl_add_u32 v{vA1}, v{vB}, 11, v{vA1}
    s_lshl_b32 s{sTMP}, s{sKS}, 8
    s_lshl_b32 s{sTMP2}, s{u}, 6
    s_add_u32 s{sTMP}, s{sTMP}, s{sTMP2}
    v_lshlrev_b32 v{vA2}, 3, v{vG}
    v_lshl_add_u32 v{vA2}, v{vB}, 11, v{vA2}
    v_add_u32 v{vA2}, s{sTMP}, v{vA2}
    s_lshl_b32 s{sTMP}, s{sKS}, 7
    s_lshl_b32 s{sTMP2}, s{u}, 5
    s_add_u32 s{sTMP}, s{sTMP}, s{sTMP2}
    s_lshl_b32 s{sTMP}, s{sTMP}, 13          ; *8192
    s_lshl_b32 s{sTMP2}, s{sHQ}, 8
    s_add_u32 s{sTMP}, s{sTMP}, s{sTMP2}
    v_lshlrev_b32 v{vPubH}, 15, v{vG}          ; 4g*8192
    v_lshl_add_u32 v{vPubH}, v{vM}, 4, v{vPubH}
    s_waitcnt lgkmcnt(0)
    s_add_u32 s{sB0}, s{sWQ}, s{sTMP}
    s_addc_u32 s{sB0+1}, s{sWQ+1}, 0
    global_load_dword v{vN}, v{vA0}, {sp(sWS)} sc1
    """)
    for i in range(4):
        a(f"global_load_dwordx4 {vr(GA+4*i,4)}, v{vA1}, {sp(sX)} offset:{i*512}")
    a(f"global_load_dwordx2 {vr(XR,2)}, v{vA2}, {sp(sX)}")
    a(f"global_load_dwordx2 {vr(XR+2,2)}, v{vA2}, {sp(sX)} offset:32")
    tch = o.get("touch", 0)
    if tch:
        a(f"""
        s_lshr_b32 s{sTMP2}, s{sKS}, 1               ; xi
        v_mov_b32 v{vA0}, 0x3f0000
        global_load_dword v{GA+44}, v{vA0}, {sp(sWS)}
        v_mov_b32 v{vA0}, 0
        """)
        if tch & 2: a(f"global_load_dword v{GA+45}, v{vA0}, {sp(sOUT)}")
        if tch & 4:
            a(f"""
            s_lshl_b32 s{sTMP}, s{sTMP2}, 3
            s_and_b32 s{sB1}, s{sHQ}, 7
            s_add_u32 s{sTMP}, s{sTMP}, s{sB1}
            s_lshl_b32 s{sTMP}, s{sTMP}, 18
            v_mov_b32 v{vA0}, s{sTMP}
            global_load_dword v{GA+46}, v{vA0}, {sp(sWO)}
            s_lshl_b32 s{sTMP}, s{sTMP2}, 1
            s_and_b32 s{sB1}, s{sHQ}, 1
            s_add_u32 s{sTMP}, s{sTMP}, s{sB1}
            s_mul_i32 s{sTMP}, s{sTMP}, {128*7168}
            v_mov_b32 v{vA0}, s{sTMP}
            global_load_dword v{GA+47}, v{vA0}, {sp(sW1)}
            s_mul_i32 s{sTMP}, s{sTMP2}, 7
            s_lshr_b32 s{sB1}, s{sHQ}, 2
            s_add_u32 s{sTMP}, s{sTMP}, s{sB1}
            s_min_u32 s{sTMP}, s{sTMP}, 27
            s_lshl_b32 s{sTMP}, s{sTMP}, 18
            v_mov_b32 v{vA0}, s{sTMP}
            global_load_dword v{GA+43}, v{vA0}, {sp(sW2)}
            """)
    ntouch = (1 + (1 if tch & 2 else 0) + (3 if tch & 4 else 0)) if tch else 0
    a.wload(RAWA, sB0, vPubH, STD_ROW, 8192)
    a(f"""
    s_mov_b32 s{sMHI}, 0
    s_mov_b32 s{sMHI+1}, -1
    s_mov_b32 s{sMB}, 0xf0f0f0f0
    s_mov_b32 s{sMB+1}, 0xf0f0f0f0
    s_mov_b32 s{sM1}, 0x22222222
    s_mov_b32 s{sM1+1}, 0x22222222
    v_mov_b32 v{ACC}, 0
    v_mov_b32 v{ACC+1}, 0
    v_mov_b32 v{ACC+2}, 0
    v_mov_b32 v{ACC+3}, 0
    s_lshl_b32 s{sTMP}, s{u}, 10
    v_lshl_add_u32 v{vA0}, v{vLane}, 4, s{sTMP}
    ds_write_b128 v{vA0}, {vr(ACC,4)} offset:{L_REDQ}
    v_and_b32 v{vA1}, 1, v{vLane}
    v_lshlrev_b32 v{vA1}, 4, v{vA1}
    ds_write_b128 v{vA1}, {vr(ACC,4)} offset:{L_CNT}
    s_waitcnt lgkmcnt(0)
    s_barrier        ; B0
    v_lshrrev_b32 v{vPubH}, 1, v{vG}
    v_lshl_add_u32 v{vPubH}, v{vM}, 1, v{vPubH}
    v_lshlrev_b32 v{vPubH}, 4, v{vPubH}      ; (2c+half)*16
    s_waitcnt vmcnt(8)
    """)
    a.stamp(1)
    a.nonce_from(vN)
    S0, S1, Q0, Q1, LO, HI = RAWB, RAWB+1, RAWB+2, RAWB+3, RAWB+4, RAWB+5
    for k in range(16):
        w = GA + k
        a(f"v_lshlrev_b32 v{LO}, 16, v{w}\n v_and_b32 v{HI}, 0xffff0000, v{w}")
        if k == 0:
            a(f"v_mov_b32 v{S0}, v{LO}\n v_mov_b32 v{S1}, v{HI}\n v_mul_f32 v{Q0}, v{LO}, v{LO}\n v_mul_f32 v{Q1}, v{HI}, v{HI}")
        else:
            a(f"v_add_f32 v{S0}, v{S0}, v{LO}\n v_add_f32 v{S1}, v{S1}, v{HI}\n v_fmac_f32 v{Q0}, v{LO}, v{LO}\n v_fmac_f32 v{Q1}, v{HI}, v{HI}")
    a(f"v_add_f32 v{S0}, v{S0}, v{S1}\n v_add_f32 v{S1}, v{Q0}, v{Q1}")
    a.dpp("v_add_f32", [S0, S1], (XOR1, XOR2, ROR8))
    a.allreduce_g([S0, S1], [Q0, Q1])
    MEAN, RSTD = S0, S1
    a(f"""
    v_mul_f32 v{MEAN}, 0x3a800000, v{S0}        ; /1024
    v_mul_f32 v{Q0}, 0x3a800000, v{S1}
    v_fma_f32 v{Q0}, -v{MEAN}, v{MEAN}, v{Q0}
    v_max_f32 v{Q0}, 0, v{Q0}
    v_add_f32 v{Q0}, 0x3727c5ac, v{Q0}           ; + 1e-5
    v_rsq_f32 v{RSTD}, v{Q0}
    """)
    XF = RAWB + 8
    for q in range(4):
        a(f"v_lshlrev_b32 v{XF+2*q}, 16, v{XR+q}\n v_and_b32 v{XF+2*q+1}, 0xffff0000, v{XR+q}")
    for e in range(8):
        a(f"v_sub_f32 v{XF+e}, v{XF+e}, v{MEAN}")
    for e in range(8):
        a(f"v_mul_f32 v{XF+e}, v{XF+e}, v{RSTD}")
    for q in range(4):
        a(f"v_cvt_pk_bf16_f32 v{AOP+q}, v{XF+2*q}, v{XF+2*q+1}")
    a("s_waitcnt vmcnt(0)")
    a.stamp(2)
    a.perm_unit(RAWA, T)
    a("s_nop 1")
    a.mfma8(RAWB, AOP, T)
    a("s_nop 7")
    X = ACC
    a.select(X, RAWB, 0)
    a.tag(X, X, vN)
    a(f"""
    ds_write_b128 v{vA0}, {vr(X,4)} offset:{L_REDQ}
    s_cmp_lg_u32 s{u}, 0
    s_cbranch_scc1 L_q_nored
    v_lshlrev_b32 v{vA0}, 4, v{vLane}
    """)
    def iss():
        for w in range(4):
            a(f"ds_read_b128 {vr(GA+4*w,4)}, v{vA0} offset:{L_REDQ + w*1024}")
    a.spin("redq", iss, [GA, GA+4, GA+8, GA+12], ACC, waitstr="s_waitcnt lgkmcnt(0)")
    reduce4(a, GA, X, vN)
    a(f"""
    s_lshl_b32 s{sTMP}, s{sHQ}, 13
    s_lshl_b32 s{sTMP2}, s{sKS}, 9
    s_add_u32 s{sTMP}, s{sTMP}, s{sTMP2}
    s_add_u32 s{sTMP}, s{sTMP}, {WS_QP}
    v_and_b32 v{vA0}, 1, v{vG}
    v_lshl_add_u32 v{vA0}, v{vA0}, 12, v{vPubH}
    v_add_u32 v{vA0}, s{sTMP}, v{vA0}
    global_store_dwordx4 v{vA0}, {vr(X,4)}, {sp(sWS)} sc1
    L_q_nored:
    """)
    a.stamp(3)
    sXI, sSLOT, sCCP, sKSB, sFCP = 54, 55, 56, 57, 59
    sHA, sFC = 58, 53
    a(f"""
    s_and_b32 s{sTMP}, s2, 7
    s_lshr_b32 s{sB1}, s{sTMP}, 2
    s_and_b32 s{sB1+1}, s{sTMP}, 3
    s_lshr_b32 s{sXI}, s{sTMP}, 1
    s_lshr_b32 s{sSLOT}, s2, 3
    s_lshl_b32 s{sHA}, s{sXI}, 3
    s_and_b32 s{sTMP}, s{sSLOT}, 7
    s_add_u32 s{sHA}, s{sHA}, s{sTMP}
    s_and_b32 s{sTMP}, s{sSLOT}, 1
    s_lshl_b32 s{sKSB}, s{sXI}, 1
    s_add_u32 s{sKSB}, s{sKSB}, s{sTMP}
    s_lshr_b32 s{sFCP}, s{sSLOT}, 1
    s_lshr_b32 s{sTMP}, s{sSLOT}, 2
    s_mul_i32 s{sFC}, s{sXI}, 7
    s_add_u32 s{sFC}, s{sFC}, s{sTMP}
    s_lshl_b32 s{sTMP}, s{sKSB}, 8
    s_lshl_b32 s{sTMP2}, s{u}, 6
    s_add_u32 s{sTMP}, s{sTMP}, s{sTMP2}
    v_lshlrev_b32 v{vA2}, 3, v{vG}
    v_lshl_add_u32 v{vA2}, v{vB}, 11, v{vA2}
    v_add_u32 v{vA2}, s{sTMP}, v{vA2}
    global_load_dwordx2 {vr(XR,2)}, v{vA2}, {sp(sX)}
    global_load_dwordx2 {vr(XR+2,2)}, v{vA2}, {sp(sX)} offset:32
    v_and_b32 v{vBG}, 31, v{vLane}
    v_lshlrev_b32 v{vBG}, 4, v{vBG}             ; gi*16
    v_lshrrev_b32 v{vA0}, 5, v{vLane}
    v_mul_u32_u24 v{vA0}, 544, v{vA0}
    v_add_u32 v{vXW}, v{vA0}, v{vBG}
    v_and_b32 v{vA0}, 3, v{vM}
    v_mul_u32_u24 v{vA0}, 1088, v{vA0}
    v_mul_u32_u24 v{vA1}, 544, v{vB}
    v_add_u32 v{vA0}, v{vA0}, v{vA1}
    v_lshl_add_u32 v{vXR}, v{vG}, 4, v{vA0}
    s_mul_i32 s{sTMP}, s{u}, 1088
    v_add_u32 v{vXW}, s{sTMP}, v{vXW}
    s_lshl_b32 s{sTMP}, s{u}, 7
    v_add_u32 v{vXR}, s{sTMP}, v{vXR}
    """)
    if o.get("dry", 1):
        a(f"""
        s_mov_b64 {sp(sFULL)}, 0
        s_mov_b64 exec, 0
        s_branch L_tail
        L_dry_done:
        s_mov_b64 {sp(sFULL)}, -1
        s_mov_b64 exec, -1
        s_setprio 3
        """)
    a.stamp(4)
    QG = RAWB
    a(f"""
    s_and_b32 s{sTMP}, s2, 3                   ; hkv
    s_lshl_b32 s{sTMP}, s{sTMP}, 3
    s_lshl_b32 s{sTMP2}, s{u}, 1
    s_add_u32 s{sTMP}, s{sTMP}, s{sTMP2}
    s_lshl_b32 s{sTMP}, s{sTMP}, 1
    s_bfe_u32 s{sTMP2}, s2, 0x10002            ; b = (wg>>2)&1
    s_add_u32 s{sTMP}, s{sTMP}, s{sTMP2}
    s_lshl_b32 s{sTMP}, s{sTMP}, 12
    s_add_u32 s{sTMP}, s{sTMP}, {WS_QP}
    s_add_u32 s{sWQ}, s{sWS}, s{sTMP}
    s_addc_u32 s{sWQ+1}, s{sWS+1}, 0
    s_add_u32 s{sB1}, s{sWQ}, 8192
    s_addc_u32 s{sB1+1}, s{sWQ+1}, 0
    v_lshlrev_b32 v{vA2}, 4, v{vLane}
    """)
    def issq():
        for hh, sb in ((0, sWQ), (1, sB1)):
            for i in range(4):
                a(f"global_load_dwordx4 {vr(QG+16*hh+4*i,4)}, v{vA2}, {sp(sb)} offset:{i*1024} sc1")
    a.spin("qg", issq, [QG+4*i for i in range(8)], ACC, sleep=o.get("qsleep", 4))
    for hh in range(2):
        base = QG + 16*hh
        for t in range(4):
            a(f"v_add_f32 v{base+t}, v{base+t}, v{base+4+t}\n v_add_f32 v{base+8+t}, v{base+8+t}, v{base+12+t}")
        for t in range(4):
            a(f"v_add_f32 v{base+t}, v{base+t}, v{base+8+t}")
    a("s_nop 1")
    for t in range(4):
        a(f"v_permlane32_swap_b32 v{QG+t}, v{QG+16+t}")
    a("s_nop 1")
    for t in range(4):
        a(f"v_add_f32 v{QG+t}, v{QG+t}, v{QG+16+t}")
    a(f"""
    v_cvt_pk_bf16_f32 v{QG+4}, v{QG}, v{QG+1}
    v_cvt_pk_bf16_f32 v{QG+5}, v{QG+2}, v{QG+3}
    v_lshrrev_b32 v{vA0}, 5, v{vLane}            ; kq
    s_lshl_b32 s{sTMP}, s{u}, 1
    v_add_u32 v{vA0}, s{sTMP}, v{vA0}            ; head
    v_mul_u32_u24 v{vA0}, 272, v{vA0}
    v_and_b32 v{vA1}, 31, v{vLane}
    v_lshl_add_u32 v{vA0}, v{vA1}, 3, v{vA0}
    ds_write_b64 v{vA0}, {vr(QG+4,2)} offset:{L_Q}
    v_mov_b32 v{vA1}, 0
    v_mov_b32 v{vA2}, 1
    s_waitcnt lgkmcnt(0)
    s_mov_b64 exec, 1
    ds_add_u32 v{vA1}, v{vA2} offset:{L_CNT}
    s_mov_b64 exec, -1
    """)
    a.stamp(5)
    a(f"s_setprio {o.get('gprio', 1)}")

    def wunit(dst, sptr, voffn, rowfn, rs):
        prev = 0
        for i in range(8):
            d = rowfn(i) - prev
            if d > 0: a(f"s_add_u32 s{sptr}, s{sptr}, {d*rs}\n s_addc_u32 s{sptr+1}, s{sptr+1}, 0")
            elif d < 0: a(f"s_sub_u32 s{sptr}, s{sptr}, {-d*rs}\n s_subb_u32 s{sptr+1}, s{sptr+1}, 0")
            prev = rowfn(i)
            a(f"global_load_dwordx4 {vr(dst+4*i, 4)}, v{voffn}, {sp(sptr)} nt")
    def wpair(dst0, dst1, sptr_src, rowbase_code, rs, gshift_code, rowfn):
        a(rowbase_code)
        a(f"""
        s_add_u32 s{sB0}, s{sptr_src}, s{sTMP}
        s_addc_u32 s{sB0+1}, s{sptr_src+1}, 0
        s_add_u32 s{sR1}, s{sB0}, 256
        s_addc_u32 s{sR1+1}, s{sB0+1}, 0""")
        a(gshift_code)
        a.guard(lambda: (wunit(dst0, sB0, vA1, rowfn, rs), wunit(dst1, sR1, vA1, rowfn, rs)))
    sR1 = 6
    def sweep(name, issue, grans, shadow, sleep):
        L = a.lab(name); Lc = a.lab(name + "c"); Lok = a.lab(name + "ok")
        a(f"s_mov_b32 s{sSPIN}, 0")
        a.guard(issue)
        shadow()
        a(f"s_branch {Lc}")
        a.label(L)
        a.guard(issue)
        a.label(Lc)
        a.guard(lambda: a("s_waitcnt vmcnt(0)"))
        a.check(grans, ACC)
        a("s_nop 0")
        a(f"s_cbranch_vccz {Lok}")
        a(f"s_add_u32 s{sSPIN}, s{sSPIN}, 1")
        if sleep: a(f"s_sleep {sleep}")
        a(f"s_cmp_lt_u32 s{sSPIN}, {SPIN_LIMIT}")
        a(f"s_cbranch_scc1 {L}")
        a("s_branch L_abort")
        a.label(Lok)
    HS = [AOP, GA+40, GA+44]
    D = GA
    vals = [GA + 32 + e for e in range(8)]
    psl = o.get("psleep", 1)
    def exchange(lbuf):
        a(f"ds_write_b128 v{vXW}, {vr(GA,4)} offset:{lbuf}")
        a.gbarrier()
        a(f"""
        ds_read_b128 {vr(vals[0],4)}, v{vXR} offset:{lbuf}
        ds_read_b128 {vr(vals[4],4)}, v{vXR} offset:{lbuf + 64}
        s_waitcnt lgkmcnt(0)""")
        a.dpp("v_add_f32", vals, (XOR1, XOR2))
    def red_pub2(name, D1, lb0, lb1, addr):
        L = a.lab("nored" + name)
        R = GA + 32
        a.select(ACC, D, 0)
        a(f"ds_write_b128 v{vA0}, {vr(ACC,4)} offset:{lb0}")
        a.select(AOP, D1, 0)
        a(f"ds_write_b128 v{vA0}, {vr(AOP,4)} offset:{lb1}")
        a.gbarrier()
        a(f"""
        s_cmp_ge_u32 s{sU}, 2
        s_cbranch_scc1 {L}
        s_mul_i32 s{sTMP}, s{sU}, {lb1 - lb0}
        v_lshl_add_u32 v{vA0}, v{vLane}, 4, s{sTMP}""")
        for w in range(4):
            a(f"ds_read_b128 {vr(R+4*w,4)}, v{vA0} offset:{lb0 + w*1024}")
        addr()
        a("s_waitcnt lgkmcnt(0)")
        reduce4(a, R, ACC, vN)
        a.guard(lambda: a(f"global_store_dwordx4 v{vA0}, {vr(ACC,4)}, {sp(sWS)} sc1"))
        a.label(L)
    def o_hint_setup(hreg):
        a(f"""
        s_lshl_b32 s{sTMP2}, s{hreg}, 14                ; h*32*512
        s_lshl_b32 s{sTMP}, s{u}, 12                  ; 8u*512
        s_add_u32 s{sTMP2}, s{sTMP2}, s{sTMP}
        s_add_u32 s{sTMP2}, s{sTMP2}, {WS_OP}
        s_add_u32 s{sWQ}, s{sWS}, s{sTMP2}
        s_addc_u32 s{sWQ+1}, s{sWS+1}, 0
        v_lshrrev_b32 v{vA1}, 5, v{vLane}
        v_lshl_add_u32 v{vA2}, v{vA1}, 19, v{vBG}      ; b<<19 + gi*16
        v_bfe_u32 v{vA1}, v{vLane}, 3, 1
        v_and_b32 v{vA0}, 7, v{vLane}
        v_lshlrev_b32 v{vA0}, 9, v{vA0}
        v_lshl_add_u32 v{vA0}, v{vA1}, 19, v{vA0}
        """)
    a("L_tail:")
    a(f"""
    s_bitcmp1_b32 s2, 0
    s_cbranch_scc{0 if o.get("xpar", 1) else 1} L_Y
    """)
    def load_wo(which=(0, 1)):
        code = f"""
            s_lshl_b32 s{sTMP}, s{sHA}, 7
            s_lshl_b32 s{sTMP2}, s{u}, 5
            s_add_u32 s{sTMP}, s{sTMP}, s{sTMP2}
            s_lshl_b32 s{sTMP}, s{sTMP}, 11
            s_lshr_b32 s{sTMP2}, s{sSLOT}, 3
            s_lshl_b32 s{sTMP2}, s{sTMP2}, 9
            s_add_u32 s{sTMP}, s{sTMP}, s{sTMP2}"""
        a(code)
        a(f"""
        s_add_u32 s{sB0}, s{sWO}, s{sTMP}
        s_addc_u32 s{sB0+1}, s{sWO+1}, 0
        s_add_u32 s{sR1}, s{sB0}, 256
        s_addc_u32 s{sR1+1}, s{sB0+1}, 0
        v_lshlrev_b32 v{vA1}, 12, v{vG}             ; 2g*2048
        v_lshl_add_u32 v{vA1}, v{vM}, 4, v{vA1}""")
        def body():
            if 0 in which: wunit(RAWA, sB0, vA1, WO_ROW, 2048)
            if 1 in which: wunit(RAWB, sR1, vA1, WO_ROW, 2048)
        a.guard(body)
    wop = o.get("wop", 0)
    if wop in (0, 2):
        a(f"v_mov_b32 v{vA1}, 0")
        a.ldswait("vw", vA1, vA2, L_CNT+4, 8)
        a(f"s_setprio {o.get('woprio', 0)}")
        load_wo((0, 1) if wop == 0 else (0,))
    a(f"s_setprio {o.get('gprio', 1)}")
    a.stamp(6)
    a.guard(lambda: a("s_barrier      ; B3\n s_barrier      ; B4"))
    if wop == 1: load_wo()
    if wop == 2: load_wo((1,))
    a.stamp(7)
    a(f"""
    s_lshl_b32 s{sTMP}, s{sHA}, 9
    s_add_u32 s{sTMP}, s{sTMP}, {WS_ML}
    v_lshrrev_b32 v{vA1}, 5, v{vLane}             ; b
    v_lshl_add_u32 v{GA+47}, v{vA1}, 14, v{vBG}
    v_add_u32 v{GA+47}, s{sTMP}, v{GA+47}
    """)
    o_hint_setup(sHA)
    HSA = [AOP, GA+36, GA+40]
    a.mask("0xffff", "0")
    a.pspin("hO", lambda r: a(f"global_load_dwordx4 {vr(r,4)}, v{vA0}, {sp(sWQ)} sc1"), HSA, ACC, sleep=psl)
    a.full()
    a.stamp(8)
    MLR = GA + 32
    def issA():
        a(f"v_mov_b32 v{vA1}, v{GA+47}")
        a(f"global_load_dwordx4 {vr(MLR,4)}, v{vA1}, {sp(sWS)} sc1")
        for i in range(8):
            a(f"global_load_dwordx4 {vr(GA+4*i,4)}, v{vA2}, {sp(sWQ)} offset:{i*512} sc1")
    MM, LLr, TT = GA+44, GA+45, GA+46
    def factors():
        a(f"v_mov_b32 v{MM}, v{MLR}")
        a.dpp("v_max_f32", [MM], (XOR1, XOR2, ROR4, ROR8))
        a.allreduce_g([MM], [TT], "v_max_f32", steps=("v_permlane16_swap_b32",))
        a(f"""
        v_sub_f32 v{MM}, v{MLR}, v{MM}
        v_exp_f32 v{MM}, v{MM}
        s_nop 0
        v_mul_f32 v{LLr}, v{MM}, v{MLR+1}""")
        a.dpp("v_add_f32", [LLr], (XOR1, XOR2, ROR4, ROR8))
        a.allreduce_g([LLr], [TT], "v_add_f32", steps=("v_permlane16_swap_b32",))
        a(f"""
        v_rcp_f32 v{LLr}, v{LLr}
        s_nop 0
        v_mul_f32 v{MM}, v{MM}, v{LLr}
        s_lshl_b32 s{sTMP}, s{u}, 8
        v_lshl_add_u32 v{vA0}, v{vLane}, 2, s{sTMP}
        ds_write_b32 v{vA0}, v{MM} offset:{L_FAC}
        v_lshrrev_b32 v{vA1}, 5, v{vLane}
        s_lshl_b32 s{sTMP2}, s{u}, 5
        s_add_u32 s{sTMP}, s{sTMP}, s{sTMP2}
        v_lshl_add_u32 v{vA0}, v{vA1}, 7, s{sTMP}      ; u*256 + b*128 + 8u*4
        ds_read_b128 {vr(AOP,4)}, v{vA0} offset:{L_FAC}
        ds_read_b128 {vr(GA+40,4)}, v{vA0} offset:{L_FAC+16}
        """)
    L = a.lab("swA"); Lok = a.lab("swAok")
    a(f"s_mov_b32 s{sSPIN}, 0")
    a.guard(issA)
    a.perm_unit(RAWA, T)
    a.perm_unit(RAWB, RAWA)
    a.label(L)
    a.guard(lambda: a("s_waitcnt vmcnt(8)"))
    for t in range(4):
        a(f"v_xor_b32 v{ACC+t}, s{sT[t]}, v{MLR+t}")
    a(f"v_or3_b32 v{GA+39}, v{ACC}, v{ACC+1}, v{ACC+2}")
    a(f"v_or_b32 v{GA+39}, v{GA+39}, v{ACC+3}")
    factors()
    a.guard(lambda: a("s_waitcnt vmcnt(0)"))
    for gi in range(8):
        for i in range(4):
            if gi == 0:
                a(f"v_xor_b32 v{ACC+i}, s{sT[i]}, v{GA+i}")
            else:
                a(f"v_bitop3_b32 v{ACC+i}, v{GA+4*gi+i}, s{sT[i]}, v{ACC+i} bitop3:0xbe")
    a(f"v_or3_b32 v{ACC}, v{ACC}, v{ACC+1}, v{ACC+2}\n v_or3_b32 v{ACC}, v{ACC}, v{ACC+3}, v{GA+39}\n v_and_b32 v{ACC}, 0xff, v{ACC}\n v_cmp_ne_u32 vcc, 0, v{ACC}")
    a(f"s_nop 0\n s_cbranch_vccz {Lok}")
    a(f"s_add_u32 s{sSPIN}, s{sSPIN}, 1\n s_sleep 1\n s_waitcnt lgkmcnt(0)")
    a.guard(issA)
    a(f"s_cmp_lt_u32 s{sSPIN}, {SPIN_LIMIT}\n s_cbranch_scc1 {L}\n s_branch L_abort")
    a.label(Lok)
    a.stamp(9)
    FACR = [AOP, AOP+1, AOP+2, AOP+3, GA+40, GA+41, GA+42, GA+43]
    a("s_waitcnt lgkmcnt(0)")
    for t in range(4):
        a(f"v_mul_f32 v{GA+t}, v{GA+t}, v{FACR[0]}")
    for i in range(1, 8):
        for t in range(4):
            a(f"v_fmac_f32 v{GA+t}, v{GA+4*i+t}, v{FACR[i]}")
    exchange(L_XA_A)
    for q in range(4):
        a(f"v_cvt_pk_bf16_f32 v{AOP+q}, v{vals[2*q]}, v{vals[2*q+1]}")
    a("s_nop 1")
    a.mfma8(D, AOP, T)
    a.mfma8(RAWB, AOP, RAWA)
    a(f"s_lshl_b32 s{sTMP}, s{sU}, 10\n v_lshl_add_u32 v{vA0}, v{vLane}, 4, s{sTMP}")
    red_pub2("a", RAWB, L_RA0, L_RA1, lambda: a(f"""
        s_lshr_b32 s{sTMP}, s{sSLOT}, 3
        s_lshl_b32 s{sTMP}, s{sTMP}, 1
        s_add_u32 s{sTMP}, s{sTMP}, s{sU}          ; cc
        s_lshl_b32 s{sTMP}, s{sTMP}, 6
        s_add_u32 s{sTMP}, s{sTMP}, s{sHA}
        s_lshl_b32 s{sTMP}, s{sTMP}, 9
        s_add_u32 s{sTMP}, s{sTMP}, {WS_AP}
        v_and_b32 v{vA0}, 1, v{vG}
        v_lshl_add_u32 v{vA0}, v{vA0}, 14, v{vPubH}
        v_add_u32 v{vA0}, s{sTMP}, v{vA0}"""))
    a.stamp(10)
    a.gbarrier()
    a(f"""
    s_cmp_ge_u32 s{sSLOT}, 28
    s_cbranch_scc1 L_skipC1
    """)
    wpair(T, RAWB, sW2, f"""
        s_lshl_b32 s{sTMP}, s{sFC}, 7
        s_lshl_b32 s{sTMP2}, s{u}, 5
        s_add_u32 s{sTMP}, s{sTMP}, s{sTMP2}
        s_lshl_b32 s{sTMP}, s{sTMP}, 11
        s_and_b32 s{sTMP2}, s{sSLOT}, 3
        s_lshl_b32 s{sTMP2}, s{sTMP2}, 9
        s_add_u32 s{sTMP}, s{sTMP}, s{sTMP2}""", 2048, f"""
        v_lshlrev_b32 v{vA1}, 13, v{vG}           ; 4g*2048
        v_lshl_add_u32 v{vA1}, v{vM}, 4, v{vA1}""", STD_ROW)
    a(f"""
    s_lshl_b32 s{sTMP}, s{sFC}, 7
    s_add_u32 s{sTMP}, s{sTMP}, {WS_FPS}
    v_and_b32 v{vA0}, 7, v{vLane}
    v_lshl_add_u32 v{vA0}, v{vA0}, 4, s{sTMP}
    s_lshl_b32 s{sTMP}, s{sFC}, 13           ; fc*2*8*512
    s_lshl_b32 s{sTMP2}, s{u}, 10             ; 2u*512
    s_add_u32 s{sTMP}, s{sTMP}, s{sTMP2}
    s_add_u32 s{sTMP}, s{sTMP}, {WS_FPP}
    s_add_u32 s{sWQ}, s{sWS}, s{sTMP}
    s_addc_u32 s{sWQ+1}, s{sWS+1}, 0
    s_lshl_b32 s{sTMP}, s{sFC}, 12           ; fc*8*512
    s_add_u32 s{sTMP}, s{sTMP}, s{sTMP2}
    s_add_u32 s{sTMP}, s{sTMP}, {WS_FPC}
    s_add_u32 s{sB1}, s{sWS}, s{sTMP}
    s_addc_u32 s{sB1+1}, s{sWS+1}, 0
    v_lshrrev_b32 v{vA1}, 5, v{vLane}
    v_lshl_add_u32 v{vA2}, v{vA1}, 12, v{vBG}   ; b*8*512 + gi*16
    """)
    a.guard(lambda: a("s_waitcnt vmcnt(0)"))
    a.perm_unit(T, RAWA)
    a.perm_unit(RAWB, T)
    a.stamp(13)
    ST = GA + 36
    a.pspin("hC", lambda r: a(f"global_load_dwordx4 {vr(r,4)}, v{vA0}, {sp(sWS)} sc1"), HS, ACC, dst=ST, sleep=psl)
    a.stamp(14)
    MEANB, RS0, RS1 = GA+32, GA+33, GA+34
    def issC():
        for k in range(2):
            a(f"global_load_dwordx4 {vr(GA+4*k,4)}, v{vA2}, {sp(sWQ)} offset:{k*512} sc1")
        for k in range(2):
            a(f"global_load_dwordx4 {vr(GA+8+4*k,4)}, v{vBG}, {sp(sB1)} offset:{k*512} sc1")
    def shadowC():
        a.dpp("v_add_f32", [ST, ST+1, ST+2, ST+3], (XOR1, XOR2, ROR4))
        a(f"""
        v_mul_f32 v{ST}, 0x3a800000, v{ST}
        v_mul_f32 v{ST+2}, 0x3a800000, v{ST+2}
        v_mul_f32 v{ST+1}, 0x3a800000, v{ST+1}
        v_mul_f32 v{ST+3}, 0x3a800000, v{ST+3}
        v_cndmask_b32 v{MEANB}, v{ST}, v{ST+2}, {sp(sMHI)}
        v_fma_f32 v{ST+1}, -v{ST}, v{ST}, v{ST+1}
        v_fma_f32 v{ST+3}, -v{ST+2}, v{ST+2}, v{ST+3}
        v_max_f32 v{ST+1}, 0, v{ST+1}
        v_max_f32 v{ST+3}, 0, v{ST+3}
        v_add_f32 v{ST+1}, 0x3727c5ac, v{ST+1}
        v_add_f32 v{ST+3}, 0x3727c5ac, v{ST+3}
        v_rsq_f32 v{RS0}, v{ST+1}
        v_rsq_f32 v{RS1}, v{ST+3}
        s_nop 0
        v_cndmask_b32 v{GA+35}, v{RS0}, v{RS1}, {sp(sMB)}
        """)
    sweep("gC", issC, [GA+4*i for i in range(4)], shadowC, o.get("csleep", 1))
    a.stamp(15)
    RSB = GA + 40
    for t in range(4):
        a(f"v_add_f32 v{GA+t}, v{GA+t}, v{GA+4+t}\n v_add_f32 v{GA+8+t}, v{GA+8+t}, v{GA+12+t}")
    for t in range(4):
        a(f"v_fma_f32 v{GA+t}, -v{MEANB}, v{GA+8+t}, v{GA+t}")
    a(f"v_mov_b32 v{RSB}, v{GA+35}")
    exchange(L_XA_C)
    for e in range(8):
        a(f"v_mul_f32 v{vals[e]}, v{vals[e]}, v{RSB}")
    E = GA + 8
    for e in range(8):
        a(f"v_mul_f32 v{E+e}, 0xbfb8aa3b, v{vals[e]}      ; -log2e * x")
    for e in range(8):
        a(f"v_exp_f32 v{E+e}, v{E+e}")
    for e in range(8):
        a(f"v_add_f32 v{E+e}, 1.0, v{E+e}")
    for e in range(8):
        a(f"v_rcp_f32 v{E+e}, v{E+e}")
    for e in range(8):
        a(f"v_mul_f32 v{vals[e]}, v{vals[e]}, v{E+e}")
    for q in range(4):
        a(f"v_cvt_pk_bf16_f32 v{AOP+q}, v{vals[2*q]}, v{vals[2*q+1]}")
    a("s_nop 1")
    a.mfma8(D, AOP, RAWA)
    a.mfma8(RAWB, AOP, T)
    a(f"s_lshl_b32 s{sTMP}, s{sU}, 10\n v_lshl_add_u32 v{vA0}, v{vLane}, 4, s{sTMP}")
    red_pub2("c", RAWB, L_RD0, L_RD1, lambda: a(f"""
        s_and_b32 s{sTMP}, s{sSLOT}, 3
        s_lshl_b32 s{sTMP}, s{sTMP}, 1
        s_add_u32 s{sTMP}, s{sTMP}, s{sU}          ; cc
        s_mul_i32 s{sTMP}, s{sTMP}, 56
        s_add_u32 s{sTMP}, s{sTMP}, s{sFC}
        s_lshl_b32 s{sTMP}, s{sTMP}, 9
        s_add_u32 s{sTMP}, s{sTMP}, {WS_O2}
        v_and_b32 v{vA0}, 1, v{vG}
        v_mul_u32_u24 v{vA0}, {28*512}, v{vA0}
        v_add3_u32 v{vA0}, v{vA0}, v{vPubH}, s{sTMP}"""))
    a("L_skipC1:")
    a.stamp(16)
    a("s_branch L_D")
    a("L_Y:")
    a.stamp(6)
    a.guard(lambda: a("s_barrier      ; B3\n s_barrier      ; B4"))
    a.stamp(7)
    a(f"""
    s_cmp_ge_u32 s{sFCP}, 14
    s_cbranch_scc1 L_D
    """)
    if o.get("ytrig", 1):
        o_hint_setup(sHA)
        a.mask("0xffff", "0")
        a.pspin("hY", lambda r: a(f"global_load_dwordx4 {vr(r,4)}, v{vA0}, {sp(sWQ)} sc1"), HS, ACC, sleep=o.get("ysleep", 3), thr=o.get("ythr", 0))
        a.full()
    a.stamp(8)
    wpair(RAWA, RAWB, sW1, f"""
        s_lshl_b32 s{sTMP}, s{sKSB}, 7
        s_lshl_b32 s{sTMP2}, s{u}, 5
        s_add_u32 s{sTMP}, s{sTMP}, s{sTMP2}
        s_mul_i32 s{sTMP}, s{sTMP}, 7168
        s_lshl_b32 s{sTMP2}, s{sFCP}, 9
        s_add_u32 s{sTMP}, s{sTMP}, s{sTMP2}""", 7168, f"""
        v_mul_u32_u24 v{vA1}, {4*7168}, v{vG}
        v_lshl_add_u32 v{vA1}, v{vM}, 4, v{vA1}""", STD_ROW)
    a(f"""
    s_lshl_b32 s{sTMP}, s{sKSB}, 15            ; ks*2*32*512
    s_lshl_b32 s{sTMP2}, s{u}, 12
    s_add_u32 s{sTMP}, s{sTMP}, s{sTMP2}
    s_add_u32 s{sTMP}, s{sTMP}, {WS_AP}
    s_add_u32 s{sWQ}, s{sWS}, s{sTMP}
    s_addc_u32 s{sWQ+1}, s{sWS+1}, 0
    v_bfe_u32 v{vA1}, v{vLane}, 3, 1
    v_and_b32 v{vA0}, 7, v{vLane}
    v_lshlrev_b32 v{vA0}, 9, v{vA0}
    v_lshl_add_u32 v{vA0}, v{vA1}, 14, v{vA0}
    v_lshrrev_b32 v{vA1}, 5, v{vLane}
    v_lshl_add_u32 v{vA2}, v{vA1}, 14, v{vBG}
    """)
    a.guard(lambda: a("s_waitcnt vmcnt(0)"))
    a.perm_unit(RAWA, T)
    a.perm_unit(RAWB, RAWA)
    a.stamp(10)
    a.mask("0xffff", "0")
    a.pspin("hB", lambda r: a(f"global_load_dwordx4 {vr(r,4)}, v{vA0}, {sp(sWQ)} sc1"), HS, ACC, sleep=psl)
    a.full()
    a.stamp(11)
    def issB():
        for i in range(8):
            a(f"global_load_dwordx4 {vr(GA+4*i,4)}, v{vA2}, {sp(sWQ)} offset:{i*512} sc1")
    XF = GA + 48 - 8
    sweep("gB", issB, [GA+4*i for i in range(8)], lambda: None, o.get("bsleep", 1))
    a.stamp(12)
    for k in (0, 8, 16, 24):
        a(f"v_pk_add_f32 {vr(GA+k,2)}, {vr(GA+k,2)}, {vr(GA+k+4,2)}\n v_pk_add_f32 {vr(GA+k+2,2)}, {vr(GA+k+2,2)}, {vr(GA+k+6,2)}")
    for k in (0, 16):
        a(f"v_pk_add_f32 {vr(GA+k,2)}, {vr(GA+k,2)}, {vr(GA+k+8,2)}\n v_pk_add_f32 {vr(GA+k+2,2)}, {vr(GA+k+2,2)}, {vr(GA+k+10,2)}")
    a(f"v_pk_add_f32 {vr(GA,2)}, {vr(GA,2)}, {vr(GA+16,2)}\n v_pk_add_f32 {vr(GA+2,2)}, {vr(GA+2,2)}, {vr(GA+18,2)}")
    a(f"ds_write_b128 v{vXW}, {vr(GA,4)} offset:{L_XA_B}")
    for q in range(4):
        a(f"v_lshlrev_b32 v{XF+2*q}, 16, v{XR+q}\n v_and_b32 v{XF+2*q+1}, 0xffff0000, v{XR+q}")
    a.gbarrier()
    a(f"""
    ds_read_b128 {vr(vals[0],4)}, v{vXR} offset:{L_XA_B}
    ds_read_b128 {vr(vals[4],4)}, v{vXR} offset:{L_XA_B + 64}
    v_mov_b32 v{ACC}, 0x3f803f80
    s_waitcnt lgkmcnt(0)""")
    a.dpp("v_add_f32", vals, (XOR1, XOR2))
    for e in range(0, 8, 2):
        a(f"v_pk_add_f32 {vr(XF+e,2)}, {vr(XF+e,2)}, {vr(vals[e],2)}")
    HP_ = XR
    for q in range(4):
        a(f"v_cvt_pk_bf16_f32 v{HP_+q}, v{XF+2*q}, v{XF+2*q+1}")
    a("s_nop 0")
    for q in range(4):
        a(f"v_cndmask_b32 v{AOP+q}, v{HP_+q}, v{ACC}, {sp(sM1)}")
    a("s_nop 1")
    DX = GA + 44
    a(f"v_mfma_f32_16x16x32_bf16 {vr(DX,4)}, {vr(AOP,4)}, {vr(AOP,4)}, 0")
    a.mfma8(D, AOP, T)
    a.mfma8(RAWB, AOP, RAWA)
    a(f"""
    s_lshl_b32 s{sTMP}, s{u}, 10
    v_lshl_add_u32 v{vA0}, v{vLane}, 4, s{sTMP}
    v_lshrrev_b32 v{vA1}, 4, v{vLane}
    v_lshlrev_b32 v{vA1}, 3, v{vA1}
    v_not_b32 v{vA2}, v{vLane}
    v_and_b32 v{vA2}, 1, v{vA2}
    v_lshl_add_u32 v{vA1}, v{vA2}, 2, v{vA1}
    s_lshl_b32 s{sTMP}, s{u}, 4
    v_add_u32 v{vA1}, s{sTMP}, v{vA1}
    """)
    a.select(ACC, D, 0)
    a(f"ds_write_b128 v{vA0}, {vr(ACC,4)} offset:{L_RA0}")
    a.select(AOP, D, 1)
    a(f"ds_write_b128 v{vA0}, {vr(AOP,4)} offset:{L_RD0}")
    a.select(GA+32, RAWB, 0)
    a(f"ds_write_b128 v{vA0}, {vr(GA+32,4)} offset:{L_RA1}")
    a.select(GA+36, RAWB, 1)
    a(f"ds_write_b128 v{vA0}, {vr(GA+36,4)} offset:{L_RD1}")
    a.mask("0x00300003", "0")
    a(f"ds_write_b32 v{vA1}, v{DX} offset:{L_REDS}")
    a.full()
    a.gbarrier()
    R2 = GA + 16
    a(f"""
    s_cmp_eq_u32 s{u}, 3
    s_cbranch_scc1 L_b_st
    s_cmp_eq_u32 s{u}, 2
    s_cbranch_scc1 L_b_cs
    s_mul_i32 s{sTMP}, s{u}, {L_RA1 - L_RA0}
    v_lshl_add_u32 v{vA0}, v{vLane}, 4, s{sTMP}
    """)
    for w in range(4):
        a(f"ds_read_b128 {vr(R2+4*w,4)}, v{vA0} offset:{L_RA0 + w*1024}")
    a(f"""
    s_lshl_b32 s{sTMP}, s{sFCP}, 1
    s_add_u32 s{sTMP}, s{sTMP}, s{u}           ; fc
    s_lshl_b32 s{sTMP}, s{sTMP}, 4             ; fc*2*8
    s_add_u32 s{sTMP}, s{sTMP}, s{sKSB}
    s_lshl_b32 s{sTMP}, s{sTMP}, 9
    s_add_u32 s{sTMP}, s{sTMP}, {WS_FPP}
    v_and_b32 v{vA0}, 1, v{vG}
    v_lshl_add_u32 v{vA0}, v{vA0}, 12, v{vPubH}
    v_add_u32 v{vA0}, s{sTMP}, v{vA0}
    s_waitcnt lgkmcnt(0)""")
    reduce4(a, R2, ACC, vN)
    a.guard(lambda: a(f"global_store_dwordx4 v{vA0}, {vr(ACC,4)}, {sp(sWS)} sc1"))
    a(f"""
    s_branch L_b_done
    L_b_cs:
    v_and_b32 v{vA1}, 1, v{vG}
    v_mul_u32_u24 v{vA0}, {L_RD1 - L_RD0}, v{vA1}
    v_lshl_add_u32 v{vA0}, v{vLane}, 4, v{vA0}
    """)
    for w in range(4):
        a(f"ds_read_b128 {vr(R2+4*w,4)}, v{vA0} offset:{L_RD0 + w*1024}")
    a(f"""
    s_lshl_b32 s{sTMP}, s{sFCP}, 4             ; fc0*8
    s_add_u32 s{sTMP}, s{sTMP}, s{sKSB}
    s_lshl_b32 s{sTMP}, s{sTMP}, 9
    s_add_u32 s{sTMP}, s{sTMP}, {WS_FPC}
    v_lshl_add_u32 v{vA0}, v{vA1}, 12, v{vPubH}     ; + (g&1)*8*512
    v_add_u32 v{vA0}, s{sTMP}, v{vA0}
    s_waitcnt lgkmcnt(0)""")
    reduce4(a, R2, ACC, vN)
    a.guard(lambda: a(f"global_store_dwordx4 v{vA0}, {vr(ACC,4)}, {sp(sWS)} sc1"))
    a(f"""
    s_branch L_b_done
    L_b_st:
    v_mov_b32 v{vA0}, 0
    """)
    for w in range(4):
        a(f"ds_read_b128 {vr(R2+4*w,4)}, v{vA0} offset:{L_REDS + w*16}")
    a(f"""
    s_lshl_b32 s{sTMP}, s{sFCP}, 4
    s_add_u32 s{sTMP}, s{sTMP}, s{sKSB}
    s_lshl_b32 s{sTMP}, s{sTMP}, 4
    s_add_u32 s{sTMP}, s{sTMP}, {WS_FPS}
    v_lshl_add_u32 v{vA0}, v{vLane}, 7, s{sTMP}
    s_waitcnt lgkmcnt(0)
    """)
    for t in (0, 2):
        a(f"v_pk_add_f32 {vr(R2+t,2)}, {vr(R2+t,2)}, {vr(R2+4+t,2)}\n v_pk_add_f32 {vr(R2+8+t,2)}, {vr(R2+8+t,2)}, {vr(R2+12+t,2)}")
    for t in (0, 2):
        a(f"v_pk_add_f32 {vr(R2+t,2)}, {vr(R2+t,2)}, {vr(R2+8+t,2)}")
    a.tag(ACC, R2, vN)
    a.mask("3", "0")
    a.guard(lambda: a(f"global_store_dwordx4 v{vA0}, {vr(ACC,4)}, {sp(sWS)} sc1"))
    a.full()
    a("L_b_done:")
    a(f"""
    s_cmp_lg_u32 s{sFCP}, 0
    s_cbranch_scc1 L_nohp""")
    XF2 = GA + 32
    for q in range(4):
        a(f"v_lshlrev_b32 v{XF2+2*q}, 16, v{HP_+q}\n v_and_b32 v{XF2+2*q+1}, 0xffff0000, v{HP_+q}")
    a.tag(GA+4, XF2, vN)
    a.tag(GA+8, XF2+4, vN)
    a(f"""
    s_lshl_b32 s{sTMP}, s{sKSB}, 5
    s_lshl_b32 s{sTMP2}, s{u}, 3
    s_add_u32 s{sTMP}, s{sTMP}, s{sTMP2}
    s_lshl_b32 s{sTMP}, s{sTMP}, 4
    s_add_u32 s{sTMP}, s{sTMP}, {WS_HP}
    v_lshlrev_b32 v{vA1}, 4, v{vG}
    v_lshl_add_u32 v{vA1}, v{vB}, 12, v{vA1}
    v_add_u32 v{vA1}, s{sTMP}, v{vA1}""")
    a.mask("0x00110011", "0x00110011")
    a.guard(lambda: a(f"""global_store_dwordx4 v{vA1}, {vr(GA+4,4)}, {sp(sWS)} sc1
    global_store_dwordx4 v{vA1}, {vr(GA+8,4)}, {sp(sWS)} offset:64 sc1"""))
    a.full()
    a("L_nohp:")
    a.stamp(13)
    if o.get("ydpre", 0): a.guard(lambda: a("\n".join([f"s_sleep {min(127, o['ydpre'] - 127*k)}" for k in range((o['ydpre'] + 126)//127)])))
    a("L_D:")
    a(f"""
    s_cmp_lg_u32 s{u}, 0
    s_cbranch_scc1 L_G_done
    s_and_b32 s{sX}, s2, 7
    s_lshl_b32 s{sX}, s{sX}, 5
    s_lshr_b32 s{sX+1}, s2, 3
    s_add_u32 s{sX}, s{sX}, s{sX+1}
    s_lshr_b32 s{sB0}, s{sX}, 7                ; b2
    s_bfe_u32 s{sB0+1}, s{sX}, 0x30004         ; cc2
    s_and_b32 s{sB1}, s{sX}, 15
    s_lshl_b32 s{sB1}, s{sB1}, 5               ; gi0*16
    s_lshl_b32 s{sTMP}, s{sB0+1}, 1
    s_add_u32 s{sTMP}, s{sTMP}, s{sB0}
    s_mul_i32 s{sTMP}, s{sTMP}, {28*512}
    s_add_u32 s{sTMP}, s{sTMP}, s{sB1}
    s_add_u32 s{sTMP}, s{sTMP}, {WS_O2}
    v_lshrrev_b32 v{vA0}, 1, v{vLane}
    v_lshlrev_b32 v{vA0}, 9, v{vA0}
    v_and_b32 v{vA1}, 1, v{vLane}
    v_lshl_add_u32 v{vA0}, v{vA1}, 4, v{vA0}
    v_add_u32 v{vA0}, s{sTMP}, v{vA0}
    s_lshl_b32 s{sTMP}, s{sB0}, 12             ; b*256*16
    s_lshl_b32 s{sTMP2}, s{sB0+1}, 9           ; cc*32*16
    s_add_u32 s{sTMP}, s{sTMP}, s{sTMP2}
    s_add_u32 s{sTMP}, s{sTMP}, s{sB1}
    s_add_u32 s{sTMP}, s{sTMP}, {WS_HP}
    v_lshl_add_u32 v{vA2}, v{vA1}, 4, s{sTMP}
    v_cmp_le_u32 vcc, 56, v{vLane}
    s_nop 1
    v_cndmask_b32 v{vA0}, v{vA0}, v{vA2}, vcc
    """)
    DS = [GA, GA+4, GA+8]
    a.mask("-1", "0x03ffffff")
    if o.get("dpre", 0): a.guard(lambda: a(f"s_sleep {o['dpre']}"))
    a.pspin("gd", lambda r: a(f"global_load_dwordx4 {vr(r,4)}, v{vA0}, {sp(sWS)} sc1"), DS, ACC, dst=GA+12, sleep=o.get("dsleep", 1))
    a.full()
    a.stamp(17)
    fv = [GA+12+i for i in range(4)]
    a.mask("0", "0xfc000000")
    for r in fv: a(f"v_mov_b32 v{r}, 0")
    a.full()
    a.dpp("v_add_f32", fv, (XOR2, ROR4, ROR8))
    a.allreduce_g(fv, [GA+16+i for i in range(4)])
    a(f"""
    v_cvt_pk_bf16_f32 v{GA+20}, v{GA+12}, v{GA+13}
    v_cvt_pk_bf16_f32 v{GA+21}, v{GA+14}, v{GA+15}
    s_lshl_b32 s{sTMP}, s{sX}, 4
    v_lshl_add_u32 v{vA0}, v{vA1}, 3, s{sTMP}
    """)
    a.mask("3", "0")
    a.guard(lambda: a(f"global_store_dwordx2 v{vA0}, {vr(GA+20,2)}, {sp(sOUT)}"))
    a(f"""
    s_cmp_lg_u32 s2, 0
    s_cbranch_scc1 L_G_done
    """)
    a.full()
    a(f"v_mov_b32 v{vA0}, 0")
    a.mask("1", "0")
    a.guard(lambda: a(f"global_store_dword v{vA0}, v{vN}, {sp(sWS)} sc1"))
    a("L_G_done:")
    if o.get("dry", 1):
        a("s_cbranch_execz L_dry_done")
    a.stamp(18)
    a.dump_stamps(19, 7)
    a("s_endpgm")

def gen_A(a):
    o = a.o
    vLane, vG, vM, vN = 0, 2, 3, 4
    vKs = 5
    vV = 9
    vT0, vT1, vT2 = 10, 11, 12
    MX, LS = 13, 14
    VR = 16
    QO = 80
    KS = 96
    S = 128
    P = 144
    TB = 80
    ACCD = 112
    sA = sU
    sP, sS = 52, 53
    a(f"""
    L_A:
    ; ---------------- A waves ----------------
    s_setprio 2
    s_sub_u32 s{sA}, s{sWAVE}, 4
    s_and_b32 s{sP}, s2, 7
    s_lshr_b32 s{sS}, s2, 3
    s_lshl_b32 s{sTMP}, s{sP}, 22
    s_lshl_b32 s{sTMP2}, s{sS}, 17
    s_add_u32 s{sTMP}, s{sTMP}, s{sTMP2}
    s_lshl_b32 s{sTMP2}, s{sA}, {12 if o.get("ilv", 1) else 14}
    s_add_u32 s{sTMP}, s{sTMP}, s{sTMP2}
    s_lshl_b32 s{sTMP2}, s{sA}, 14
    """)
    TS = 32768 if o.get("ilv", 1) else 4096
    for r in range(4):
        a(f"v_add_u32 v{vT0}, {4*r}, v{vG}\n v_xor_b32 v{vT0}, v{vT0}, v{vM}\n v_lshlrev_b32 v{vT0}, 4, v{vT0}\n v_lshl_add_u32 v{vKs+r}, v{vG}, 8, v{vT0}")
    a(f"""
    v_lshlrev_b32 v{vT0}, 4, v{vM}
    v_lshl_add_u32 v{vV}, v{vG}, 10, v{vT0}
    v_mov_b32 v{vT1}, 0
    s_mov_b32 s{sM8}, 0xff00ff00
    s_mov_b32 s{sM8+1}, 0xff00ff00
    s_waitcnt lgkmcnt(0)
    s_add_u32 s{sB0}, s{sK}, s{sTMP}
    s_addc_u32 s{sB0+1}, s{sK+1}, 0
    s_add_u32 s{sB1}, s{sV}, s{sTMP}
    s_addc_u32 s{sB1+1}, s{sV+1}, 0
    s_add_u32 m0, s{sTMP2}, {L_K}
    s_barrier       ; B0
    global_load_dword v{vN}, v{vT1}, {sp(sWS)} sc1
    """)
    KW = o.get("kwin", 3)
    for i in range(16):
        r = i % 4
        if KW and i >= KW: a(f"s_waitcnt vmcnt({KW-1})")
        a(f"global_load_lds_dwordx4 v{vKs+r}, {sp(sB0)} offset:{r*1024} nt")
        if r == 3 and i < 15:
            a(f"s_add_u32 s{sB0}, s{sB0}, {TS}\n s_addc_u32 s{sB0+1}, s{sB0+1}, 0\n s_add_u32 m0, m0, 4096")
    a.stamp(1)
    a(f"s_setprio {o.get('vprio', 1)}")
    VW = o.get("vwin", 0)
    for uu in range(2):
        for i in range(8):
            reg = VR + (uu*8+i)*4
            if VW and uu*8+i < o.get("vwn", 16): a(f"s_waitcnt vmcnt({VW-1})")
            a(f"global_load_dwordx4 {vr(reg,4)}, v{vV}, {sp(sB1)} offset:{(i%4)*256} nt")
            if i % 4 == 3 and not (uu == 1 and i == 7):
                a(f"s_add_u32 s{sB1}, s{sB1}, {TS}\n s_addc_u32 s{sB1+1}, s{sB1+1}, 0")
    a.stamp(2)
    a(f"""
    v_mov_b32 v{vT1}, 0
    v_mov_b32 v{vT2}, 1
    s_mov_b64 exec, 1
    ds_add_u32 v{vT1}, v{vT2} offset:{L_CNT+4}
    s_mov_b64 exec, -1""")
    a(f"s_lshl_b32 s{sTMP}, s{sA}, 14\n s_add_u32 s{sTMP}, s{sTMP}, {L_K}")
    for s in range(4):
        a(f"v_add_u32 v{vT0}, {4*s}, v{vG}\n v_xor_b32 v{vT0}, v{vT0}, v{vM}\n v_lshlrev_b32 v{vT0}, 4, v{vT0}\n v_lshl_add_u32 v{vT0}, v{vM}, 8, v{vT0}\n v_add_u32 v{vKs+s}, s{sTMP}, v{vT0}")
    a.ldswait("Aq", vT1, vT2, L_CNT, 4, sleep=4)
    a(f"""
    v_and_b32 v{vT0}, 7, v{vM}
    v_mul_u32_u24 v{vT0}, 272, v{vT0}
    v_lshl_add_u32 v{vT0}, v{vG}, 4, v{vT0}
    """)
    a.stamp(3)
    for s in range(4):
        a(f"ds_read_b128 {vr(QO+4*s,4)}, v{vT0} offset:{L_Q + s*64}")
    a("s_waitcnt vmcnt(16)")
    a.nonce_from(vN)
    def kread(t, buf):
        for s in range(4):
            a(f"ds_read_b128 {vr(KS+16*buf+4*s,4)}, v{vKs+s} offset:{t*4096}")
    kread(0, 0); kread(1, 1)
    for t in range(4):
        buf = t % 2
        a("s_waitcnt lgkmcnt(4)" if t < 3 else "s_waitcnt lgkmcnt(0)")
        for s in range(4):
            c = "0" if s == 0 else vr(S+4*t, 4)
            a(f"v_mfma_f32_16x16x32_bf16 {vr(S+4*t,4)}, {vr(KS+16*buf+4*s,4)}, {vr(QO+4*s,4)}, {c}")
        if t + 2 < 4:
            kread(t + 2, buf)
    a("s_nop 7")
    a(f"v_max3_f32 v{MX}, v{S}, v{S+1}, v{S+2}")
    for k in range(3, 15, 2):
        a(f"v_max3_f32 v{MX}, v{MX}, v{S+k}, v{S+k+1}")
    a(f"v_max_f32 v{MX}, v{MX}, v{S+15}")
    a.allreduce_g([MX], [vT2], "v_max_f32")
    a(f"""
    s_mov_b32 s{sC}, 0x3e0293ee                   ; 128^-0.5 * log2(e)
    v_mul_f32 v{MX}, s{sC}, v{MX}""")
    for k in range(16):
        a(f"v_fma_f32 v{S+k}, v{S+k}, s{sC}, -v{MX}")
    for k in range(16):
        a(f"v_exp_f32 v{S+k}, v{S+k}")
    a("s_nop 0")
    for uu in range(2):
        for q in range(4):
            k = 8*uu + 2*q
            a(f"v_cvt_pk_bf16_f32 v{P+4*uu+q}, v{S+k}, v{S+k+1}")
    a(f"v_add_f32 v{LS}, v{S}, v{S+1}")
    for k in range(2, 16):
        a(f"v_add_f32 v{LS}, v{LS}, v{S+k}")
    a.allreduce_g([LS], [KS])
    a(f"""
    v_and_b32 v{vT0}, 7, v{vM}
    v_lshlrev_b32 v{vT0}, 5, v{vT0}             ; head*32
    s_lshl_b32 s{sTMP}, s{sA}, 2
    v_add_u32 v{vT0}, s{sTMP}, v{vT0}            ; head*32 + a*4
    s_mov_b64 exec, 0xff
    ds_write_b32 v{vT0}, v{MX} offset:{L_MX}
    ds_write_b32 v{vT0}, v{LS} offset:{L_LS}
    s_mov_b64 exec, 1
    v_mov_b32 v{vT1}, 0
    v_mov_b32 v{vT2}, 1
    s_waitcnt lgkmcnt(0)
    ds_add_rtn_u32 v{vT2}, v{vT1}, v{vT2} offset:{L_CNT+8}
    s_waitcnt lgkmcnt(0)
    s_mov_b64 exec, -1
    v_readfirstlane_b32 s{sTMP}, v{vT2}
    s_mov_b32 s{sSPIN}, 0
    s_cmp_lg_u32 s{sTMP}, 7
    s_cbranch_scc1 L_A_noml
    v_and_b32 v{vT0}, 7, v{vLane}
    v_lshlrev_b32 v{vT1}, 5, v{vT0}
    ds_read_b128 {vr(KS,4)}, v{vT1} offset:{L_MX}
    ds_read_b128 {vr(KS+4,4)}, v{vT1} offset:{L_MX+16}
    ds_read_b128 {vr(KS+8,4)}, v{vT1} offset:{L_LS}
    ds_read_b128 {vr(KS+12,4)}, v{vT1} offset:{L_LS+16}
    s_lshl_b32 s{sTMP}, s{sP}, 8                   ; p*8*32
    s_add_u32 s{sTMP}, s{sTMP}, s{sS}
    s_lshl_b32 s{sTMP}, s{sTMP}, 4
    s_add_u32 s{sTMP}, s{sTMP}, {WS_ML}
    v_lshl_add_u32 v{vT1}, v{vT0}, 9, s{sTMP}       ; + head*32*16
    s_waitcnt lgkmcnt(0)
    v_max3_f32 v{KS+16}, v{KS}, v{KS+1}, v{KS+2}
    v_max3_f32 v{KS+17}, v{KS+3}, v{KS+4}, v{KS+5}
    v_max3_f32 v{KS+16}, v{KS+16}, v{KS+6}, v{KS+7}
    v_max_f32 v{KS+16}, v{KS+16}, v{KS+17}
    v_perm_b32 v{KS+16}, v{KS+16}, v{vN}, s{sSEL[0]}
    """)
    for w in range(8):
        a(f"v_sub_f32 v{KS+w}, v{KS+w}, v{KS+16}")
    for w in range(8):
        a(f"v_exp_f32 v{KS+w}, v{KS+w}")
    a(f"s_nop 0\n v_mul_f32 v{KS+17}, v{KS}, v{KS+8}")
    for w in range(1, 8):
        a(f"v_fmac_f32 v{KS+17}, v{KS+w}, v{KS+8+w}")
    a(f"v_mov_b32 v{KS+18}, v{KS+16}\n v_mov_b32 v{KS+19}, v{KS+16}")
    a.tag(KS+20, KS+16, vN)
    a(f"""
    s_mov_b64 exec, 0xff
    global_store_dwordx4 v{vT1}, {vr(KS+20,4)}, {sp(sWS)} sc1
    s_mov_b64 exec, -1
    s_mov_b32 s{sPEND}, 1
    s_branch L_A_ml2
    L_A_noml:
    s_mov_b32 s{sPEND}, 0
    L_A_ml2:
    """)
    a.stamp(4)
    for uu in range(2):
        if uu == 0:
            a("s_waitcnt vmcnt(8)")
        else:
            a(f"s_cmp_eq_u32 s{sPEND}, 0\n s_cbranch_scc1 L_A_w0\n s_waitcnt vmcnt(1)\n s_branch L_A_w1\n L_A_w0:\n s_waitcnt vmcnt(0)\n L_A_w1:")
        if uu == 1: a.stamp(5)
        raw = VR + 32*uu
        for t in range(4):
            tb = TB + 8*t
            for par, sel in ((0, sPLO), (1, sPHI)):
                for q in range(4):
                    a(f"v_perm_b32 v{tb+4*par+q}, v{raw+4*(2*q+1)+t}, v{raw+4*(2*q)+t}, s{sel}")
            if t > 0:
                for par in range(2):
                    j = 2*(t-1) + par
                    c = "0" if uu == 0 else vr(ACCD+4*j, 4)
                    a(f"v_mfma_f32_16x16x32_bf16 {vr(ACCD+4*j,4)}, {vr(TB+8*(t-1)+4*par,4)}, {vr(P+4*uu,4)}, {c}")
        a("s_nop 1")
        for par in range(2):
            j = 6 + par
            c = "0" if uu == 0 else vr(ACCD+4*j, 4)
            a(f"v_mfma_f32_16x16x32_bf16 {vr(ACCD+4*j,4)}, {vr(TB+24+4*par,4)}, {vr(P+4*uu,4)}, {c}")
        if uu == 0:
            a(f"""
            s_lshl_b32 s{sTMP}, s{sA}, 14
            s_add_u32 s{sTMP}, s{sTMP}, {L_OB}
            v_mul_u32_u24 v{vT0}, 17, v{vG}
            v_add_u32 v{vT0}, v{vT0}, v{vM}
            v_lshl_add_u32 v{vT0}, v{vT0}, 4, s{sTMP}
            v_bfe_u32 v{vT1}, v{vLane}, 3, 2            ; g'
            v_and_b32 v{vKs}, 3, v{vLane}               ; j'&3
            v_bfe_u32 v{vKs+1}, v{vLane}, 2, 1          ; j'>>2
            v_lshl_add_u32 v{vKs}, v{vKs}, 1, v{vKs+1}  ; j
            v_and_b32 v{vKs+1}, 3, v{vKs}               ; jj
            v_lshrrev_b32 v{vKs}, 2, v{vKs}             ; nh
            v_lshl_add_u32 v{vT1}, v{vKs+1}, 2, v{vT1}  ; jj*4+g'
            v_mul_u32_u24 v{vT1}, 17, v{vT1}
            v_lshl_add_u32 v{vT1}, v{vKs}, 3, v{vT1}
            v_add_u32 v{vT1}, s{sA}, v{vT1}
            v_lshlrev_b32 v{vT1}, 4, v{vT1}
            v_lshrrev_b32 v{vKs}, 5, v{vLane}           ; ph
            v_lshl_add_u32 v{vT1}, v{vKs}, 16, v{vT1}   ; + ph*4*16384
            v_add_u32 v{vT1}, {L_OB}, v{vT1}
            s_lshl_b32 s{sTMP}, s{sA}, 5
            v_lshl_add_u32 v{vKs+1}, v{vKs}, 4, s{sTMP}
            v_xor_b32 v{vKs+2}, 16, v{vKs+1}
            s_lshl_b32 s{sTMP}, s{sP}, 3
            s_add_u32 s{sTMP}, s{sTMP}, s{sA}
            s_lshl_b32 s{sTMP}, s{sTMP}, 5
            s_add_u32 s{sTMP}, s{sTMP}, s{sS}            ; (p*8+head)*32 + s
            s_lshl_b32 s{sTMP2}, s{sTMP}, 9
            s_add_u32 s{sTMP2}, s{sTMP2}, {WS_OP}
            v_and_b32 v{vKs+3}, 31, v{vLane}
            v_lshl_add_u32 v{vV}, v{vKs+3}, 4, s{sTMP2}
            v_mov_b32 v{vKs}, 0
            v_mov_b32 v{vKs+3}, 1
            s_setprio 3
            """)
    a("s_nop 7")
    XB = TB
    for jj in range(4):
        for r in range(4):
            a(f"v_cndmask_b32 v{XB+4*jj+r}, v{ACCD+4*jj+r}, v{ACCD+4*(jj+4)+r}, {sp(sM8)}")
        a(f"ds_write_b128 v{vT0}, {vr(XB+4*jj,4)} offset:{jj*1088}")
    a("s_waitcnt lgkmcnt(0)\n s_barrier     ; B3")
    a.stamp(6)
    R = KS
    for w in range(4):
        a(f"ds_read_b128 {vr(R+4*w,4)}, v{vT1} offset:{w*OB_STRIDE}")
    MO, MT = R+16, R+20
    a(f"ds_read_b128 {vr(MO,4)}, v{vKs+1} offset:{L_MX}")
    a(f"ds_read_b128 {vr(MT,4)}, v{vKs+2} offset:{L_MX}")
    a(f"""
    s_waitcnt lgkmcnt(0)
    v_max3_f32 v{MX}, v{MO}, v{MO+1}, v{MO+2}
    v_max3_f32 v{MT}, v{MT}, v{MT+1}, v{MT+2}
    v_max3_f32 v{MX}, v{MX}, v{MO+3}, v{MT+3}
    v_max_f32 v{MX}, v{MX}, v{MT}
    v_perm_b32 v{MX}, v{MX}, v{vN}, s{sSEL[0]}
    """)
    for w in range(4):
        a(f"v_sub_f32 v{MO+w}, v{MO+w}, v{MX}")
    for w in range(4):
        a(f"v_exp_f32 v{MO+w}, v{MO+w}")
    a("s_nop 0")
    for t in range(4):
        a(f"v_mul_f32 v{R+t}, v{R+t}, v{MO}")
    for w in range(1, 4):
        for t in range(4):
            a(f"v_fmac_f32 v{R+t}, v{R+4*w+t}, v{MO+w}")
    a.allreduce_g([R, R+1, R+2, R+3], [R+4, R+5, R+6, R+7], steps=("v_permlane32_swap_b32",))
    a.tag(R+8, R, vN)
    a(f"""
    s_mov_b32 exec_hi, 0
    global_store_dwordx4 v{vV}, {vr(R+8,4)}, {sp(sWS)} sc1
    """)
    a.stamp(7)
    a("s_barrier     ; B4")
    a.dump_stamps(8, 10)
    a("s_endpgm")

if __name__ == "__main__":
    out = sys.argv[1]
    stamps = len(sys.argv) > 2 and sys.argv[2] == "1"
    opts = {}
    for kv in sys.argv[3:]:
        k, v = kv.split("="); opts[k] = int(v)
    open(out, "w").write(build(stamps, **opts))
```

```python
import sys
from gen_common import *

WS_EPOCH = 0
WS_QP   = 0x010000
WS_ML   = 0x080000
WS_HP   = 0x090000
WS_OP   = 0x100000
WS_AP   = 0x200000
WS_FPP  = 0x240000
WS_FPC  = 0x280000
WS_FPS  = 0x2A0000
WS_O2   = 0x2C0000
WS_STAMP = 0x800000
L_Q   = 0
L_MX  = 2304
L_LS  = L_MX + 256
L_REDQ = L_LS + 256
L_CNT = 6912
L_K   = 8192
L_OB  = L_K
OB_STRIDE = 16384
LDS_BYTES = L_K + 131072
L_XA_A = 12544
L_FAC  = 16896
L_XA_C = 17920
L_RA0, L_RA1 = 28928, 33024
L_RD0, L_RD1 = 45312, 49408
L_XA_B = 12544
L_REDS = 16896

SPIN_LIMIT = 4000

sX, sK, sV, sWQ, sWO, sW1, sW2, sOUT, sDBG, sWS = 4, 6, 8, 10, 12, 16, 18, 20, 22, 24
sFULL = 14
sWAVE, sU = 26, 27
sNONCE = 28
sT = [29, 30, 31, 32]
sSEL = [33, 34, 35, 36]
sPLO, sPHI = 37, 38
sC = 39
sMHI = 40
sM8 = 42
sB0 = 44
sB1 = 46
sMB = 48
sM1 = 50
sSPIN = 60
sTMP, sTMP2 = 61, 62
sPEND = 63
sSTAMP = 64

def sp(r): return f"s[{r}:{r+1}]"
def vr(r, n): return f"v[{r}:{r+n-1}]" if n > 1 else f"v{r}"
XOR1, XOR2, ROR4, ROR8 = "quad_perm:[1,0,3,2]", "quad_perm:[2,3,0,1]", "row_ror:4", "row_ror:8"
DM = "row_mask:0xf bank_mask:0xf"

class Gen(Asm):
    def __init__(self, stamps=False, opts=None):
        super().__init__()
        self.stamps = stamps
        self.o = opts or {}
        self.uid = 0
    def lab(self, base):
        self.uid += 1
        return f"L_{base}_{self.uid}"
    def stamp(self, idx):
        if self.stamps:
            self(f"s_memrealtime {sp(sSTAMP + 2 * idx)}")
    def dump_stamps(self, n, tmpv):
        if not self.stamps: return
        if self.o.get("dbgst", 0) == 2:
            if n <= 10: return
            L = self.lab("nodbg")
            self(f"s_cmp_lg_u32 s2, {self.o.get('dbgwg', 0)}\n s_cbranch_scc1 {L}\n s_cmp_lg_u32 s{sWAVE}, 0\n s_cbranch_scc1 {L}")
            self(f"s_waitcnt lgkmcnt(0)\n s_mov_b64 exec, 1\n v_mov_b32 v{tmpv}, 0")
            for k, i in enumerate((1, 2, 3, 4, 5, 6, 7, 8, 9, 10, 11, 12, 13, 15, 16, 18)):
                self(f"s_sub_u32 s{sTMP}, s{sSTAMP+2*i}, s{sSTAMP}\n v_mov_b32 v{tmpv+1}, s{sTMP}\n global_store_dword v{tmpv}, v{tmpv+1}, {sp(sDBG)} offset:{4*k}\n s_nop 1")
            self.label(L)
            return
        self(f"""s_waitcnt lgkmcnt(0)
        s_lshl_b32 s{sTMP}, s2, 4
        s_add_u32 s{sTMP}, s{sTMP}, s{sWAVE}
        s_lshl_b32 s{sTMP}, s{sTMP}, 7
        s_add_u32 s{sTMP}, s{sTMP}, {WS_STAMP}
        s_mov_b64 exec, 1
        v_mov_b32 v{tmpv}, s{sTMP}""")
        for i in range(n):
            self(f"v_mov_b32 v{tmpv+1}, s{sSTAMP+2*i}\n global_store_dword v{tmpv}, v{tmpv+1}, {sp(sWS)} offset:{4*i}\n s_nop 1")
    def full(self): self(f"s_mov_b64 exec, {sp(sFULL)}")
    def mask(self, lo, hi): self(f"s_and_b32 exec_lo, s{sFULL}, {lo}\n s_and_b32 exec_hi, s{sFULL+1}, {hi}")
    def guard(self, fn):
        L = self.lab("grd")
        self(f"s_cbranch_execz {L}")
        fn()
        self.label(L)
    def gbarrier(self):
        self("s_waitcnt lgkmcnt(0)")
        self.guard(lambda: self("s_barrier"))
    def dpp(self, op, regs, ctrls):
        n = len(regs)
        for ctrl in ctrls:
            if n < 3: self(f"s_nop {2 - n}" if n < 2 else "s_nop 0")
            for r in regs:
                self(f"{op}_dpp v{r}, v{r}, v{r} {ctrl} {DM}")
    def allreduce_g(self, regs, tmps, op="v_add_f32", steps=("v_permlane16_swap_b32", "v_permlane32_swap_b32")):
        n = len(regs)
        for swap in steps:
            for r, t in zip(regs, tmps):
                self(f"v_mov_b32 v{t}, v{r}")
            self("s_nop 1" if n < 2 else "s_nop 0")
            for r, t in zip(regs, tmps):
                self(f"{swap} v{r}, v{t}")
            self("s_nop 1" if n < 2 else "s_nop 0")
            for r, t in zip(regs, tmps):
                self(f"{op} v{r}, v{r}, v{t}")
    def tag(self, dst, src, vN):
        for i in range(4):
            self(f"v_perm_b32 v{dst+i}, v{src+i}, v{vN}, s{sSEL[i]}")
    def check(self, grans, acc):
        for gi, gbase in enumerate(grans):
            for i in range(4):
                if gi == 0:
                    self(f"v_xor_b32 v{acc+i}, s{sT[i]}, v{gbase+i}")
                else:
                    self(f"v_bitop3_b32 v{acc+i}, v{gbase+i}, s{sT[i]}, v{acc+i} bitop3:0xbe")
        self(f"v_or3_b32 v{acc}, v{acc}, v{acc+1}, v{acc+2}")
        self(f"v_or_b32 v{acc}, v{acc}, v{acc+3}")
        self(f"v_and_b32 v{acc}, 0xff, v{acc}")
        self(f"v_cmp_ne_u32 vcc, 0, v{acc}")
    def spin(self, name, issue, grans, acc, waitstr="s_waitcnt vmcnt(0)", sleep=0):
        L = self.lab(name); Lok = self.lab(name + "ok")
        self(f"s_mov_b32 s{sSPIN}, 0")
        self.label(L)
        self.guard(issue)
        self.guard(lambda: self(waitstr))
        self.check(grans, acc)
        self("s_nop 0")
        self(f"s_cbranch_vccz {Lok}")
        self(f"s_add_u32 s{sSPIN}, s{sSPIN}, 1")
        if sleep: self(f"s_sleep {sleep}")
        self(f"s_cmp_lt_u32 s{sSPIN}, {SPIN_LIMIT}")
        self(f"s_cbranch_scc1 {L}")
        self("s_branch L_abort")
        self.label(Lok)
    def pspin(self, name, load, sets, acc, dst=None, ncopy=4, sleep=0, thr=0):
        L = self.lab(name); Lok = self.lab(name + "ok")
        oks = [self.lab(name + f"k{i}") for i in range(3)]
        self(f"s_mov_b32 s{sSPIN}, 0")
        self.guard(lambda: (load(sets[0]), load(sets[1])))
        self.label(L)
        for k in range(3):
            self.guard(lambda k=k: (load(sets[(k + 2) % 3]), self("s_waitcnt vmcnt(2)")))
            self.check([sets[k]], acc)
            if thr:
                self(f"s_nop 0\n s_bcnt1_i32_b64 s{sTMP}, vcc\n s_cmp_le_u32 s{sTMP}, {thr}\n s_cbranch_scc1 {oks[k]}")
            else:
                self("s_nop 0")
                self(f"s_cbranch_vccz {oks[k]}")
            if sleep: self(f"s_sleep {sleep}")
        self(f"s_add_u32 s{sSPIN}, s{sSPIN}, 1")
        self(f"s_cmp_lt_u32 s{sSPIN}, {SPIN_LIMIT}")
        self(f"s_cbranch_scc1 {L}")
        self("s_branch L_abort")
        for k in range(3):
            self.label(oks[k])
            if dst is not None and sets[k] != dst:
                for t in range(ncopy): self(f"v_mov_b32 v{dst+t}, v{sets[k]+t}")
            if k < 2: self(f"s_branch {Lok}")
        self.label(Lok)
    def ldswait(self, name, vaddr, vtmp, off, count, sleep=2):
        L = self.lab(name); Lok = self.lab(name + "ok")
        self(f"""
        s_mov_b32 s{sSPIN}, 0
        s_cbranch_execz {Lok}
        {L}:
        ds_read_b32 v{vtmp}, v{vaddr} offset:{off}
        s_waitcnt lgkmcnt(0)
        v_readfirstlane_b32 s{sTMP}, v{vtmp}
        s_cmp_ge_u32 s{sTMP}, {count}
        s_cbranch_scc1 {Lok}
        s_add_u32 s{sSPIN}, s{sSPIN}, 1""")
        if sleep: self(f"s_sleep {sleep}")
        self(f"""
        s_cmp_lt_u32 s{sSPIN}, 400000
        s_cbranch_scc1 {L}
        s_branch L_abort
        {Lok}:""")
    def perm_unit(self, raw, T):
        for t in range(4):
            for par, sel in ((0, sPLO), (1, sPHI)):
                j = 2 * t + par
                for q in range(4):
                    self(f"v_perm_b32 v{T + 4*j + q}, v{raw + 4*(2*q+1) + t}, v{raw + 4*(2*q) + t}, s{sel}")
    def wload(self, dst, sbase, voff, rowfn, rs, nt=True):
        prev = 0
        for i in range(8):
            d = rowfn(i) - prev
            if d > 0:
                self(f"s_add_u32 s{sbase}, s{sbase}, {d*rs}\n s_addc_u32 s{sbase+1}, s{sbase+1}, 0")
            elif d < 0:
                self(f"s_sub_u32 s{sbase}, s{sbase}, {-d*rs}\n s_subb_u32 s{sbase+1}, s{sbase+1}, 0")
            prev = rowfn(i)
            self(f"global_load_dwordx4 {vr(dst+4*i, 4)}, v{voff}, {sp(sbase)}" + (" nt" if nt else ""))
    def mfma8(self, D, AOP, T):
        for j in range(8):
            self(f"v_mfma_f32_16x16x32_bf16 {vr(D+4*j,4)}, {vr(AOP,4)}, {vr(T+4*j,4)}, 0")
    def select(self, X, D, r):
        for jj in range(4):
            self(f"v_cndmask_b32 v{X+jj}, v{D+4*jj+r}, v{D+4*(4+jj)+r}, {sp(sMHI)}")
    def nonce_from(self, vN):
        self(f"""
        v_readfirstlane_b32 s{sNONCE}, v{vN}
        s_add_u32 s{sNONCE}, s{sNONCE}, 0x01010101
        s_or_b32 s{sNONCE}, s{sNONCE}, 1
        s_mov_b32 s{sT[0]}, s{sNONCE}
        s_lshr_b32 s{sT[1]}, s{sNONCE}, 8
        s_lshr_b32 s{sT[2]}, s{sNONCE}, 16
        s_lshr_b32 s{sT[3]}, s{sNONCE}, 24
        v_mov_b32 v{vN}, s{sNONCE}
        """)

STD_ROW = lambda i: 16 * (i // 4) + (i % 4)
WO_ROW = lambda i: 8 * (i % 4) + (i // 4)

def reduce4(a, R, X, vN):
    for t in (0, 2):
        a(f"v_pk_add_f32 {vr(R+t,2)}, {vr(R+t,2)}, {vr(R+4+t,2)}\n v_pk_add_f32 {vr(R+8+t,2)}, {vr(R+8+t,2)}, {vr(R+12+t,2)}")
    for t in (0, 2):
        a(f"v_pk_add_f32 {vr(R+t,2)}, {vr(R+t,2)}, {vr(R+8+t,2)}")
    a.tag(X, R, vN)

def build(stamps=False, **o):
    a = Gen(stamps, o)
    a(f"""
    s_cmp_ge_u32 s2, 256
    s_cbranch_scc1 L_end""")
    a.stamp(0)
    a(f"""
    s_load_dwordx8 s[4:11], s[0:1], 0
    s_load_dwordx2 s[12:13], s[0:1], 32
    s_load_dwordx4 s[16:19], s[0:1], 48
    s_load_dwordx4 s[20:23], s[0:1], 64
    s_load_dwordx2 s[24:25], s[0:1], 80
    v_lshrrev_b32 v1, 6, v0
    v_and_b32 v0, 63, v0
    s_mov_b32 s{sPLO}, 0x05040100
    v_readfirstlane_b32 s{sWAVE}, v1
    s_mov_b32 s{sPHI}, 0x07060302
    s_mov_b32 s{sSEL[0]}, 0x07060500
    s_mov_b32 s{sSEL[1]}, 0x07060501
    s_mov_b32 s{sSEL[2]}, 0x07060502
    s_mov_b32 s{sSEL[3]}, 0x07060503
    s_mov_b64 {sp(sFULL)}, -1
    v_lshrrev_b32 v2, 4, v0            ; g
    v_and_b32 v3, 15, v0               ; m / c
    s_cmp_ge_u32 s{sWAVE}, 4
    s_cbranch_scc1 L_A
    """)
    gen_G(a)
    gen_A(a)
    a("""
    L_abort:
    L_end:
    s_endpgm
    """)
    return kernel_wrap(a.text(), 256, 768, LDS_BYTES, 168)

def gen_G(a):
    o = a.o
    vLane, vG, vM, vB, vN = 0, 2, 3, 4, 6
    vBG = 1
    vPP = 5
    vA0, vA1, vA2 = 7, 8, 9
    vPubH = 10
    vXW = 11
    vXR = vPP
    XR = 12
    AOP = 16
    ACC = 20
    RAWA, RAWB, T, GA = 24, 56, 88, 120
    u = sU
    sKS, sHQ, sP, sBA, sHKV, sFC2, sH, sCC = 52, 53, 54, 55, 56, 57, 58, 59
    a(f"""
    ; ---------------- G waves ----------------
    s_setprio 3
    s_mov_b32 s{u}, s{sWAVE}
    v_bfe_u32 v{vB}, v{vM}, 2, 1
    v_and_b32 v{vPP}, 3, v{vM}
    v_lshrrev_b32 v{vA0}, 3, v{vM}
    v_lshl_or_b32 v{vPP}, v{vA0}, 2, v{vPP}
    s_and_b32 s{sKS}, s2, 7
    s_lshr_b32 s{sHQ}, s2, 3
    v_mov_b32 v{vA0}, 0
    v_lshl_add_u32 v{vA1}, v{vPP}, 2, v{vG}
    v_lshlrev_b32 v{vA1}, 4, v{vA1}
    v_lshl_add_u32 v{vA1}, v{vB}, 11, v{vA1}
    s_lshl_b32 s{sTMP}, s{sKS}, 8
    s_lshl_b32 s{sTMP2}, s{u}, 6
    s_add_u32 s{sTMP}, s{sTMP}, s{sTMP2}
    v_lshlrev_b32 v{vA2}, 3, v{vG}
    v_lshl_add_u32 v{vA2}, v{vB}, 11, v{vA2}
    v_add_u32 v{vA2}, s{sTMP}, v{vA2}
    s_lshl_b32 s{sTMP}, s{sKS}, 7
    s_lshl_b32 s{sTMP2}, s{u}, 5
    s_add_u32 s{sTMP}, s{sTMP}, s{sTMP2}
    s_lshl_b32 s{sTMP}, s{sTMP}, 13          ; *8192
    s_lshl_b32 s{sTMP2}, s{sHQ}, 8
    s_add_u32 s{sTMP}, s{sTMP}, s{sTMP2}
    v_lshlrev_b32 v{vPubH}, 15, v{vG}          ; 4g*8192
    v_lshl_add_u32 v{vPubH}, v{vM}, 4, v{vPubH}
    s_waitcnt lgkmcnt(0)
    s_add_u32 s{sB0}, s{sWQ}, s{sTMP}
    s_addc_u32 s{sB0+1}, s{sWQ+1}, 0
    global_load_dword v{vN}, v{vA0}, {sp(sWS)} sc1
    """)
    for i in range(4):
        a(f"global_load_dwordx4 {vr(GA+4*i,4)}, v{vA1}, {sp(sX)} offset:{i*512}")
    a(f"global_load_dwordx2 {vr(XR,2)}, v{vA2}, {sp(sX)}")
    a(f"global_load_dwordx2 {vr(XR+2,2)}, v{vA2}, {sp(sX)} offset:32")
    tch = o.get("touch", 0)
    if tch:
        a(f"""
        s_lshr_b32 s{sTMP2}, s{sKS}, 1               ; xi
        v_mov_b32 v{vA0}, 0x3f0000
        global_load_dword v{GA+44}, v{vA0}, {sp(sWS)}
        v_mov_b32 v{vA0}, 0
        """)
        if tch & 2: a(f"global_load_dword v{GA+45}, v{vA0}, {sp(sOUT)}")
        if tch & 4:
            a(f"""
            s_lshl_b32 s{sTMP}, s{sTMP2}, 3
            s_and_b32 s{sB1}, s{sHQ}, 7
            s_add_u32 s{sTMP}, s{sTMP}, s{sB1}
            s_lshl_b32 s{sTMP}, s{sTMP}, 18
            v_mov_b32 v{vA0}, s{sTMP}
            global_load_dword v{GA+46}, v{vA0}, {sp(sWO)}
            s_lshl_b32 s{sTMP}, s{sTMP2}, 1
            s_and_b32 s{sB1}, s{sHQ}, 1
            s_add_u32 s{sTMP}, s{sTMP}, s{sB1}
            s_mul_i32 s{sTMP}, s{sTMP}, {128*7168}
            v_mov_b32 v{vA0}, s{sTMP}
            global_load_dword v{GA+47}, v{vA0}, {sp(sW1)}
            s_mul_i32 s{sTMP}, s{sTMP2}, 7
            s_lshr_b32 s{sB1}, s{sHQ}, 2
            s_add_u32 s{sTMP}, s{sTMP}, s{sB1}
            s_min_u32 s{sTMP}, s{sTMP}, 27
            s_lshl_b32 s{sTMP}, s{sTMP}, 18
            v_mov_b32 v{vA0}, s{sTMP}
            global_load_dword v{GA+43}, v{vA0}, {sp(sW2)}
            """)
    ntouch = (1 + (1 if tch & 2 else 0) + (3 if tch & 4 else 0)) if tch else 0
    a.wload(RAWA, sB0, vPubH, STD_ROW, 8192)
    a(f"""
    s_mov_b32 s{sMHI}, 0
    s_mov_b32 s{sMHI+1}, -1
    s_mov_b32 s{sMB}, 0xf0f0f0f0
    s_mov_b32 s{sMB+1}, 0xf0f0f0f0
    s_mov_b32 s{sM1}, 0x22222222
    s_mov_b32 s{sM1+1}, 0x22222222
    v_mov_b32 v{ACC}, 0
    v_mov_b32 v{ACC+1}, 0
    v_mov_b32 v{ACC+2}, 0
    v_mov_b32 v{ACC+3}, 0
    s_lshl_b32 s{sTMP}, s{u}, 10
    v_lshl_add_u32 v{vA0}, v{vLane}, 4, s{sTMP}
    ds_write_b128 v{vA0}, {vr(ACC,4)} offset:{L_REDQ}
    v_and_b32 v{vA1}, 1, v{vLane}
    v_lshlrev_b32 v{vA1}, 4, v{vA1}
    ds_write_b128 v{vA1}, {vr(ACC,4)} offset:{L_CNT}
    s_waitcnt lgkmcnt(0)
    s_barrier        ; B0
    v_lshrrev_b32 v{vPubH}, 1, v{vG}
    v_lshl_add_u32 v{vPubH}, v{vM}, 1, v{vPubH}
    v_lshlrev_b32 v{vPubH}, 4, v{vPubH}      ; (2c+half)*16
    s_waitcnt vmcnt(8)
    """)
    a.stamp(1)
    a.nonce_from(vN)
    S0, S1, Q0, Q1, LO, HI = RAWB, RAWB+1, RAWB+2, RAWB+3, RAWB+4, RAWB+5
    for k in range(16):
        w = GA + k
        a(f"v_lshlrev_b32 v{LO}, 16, v{w}\n v_and_b32 v{HI}, 0xffff0000, v{w}")
        if k == 0:
            a(f"v_mov_b32 v{S0}, v{LO}\n v_mov_b32 v{S1}, v{HI}\n v_mul_f32 v{Q0}, v{LO}, v{LO}\n v_mul_f32 v{Q1}, v{HI}, v{HI}")
        else:
            a(f"v_add_f32 v{S0}, v{S0}, v{LO}\n v_add_f32 v{S1}, v{S1}, v{HI}\n v_fmac_f32 v{Q0}, v{LO}, v{LO}\n v_fmac_f32 v{Q1}, v{HI}, v{HI}")
    a(f"v_add_f32 v{S0}, v{S0}, v{S1}\n v_add_f32 v{S1}, v{Q0}, v{Q1}")
    a.dpp("v_add_f32", [S0, S1], (XOR1, XOR2, ROR8))
    a.allreduce_g([S0, S1], [Q0, Q1])
    MEAN, RSTD = S0, S1
    a(f"""
    v_mul_f32 v{MEAN}, 0x3a800000, v{S0}        ; /1024
    v_mul_f32 v{Q0}, 0x3a800000, v{S1}
    v_fma_f32 v{Q0}, -v{MEAN}, v{MEAN}, v{Q0}
    v_max_f32 v{Q0}, 0, v{Q0}
    v_add_f32 v{Q0}, 0x3727c5ac, v{Q0}           ; + 1e-5
    v_rsq_f32 v{RSTD}, v{Q0}
    """)
    XF = RAWB + 8
    for q in range(4):
        a(f"v_lshlrev_b32 v{XF+2*q}, 16, v{XR+q}\n v_and_b32 v{XF+2*q+1}, 0xffff0000, v{XR+q}")
    for e in range(8):
        a(f"v_sub_f32 v{XF+e}, v{XF+e}, v{MEAN}")
    for e in range(8):
        a(f"v_mul_f32 v{XF+e}, v{XF+e}, v{RSTD}")
    for q in range(4):
        a(f"v_cvt_pk_bf16_f32 v{AOP+q}, v{XF+2*q}, v{XF+2*q+1}")
    a("s_waitcnt vmcnt(0)")
    a.stamp(2)
    a.perm_unit(RAWA, T)
    a("s_nop 1")
    a.mfma8(RAWB, AOP, T)
    a("s_nop 7")
    X = ACC
    a.select(X, RAWB, 0)
    a.tag(X, X, vN)
    a(f"""
    ds_write_b128 v{vA0}, {vr(X,4)} offset:{L_REDQ}
    s_cmp_lg_u32 s{u}, 0
    s_cbranch_scc1 L_q_nored
    v_lshlrev_b32 v{vA0}, 4, v{vLane}
    """)
    def iss():
        for w in range(4):
            a(f"ds_read_b128 {vr(GA+4*w,4)}, v{vA0} offset:{L_REDQ + w*1024}")
    a.spin("redq", iss, [GA, GA+4, GA+8, GA+12], ACC, waitstr="s_waitcnt lgkmcnt(0)")
    reduce4(a, GA, X, vN)
    a(f"""
    s_lshl_b32 s{sTMP}, s{sHQ}, 13
    s_lshl_b32 s{sTMP2}, s{sKS}, 9
    s_add_u32 s{sTMP}, s{sTMP}, s{sTMP2}
    s_add_u32 s{sTMP}, s{sTMP}, {WS_QP}
    v_and_b32 v{vA0}, 1, v{vG}
    v_lshl_add_u32 v{vA0}, v{vA0}, 12, v{vPubH}
    v_add_u32 v{vA0}, s{sTMP}, v{vA0}
    global_store_dwordx4 v{vA0}, {vr(X,4)}, {sp(sWS)} sc1
    L_q_nored:
    """)
    a.stamp(3)
    sXI, sSLOT, sCCP, sKSB, sFCP = 54, 55, 56, 57, 59
    sHA, sFC = 58, 53
    a(f"""
    s_and_b32 s{sTMP}, s2, 7
    s_lshr_b32 s{sB1}, s{sTMP}, 2
    s_and_b32 s{sB1+1}, s{sTMP}, 3
    s_lshr_b32 s{sXI}, s{sTMP}, 1
    s_lshr_b32 s{sSLOT}, s2, 3
    s_lshl_b32 s{sHA}, s{sXI}, 3
    s_and_b32 s{sTMP}, s{sSLOT}, 7
    s_add_u32 s{sHA}, s{sHA}, s{sTMP}
    s_and_b32 s{sTMP}, s{sSLOT}, 1
    s_lshl_b32 s{sKSB}, s{sXI}, 1
    s_add_u32 s{sKSB}, s{sKSB}, s{sTMP}
    s_lshr_b32 s{sFCP}, s{sSLOT}, 1
    s_lshr_b32 s{sTMP}, s{sSLOT}, 2
    s_mul_i32 s{sFC}, s{sXI}, 7
    s_add_u32 s{sFC}, s{sFC}, s{sTMP}
    s_lshl_b32 s{sTMP}, s{sKSB}, 8
    s_lshl_b32 s{sTMP2}, s{u}, 6
    s_add_u32 s{sTMP}, s{sTMP}, s{sTMP2}
    v_lshlrev_b32 v{vA2}, 3, v{vG}
    v_lshl_add_u32 v{vA2}, v{vB}, 11, v{vA2}
    v_add_u32 v{vA2}, s{sTMP}, v{vA2}
    global_load_dwordx2 {vr(XR,2)}, v{vA2}, {sp(sX)}
    global_load_dwordx2 {vr(XR+2,2)}, v{vA2}, {sp(sX)} offset:32
    v_and_b32 v{vBG}, 31, v{vLane}
    v_lshlrev_b32 v{vBG}, 4, v{vBG}             ; gi*16
    v_lshrrev_b32 v{vA0}, 5, v{vLane}
    v_mul_u32_u24 v{vA0}, 544, v{vA0}
    v_add_u32 v{vXW}, v{vA0}, v{vBG}
    v_and_b32 v{vA0}, 3, v{vM}
    v_mul_u32_u24 v{vA0}, 1088, v{vA0}
    v_mul_u32_u24 v{vA1}, 544, v{vB}
    v_add_u32 v{vA0}, v{vA0}, v{vA1}
    v_lshl_add_u32 v{vXR}, v{vG}, 4, v{vA0}
    s_mul_i32 s{sTMP}, s{u}, 1088
    v_add_u32 v{vXW}, s{sTMP}, v{vXW}
    s_lshl_b32 s{sTMP}, s{u}, 7
    v_add_u32 v{vXR}, s{sTMP}, v{vXR}
    """)
    if o.get("dry", 1):
        a(f"""
        s_mov_b64 {sp(sFULL)}, 0
        s_mov_b64 exec, 0
        s_branch L_tail
        L_dry_done:
        s_mov_b64 {sp(sFULL)}, -1
        s_mov_b64 exec, -1
        s_setprio 3
        """)
    a.stamp(4)
    QG = RAWB
    a(f"""
    s_and_b32 s{sTMP}, s2, 3                   ; hkv
    s_lshl_b32 s{sTMP}, s{sTMP}, 3
    s_lshl_b32 s{sTMP2}, s{u}, 1
    s_add_u32 s{sTMP}, s{sTMP}, s{sTMP2}
    s_lshl_b32 s{sTMP}, s{sTMP}, 1
    s_bfe_u32 s{sTMP2}, s2, 0x10002            ; b = (wg>>2)&1
    s_add_u32 s{sTMP}, s{sTMP}, s{sTMP2}
    s_lshl_b32 s{sTMP}, s{sTMP}, 12
    s_add_u32 s{sTMP}, s{sTMP}, {WS_QP}
    s_add_u32 s{sWQ}, s{sWS}, s{sTMP}
    s_addc_u32 s{sWQ+1}, s{sWS+1}, 0
    s_add_u32 s{sB1}, s{sWQ}, 8192
    s_addc_u32 s{sB1+1}, s{sWQ+1}, 0
    v_lshlrev_b32 v{vA2}, 4, v{vLane}
    """)
    def issq():
        for hh, sb in ((0, sWQ), (1, sB1)):
            for i in range(4):
                a(f"global_load_dwordx4 {vr(QG+16*hh+4*i,4)}, v{vA2}, {sp(sb)} offset:{i*1024} sc1")
    a.spin("qg", issq, [QG+4*i for i in range(8)], ACC, sleep=o.get("qsleep", 4))
    for hh in range(2):
        base = QG + 16*hh
        for t in range(4):
            a(f"v_add_f32 v{base+t}, v{base+t}, v{base+4+t}\n v_add_f32 v{base+8+t}, v{base+8+t}, v{base+12+t}")
        for t in range(4):
            a(f"v_add_f32 v{base+t}, v{base+t}, v{base+8+t}")
    a("s_nop 1")
    for t in range(4):
        a(f"v_permlane32_swap_b32 v{QG+t}, v{QG+16+t}")
    a("s_nop 1")
    for t in range(4):
        a(f"v_add_f32 v{QG+t}, v{QG+t}, v{QG+16+t}")
    a(f"""
    v_cvt_pk_bf16_f32 v{QG+4}, v{QG}, v{QG+1}
    v_cvt_pk_bf16_f32 v{QG+5}, v{QG+2}, v{QG+3}
    v_lshrrev_b32 v{vA0}, 5, v{vLane}            ; kq
    s_lshl_b32 s{sTMP}, s{u}, 1
    v_add_u32 v{vA0}, s{sTMP}, v{vA0}            ; head
    v_mul_u32_u24 v{vA0}, 272, v{vA0}
    v_and_b32 v{vA1}, 31, v{vLane}
    v_lshl_add_u32 v{vA0}, v{vA1}, 3, v{vA0}
    ds_write_b64 v{vA0}, {vr(QG+4,2)} offset:{L_Q}
    v_mov_b32 v{vA1}, 0
    v_mov_b32 v{vA2}, 1
    s_waitcnt lgkmcnt(0)
    s_mov_b64 exec, 1
    ds_add_u32 v{vA1}, v{vA2} offset:{L_CNT}
    s_mov_b64 exec, -1
    """)
    a.stamp(5)
    a(f"s_setprio {o.get('gprio', 1)}")

    def wunit(dst, sptr, voffn, rowfn, rs):
        prev = 0
        for i in range(8):
            d = rowfn(i) - prev
            if d > 0: a(f"s_add_u32 s{sptr}, s{sptr}, {d*rs}\n s_addc_u32 s{sptr+1}, s{sptr+1}, 0")
            elif d < 0: a(f"s_sub_u32 s{sptr}, s{sptr}, {-d*rs}\n s_subb_u32 s{sptr+1}, s{sptr+1}, 0")
            prev = rowfn(i)
            a(f"global_load_dwordx4 {vr(dst+4*i, 4)}, v{voffn}, {sp(sptr)} nt")
    def wpair(dst0, dst1, sptr_src, rowbase_code, rs, gshift_code, rowfn):
        a(rowbase_code)
        a(f"""
        s_add_u32 s{sB0}, s{sptr_src}, s{sTMP}
        s_addc_u32 s{sB0+1}, s{sptr_src+1}, 0
        s_add_u32 s{sR1}, s{sB0}, 256
        s_addc_u32 s{sR1+1}, s{sB0+1}, 0""")
        a(gshift_code)
        a.guard(lambda: (wunit(dst0, sB0, vA1, rowfn, rs), wunit(dst1, sR1, vA1, rowfn, rs)))
    sR1 = 6
    def sweep(name, issue, grans, shadow, sleep):
        L = a.lab(name); Lc = a.lab(name + "c"); Lok = a.lab(name + "ok")
        a(f"s_mov_b32 s{sSPIN}, 0")
        a.guard(issue)
        shadow()
        a(f"s_branch {Lc}")
        a.label(L)
        a.guard(issue)
        a.label(Lc)
        a.guard(lambda: a("s_waitcnt vmcnt(0)"))
        a.check(grans, ACC)
        a("s_nop 0")
        a(f"s_cbranch_vccz {Lok}")
        a(f"s_add_u32 s{sSPIN}, s{sSPIN}, 1")
        if sleep: a(f"s_sleep {sleep}")
        a(f"s_cmp_lt_u32 s{sSPIN}, {SPIN_LIMIT}")
        a(f"s_cbranch_scc1 {L}")
        a("s_branch L_abort")
        a.label(Lok)
    HS = [AOP, GA+40, GA+44]
    D = GA
    vals = [GA + 32 + e for e in range(8)]
    psl = o.get("psleep", 1)
    def exchange(lbuf):
        a(f"ds_write_b128 v{vXW}, {vr(GA,4)} offset:{lbuf}")
        a.gbarrier()
        a(f"""
        ds_read_b128 {vr(vals[0],4)}, v{vXR} offset:{lbuf}
        ds_read_b128 {vr(vals[4],4)}, v{vXR} offset:{lbuf + 64}
        s_waitcnt lgkmcnt(0)""")
        a.dpp("v_add_f32", vals, (XOR1, XOR2))
    def red_pub2(name, D1, lb0, lb1, addr):
        L = a.lab("nored" + name)
        R = GA + 32
        a.select(ACC, D, 0)
        a(f"ds_write_b128 v{vA0}, {vr(ACC,4)} offset:{lb0}")
        a.select(AOP, D1, 0)
        a(f"ds_write_b128 v{vA0}, {vr(AOP,4)} offset:{lb1}")
        a.gbarrier()
        a(f"""
        s_cmp_ge_u32 s{sU}, 2
        s_cbranch_scc1 {L}
        s_mul_i32 s{sTMP}, s{sU}, {lb1 - lb0}
        v_lshl_add_u32 v{vA0}, v{vLane}, 4, s{sTMP}""")
        for w in range(4):
            a(f"ds_read_b128 {vr(R+4*w,4)}, v{vA0} offset:{lb0 + w*1024}")
        addr()
        a("s_waitcnt lgkmcnt(0)")
        reduce4(a, R, ACC, vN)
        a.guard(lambda: a(f"global_store_dwordx4 v{vA0}, {vr(ACC,4)}, {sp(sWS)} sc1"))
        a.label(L)
    def o_hint_setup(hreg):
        a(f"""
        s_lshl_b32 s{sTMP2}, s{hreg}, 14                ; h*32*512
        s_lshl_b32 s{sTMP}, s{u}, 12                  ; 8u*512
        s_add_u32 s{sTMP2}, s{sTMP2}, s{sTMP}
        s_add_u32 s{sTMP2}, s{sTMP2}, {WS_OP}
        s_add_u32 s{sWQ}, s{sWS}, s{sTMP2}
        s_addc_u32 s{sWQ+1}, s{sWS+1}, 0
        v_lshrrev_b32 v{vA1}, 5, v{vLane}
        v_lshl_add_u32 v{vA2}, v{vA1}, 19, v{vBG}      ; b<<19 + gi*16
        v_bfe_u32 v{vA1}, v{vLane}, 3, 1
        v_and_b32 v{vA0}, 7, v{vLane}
        v_lshlrev_b32 v{vA0}, 9, v{vA0}
        v_lshl_add_u32 v{vA0}, v{vA1}, 19, v{vA0}
        """)
    a("L_tail:")
    a(f"""
    s_bitcmp1_b32 s2, 0
    s_cbranch_scc{0 if o.get("xpar", 1) else 1} L_Y
    """)
    def load_wo(which=(0, 1)):
        code = f"""
            s_lshl_b32 s{sTMP}, s{sHA}, 7
            s_lshl_b32 s{sTMP2}, s{u}, 5
            s_add_u32 s{sTMP}, s{sTMP}, s{sTMP2}
            s_lshl_b32 s{sTMP}, s{sTMP}, 11
            s_lshr_b32 s{sTMP2}, s{sSLOT}, 3
            s_lshl_b32 s{sTMP2}, s{sTMP2}, 9
            s_add_u32 s{sTMP}, s{sTMP}, s{sTMP2}"""
        a(code)
        a(f"""
        s_add_u32 s{sB0}, s{sWO}, s{sTMP}
        s_addc_u32 s{sB0+1}, s{sWO+1}, 0
        s_add_u32 s{sR1}, s{sB0}, 256
        s_addc_u32 s{sR1+1}, s{sB0+1}, 0
        v_lshlrev_b32 v{vA1}, 12, v{vG}             ; 2g*2048
        v_lshl_add_u32 v{vA1}, v{vM}, 4, v{vA1}""")
        def body():
            if 0 in which: wunit(RAWA, sB0, vA1, WO_ROW, 2048)
            if 1 in which: wunit(RAWB, sR1, vA1, WO_ROW, 2048)
        a.guard(body)
    wop = o.get("wop", 0)
    if wop in (0, 2):
        a(f"v_mov_b32 v{vA1}, 0")
        a.ldswait("vw", vA1, vA2, L_CNT+4, 8)
        a(f"s_setprio {o.get('woprio', 0)}")
        load_wo((0, 1) if wop == 0 else (0,))
    a(f"s_setprio {o.get('gprio', 1)}")
    a.stamp(6)
    a.guard(lambda: a("s_barrier      ; B3\n s_barrier      ; B4"))
    if wop == 1: load_wo()
    if wop == 2: load_wo((1,))
    a.stamp(7)
    a(f"""
    s_lshl_b32 s{sTMP}, s{sHA}, 9
    s_add_u32 s{sTMP}, s{sTMP}, {WS_ML}
    v_lshrrev_b32 v{vA1}, 5, v{vLane}             ; b
    v_lshl_add_u32 v{GA+47}, v{vA1}, 14, v{vBG}
    v_add_u32 v{GA+47}, s{sTMP}, v{GA+47}
    """)
    o_hint_setup(sHA)
    HSA = [AOP, GA+36, GA+40]
    a.mask("0xffff", "0")
    a.pspin("hO", lambda r: a(f"global_load_dwordx4 {vr(r,4)}, v{vA0}, {sp(sWQ)} sc1"), HSA, ACC, sleep=psl)
    a.full()
    a.stamp(8)
    MLR = GA + 32
    def issA():
        a(f"v_mov_b32 v{vA1}, v{GA+47}")
        a(f"global_load_dwordx4 {vr(MLR,4)}, v{vA1}, {sp(sWS)} sc1")
        for i in range(8):
            a(f"global_load_dwordx4 {vr(GA+4*i,4)}, v{vA2}, {sp(sWQ)} offset:{i*512} sc1")
    MM, LLr, TT = GA+44, GA+45, GA+46
    def factors():
        a(f"v_mov_b32 v{MM}, v{MLR}")
        a.dpp("v_max_f32", [MM], (XOR1, XOR2, ROR4, ROR8))
        a.allreduce_g([MM], [TT], "v_max_f32", steps=("v_permlane16_swap_b32",))
        a(f"""
        v_sub_f32 v{MM}, v{MLR}, v{MM}
        v_exp_f32 v{MM}, v{MM}
        s_nop 0
        v_mul_f32 v{LLr}, v{MM}, v{MLR+1}""")
        a.dpp("v_add_f32", [LLr], (XOR1, XOR2, ROR4, ROR8))
        a.allreduce_g([LLr], [TT], "v_add_f32", steps=("v_permlane16_swap_b32",))
        a(f"""
        v_rcp_f32 v{LLr}, v{LLr}
        s_nop 0
        v_mul_f32 v{MM}, v{MM}, v{LLr}
        s_lshl_b32 s{sTMP}, s{u}, 8
        v_lshl_add_u32 v{vA0}, v{vLane}, 2, s{sTMP}
        ds_write_b32 v{vA0}, v{MM} offset:{L_FAC}
        v_lshrrev_b32 v{vA1}, 5, v{vLane}
        s_lshl_b32 s{sTMP2}, s{u}, 5
        s_add_u32 s{sTMP}, s{sTMP}, s{sTMP2}
        v_lshl_add_u32 v{vA0}, v{vA1}, 7, s{sTMP}      ; u*256 + b*128 + 8u*4
        ds_read_b128 {vr(AOP,4)}, v{vA0} offset:{L_FAC}
        ds_read_b128 {vr(GA+40,4)}, v{vA0} offset:{L_FAC+16}
        """)
    L = a.lab("swA"); Lok = a.lab("swAok")
    a(f"s_mov_b32 s{sSPIN}, 0")
    a.guard(issA)
    a.perm_unit(RAWA, T)
    a.perm_unit(RAWB, RAWA)
    a.label(L)
    a.guard(lambda: a("s_waitcnt vmcnt(8)"))
    for t in range(4):
        a(f"v_xor_b32 v{ACC+t}, s{sT[t]}, v{MLR+t}")
    a(f"v_or3_b32 v{GA+39}, v{ACC}, v{ACC+1}, v{ACC+2}")
    a(f"v_or_b32 v{GA+39}, v{GA+39}, v{ACC+3}")
    factors()
    a.guard(lambda: a("s_waitcnt vmcnt(0)"))
    for gi in range(8):
        for i in range(4):
            if gi == 0:
                a(f"v_xor_b32 v{ACC+i}, s{sT[i]}, v{GA+i}")
            else:
                a(f"v_bitop3_b32 v{ACC+i}, v{GA+4*gi+i}, s{sT[i]}, v{ACC+i} bitop3:0xbe")
    a(f"v_or3_b32 v{ACC}, v{ACC}, v{ACC+1}, v{ACC+2}\n v_or3_b32 v{ACC}, v{ACC}, v{ACC+3}, v{GA+39}\n v_and_b32 v{ACC}, 0xff, v{ACC}\n v_cmp_ne_u32 vcc, 0, v{ACC}")
    a(f"s_nop 0\n s_cbranch_vccz {Lok}")
    a(f"s_add_u32 s{sSPIN}, s{sSPIN}, 1\n s_sleep 1\n s_waitcnt lgkmcnt(0)")
    a.guard(issA)
    a(f"s_cmp_lt_u32 s{sSPIN}, {SPIN_LIMIT}\n s_cbranch_scc1 {L}\n s_branch L_abort")
    a.label(Lok)
    a.stamp(9)
    FACR = [AOP, AOP+1, AOP+2, AOP+3, GA+40, GA+41, GA+42, GA+43]
    a("s_waitcnt lgkmcnt(0)")
    for t in range(4):
        a(f"v_mul_f32 v{GA+t}, v{GA+t}, v{FACR[0]}")
    for i in range(1, 8):
        for t in range(4):
            a(f"v_fmac_f32 v{GA+t}, v{GA+4*i+t}, v{FACR[i]}")
    exchange(L_XA_A)
    for q in range(4):
        a(f"v_cvt_pk_bf16_f32 v{AOP+q}, v{vals[2*q]}, v{vals[2*q+1]}")
    a("s_nop 1")
    a.mfma8(D, AOP, T)
    a.mfma8(RAWB, AOP, RAWA)
    a(f"s_lshl_b32 s{sTMP}, s{sU}, 10\n v_lshl_add_u32 v{vA0}, v{vLane}, 4, s{sTMP}")
    red_pub2("a", RAWB, L_RA0, L_RA1, lambda: a(f"""
        s_lshr_b32 s{sTMP}, s{sSLOT}, 3
        s_lshl_b32 s{sTMP}, s{sTMP}, 1
        s_add_u32 s{sTMP}, s{sTMP}, s{sU}          ; cc
        s_lshl_b32 s{sTMP}, s{sTMP}, 6
        s_add_u32 s{sTMP}, s{sTMP}, s{sHA}
        s_lshl_b32 s{sTMP}, s{sTMP}, 9
        s_add_u32 s{sTMP}, s{sTMP}, {WS_AP}
        v_and_b32 v{vA0}, 1, v{vG}
        v_lshl_add_u32 v{vA0}, v{vA0}, 14, v{vPubH}
        v_add_u32 v{vA0}, s{sTMP}, v{vA0}"""))
    a.stamp(10)
    a.gbarrier()
    a(f"""
    s_cmp_ge_u32 s{sSLOT}, 28
    s_cbranch_scc1 L_skipC1
    """)
    wpair(T, RAWB, sW2, f"""
        s_lshl_b32 s{sTMP}, s{sFC}, 7
        s_lshl_b32 s{sTMP2}, s{u}, 5
        s_add_u32 s{sTMP}, s{sTMP}, s{sTMP2}
        s_lshl_b32 s{sTMP}, s{sTMP}, 11
        s_and_b32 s{sTMP2}, s{sSLOT}, 3
        s_lshl_b32 s{sTMP2}, s{sTMP2}, 9
        s_add_u32 s{sTMP}, s{sTMP}, s{sTMP2}""", 2048, f"""
        v_lshlrev_b32 v{vA1}, 13, v{vG}           ; 4g*2048
        v_lshl_add_u32 v{vA1}, v{vM}, 4, v{vA1}""", STD_ROW)
    a(f"""
    s_lshl_b32 s{sTMP}, s{sFC}, 7
    s_add_u32 s{sTMP}, s{sTMP}, {WS_FPS}
    v_and_b32 v{vA0}, 7, v{vLane}
    v_lshl_add_u32 v{vA0}, v{vA0}, 4, s{sTMP}
    s_lshl_b32 s{sTMP}, s{sFC}, 13           ; fc*2*8*512
    s_lshl_b32 s{sTMP2}, s{u}, 10             ; 2u*512
    s_add_u32 s{sTMP}, s{sTMP}, s{sTMP2}
    s_add_u32 s{sTMP}, s{sTMP}, {WS_FPP}
    s_add_u32 s{sWQ}, s{sWS}, s{sTMP}
    s_addc_u32 s{sWQ+1}, s{sWS+1}, 0
    s_lshl_b32 s{sTMP}, s{sFC}, 12           ; fc*8*512
    s_add_u32 s{sTMP}, s{sTMP}, s{sTMP2}
    s_add_u32 s{sTMP}, s{sTMP}, {WS_FPC}
    s_add_u32 s{sB1}, s{sWS}, s{sTMP}
    s_addc_u32 s{sB1+1}, s{sWS+1}, 0
    v_lshrrev_b32 v{vA1}, 5, v{vLane}
    v_lshl_add_u32 v{vA2}, v{vA1}, 12, v{vBG}   ; b*8*512 + gi*16
    """)
    a.guard(lambda: a("s_waitcnt vmcnt(0)"))
    a.perm_unit(T, RAWA)
    a.perm_unit(RAWB, T)
    a.stamp(13)
    ST = GA + 36
    a.pspin("hC", lambda r: a(f"global_load_dwordx4 {vr(r,4)}, v{vA0}, {sp(sWS)} sc1"), HS, ACC, dst=ST, sleep=psl)
    a.stamp(14)
    MEANB, RS0, RS1 = GA+32, GA+33, GA+34
    def issC():
        for k in range(2):
            a(f"global_load_dwordx4 {vr(GA+4*k,4)}, v{vA2}, {sp(sWQ)} offset:{k*512} sc1")
        for k in range(2):
            a(f"global_load_dwordx4 {vr(GA+8+4*k,4)}, v{vBG}, {sp(sB1)} offset:{k*512} sc1")
    def shadowC():
        a.dpp("v_add_f32", [ST, ST+1, ST+2, ST+3], (XOR1, XOR2, ROR4))
        a(f"""
        v_mul_f32 v{ST}, 0x3a800000, v{ST}
        v_mul_f32 v{ST+2}, 0x3a800000, v{ST+2}
        v_mul_f32 v{ST+1}, 0x3a800000, v{ST+1}
        v_mul_f32 v{ST+3}, 0x3a800000, v{ST+3}
        v_cndmask_b32 v{MEANB}, v{ST}, v{ST+2}, {sp(sMHI)}
        v_fma_f32 v{ST+1}, -v{ST}, v{ST}, v{ST+1}
        v_fma_f32 v{ST+3}, -v{ST+2}, v{ST+2}, v{ST+3}
        v_max_f32 v{ST+1}, 0, v{ST+1}
        v_max_f32 v{ST+3}, 0, v{ST+3}
        v_add_f32 v{ST+1}, 0x3727c5ac, v{ST+1}
        v_add_f32 v{ST+3}, 0x3727c5ac, v{ST+3}
        v_rsq_f32 v{RS0}, v{ST+1}
        v_rsq_f32 v{RS1}, v{ST+3}
        s_nop 0
        v_cndmask_b32 v{GA+35}, v{RS0}, v{RS1}, {sp(sMB)}
        """)
    sweep("gC", issC, [GA+4*i for i in range(4)], shadowC, o.get("csleep", 1))
    a.stamp(15)
    RSB = GA + 40
    for t in range(4):
        a(f"v_add_f32 v{GA+t}, v{GA+t}, v{GA+4+t}\n v_add_f32 v{GA+8+t}, v{GA+8+t}, v{GA+12+t}")
    for t in range(4):
        a(f"v_fma_f32 v{GA+t}, -v{MEANB}, v{GA+8+t}, v{GA+t}")
    a(f"v_mov_b32 v{RSB}, v{GA+35}")
    exchange(L_XA_C)
    for e in range(8):
        a(f"v_mul_f32 v{vals[e]}, v{vals[e]}, v{RSB}")
    E = GA + 8
    for e in range(8):
        a(f"v_mul_f32 v{E+e}, 0xbfb8aa3b, v{vals[e]}      ; -log2e * x")
    for e in range(8):
        a(f"v_exp_f32 v{E+e}, v{E+e}")
    for e in range(8):
        a(f"v_add_f32 v{E+e}, 1.0, v{E+e}")
    for e in range(8):
        a(f"v_rcp_f32 v{E+e}, v{E+e}")
    for e in range(8):
        a(f"v_mul_f32 v{vals[e]}, v{vals[e]}, v{E+e}")
    for q in range(4):
        a(f"v_cvt_pk_bf16_f32 v{AOP+q}, v{vals[2*q]}, v{vals[2*q+1]}")
    a("s_nop 1")
    a.mfma8(D, AOP, RAWA)
    a.mfma8(RAWB, AOP, T)
    a(f"s_lshl_b32 s{sTMP}, s{sU}, 10\n v_lshl_add_u32 v{vA0}, v{vLane}, 4, s{sTMP}")
    red_pub2("c", RAWB, L_RD0, L_RD1, lambda: a(f"""
        s_and_b32 s{sTMP}, s{sSLOT}, 3
        s_lshl_b32 s{sTMP}, s{sTMP}, 1
        s_add_u32 s{sTMP}, s{sTMP}, s{sU}          ; cc
        s_mul_i32 s{sTMP}, s{sTMP}, 56
        s_add_u32 s{sTMP}, s{sTMP}, s{sFC}
        s_lshl_b32 s{sTMP}, s{sTMP}, 9
        s_add_u32 s{sTMP}, s{sTMP}, {WS_O2}
        v_and_b32 v{vA0}, 1, v{vG}
        v_mul_u32_u24 v{vA0}, {28*512}, v{vA0}
        v_add3_u32 v{vA0}, v{vA0}, v{vPubH}, s{sTMP}"""))
    a("L_skipC1:")
    a.stamp(16)
    a("s_branch L_D")
    a("L_Y:")
    a.stamp(6)
    a.guard(lambda: a("s_barrier      ; B3\n s_barrier      ; B4"))
    a.stamp(7)
    a(f"""
    s_cmp_ge_u32 s{sFCP}, 14
    s_cbranch_scc1 L_D
    """)
    if o.get("ytrig", 1):
        o_hint_setup(sHA)
        a.mask("0xffff", "0")
        a.pspin("hY", lambda r: a(f"global_load_dwordx4 {vr(r,4)}, v{vA0}, {sp(sWQ)} sc1"), HS, ACC, sleep=o.get("ysleep", 3), thr=o.get("ythr", 0))
        a.full()
    a.stamp(8)
    wpair(RAWA, RAWB, sW1, f"""
        s_lshl_b32 s{sTMP}, s{sKSB}, 7
        s_lshl_b32 s{sTMP2}, s{u}, 5
        s_add_u32 s{sTMP}, s{sTMP}, s{sTMP2}
        s_mul_i32 s{sTMP}, s{sTMP}, 7168
        s_lshl_b32 s{sTMP2}, s{sFCP}, 9
        s_add_u32 s{sTMP}, s{sTMP}, s{sTMP2}""", 7168, f"""
        v_mul_u32_u24 v{vA1}, {4*7168}, v{vG}
        v_lshl_add_u32 v{vA1}, v{vM}, 4, v{vA1}""", STD_ROW)
    a(f"""
    s_lshl_b32 s{sTMP}, s{sKSB}, 15            ; ks*2*32*512
    s_lshl_b32 s{sTMP2}, s{u}, 12
    s_add_u32 s{sTMP}, s{sTMP}, s{sTMP2}
    s_add_u32 s{sTMP}, s{sTMP}, {WS_AP}
    s_add_u32 s{sWQ}, s{sWS}, s{sTMP}
    s_addc_u32 s{sWQ+1}, s{sWS+1}, 0
    v_bfe_u32 v{vA1}, v{vLane}, 3, 1
    v_and_b32 v{vA0}, 7, v{vLane}
    v_lshlrev_b32 v{vA0}, 9, v{vA0}
    v_lshl_add_u32 v{vA0}, v{vA1}, 14, v{vA0}
    v_lshrrev_b32 v{vA1}, 5, v{vLane}
    v_lshl_add_u32 v{vA2}, v{vA1}, 14, v{vBG}
    """)
    a.guard(lambda: a("s_waitcnt vmcnt(0)"))
    a.perm_unit(RAWA, T)
    a.perm_unit(RAWB, RAWA)
    a.stamp(10)
    a.mask("0xffff", "0")
    a.pspin("hB", lambda r: a(f"global_load_dwordx4 {vr(r,4)}, v{vA0}, {sp(sWQ)} sc1"), HS, ACC, sleep=psl)
    a.full()
    a.stamp(11)
    def issB():
        for i in range(8):
            a(f"global_load_dwordx4 {vr(GA+4*i,4)}, v{vA2}, {sp(sWQ)} offset:{i*512} sc1")
    XF = GA + 48 - 8
    sweep("gB", issB, [GA+4*i for i in range(8)], lambda: None, o.get("bsleep", 1))
    a.stamp(12)
    for k in (0, 8, 16, 24):
        a(f"v_pk_add_f32 {vr(GA+k,2)}, {vr(GA+k,2)}, {vr(GA+k+4,2)}\n v_pk_add_f32 {vr(GA+k+2,2)}, {vr(GA+k+2,2)}, {vr(GA+k+6,2)}")
    for k in (0, 16):
        a(f"v_pk_add_f32 {vr(GA+k,2)}, {vr(GA+k,2)}, {vr(GA+k+8,2)}\n v_pk_add_f32 {vr(GA+k+2,2)}, {vr(GA+k+2,2)}, {vr(GA+k+10,2)}")
    a(f"v_pk_add_f32 {vr(GA,2)}, {vr(GA,2)}, {vr(GA+16,2)}\n v_pk_add_f32 {vr(GA+2,2)}, {vr(GA+2,2)}, {vr(GA+18,2)}")
    a(f"ds_write_b128 v{vXW}, {vr(GA,4)} offset:{L_XA_B}")
    for q in range(4):
        a(f"v_lshlrev_b32 v{XF+2*q}, 16, v{XR+q}\n v_and_b32 v{XF+2*q+1}, 0xffff0000, v{XR+q}")
    a.gbarrier()
    a(f"""
    ds_read_b128 {vr(vals[0],4)}, v{vXR} offset:{L_XA_B}
    ds_read_b128 {vr(vals[4],4)}, v{vXR} offset:{L_XA_B + 64}
    v_mov_b32 v{ACC}, 0x3f803f80
    s_waitcnt lgkmcnt(0)""")
    a.dpp("v_add_f32", vals, (XOR1, XOR2))
    for e in range(0, 8, 2):
        a(f"v_pk_add_f32 {vr(XF+e,2)}, {vr(XF+e,2)}, {vr(vals[e],2)}")
    HP_ = XR
    for q in range(4):
        a(f"v_cvt_pk_bf16_f32 v{HP_+q}, v{XF+2*q}, v{XF+2*q+1}")
    a("s_nop 0")
    for q in range(4):
        a(f"v_cndmask_b32 v{AOP+q}, v{HP_+q}, v{ACC}, {sp(sM1)}")
    a("s_nop 1")
    DX = GA + 44
    a(f"v_mfma_f32_16x16x32_bf16 {vr(DX,4)}, {vr(AOP,4)}, {vr(AOP,4)}, 0")
    a.mfma8(D, AOP, T)
    a.mfma8(RAWB, AOP, RAWA)
    a(f"""
    s_lshl_b32 s{sTMP}, s{u}, 10
    v_lshl_add_u32 v{vA0}, v{vLane}, 4, s{sTMP}
    v_lshrrev_b32 v{vA1}, 4, v{vLane}
    v_lshlrev_b32 v{vA1}, 3, v{vA1}
    v_not_b32 v{vA2}, v{vLane}
    v_and_b32 v{vA2}, 1, v{vA2}
    v_lshl_add_u32 v{vA1}, v{vA2}, 2, v{vA1}
    s_lshl_b32 s{sTMP}, s{u}, 4
    v_add_u32 v{vA1}, s{sTMP}, v{vA1}
    """)
    a.select(ACC, D, 0)
    a(f"ds_write_b128 v{vA0}, {vr(ACC,4)} offset:{L_RA0}")
    a.select(AOP, D, 1)
    a(f"ds_write_b128 v{vA0}, {vr(AOP,4)} offset:{L_RD0}")
    a.select(GA+32, RAWB, 0)
    a(f"ds_write_b128 v{vA0}, {vr(GA+32,4)} offset:{L_RA1}")
    a.select(GA+36, RAWB, 1)
    a(f"ds_write_b128 v{vA0}, {vr(GA+36,4)} offset:{L_RD1}")
    a.mask("0x00300003", "0")
    a(f"ds_write_b32 v{vA1}, v{DX} offset:{L_REDS}")
    a.full()
    a.gbarrier()
    R2 = GA + 16
    a(f"""
    s_cmp_eq_u32 s{u}, 3
    s_cbranch_scc1 L_b_st
    s_cmp_eq_u32 s{u}, 2
    s_cbranch_scc1 L_b_cs
    s_mul_i32 s{sTMP}, s{u}, {L_RA1 - L_RA0}
    v_lshl_add_u32 v{vA0}, v{vLane}, 4, s{sTMP}
    """)
    for w in range(4):
        a(f"ds_read_b128 {vr(R2+4*w,4)}, v{vA0} offset:{L_RA0 + w*1024}")
    a(f"""
    s_lshl_b32 s{sTMP}, s{sFCP}, 1
    s_add_u32 s{sTMP}, s{sTMP}, s{u}           ; fc
    s_lshl_b32 s{sTMP}, s{sTMP}, 4             ; fc*2*8
    s_add_u32 s{sTMP}, s{sTMP}, s{sKSB}
    s_lshl_b32 s{sTMP}, s{sTMP}, 9
    s_add_u32 s{sTMP}, s{sTMP}, {WS_FPP}
    v_and_b32 v{vA0}, 1, v{vG}
    v_lshl_add_u32 v{vA0}, v{vA0}, 12, v{vPubH}
    v_add_u32 v{vA0}, s{sTMP}, v{vA0}
    s_waitcnt lgkmcnt(0)""")
    reduce4(a, R2, ACC, vN)
    a.guard(lambda: a(f"global_store_dwordx4 v{vA0}, {vr(ACC,4)}, {sp(sWS)} sc1"))
    a(f"""
    s_branch L_b_done
    L_b_cs:
    v_and_b32 v{vA1}, 1, v{vG}
    v_mul_u32_u24 v{vA0}, {L_RD1 - L_RD0}, v{vA1}
    v_lshl_add_u32 v{vA0}, v{vLane}, 4, v{vA0}
    """)
    for w in range(4):
        a(f"ds_read_b128 {vr(R2+4*w,4)}, v{vA0} offset:{L_RD0 + w*1024}")
    a(f"""
    s_lshl_b32 s{sTMP}, s{sFCP}, 4             ; fc0*8
    s_add_u32 s{sTMP}, s{sTMP}, s{sKSB}
    s_lshl_b32 s{sTMP}, s{sTMP}, 9
    s_add_u32 s{sTMP}, s{sTMP}, {WS_FPC}
    v_lshl_add_u32 v{vA0}, v{vA1}, 12, v{vPubH}     ; + (g&1)*8*512
    v_add_u32 v{vA0}, s{sTMP}, v{vA0}
    s_waitcnt lgkmcnt(0)""")
    reduce4(a, R2, ACC, vN)
    a.guard(lambda: a(f"global_store_dwordx4 v{vA0}, {vr(ACC,4)}, {sp(sWS)} sc1"))
    a(f"""
    s_branch L_b_done
    L_b_st:
    v_mov_b32 v{vA0}, 0
    """)
    for w in range(4):
        a(f"ds_read_b128 {vr(R2+4*w,4)}, v{vA0} offset:{L_REDS + w*16}")
    a(f"""
    s_lshl_b32 s{sTMP}, s{sFCP}, 4
    s_add_u32 s{sTMP}, s{sTMP}, s{sKSB}
    s_lshl_b32 s{sTMP}, s{sTMP}, 4
    s_add_u32 s{sTMP}, s{sTMP}, {WS_FPS}
    v_lshl_add_u32 v{vA0}, v{vLane}, 7, s{sTMP}
    s_waitcnt lgkmcnt(0)
    """)
    for t in (0, 2):
        a(f"v_pk_add_f32 {vr(R2+t,2)}, {vr(R2+t,2)}, {vr(R2+4+t,2)}\n v_pk_add_f32 {vr(R2+8+t,2)}, {vr(R2+8+t,2)}, {vr(R2+12+t,2)}")
    for t in (0, 2):
        a(f"v_pk_add_f32 {vr(R2+t,2)}, {vr(R2+t,2)}, {vr(R2+8+t,2)}")
    a.tag(ACC, R2, vN)
    a.mask("3", "0")
    a.guard(lambda: a(f"global_store_dwordx4 v{vA0}, {vr(ACC,4)}, {sp(sWS)} sc1"))
    a.full()
    a("L_b_done:")
    a(f"""
    s_cmp_lg_u32 s{sFCP}, 0
    s_cbranch_scc1 L_nohp""")
    XF2 = GA + 32
    for q in range(4):
        a(f"v_lshlrev_b32 v{XF2+2*q}, 16, v{HP_+q}\n v_and_b32 v{XF2+2*q+1}, 0xffff0000, v{HP_+q}")
    a.tag(GA+4, XF2, vN)
    a.tag(GA+8, XF2+4, vN)
    a(f"""
    s_lshl_b32 s{sTMP}, s{sKSB}, 5
    s_lshl_b32 s{sTMP2}, s{u}, 3
    s_add_u32 s{sTMP}, s{sTMP}, s{sTMP2}
    s_lshl_b32 s{sTMP}, s{sTMP}, 4
    s_add_u32 s{sTMP}, s{sTMP}, {WS_HP}
    v_lshlrev_b32 v{vA1}, 4, v{vG}
    v_lshl_add_u32 v{vA1}, v{vB}, 12, v{vA1}
    v_add_u32 v{vA1}, s{sTMP}, v{vA1}""")
    a.mask("0x00110011", "0x00110011")
    a.guard(lambda: a(f"""global_store_dwordx4 v{vA1}, {vr(GA+4,4)}, {sp(sWS)} sc1
    global_store_dwordx4 v{vA1}, {vr(GA+8,4)}, {sp(sWS)} offset:64 sc1"""))
    a.full()
    a("L_nohp:")
    a.stamp(13)
    if o.get("ydpre", 0): a.guard(lambda: a("\n".join([f"s_sleep {min(127, o['ydpre'] - 127*k)}" for k in range((o['ydpre'] + 126)//127)])))
    a("L_D:")
    a(f"""
    s_cmp_lg_u32 s{u}, 0
    s_cbranch_scc1 L_G_done
    s_and_b32 s{sX}, s2, 7
    s_lshl_b32 s{sX}, s{sX}, 5
    s_lshr_b32 s{sX+1}, s2, 3
    s_add_u32 s{sX}, s{sX}, s{sX+1}
    s_lshr_b32 s{sB0}, s{sX}, 7                ; b2
    s_bfe_u32 s{sB0+1}, s{sX}, 0x30004         ; cc2
    s_and_b32 s{sB1}, s{sX}, 15
    s_lshl_b32 s{sB1}, s{sB1}, 5               ; gi0*16
    s_lshl_b32 s{sTMP}, s{sB0+1}, 1
    s_add_u32 s{sTMP}, s{sTMP}, s{sB0}
    s_mul_i32 s{sTMP}, s{sTMP}, {28*512}
    s_add_u32 s{sTMP}, s{sTMP}, s{sB1}
    s_add_u32 s{sTMP}, s{sTMP}, {WS_O2}
    v_lshrrev_b32 v{vA0}, 1, v{vLane}
    v_lshlrev_b32 v{vA0}, 9, v{vA0}
    v_and_b32 v{vA1}, 1, v{vLane}
    v_lshl_add_u32 v{vA0}, v{vA1}, 4, v{vA0}
    v_add_u32 v{vA0}, s{sTMP}, v{vA0}
    s_lshl_b32 s{sTMP}, s{sB0}, 12             ; b*256*16
    s_lshl_b32 s{sTMP2}, s{sB0+1}, 9           ; cc*32*16
    s_add_u32 s{sTMP}, s{sTMP}, s{sTMP2}
    s_add_u32 s{sTMP}, s{sTMP}, s{sB1}
    s_add_u32 s{sTMP}, s{sTMP}, {WS_HP}
    v_lshl_add_u32 v{vA2}, v{vA1}, 4, s{sTMP}
    v_cmp_le_u32 vcc, 56, v{vLane}
    s_nop 1
    v_cndmask_b32 v{vA0}, v{vA0}, v{vA2}, vcc
    """)
    DS = [GA, GA+4, GA+8]
    a.mask("-1", "0x03ffffff")
    if o.get("dpre", 0): a.guard(lambda: a(f"s_sleep {o['dpre']}"))
    a.pspin("gd", lambda r: a(f"global_load_dwordx4 {vr(r,4)}, v{vA0}, {sp(sWS)} sc1"), DS, ACC, dst=GA+12, sleep=o.get("dsleep", 1))
    a.full()
    a.stamp(17)
    fv = [GA+12+i for i in range(4)]
    a.mask("0", "0xfc000000")
    for r in fv: a(f"v_mov_b32 v{r}, 0")
    a.full()
    a.dpp("v_add_f32", fv, (XOR2, ROR4, ROR8))
    a.allreduce_g(fv, [GA+16+i for i in range(4)])
    a(f"""
    v_cvt_pk_bf16_f32 v{GA+20}, v{GA+12}, v{GA+13}
    v_cvt_pk_bf16_f32 v{GA+21}, v{GA+14}, v{GA+15}
    s_lshl_b32 s{sTMP}, s{sX}, 4
    v_lshl_add_u32 v{vA0}, v{vA1}, 3, s{sTMP}
    """)
    a.mask("3", "0")
    a.guard(lambda: a(f"global_store_dwordx2 v{vA0}, {vr(GA+20,2)}, {sp(sOUT)}"))
    a(f"""
    s_cmp_lg_u32 s2, 0
    s_cbranch_scc1 L_G_done
    """)
    a.full()
    a(f"v_mov_b32 v{vA0}, 0")
    a.mask("1", "0")
    a.guard(lambda: a(f"global_store_dword v{vA0}, v{vN}, {sp(sWS)} sc1"))
    a("L_G_done:")
    if o.get("dry", 1):
        a("s_cbranch_execz L_dry_done")
    a.stamp(18)
    a.dump_stamps(19, 7)
    a("s_endpgm")

def gen_A(a):
    o = a.o
    vLane, vG, vM, vN = 0, 2, 3, 4
    vKs = 5
    vV = 9
    vT0, vT1, vT2 = 10, 11, 12
    MX, LS = 13, 14
    VR = 16
    QO = 80
    KS = 96
    S = 128
    P = 144
    TB = 80
    ACCD = 112
    sA = sU
    sP, sS = 52, 53
    a(f"""
    L_A:
    ; ---------------- A waves ----------------
    s_setprio 2
    s_sub_u32 s{sA}, s{sWAVE}, 4
    s_and_b32 s{sP}, s2, 7
    s_lshr_b32 s{sS}, s2, 3
    s_lshl_b32 s{sTMP}, s{sP}, 22
    s_lshl_b32 s{sTMP2}, s{sS}, 17
    s_add_u32 s{sTMP}, s{sTMP}, s{sTMP2}
    s_lshl_b32 s{sTMP2}, s{sA}, {12 if o.get("ilv", 1) else 14}
    s_add_u32 s{sTMP}, s{sTMP}, s{sTMP2}
    s_lshl_b32 s{sTMP2}, s{sA}, 14
    """)
    TS = 32768 if o.get("ilv", 1) else 4096
    for r in range(4):
        a(f"v_add_u32 v{vT0}, {4*r}, v{vG}\n v_xor_b32 v{vT0}, v{vT0}, v{vM}\n v_lshlrev_b32 v{vT0}, 4, v{vT0}\n v_lshl_add_u32 v{vKs+r}, v{vG}, 8, v{vT0}")
    a(f"""
    v_lshlrev_b32 v{vT0}, 4, v{vM}
    v_lshl_add_u32 v{vV}, v{vG}, 10, v{vT0}
    v_mov_b32 v{vT1}, 0
    s_mov_b32 s{sM8}, 0xff00ff00
    s_mov_b32 s{sM8+1}, 0xff00ff00
    s_waitcnt lgkmcnt(0)
    s_add_u32 s{sB0}, s{sK}, s{sTMP}
    s_addc_u32 s{sB0+1}, s{sK+1}, 0
    s_add_u32 s{sB1}, s{sV}, s{sTMP}
    s_addc_u32 s{sB1+1}, s{sV+1}, 0
    s_add_u32 m0, s{sTMP2}, {L_K}
    s_barrier       ; B0
    global_load_dword v{vN}, v{vT1}, {sp(sWS)} sc1
    """)
    KW = o.get("kwin", 3)
    for i in range(16):
        r = i % 4
        if KW and i >= KW: a(f"s_waitcnt vmcnt({KW-1})")
        a(f"global_load_lds_dwordx4 v{vKs+r}, {sp(sB0)} offset:{r*1024} nt")
        if r == 3 and i < 15:
            a(f"s_add_u32 s{sB0}, s{sB0}, {TS}\n s_addc_u32 s{sB0+1}, s{sB0+1}, 0\n s_add_u32 m0, m0, 4096")
    a.stamp(1)
    a(f"s_setprio {o.get('vprio', 1)}")
    VW = o.get("vwin", 0)
    for uu in range(2):
        for i in range(8):
            reg = VR + (uu*8+i)*4
            if VW and uu*8+i < o.get("vwn", 16): a(f"s_waitcnt vmcnt({VW-1})")
            a(f"global_load_dwordx4 {vr(reg,4)}, v{vV}, {sp(sB1)} offset:{(i%4)*256} nt")
            if i % 4 == 3 and not (uu == 1 and i == 7):
                a(f"s_add_u32 s{sB1}, s{sB1}, {TS}\n s_addc_u32 s{sB1+1}, s{sB1+1}, 0")
    a.stamp(2)
    a(f"""
    v_mov_b32 v{vT1}, 0
    v_mov_b32 v{vT2}, 1
    s_mov_b64 exec, 1
    ds_add_u32 v{vT1}, v{vT2} offset:{L_CNT+4}
    s_mov_b64 exec, -1""")
    a(f"s_lshl_b32 s{sTMP}, s{sA}, 14\n s_add_u32 s{sTMP}, s{sTMP}, {L_K}")
    for s in range(4):
        a(f"v_add_u32 v{vT0}, {4*s}, v{vG}\n v_xor_b32 v{vT0}, v{vT0}, v{vM}\n v_lshlrev_b32 v{vT0}, 4, v{vT0}\n v_lshl_add_u32 v{vT0}, v{vM}, 8, v{vT0}\n v_add_u32 v{vKs+s}, s{sTMP}, v{vT0}")
    a.ldswait("Aq", vT1, vT2, L_CNT, 4, sleep=4)
    a(f"""
    v_and_b32 v{vT0}, 7, v{vM}
    v_mul_u32_u24 v{vT0}, 272, v{vT0}
    v_lshl_add_u32 v{vT0}, v{vG}, 4, v{vT0}
    """)
    a.stamp(3)
    for s in range(4):
        a(f"ds_read_b128 {vr(QO+4*s,4)}, v{vT0} offset:{L_Q + s*64}")
    a("s_waitcnt vmcnt(16)")
    a.nonce_from(vN)
    def kread(t, buf):
        for s in range(4):
            a(f"ds_read_b128 {vr(KS+16*buf+4*s,4)}, v{vKs+s} offset:{t*4096}")
    kread(0, 0); kread(1, 1)
    for t in range(4):
        buf = t % 2
        a("s_waitcnt lgkmcnt(4)" if t < 3 else "s_waitcnt lgkmcnt(0)")
        for s in range(4):
            c = "0" if s == 0 else vr(S+4*t, 4)
            a(f"v_mfma_f32_16x16x32_bf16 {vr(S+4*t,4)}, {vr(KS+16*buf+4*s,4)}, {vr(QO+4*s,4)}, {c}")
        if t + 2 < 4:
            kread(t + 2, buf)
    a("s_nop 7")
    a(f"v_max3_f32 v{MX}, v{S}, v{S+1}, v{S+2}")
    for k in range(3, 15, 2):
        a(f"v_max3_f32 v{MX}, v{MX}, v{S+k}, v{S+k+1}")
    a(f"v_max_f32 v{MX}, v{MX}, v{S+15}")
    a.allreduce_g([MX], [vT2], "v_max_f32")
    a(f"""
    s_mov_b32 s{sC}, 0x3e0293ee                   ; 128^-0.5 * log2(e)
    v_mul_f32 v{MX}, s{sC}, v{MX}""")
    for k in range(16):
        a(f"v_fma_f32 v{S+k}, v{S+k}, s{sC}, -v{MX}")
    for k in range(16):
        a(f"v_exp_f32 v{S+k}, v{S+k}")
    a("s_nop 0")
    for uu in range(2):
        for q in range(4):
            k = 8*uu + 2*q
            a(f"v_cvt_pk_bf16_f32 v{P+4*uu+q}, v{S+k}, v{S+k+1}")
    a(f"v_add_f32 v{LS}, v{S}, v{S+1}")
    for k in range(2, 16):
        a(f"v_add_f32 v{LS}, v{LS}, v{S+k}")
    a.allreduce_g([LS], [KS])
    a(f"""
    v_and_b32 v{vT0}, 7, v{vM}
    v_lshlrev_b32 v{vT0}, 5, v{vT0}             ; head*32
    s_lshl_b32 s{sTMP}, s{sA}, 2
    v_add_u32 v{vT0}, s{sTMP}, v{vT0}            ; head*32 + a*4
    s_mov_b64 exec, 0xff
    ds_write_b32 v{vT0}, v{MX} offset:{L_MX}
    ds_write_b32 v{vT0}, v{LS} offset:{L_LS}
    s_mov_b64 exec, 1
    v_mov_b32 v{vT1}, 0
    v_mov_b32 v{vT2}, 1
    s_waitcnt lgkmcnt(0)
    ds_add_rtn_u32 v{vT2}, v{vT1}, v{vT2} offset:{L_CNT+8}
    s_waitcnt lgkmcnt(0)
    s_mov_b64 exec, -1
    v_readfirstlane_b32 s{sTMP}, v{vT2}
    s_mov_b32 s{sSPIN}, 0
    s_cmp_lg_u32 s{sTMP}, 7
    s_cbranch_scc1 L_A_noml
    v_and_b32 v{vT0}, 7, v{vLane}
    v_lshlrev_b32 v{vT1}, 5, v{vT0}
    ds_read_b128 {vr(KS,4)}, v{vT1} offset:{L_MX}
    ds_read_b128 {vr(KS+4,4)}, v{vT1} offset:{L_MX+16}
    ds_read_b128 {vr(KS+8,4)}, v{vT1} offset:{L_LS}
    ds_read_b128 {vr(KS+12,4)}, v{vT1} offset:{L_LS+16}
    s_lshl_b32 s{sTMP}, s{sP}, 8                   ; p*8*32
    s_add_u32 s{sTMP}, s{sTMP}, s{sS}
    s_lshl_b32 s{sTMP}, s{sTMP}, 4
    s_add_u32 s{sTMP}, s{sTMP}, {WS_ML}
    v_lshl_add_u32 v{vT1}, v{vT0}, 9, s{sTMP}       ; + head*32*16
    s_waitcnt lgkmcnt(0)
    v_max3_f32 v{KS+16}, v{KS}, v{KS+1}, v{KS+2}
    v_max3_f32 v{KS+17}, v{KS+3}, v{KS+4}, v{KS+5}
    v_max3_f32 v{KS+16}, v{KS+16}, v{KS+6}, v{KS+7}
    v_max_f32 v{KS+16}, v{KS+16}, v{KS+17}
    v_perm_b32 v{KS+16}, v{KS+16}, v{vN}, s{sSEL[0]}
    """)
    for w in range(8):
        a(f"v_sub_f32 v{KS+w}, v{KS+w}, v{KS+16}")
    for w in range(8):
        a(f"v_exp_f32 v{KS+w}, v{KS+w}")
    a(f"s_nop 0\n v_mul_f32 v{KS+17}, v{KS}, v{KS+8}")
    for w in range(1, 8):
        a(f"v_fmac_f32 v{KS+17}, v{KS+w}, v{KS+8+w}")
    a(f"v_mov_b32 v{KS+18}, v{KS+16}\n v_mov_b32 v{KS+19}, v{KS+16}")
    a.tag(KS+20, KS+16, vN)
    a(f"""
    s_mov_b64 exec, 0xff
    global_store_dwordx4 v{vT1}, {vr(KS+20,4)}, {sp(sWS)} sc1
    s_mov_b64 exec, -1
    s_mov_b32 s{sPEND}, 1
    s_branch L_A_ml2
    L_A_noml:
    s_mov_b32 s{sPEND}, 0
    L_A_ml2:
    """)
    a.stamp(4)
    def pwait(n):
        L0, L1 = a.lab("pw"), a.lab("pw")
        a(f"s_cmp_eq_u32 s{sPEND}, 0\n s_cbranch_scc1 {L0}\n s_waitcnt vmcnt({n+1})\n s_branch {L1}\n {L0}:\n s_waitcnt vmcnt({n})\n {L1}:")
    F = VR
    a("s_waitcnt vmcnt(8)")
    raw = VR
    for t in range(4):
        tb = TB + 8*t
        for par, sel in ((0, sPLO), (1, sPHI)):
            for q in range(4):
                a(f"v_perm_b32 v{tb+4*par+q}, v{raw+4*(2*q+1)+t}, v{raw+4*(2*q)+t}, s{sel}")
        if t > 0:
            for par in range(2):
                j = 2*(t-1) + par
                a(f"v_mfma_f32_16x16x32_bf16 {vr(ACCD+4*j,4)}, {vr(TB+8*(t-1)+4*par,4)}, {vr(P,4)}, 0")
    a("s_nop 1")
    for par in range(2):
        j = 6 + par
        a(f"v_mfma_f32_16x16x32_bf16 {vr(ACCD+4*j,4)}, {vr(TB+24+4*par,4)}, {vr(P,4)}, 0")
    a(f"""
    s_lshl_b32 s{sTMP}, s{sA}, 14
    s_add_u32 s{sTMP}, s{sTMP}, {L_OB}
    v_mul_u32_u24 v{vT0}, 17, v{vG}
    v_add_u32 v{vT0}, v{vT0}, v{vM}
    v_lshl_add_u32 v{vT0}, v{vT0}, 4, s{sTMP}
    v_bfe_u32 v{vT1}, v{vLane}, 3, 2            ; g'
    v_and_b32 v{vKs}, 3, v{vLane}               ; j'&3
    v_bfe_u32 v{vKs+1}, v{vLane}, 2, 1          ; j'>>2
    v_lshl_add_u32 v{vKs}, v{vKs}, 1, v{vKs+1}  ; j
    v_and_b32 v{vKs+1}, 3, v{vKs}               ; jj
    v_lshrrev_b32 v{vKs}, 2, v{vKs}             ; nh
    v_lshl_add_u32 v{vT1}, v{vKs+1}, 2, v{vT1}  ; jj*4+g'
    v_mul_u32_u24 v{vT1}, 17, v{vT1}
    v_lshl_add_u32 v{vT1}, v{vKs}, 3, v{vT1}
    v_add_u32 v{vT1}, s{sA}, v{vT1}
    v_lshlrev_b32 v{vT1}, 4, v{vT1}
    v_lshrrev_b32 v{vKs}, 5, v{vLane}           ; ph
    v_lshl_add_u32 v{vT1}, v{vKs}, 16, v{vT1}   ; + ph*4*16384
    v_add_u32 v{vT1}, {L_OB}, v{vT1}
    s_lshl_b32 s{sTMP}, s{sA}, 5
    v_lshl_add_u32 v{vKs+1}, v{vKs}, 4, s{sTMP}
    v_xor_b32 v{vKs+2}, 16, v{vKs+1}
    s_lshl_b32 s{sTMP}, s{sP}, 3
    s_add_u32 s{sTMP}, s{sTMP}, s{sA}
    s_lshl_b32 s{sTMP}, s{sTMP}, 5
    s_add_u32 s{sTMP}, s{sTMP}, s{sS}            ; (p*8+head)*32 + s
    s_lshl_b32 s{sTMP2}, s{sTMP}, 9
    s_add_u32 s{sTMP2}, s{sTMP2}, {WS_OP}
    v_and_b32 v{vKs+3}, 31, v{vLane}
    v_lshl_add_u32 v{vV}, v{vKs+3}, 4, s{sTMP2}
    v_mov_b32 v{vKs}, 0
    """)
    a.ldswait("Amx", vKs, vT2, L_CNT+8, 8, sleep=1)
    MO, MT = VR, VR+4
    a(f"""
    ds_read_b128 {vr(MO,4)}, v{vKs+1} offset:{L_MX}
    ds_read_b128 {vr(MT,4)}, v{vKs+2} offset:{L_MX}
    s_setprio 3
    s_waitcnt lgkmcnt(0)
    v_max3_f32 v{MX}, v{MO}, v{MO+1}, v{MO+2}
    v_max3_f32 v{MT}, v{MT}, v{MT+1}, v{MT+2}
    v_max3_f32 v{MX}, v{MX}, v{MO+3}, v{MT+3}
    v_max_f32 v{MX}, v{MX}, v{MT}
    v_perm_b32 v{MX}, v{MX}, v{vN}, s{sSEL[0]}
    """)
    for w in range(4):
        a(f"v_sub_f32 v{F+w}, v{MO+w}, v{MX}")
    for w in range(4):
        a(f"v_exp_f32 v{F+w}, v{F+w}")
    raw = VR + 32
    pwait(4)
    for t in range(4):
        for par, sel in ((0, sPLO), (1, sPHI)):
            for q in range(2):
                a(f"v_perm_b32 v{TB+8*t+4*par+q}, v{raw+4*(2*q+1)+t}, v{raw+4*(2*q)+t}, s{sel}")
    pwait(0)
    a.stamp(5)
    for t in range(4):
        for par, sel in ((0, sPLO), (1, sPHI)):
            for q in (2, 3):
                a(f"v_perm_b32 v{TB+8*t+4*par+q}, v{raw+4*(2*q+1)+t}, v{raw+4*(2*q)+t}, s{sel}")
        if t > 0:
            for par in range(2):
                j = 2*(t-1) + par
                a(f"v_mfma_f32_16x16x32_bf16 {vr(ACCD+4*j,4)}, {vr(TB+8*(t-1)+4*par,4)}, {vr(P+4,4)}, {vr(ACCD+4*j,4)}")
    a("s_nop 1")
    for par in range(2):
        j = 6 + par
        a(f"v_mfma_f32_16x16x32_bf16 {vr(ACCD+4*j,4)}, {vr(TB+24+4*par,4)}, {vr(P+4,4)}, {vr(ACCD+4*j,4)}")
    XB = TB
    a("s_nop 3")
    for jj in range(4):
        if jj == 2: a("s_nop 1")
        for r in range(4):
            a(f"v_cndmask_b32 v{XB+4*jj+r}, v{ACCD+4*jj+r}, v{ACCD+4*(jj+4)+r}, {sp(sM8)}")
        a(f"ds_write_b128 v{vT0}, {vr(XB+4*jj,4)} offset:{jj*1088}")
    a("s_waitcnt lgkmcnt(0)")
    if o.get("adry", 1):
        a(f"""
        s_cmp_ge_u32 s{sA}, 4
        s_cbranch_scc1 L_A_b3
        s_mov_b64 exec, 0
        s_branch L_A_post
        L_A_postret:
        s_mov_b64 exec, -1
        L_A_b3:
        """)
    a("s_barrier     ; B3")
    a.stamp(6)
    a("L_A_post:")
    R = KS
    for w in range(4):
        a(f"ds_read_b128 {vr(R+4*w,4)}, v{vT1} offset:{w*OB_STRIDE}")
    a("s_waitcnt lgkmcnt(2)")
    for t in range(4):
        a(f"v_mul_f32 v{R+t}, v{R+t}, v{F}")
    for t in range(4):
        a(f"v_fmac_f32 v{R+t}, v{R+4+t}, v{F+1}")
    a("s_waitcnt lgkmcnt(0)")
    for w in range(2, 4):
        for t in range(4):
            a(f"v_fmac_f32 v{R+t}, v{R+4*w+t}, v{F+w}")
    a.allreduce_g([R, R+1, R+2, R+3], [R+4, R+5, R+6, R+7], steps=("v_permlane32_swap_b32",))
    a.tag(R+8, R, vN)
    a("s_mov_b32 exec_hi, 0")
    a.guard(lambda: a(f"global_store_dwordx4 v{vV}, {vr(R+8,4)}, {sp(sWS)} sc1"))
    if o.get("adry", 1): a("s_cbranch_execz L_A_postret")
    a.stamp(7)
    a("s_barrier     ; B4")
    a.dump_stamps(8, 10)
    a("s_endpgm")

if __name__ == "__main__":
    out = sys.argv[1]
    stamps = len(sys.argv) > 2 and sys.argv[2] == "1"
    opts = {}
    for kv in sys.argv[3:]:
        k, v = kv.split("="); opts[k] = int(v)
    open(out, "w").write(build(stamps, **opts))
```

```python
import sys
from gen_common import *

WS_EPOCH = 0
WS_QP   = 0x010000
WS_ML   = 0x080000
WS_HP   = 0x090000
WS_OP   = 0x100000
WS_AP   = 0x200000
WS_FPP  = 0x240000
WS_FPC  = 0x280000
WS_FPS  = 0x2A0000
WS_O2   = 0x2C0000
WS_STAMP = 0x800000
L_Q   = 0
L_MX  = 2304
L_LS  = L_MX + 256
L_REDQ = L_LS + 256
L_CNT = 6912
L_K   = 8192
L_OB  = L_K
OB_STRIDE = 16384
LDS_BYTES = L_K + 131072
L_XA_A = 12544
L_FAC  = 16896
L_XA_C = 17920
L_RA0, L_RA1 = 28928, 33024
L_RD0, L_RD1 = 45312, 49408
L_XA_B = 12544
L_REDS = 16896

SPIN_LIMIT = 4000

sX, sK, sV, sWQ, sWO, sW1, sW2, sOUT, sDBG, sWS = 4, 6, 8, 10, 12, 16, 18, 20, 22, 24
sFULL = 14
sWAVE, sU = 26, 27
sNONCE = 28
sT = [29, 30, 31, 32]
sSEL = [33, 34, 35, 36]
sPLO, sPHI = 37, 38
sC = 39
sMHI = 40
sM8 = 42
sB0 = 44
sB1 = 46
sMB = 48
sM1 = 50
sSPIN = 60
sTMP, sTMP2 = 61, 62
sPEND = 63
sSTAMP = 64

def sp(r): return f"s[{r}:{r+1}]"
def vr(r, n): return f"v[{r}:{r+n-1}]" if n > 1 else f"v{r}"
XOR1, XOR2, ROR4, ROR8 = "quad_perm:[1,0,3,2]", "quad_perm:[2,3,0,1]", "row_ror:4", "row_ror:8"
DM = "row_mask:0xf bank_mask:0xf"

class Gen(Asm):
    def __init__(self, stamps=False, opts=None):
        super().__init__()
        self.stamps = stamps
        self.o = opts or {}
        self.uid = 0
    def lab(self, base):
        self.uid += 1
        return f"L_{base}_{self.uid}"
    def stamp(self, idx):
        if self.stamps:
            self(f"s_memrealtime {sp(sSTAMP + 2 * idx)}")
    def dump_stamps(self, n, tmpv):
        if not self.stamps: return
        if self.o.get("dbgst", 0) == 2:
            if n <= 10: return
            L = self.lab("nodbg")
            self(f"s_cmp_lg_u32 s2, {self.o.get('dbgwg', 0)}\n s_cbranch_scc1 {L}\n s_cmp_lg_u32 s{sWAVE}, 0\n s_cbranch_scc1 {L}")
            self(f"s_waitcnt lgkmcnt(0)\n s_mov_b64 exec, 1\n v_mov_b32 v{tmpv}, 0")
            for k, i in enumerate((1, 2, 3, 4, 5, 6, 7, 8, 9, 10, 11, 12, 13, 15, 16, 18)):
                self(f"s_sub_u32 s{sTMP}, s{sSTAMP+2*i}, s{sSTAMP}\n v_mov_b32 v{tmpv+1}, s{sTMP}\n global_store_dword v{tmpv}, v{tmpv+1}, {sp(sDBG)} offset:{4*k}\n s_nop 1")
            self.label(L)
            return
        self(f"""s_waitcnt lgkmcnt(0)
        s_lshl_b32 s{sTMP}, s2, 4
        s_add_u32 s{sTMP}, s{sTMP}, s{sWAVE}
        s_lshl_b32 s{sTMP}, s{sTMP}, 7
        s_add_u32 s{sTMP}, s{sTMP}, {WS_STAMP}
        s_mov_b64 exec, 1
        v_mov_b32 v{tmpv}, s{sTMP}""")
        for i in range(n):
            self(f"v_mov_b32 v{tmpv+1}, s{sSTAMP+2*i}\n global_store_dword v{tmpv}, v{tmpv+1}, {sp(sWS)} offset:{4*i}\n s_nop 1")
    def full(self): self(f"s_mov_b64 exec, {sp(sFULL)}")
    def mask(self, lo, hi): self(f"s_and_b32 exec_lo, s{sFULL}, {lo}\n s_and_b32 exec_hi, s{sFULL+1}, {hi}")
    def guard(self, fn):
        L = self.lab("grd")
        self(f"s_cbranch_execz {L}")
        fn()
        self.label(L)
    def gbarrier(self):
        self("s_waitcnt lgkmcnt(0)")
        self.guard(lambda: self("s_barrier"))
    def dpp(self, op, regs, ctrls):
        n = len(regs)
        for ctrl in ctrls:
            if n < 3: self(f"s_nop {2 - n}" if n < 2 else "s_nop 0")
            for r in regs:
                self(f"{op}_dpp v{r}, v{r}, v{r} {ctrl} {DM}")
    def allreduce_g(self, regs, tmps, op="v_add_f32", steps=("v_permlane16_swap_b32", "v_permlane32_swap_b32")):
        n = len(regs)
        for swap in steps:
            for r, t in zip(regs, tmps):
                self(f"v_mov_b32 v{t}, v{r}")
            self("s_nop 1" if n < 2 else "s_nop 0")
            for r, t in zip(regs, tmps):
                self(f"{swap} v{r}, v{t}")
            self("s_nop 1" if n < 2 else "s_nop 0")
            for r, t in zip(regs, tmps):
                self(f"{op} v{r}, v{r}, v{t}")
    def tag(self, dst, src, vN):
        for i in range(4):
            self(f"v_perm_b32 v{dst+i}, v{src+i}, v{vN}, s{sSEL[i]}")
    def check(self, grans, acc):
        for gi, gbase in enumerate(grans):
            for i in range(4):
                if gi == 0:
                    self(f"v_xor_b32 v{acc+i}, s{sT[i]}, v{gbase+i}")
                else:
                    self(f"v_bitop3_b32 v{acc+i}, v{gbase+i}, s{sT[i]}, v{acc+i} bitop3:0xbe")
        self(f"v_or3_b32 v{acc}, v{acc}, v{acc+1}, v{acc+2}")
        self(f"v_or_b32 v{acc}, v{acc}, v{acc+3}")
        self(f"v_and_b32 v{acc}, 0xff, v{acc}")
        self(f"v_cmp_ne_u32 vcc, 0, v{acc}")
    def spin(self, name, issue, grans, acc, waitstr="s_waitcnt vmcnt(0)", sleep=0):
        L = self.lab(name); Lok = self.lab(name + "ok")
        self(f"s_mov_b32 s{sSPIN}, 0")
        self.label(L)
        self.guard(issue)
        self.guard(lambda: self(waitstr))
        self.check(grans, acc)
        self("s_nop 0")
        self(f"s_cbranch_vccz {Lok}")
        self(f"s_add_u32 s{sSPIN}, s{sSPIN}, 1")
        if sleep: self(f"s_sleep {sleep}")
        self(f"s_cmp_lt_u32 s{sSPIN}, {SPIN_LIMIT}")
        self(f"s_cbranch_scc1 {L}")
        self("s_branch L_abort")
        self.label(Lok)
    def pspin(self, name, load, sets, acc, dst=None, ncopy=4, sleep=0, thr=0):
        L = self.lab(name); Lok = self.lab(name + "ok")
        oks = [self.lab(name + f"k{i}") for i in range(3)]
        self(f"s_mov_b32 s{sSPIN}, 0")
        self.guard(lambda: (load(sets[0]), load(sets[1])))
        self.label(L)
        for k in range(3):
            self.guard(lambda k=k: (load(sets[(k + 2) % 3]), self("s_waitcnt vmcnt(2)")))
            self.check([sets[k]], acc)
            if thr:
                self(f"s_nop 0\n s_bcnt1_i32_b64 s{sTMP}, vcc\n s_cmp_le_u32 s{sTMP}, {thr}\n s_cbranch_scc1 {oks[k]}")
            else:
                self("s_nop 0")
                self(f"s_cbranch_vccz {oks[k]}")
            if sleep: self(f"s_sleep {sleep}")
        self(f"s_add_u32 s{sSPIN}, s{sSPIN}, 1")
        self(f"s_cmp_lt_u32 s{sSPIN}, {SPIN_LIMIT}")
        self(f"s_cbranch_scc1 {L}")
        self("s_branch L_abort")
        for k in range(3):
            self.label(oks[k])
            if dst is not None and sets[k] != dst:
                for t in range(ncopy): self(f"v_mov_b32 v{dst+t}, v{sets[k]+t}")
            if k < 2: self(f"s_branch {Lok}")
        self.label(Lok)
    def ldswait(self, name, vaddr, vtmp, off, count, sleep=2):
        L = self.lab(name); Lok = self.lab(name + "ok")
        self(f"""
        s_mov_b32 s{sSPIN}, 0
        s_cbranch_execz {Lok}
        {L}:
        ds_read_b32 v{vtmp}, v{vaddr} offset:{off}
        s_waitcnt lgkmcnt(0)
        v_readfirstlane_b32 s{sTMP}, v{vtmp}
        s_cmp_ge_u32 s{sTMP}, {count}
        s_cbranch_scc1 {Lok}
        s_add_u32 s{sSPIN}, s{sSPIN}, 1""")
        if sleep: self(f"s_sleep {sleep}")
        self(f"""
        s_cmp_lt_u32 s{sSPIN}, 400000
        s_cbranch_scc1 {L}
        s_branch L_abort
        {Lok}:""")
    def perm_unit(self, raw, T):
        for t in range(4):
            for par, sel in ((0, sPLO), (1, sPHI)):
                j = 2 * t + par
                for q in range(4):
                    self(f"v_perm_b32 v{T + 4*j + q}, v{raw + 4*(2*q+1) + t}, v{raw + 4*(2*q) + t}, s{sel}")
    def wload(self, dst, sbase, voff, rowfn, rs, nt=True):
        prev = 0
        for i in range(8):
            d = rowfn(i) - prev
            if d > 0:
                self(f"s_add_u32 s{sbase}, s{sbase}, {d*rs}\n s_addc_u32 s{sbase+1}, s{sbase+1}, 0")
            elif d < 0:
                self(f"s_sub_u32 s{sbase}, s{sbase}, {-d*rs}\n s_subb_u32 s{sbase+1}, s{sbase+1}, 0")
            prev = rowfn(i)
            self(f"global_load_dwordx4 {vr(dst+4*i, 4)}, v{voff}, {sp(sbase)}" + (" nt" if nt else ""))
    def mfma8(self, D, AOP, T):
        for j in range(8):
            self(f"v_mfma_f32_16x16x32_bf16 {vr(D+4*j,4)}, {vr(AOP,4)}, {vr(T+4*j,4)}, 0")
    def select(self, X, D, r):
        for jj in range(4):
            self(f"v_cndmask_b32 v{X+jj}, v{D+4*jj+r}, v{D+4*(4+jj)+r}, {sp(sMHI)}")
    def nonce_from(self, vN):
        self(f"""
        v_readfirstlane_b32 s{sNONCE}, v{vN}
        s_add_u32 s{sNONCE}, s{sNONCE}, 0x01010101
        s_or_b32 s{sNONCE}, s{sNONCE}, 1
        s_mov_b32 s{sT[0]}, s{sNONCE}
        s_lshr_b32 s{sT[1]}, s{sNONCE}, 8
        s_lshr_b32 s{sT[2]}, s{sNONCE}, 16
        s_lshr_b32 s{sT[3]}, s{sNONCE}, 24
        v_mov_b32 v{vN}, s{sNONCE}
        """)

STD_ROW = lambda i: 16 * (i // 4) + (i % 4)
WO_ROW = lambda i: 8 * (i % 4) + (i // 4)

def reduce4(a, R, X, vN):
    for t in (0, 2):
        a(f"v_pk_add_f32 {vr(R+t,2)}, {vr(R+t,2)}, {vr(R+4+t,2)}\n v_pk_add_f32 {vr(R+8+t,2)}, {vr(R+8+t,2)}, {vr(R+12+t,2)}")
    for t in (0, 2):
        a(f"v_pk_add_f32 {vr(R+t,2)}, {vr(R+t,2)}, {vr(R+8+t,2)}")
    a.tag(X, R, vN)

def build(stamps=False, **o):
    a = Gen(stamps, o)
    a(f"""
    s_cmp_ge_u32 s2, 256
    s_cbranch_scc1 L_end""")
    a.stamp(0)
    a(f"""
    s_load_dwordx8 s[4:11], s[0:1], 0
    s_load_dwordx2 s[12:13], s[0:1], 32
    s_load_dwordx4 s[16:19], s[0:1], 48
    s_load_dwordx4 s[20:23], s[0:1], 64
    s_load_dwordx2 s[24:25], s[0:1], 80
    v_lshrrev_b32 v1, 6, v0
    v_and_b32 v0, 63, v0
    s_mov_b32 s{sPLO}, 0x05040100
    v_readfirstlane_b32 s{sWAVE}, v1
    s_mov_b32 s{sPHI}, 0x07060302
    s_mov_b32 s{sSEL[0]}, 0x07060500
    s_mov_b32 s{sSEL[1]}, 0x07060501
    s_mov_b32 s{sSEL[2]}, 0x07060502
    s_mov_b32 s{sSEL[3]}, 0x07060503
    s_mov_b64 {sp(sFULL)}, -1
    v_lshrrev_b32 v2, 4, v0            ; g
    v_and_b32 v3, 15, v0               ; m / c
    s_cmp_ge_u32 s{sWAVE}, 4
    s_cbranch_scc1 L_A
    """)
    gen_G(a)
    gen_A(a)
    a("""
    L_abort:
    L_end:
    s_endpgm
    """)
    return kernel_wrap(a.text(), 256, 768, LDS_BYTES, 168)

def gen_G(a):
    o = a.o
    vLane, vG, vM, vB, vN = 0, 2, 3, 4, 6
    vBG = 1
    vPP = 5
    vA0, vA1, vA2 = 7, 8, 9
    vPubH = 10
    vXW = 11
    vXR = vPP
    XR = 12
    AOP = 16
    ACC = 20
    RAWA, RAWB, T, GA = 24, 56, 88, 120
    u = sU
    sKS, sHQ, sP, sBA, sHKV, sFC2, sH, sCC = 52, 53, 54, 55, 56, 57, 58, 59
    a(f"""
    ; ---------------- G waves ----------------
    s_setprio 3
    s_mov_b32 s{u}, s{sWAVE}
    v_bfe_u32 v{vB}, v{vM}, 2, 1
    v_and_b32 v{vPP}, 3, v{vM}
    v_lshrrev_b32 v{vA0}, 3, v{vM}
    v_lshl_or_b32 v{vPP}, v{vA0}, 2, v{vPP}
    s_and_b32 s{sKS}, s2, 7
    s_lshr_b32 s{sHQ}, s2, 3
    v_mov_b32 v{vA0}, 0
    v_lshl_add_u32 v{vA1}, v{vPP}, 2, v{vG}
    v_lshlrev_b32 v{vA1}, 4, v{vA1}
    v_lshl_add_u32 v{vA1}, v{vB}, 11, v{vA1}
    s_lshl_b32 s{sTMP}, s{sKS}, 8
    s_lshl_b32 s{sTMP2}, s{u}, 6
    s_add_u32 s{sTMP}, s{sTMP}, s{sTMP2}
    v_lshlrev_b32 v{vA2}, 3, v{vG}
    v_lshl_add_u32 v{vA2}, v{vB}, 11, v{vA2}
    v_add_u32 v{vA2}, s{sTMP}, v{vA2}
    s_lshl_b32 s{sTMP}, s{sKS}, 7
    s_lshl_b32 s{sTMP2}, s{u}, 5
    s_add_u32 s{sTMP}, s{sTMP}, s{sTMP2}
    s_lshl_b32 s{sTMP}, s{sTMP}, 13          ; *8192
    s_lshl_b32 s{sTMP2}, s{sHQ}, 8
    s_add_u32 s{sTMP}, s{sTMP}, s{sTMP2}
    v_lshlrev_b32 v{vPubH}, 15, v{vG}          ; 4g*8192
    v_lshl_add_u32 v{vPubH}, v{vM}, 4, v{vPubH}
    s_waitcnt lgkmcnt(0)
    s_add_u32 s{sB0}, s{sWQ}, s{sTMP}
    s_addc_u32 s{sB0+1}, s{sWQ+1}, 0
    global_load_dword v{vN}, v{vA0}, {sp(sWS)} sc1
    """)
    for i in range(4):
        a(f"global_load_dwordx4 {vr(GA+4*i,4)}, v{vA1}, {sp(sX)} offset:{i*512}")
    a(f"global_load_dwordx2 {vr(XR,2)}, v{vA2}, {sp(sX)}")
    a(f"global_load_dwordx2 {vr(XR+2,2)}, v{vA2}, {sp(sX)} offset:32")
    if o.get("cpf", 0):
        a(f"""
        s_getpc_b64 {sp(sB1)}
        L_pc_here:
        s_sub_u32 s{sB1}, s{sB1}, L_pc_here-{KNAME}
        s_subb_u32 s{sB1+1}, s{sB1+1}, 0
        s_lshl_b32 s{sTMP}, s{u}, 13
        v_lshlrev_b32 v{vA0}, 7, v{vLane}
        v_add_u32 v{vA0}, s{sTMP}, v{vA0}
        v_min_u32 v{vA0}, L_end-{KNAME}, v{vA0}
        global_load_dword v{GA+44}, v{vA0}, {sp(sB1)}
        """)
    tch = o.get("touch", 0)
    if tch:
        a(f"""
        s_lshr_b32 s{sTMP2}, s{sKS}, 1               ; xi
        v_mov_b32 v{vA0}, 0x3f0000
        global_load_dword v{GA+44}, v{vA0}, {sp(sWS)}
        v_mov_b32 v{vA0}, 0
        """)
        if tch & 2: a(f"global_load_dword v{GA+45}, v{vA0}, {sp(sOUT)}")
        if tch & 4:
            a(f"""
            s_lshl_b32 s{sTMP}, s{sTMP2}, 3
            s_and_b32 s{sB1}, s{sHQ}, 7
            s_add_u32 s{sTMP}, s{sTMP}, s{sB1}
            s_lshl_b32 s{sTMP}, s{sTMP}, 18
            v_mov_b32 v{vA0}, s{sTMP}
            global_load_dword v{GA+46}, v{vA0}, {sp(sWO)}
            s_lshl_b32 s{sTMP}, s{sTMP2}, 1
            s_and_b32 s{sB1}, s{sHQ}, 1
            s_add_u32 s{sTMP}, s{sTMP}, s{sB1}
            s_mul_i32 s{sTMP}, s{sTMP}, {128*7168}
            v_mov_b32 v{vA0}, s{sTMP}
            global_load_dword v{GA+47}, v{vA0}, {sp(sW1)}
            s_mul_i32 s{sTMP}, s{sTMP2}, 7
            s_lshr_b32 s{sB1}, s{sHQ}, 2
            s_add_u32 s{sTMP}, s{sTMP}, s{sB1}
            s_min_u32 s{sTMP}, s{sTMP}, 27
            s_lshl_b32 s{sTMP}, s{sTMP}, 18
            v_mov_b32 v{vA0}, s{sTMP}
            global_load_dword v{GA+43}, v{vA0}, {sp(sW2)}
            """)
    ntouch = (1 + (1 if tch & 2 else 0) + (3 if tch & 4 else 0)) if tch else 0
    a.wload(RAWA, sB0, vPubH, STD_ROW, 8192)
    a(f"""
    s_mov_b32 s{sMHI}, 0
    s_mov_b32 s{sMHI+1}, -1
    s_mov_b32 s{sMB}, 0xf0f0f0f0
    s_mov_b32 s{sMB+1}, 0xf0f0f0f0
    s_mov_b32 s{sM1}, 0x22222222
    s_mov_b32 s{sM1+1}, 0x22222222
    v_mov_b32 v{ACC}, 0
    v_mov_b32 v{ACC+1}, 0
    v_mov_b32 v{ACC+2}, 0
    v_mov_b32 v{ACC+3}, 0
    s_lshl_b32 s{sTMP}, s{u}, 10
    v_lshl_add_u32 v{vA0}, v{vLane}, 4, s{sTMP}
    ds_write_b128 v{vA0}, {vr(ACC,4)} offset:{L_REDQ}
    v_and_b32 v{vA1}, 1, v{vLane}
    v_lshlrev_b32 v{vA1}, 4, v{vA1}
    ds_write_b128 v{vA1}, {vr(ACC,4)} offset:{L_CNT}
    s_waitcnt lgkmcnt(0)
    s_barrier        ; B0
    v_lshrrev_b32 v{vPubH}, 1, v{vG}
    v_lshl_add_u32 v{vPubH}, v{vM}, 1, v{vPubH}
    v_lshlrev_b32 v{vPubH}, 4, v{vPubH}      ; (2c+half)*16
    s_waitcnt vmcnt(8)
    """)
    a.stamp(1)
    a.nonce_from(vN)
    S0, S1, Q0, Q1, LO, HI = RAWB, RAWB+1, RAWB+2, RAWB+3, RAWB+4, RAWB+5
    for k in range(16):
        w = GA + k
        a(f"v_lshlrev_b32 v{LO}, 16, v{w}\n v_and_b32 v{HI}, 0xffff0000, v{w}")
        if k == 0:
            a(f"v_mov_b32 v{S0}, v{LO}\n v_mov_b32 v{S1}, v{HI}\n v_mul_f32 v{Q0}, v{LO}, v{LO}\n v_mul_f32 v{Q1}, v{HI}, v{HI}")
        else:
            a(f"v_add_f32 v{S0}, v{S0}, v{LO}\n v_add_f32 v{S1}, v{S1}, v{HI}\n v_fmac_f32 v{Q0}, v{LO}, v{LO}\n v_fmac_f32 v{Q1}, v{HI}, v{HI}")
    a(f"v_add_f32 v{S0}, v{S0}, v{S1}\n v_add_f32 v{S1}, v{Q0}, v{Q1}")
    a.dpp("v_add_f32", [S0, S1], (XOR1, XOR2, ROR8))
    a.allreduce_g([S0, S1], [Q0, Q1])
    MEAN, RSTD = S0, S1
    a(f"""
    v_mul_f32 v{MEAN}, 0x3a800000, v{S0}        ; /1024
    v_mul_f32 v{Q0}, 0x3a800000, v{S1}
    v_fma_f32 v{Q0}, -v{MEAN}, v{MEAN}, v{Q0}
    v_max_f32 v{Q0}, 0, v{Q0}
    v_add_f32 v{Q0}, 0x3727c5ac, v{Q0}           ; + 1e-5
    v_rsq_f32 v{RSTD}, v{Q0}
    """)
    XF = RAWB + 8
    for q in range(4):
        a(f"v_lshlrev_b32 v{XF+2*q}, 16, v{XR+q}\n v_and_b32 v{XF+2*q+1}, 0xffff0000, v{XR+q}")
    for e in range(8):
        a(f"v_sub_f32 v{XF+e}, v{XF+e}, v{MEAN}")
    for e in range(8):
        a(f"v_mul_f32 v{XF+e}, v{XF+e}, v{RSTD}")
    for q in range(4):
        a(f"v_cvt_pk_bf16_f32 v{AOP+q}, v{XF+2*q}, v{XF+2*q+1}")
    a("s_waitcnt vmcnt(0)")
    a.stamp(2)
    a.perm_unit(RAWA, T)
    a("s_nop 1")
    a.mfma8(RAWB, AOP, T)
    a("s_nop 7")
    X = ACC
    a.select(X, RAWB, 0)
    a.tag(X, X, vN)
    a(f"""
    ds_write_b128 v{vA0}, {vr(X,4)} offset:{L_REDQ}
    s_cmp_lg_u32 s{u}, 0
    s_cbranch_scc1 L_q_nored
    v_lshlrev_b32 v{vA0}, 4, v{vLane}
    """)
    def iss():
        for w in range(4):
            a(f"ds_read_b128 {vr(GA+4*w,4)}, v{vA0} offset:{L_REDQ + w*1024}")
    a.spin("redq", iss, [GA, GA+4, GA+8, GA+12], ACC, waitstr="s_waitcnt lgkmcnt(0)")
    reduce4(a, GA, X, vN)
    a(f"""
    s_lshl_b32 s{sTMP}, s{sHQ}, 13
    s_lshl_b32 s{sTMP2}, s{sKS}, 9
    s_add_u32 s{sTMP}, s{sTMP}, s{sTMP2}
    s_add_u32 s{sTMP}, s{sTMP}, {WS_QP}
    v_and_b32 v{vA0}, 1, v{vG}
    v_lshl_add_u32 v{vA0}, v{vA0}, 12, v{vPubH}
    v_add_u32 v{vA0}, s{sTMP}, v{vA0}
    global_store_dwordx4 v{vA0}, {vr(X,4)}, {sp(sWS)} sc1
    L_q_nored:
    """)
    a.stamp(3)
    sXI, sSLOT, sCCP, sKSB, sFCP = 54, 55, 56, 57, 59
    sHA, sFC = 58, 53
    a(f"""
    s_and_b32 s{sTMP}, s2, 7
    s_lshr_b32 s{sB1}, s{sTMP}, 2
    s_and_b32 s{sB1+1}, s{sTMP}, 3
    {'s_and_b32 s%d, s%d, 3' % (sXI, sTMP) if o.get("xmap", 0) == 2 else 's_lshr_b32 s%d, s%d, 1' % (sXI, sTMP)}
    s_lshr_b32 s{sSLOT}, s2, 3
    s_lshl_b32 s{sHA}, s{sXI}, 3
    s_and_b32 s{sTMP}, s{sSLOT}, 7
    s_add_u32 s{sHA}, s{sHA}, s{sTMP}
    s_and_b32 s{sTMP}, s{sSLOT}, 1
    s_lshl_b32 s{sKSB}, s{sXI}, 1
    s_add_u32 s{sKSB}, s{sKSB}, s{sTMP}
    s_lshr_b32 s{sFCP}, s{sSLOT}, 1
    s_lshr_b32 s{sTMP}, s{sSLOT}, 2
    s_mul_i32 s{sFC}, s{sXI}, 7
    s_add_u32 s{sFC}, s{sFC}, s{sTMP}
    s_lshl_b32 s{sTMP}, s{sKSB}, 8
    s_lshl_b32 s{sTMP2}, s{u}, 6
    s_add_u32 s{sTMP}, s{sTMP}, s{sTMP2}
    v_lshlrev_b32 v{vA2}, 3, v{vG}
    v_lshl_add_u32 v{vA2}, v{vB}, 11, v{vA2}
    v_add_u32 v{vA2}, s{sTMP}, v{vA2}
    global_load_dwordx2 {vr(XR,2)}, v{vA2}, {sp(sX)}
    global_load_dwordx2 {vr(XR+2,2)}, v{vA2}, {sp(sX)} offset:32
    v_and_b32 v{vBG}, 31, v{vLane}
    v_lshlrev_b32 v{vBG}, 4, v{vBG}             ; gi*16
    v_lshrrev_b32 v{vA0}, 5, v{vLane}
    v_mul_u32_u24 v{vA0}, 544, v{vA0}
    v_add_u32 v{vXW}, v{vA0}, v{vBG}
    v_and_b32 v{vA0}, 3, v{vM}
    v_mul_u32_u24 v{vA0}, 1088, v{vA0}
    v_mul_u32_u24 v{vA1}, 544, v{vB}
    v_add_u32 v{vA0}, v{vA0}, v{vA1}
    v_lshl_add_u32 v{vXR}, v{vG}, 4, v{vA0}
    s_mul_i32 s{sTMP}, s{u}, 1088
    v_add_u32 v{vXW}, s{sTMP}, v{vXW}
    s_lshl_b32 s{sTMP}, s{u}, 7
    v_add_u32 v{vXR}, s{sTMP}, v{vXR}
    """)
    if o.get("dry", 1):
        a(f"""
        s_mov_b64 {sp(sFULL)}, 0
        s_mov_b64 exec, 0
        s_branch L_tail
        L_dry_done:
        s_mov_b64 {sp(sFULL)}, -1
        s_mov_b64 exec, -1
        s_setprio 3
        """)
    a.stamp(4)
    QG = RAWB
    a(f"""
    s_and_b32 s{sTMP}, s2, 3                   ; hkv
    s_lshl_b32 s{sTMP}, s{sTMP}, 3
    s_lshl_b32 s{sTMP2}, s{u}, 1
    s_add_u32 s{sTMP}, s{sTMP}, s{sTMP2}
    s_lshl_b32 s{sTMP}, s{sTMP}, 1
    s_bfe_u32 s{sTMP2}, s2, 0x10002            ; b = (wg>>2)&1
    s_add_u32 s{sTMP}, s{sTMP}, s{sTMP2}
    s_lshl_b32 s{sTMP}, s{sTMP}, 12
    s_add_u32 s{sTMP}, s{sTMP}, {WS_QP}
    s_add_u32 s{sWQ}, s{sWS}, s{sTMP}
    s_addc_u32 s{sWQ+1}, s{sWS+1}, 0
    s_add_u32 s{sB1}, s{sWQ}, 8192
    s_addc_u32 s{sB1+1}, s{sWQ+1}, 0
    v_lshlrev_b32 v{vA2}, 4, v{vLane}
    """)
    def issq():
        for hh, sb in ((0, sWQ), (1, sB1)):
            for i in range(4):
                a(f"global_load_dwordx4 {vr(QG+16*hh+4*i,4)}, v{vA2}, {sp(sb)} offset:{i*1024} sc1")
    a.spin("qg", issq, [QG+4*i for i in range(8)], ACC, sleep=o.get("qsleep", 4))
    for hh in range(2):
        base = QG + 16*hh
        for t in range(4):
            a(f"v_add_f32 v{base+t}, v{base+t}, v{base+4+t}\n v_add_f32 v{base+8+t}, v{base+8+t}, v{base+12+t}")
        for t in range(4):
            a(f"v_add_f32 v{base+t}, v{base+t}, v{base+8+t}")
    a("s_nop 1")
    for t in range(4):
        a(f"v_permlane32_swap_b32 v{QG+t}, v{QG+16+t}")
    a("s_nop 1")
    for t in range(4):
        a(f"v_add_f32 v{QG+t}, v{QG+t}, v{QG+16+t}")
    a(f"""
    v_cvt_pk_bf16_f32 v{QG+4}, v{QG}, v{QG+1}
    v_cvt_pk_bf16_f32 v{QG+5}, v{QG+2}, v{QG+3}
    v_lshrrev_b32 v{vA0}, 5, v{vLane}            ; kq
    s_lshl_b32 s{sTMP}, s{u}, 1
    v_add_u32 v{vA0}, s{sTMP}, v{vA0}            ; head
    v_mul_u32_u24 v{vA0}, 272, v{vA0}
    v_and_b32 v{vA1}, 31, v{vLane}
    v_lshl_add_u32 v{vA0}, v{vA1}, 3, v{vA0}
    ds_write_b64 v{vA0}, {vr(QG+4,2)} offset:{L_Q}
    v_mov_b32 v{vA1}, 0
    v_mov_b32 v{vA2}, 1
    s_waitcnt lgkmcnt(0)
    s_mov_b64 exec, 1
    ds_add_u32 v{vA1}, v{vA2} offset:{L_CNT}
    s_mov_b64 exec, -1
    """)
    a.stamp(5)
    a(f"s_setprio {o.get('gprio', 1)}")

    def wunit(dst, sptr, voffn, rowfn, rs):
        prev = 0
        for i in range(8):
            d = rowfn(i) - prev
            if d > 0: a(f"s_add_u32 s{sptr}, s{sptr}, {d*rs}\n s_addc_u32 s{sptr+1}, s{sptr+1}, 0")
            elif d < 0: a(f"s_sub_u32 s{sptr}, s{sptr}, {-d*rs}\n s_subb_u32 s{sptr+1}, s{sptr+1}, 0")
            prev = rowfn(i)
            a(f"global_load_dwordx4 {vr(dst+4*i, 4)}, v{voffn}, {sp(sptr)} nt")
    def wpair(dst0, dst1, sptr_src, rowbase_code, rs, gshift_code, rowfn):
        a(rowbase_code)
        a(f"""
        s_add_u32 s{sB0}, s{sptr_src}, s{sTMP}
        s_addc_u32 s{sB0+1}, s{sptr_src+1}, 0
        s_add_u32 s{sR1}, s{sB0}, 256
        s_addc_u32 s{sR1+1}, s{sB0+1}, 0""")
        a(gshift_code)
        a.guard(lambda: (wunit(dst0, sB0, vA1, rowfn, rs), wunit(dst1, sR1, vA1, rowfn, rs)))
    sR1 = 6
    def sweep(name, issue, grans, shadow, sleep):
        L = a.lab(name); Lc = a.lab(name + "c"); Lok = a.lab(name + "ok")
        a(f"s_mov_b32 s{sSPIN}, 0")
        a.guard(issue)
        shadow()
        a(f"s_branch {Lc}")
        a.label(L)
        a.guard(issue)
        a.label(Lc)
        a.guard(lambda: a("s_waitcnt vmcnt(0)"))
        a.check(grans, ACC)
        a("s_nop 0")
        a(f"s_cbranch_vccz {Lok}")
        a(f"s_add_u32 s{sSPIN}, s{sSPIN}, 1")
        if sleep: a(f"s_sleep {sleep}")
        a(f"s_cmp_lt_u32 s{sSPIN}, {SPIN_LIMIT}")
        a(f"s_cbranch_scc1 {L}")
        a("s_branch L_abort")
        a.label(Lok)
    HS = [AOP, GA+40, GA+44]
    D = GA
    vals = [GA + 32 + e for e in range(8)]
    psl = o.get("psleep", 1)
    def exchange(lbuf):
        a(f"ds_write_b128 v{vXW}, {vr(GA,4)} offset:{lbuf}")
        a.gbarrier()
        a(f"""
        ds_read_b128 {vr(vals[0],4)}, v{vXR} offset:{lbuf}
        ds_read_b128 {vr(vals[4],4)}, v{vXR} offset:{lbuf + 64}
        s_waitcnt lgkmcnt(0)""")
        a.dpp("v_add_f32", vals, (XOR1, XOR2))
    def red_pub2(name, D1, lb0, lb1, addr):
        L = a.lab("nored" + name)
        R = GA + 32
        a.select(ACC, D, 0)
        a(f"ds_write_b128 v{vA0}, {vr(ACC,4)} offset:{lb0}")
        a.select(AOP, D1, 0)
        a(f"ds_write_b128 v{vA0}, {vr(AOP,4)} offset:{lb1}")
        a.gbarrier()
        a(f"""
        s_cmp_ge_u32 s{sU}, 2
        s_cbranch_scc1 {L}
        s_mul_i32 s{sTMP}, s{sU}, {lb1 - lb0}
        v_lshl_add_u32 v{vA0}, v{vLane}, 4, s{sTMP}""")
        for w in range(4):
            a(f"ds_read_b128 {vr(R+4*w,4)}, v{vA0} offset:{lb0 + w*1024}")
        addr()
        a("s_waitcnt lgkmcnt(0)")
        reduce4(a, R, ACC, vN)
        a.guard(lambda: a(f"global_store_dwordx4 v{vA0}, {vr(ACC,4)}, {sp(sWS)} sc1"))
        a.label(L)
    def o_hint_setup(hreg):
        a(f"""
        s_lshl_b32 s{sTMP2}, s{hreg}, 14                ; h*32*512
        s_lshl_b32 s{sTMP}, s{u}, 12                  ; 8u*512
        s_add_u32 s{sTMP2}, s{sTMP2}, s{sTMP}
        s_add_u32 s{sTMP2}, s{sTMP2}, {WS_OP}
        s_add_u32 s{sWQ}, s{sWS}, s{sTMP2}
        s_addc_u32 s{sWQ+1}, s{sWS+1}, 0
        v_lshrrev_b32 v{vA1}, 5, v{vLane}
        v_lshl_add_u32 v{vA2}, v{vA1}, 19, v{vBG}      ; b<<19 + gi*16
        """)
        if o.get("fullhint", 0):
            a(f"""
            v_bfe_u32 v{vA0}, v{vLane}, 2, 3            ; row i = (l>>2)&7
            v_lshlrev_b32 v{vA0}, 9, v{vA0}
            v_and_b32 v{GA+30}, 3, v{vLane}
            v_lshl_add_u32 v{vA0}, v{GA+30}, 7, v{vA0}   ; + line*128
            v_lshl_add_u32 v{vA0}, v{vA1}, 19, v{vA0}    ; + b<<19   (b = l>>5)
            """)
        else:
            a(f"""
            v_bfe_u32 v{vA1}, v{vLane}, 3, 1
            v_and_b32 v{vA0}, 7, v{vLane}
            v_lshlrev_b32 v{vA0}, 9, v{vA0}
            v_lshl_add_u32 v{vA0}, v{vA1}, 19, v{vA0}
            """)
    a("L_tail:")
    a(f"""
    s_bitcmp1_b32 s2, {2 if o.get("xmap", 0) == 2 else 0}
    s_cbranch_scc{(1 if o.get("xpar", 1) else 0) if o.get("xmap", 0) == 2 else (0 if o.get("xpar", 1) else 1)} L_Y
    """)
    def load_wo(which=(0, 1)):
        code = f"""
            s_lshl_b32 s{sTMP}, s{sHA}, 7
            s_lshl_b32 s{sTMP2}, s{u}, 5
            s_add_u32 s{sTMP}, s{sTMP}, s{sTMP2}
            s_lshl_b32 s{sTMP}, s{sTMP}, 11
            s_lshr_b32 s{sTMP2}, s{sSLOT}, 3
            s_lshl_b32 s{sTMP2}, s{sTMP2}, 9
            s_add_u32 s{sTMP}, s{sTMP}, s{sTMP2}"""
        a(code)
        a(f"""
        s_add_u32 s{sB0}, s{sWO}, s{sTMP}
        s_addc_u32 s{sB0+1}, s{sWO+1}, 0
        s_add_u32 s{sR1}, s{sB0}, 256
        s_addc_u32 s{sR1+1}, s{sB0+1}, 0
        v_lshlrev_b32 v{vA1}, 12, v{vG}             ; 2g*2048
        v_lshl_add_u32 v{vA1}, v{vM}, 4, v{vA1}""")
        def body():
            if 0 in which: wunit(RAWA, sB0, vA1, WO_ROW, 2048)
            if 1 in which: wunit(RAWB, sR1, vA1, WO_ROW, 2048)
        a.guard(body)
    wop = o.get("wop", 0)
    if wop in (0, 2):
        a(f"v_mov_b32 v{vA1}, 0")
        a.ldswait("vw", vA1, vA2, L_CNT+4, 8)
        a(f"s_setprio {o.get('woprio', 0)}")
        load_wo((0, 1) if wop == 0 else (0,))
    a(f"s_setprio {o.get('gprio', 1)}")
    a.stamp(6)
    a.guard(lambda: a("s_barrier      ; B3\n s_barrier      ; B4"))
    if wop == 1: load_wo()
    if wop == 2: load_wo((1,))
    a.stamp(7)
    a(f"""
    s_lshl_b32 s{sTMP}, s{sHA}, 9
    s_add_u32 s{sTMP}, s{sTMP}, {WS_ML}
    v_lshrrev_b32 v{vA1}, 5, v{vLane}             ; b
    v_lshl_add_u32 v{GA+47}, v{vA1}, 14, v{vBG}
    v_add_u32 v{GA+47}, s{sTMP}, v{GA+47}
    """)
    o_hint_setup(sHA)
    HSA = [AOP, GA+36, GA+40]
    if not o.get("fullhint", 0): a.mask("0xffff", "0")
    a.pspin("hO", lambda r: a(f"global_load_dwordx4 {vr(r,4)}, v{vA0}, {sp(sWQ)} sc1"), HSA, ACC, sleep=psl)
    a.full()
    a.stamp(8)
    MLR = GA + 32
    def issA():
        a(f"v_mov_b32 v{vA1}, v{GA+47}")
        a(f"global_load_dwordx4 {vr(MLR,4)}, v{vA1}, {sp(sWS)} sc1")
        for i in range(8):
            a(f"global_load_dwordx4 {vr(GA+4*i,4)}, v{vA2}, {sp(sWQ)} offset:{i*512} sc1")
    MM, LLr, TT = GA+44, GA+45, GA+46
    def factors():
        a(f"v_mov_b32 v{MM}, v{MLR}")
        a.dpp("v_max_f32", [MM], (XOR1, XOR2, ROR4, ROR8))
        a.allreduce_g([MM], [TT], "v_max_f32", steps=("v_permlane16_swap_b32",))
        a(f"""
        v_sub_f32 v{MM}, v{MLR}, v{MM}
        v_exp_f32 v{MM}, v{MM}
        s_nop 0
        v_mul_f32 v{LLr}, v{MM}, v{MLR+1}""")
        a.dpp("v_add_f32", [LLr], (XOR1, XOR2, ROR4, ROR8))
        a.allreduce_g([LLr], [TT], "v_add_f32", steps=("v_permlane16_swap_b32",))
        a(f"""
        v_rcp_f32 v{LLr}, v{LLr}
        s_nop 0
        v_mul_f32 v{MM}, v{MM}, v{LLr}
        s_lshl_b32 s{sTMP}, s{u}, 8
        v_lshl_add_u32 v{vA0}, v{vLane}, 2, s{sTMP}
        ds_write_b32 v{vA0}, v{MM} offset:{L_FAC}
        v_lshrrev_b32 v{vA1}, 5, v{vLane}
        s_lshl_b32 s{sTMP2}, s{u}, 5
        s_add_u32 s{sTMP}, s{sTMP}, s{sTMP2}
        v_lshl_add_u32 v{vA0}, v{vA1}, 7, s{sTMP}      ; u*256 + b*128 + 8u*4
        ds_read_b128 {vr(AOP,4)}, v{vA0} offset:{L_FAC}
        ds_read_b128 {vr(GA+40,4)}, v{vA0} offset:{L_FAC+16}
        """)
    L = a.lab("swA"); Lok = a.lab("swAok")
    a(f"s_mov_b32 s{sSPIN}, 0")
    a.guard(issA)
    a.perm_unit(RAWA, T)
    a.perm_unit(RAWB, RAWA)
    a.label(L)
    a.guard(lambda: a("s_waitcnt vmcnt(8)"))
    for t in range(4):
        a(f"v_xor_b32 v{ACC+t}, s{sT[t]}, v{MLR+t}")
    a(f"v_or3_b32 v{GA+39}, v{ACC}, v{ACC+1}, v{ACC+2}")
    a(f"v_or_b32 v{GA+39}, v{GA+39}, v{ACC+3}")
    factors()
    a.guard(lambda: a("s_waitcnt vmcnt(0)"))
    for gi in range(8):
        for i in range(4):
            if gi == 0:
                a(f"v_xor_b32 v{ACC+i}, s{sT[i]}, v{GA+i}")
            else:
                a(f"v_bitop3_b32 v{ACC+i}, v{GA+4*gi+i}, s{sT[i]}, v{ACC+i} bitop3:0xbe")
    a(f"v_or3_b32 v{ACC}, v{ACC}, v{ACC+1}, v{ACC+2}\n v_or3_b32 v{ACC}, v{ACC}, v{ACC+3}, v{GA+39}\n v_and_b32 v{ACC}, 0xff, v{ACC}\n v_cmp_ne_u32 vcc, 0, v{ACC}")
    a(f"s_nop 0\n s_cbranch_vccz {Lok}")
    a(f"s_add_u32 s{sSPIN}, s{sSPIN}, 1\n s_sleep 1\n s_waitcnt lgkmcnt(0)")
    a.guard(issA)
    a(f"s_cmp_lt_u32 s{sSPIN}, {SPIN_LIMIT}\n s_cbranch_scc1 {L}\n s_branch L_abort")
    a.label(Lok)
    a.stamp(9)
    FACR = [AOP, AOP+1, AOP+2, AOP+3, GA+40, GA+41, GA+42, GA+43]
    a("s_waitcnt lgkmcnt(0)")
    for t in range(4):
        a(f"v_mul_f32 v{GA+t}, v{GA+t}, v{FACR[0]}")
    for i in range(1, 8):
        for t in range(4):
            a(f"v_fmac_f32 v{GA+t}, v{GA+4*i+t}, v{FACR[i]}")
    exchange(L_XA_A)
    for q in range(4):
        a(f"v_cvt_pk_bf16_f32 v{AOP+q}, v{vals[2*q]}, v{vals[2*q+1]}")
    a("s_nop 1")
    a.mfma8(D, AOP, T)
    a.mfma8(RAWB, AOP, RAWA)
    a(f"s_lshl_b32 s{sTMP}, s{sU}, 10\n v_lshl_add_u32 v{vA0}, v{vLane}, 4, s{sTMP}")
    red_pub2("a", RAWB, L_RA0, L_RA1, lambda: a(f"""
        s_lshr_b32 s{sTMP}, s{sSLOT}, 3
        s_lshl_b32 s{sTMP}, s{sTMP}, 1
        s_add_u32 s{sTMP}, s{sTMP}, s{sU}          ; cc
        s_lshl_b32 s{sTMP}, s{sTMP}, 6
        s_add_u32 s{sTMP}, s{sTMP}, s{sHA}
        s_lshl_b32 s{sTMP}, s{sTMP}, 9
        s_add_u32 s{sTMP}, s{sTMP}, {WS_AP}
        v_and_b32 v{vA0}, 1, v{vG}
        v_lshl_add_u32 v{vA0}, v{vA0}, 14, v{vPubH}
        v_add_u32 v{vA0}, s{sTMP}, v{vA0}"""))
    a.stamp(10)
    a.gbarrier()
    a(f"""
    s_cmp_ge_u32 s{sSLOT}, 28
    s_cbranch_scc1 L_skipC1
    """)
    wpair(T, RAWB, sW2, f"""
        s_lshl_b32 s{sTMP}, s{sFC}, 7
        s_lshl_b32 s{sTMP2}, s{u}, 5
        s_add_u32 s{sTMP}, s{sTMP}, s{sTMP2}
        s_lshl_b32 s{sTMP}, s{sTMP}, 11
        s_and_b32 s{sTMP2}, s{sSLOT}, 3
        s_lshl_b32 s{sTMP2}, s{sTMP2}, 9
        s_add_u32 s{sTMP}, s{sTMP}, s{sTMP2}""", 2048, f"""
        v_lshlrev_b32 v{vA1}, 13, v{vG}           ; 4g*2048
        v_lshl_add_u32 v{vA1}, v{vM}, 4, v{vA1}""", STD_ROW)
    a(f"""
    s_lshl_b32 s{sTMP}, s{sFC}, 7
    s_add_u32 s{sTMP}, s{sTMP}, {WS_FPS}
    v_and_b32 v{vA0}, 7, v{vLane}
    v_lshl_add_u32 v{vA0}, v{vA0}, 4, s{sTMP}
    s_lshl_b32 s{sTMP}, s{sFC}, 13           ; fc*2*8*512
    s_lshl_b32 s{sTMP2}, s{u}, 10             ; 2u*512
    s_add_u32 s{sTMP}, s{sTMP}, s{sTMP2}
    s_add_u32 s{sTMP}, s{sTMP}, {WS_FPP}
    s_add_u32 s{sWQ}, s{sWS}, s{sTMP}
    s_addc_u32 s{sWQ+1}, s{sWS+1}, 0
    s_lshl_b32 s{sTMP}, s{sFC}, 12           ; fc*8*512
    s_add_u32 s{sTMP}, s{sTMP}, s{sTMP2}
    s_add_u32 s{sTMP}, s{sTMP}, {WS_FPC}
    s_add_u32 s{sB1}, s{sWS}, s{sTMP}
    s_addc_u32 s{sB1+1}, s{sWS+1}, 0
    v_lshrrev_b32 v{vA1}, 5, v{vLane}
    v_lshl_add_u32 v{vA2}, v{vA1}, 12, v{vBG}   ; b*8*512 + gi*16
    """)
    a.guard(lambda: a("s_waitcnt vmcnt(0)"))
    a.perm_unit(T, RAWA)
    a.perm_unit(RAWB, T)
    a.stamp(13)
    ST = GA + 36
    a.pspin("hC", lambda r: a(f"global_load_dwordx4 {vr(r,4)}, v{vA0}, {sp(sWS)} sc1"), HS, ACC, dst=ST, sleep=psl)
    a.stamp(14)
    MEANB, RS0, RS1 = GA+32, GA+33, GA+34
    def issC():
        for k in range(2):
            a(f"global_load_dwordx4 {vr(GA+4*k,4)}, v{vA2}, {sp(sWQ)} offset:{k*512} sc1")
        for k in range(2):
            a(f"global_load_dwordx4 {vr(GA+8+4*k,4)}, v{vBG}, {sp(sB1)} offset:{k*512} sc1")
    def shadowC():
        a.dpp("v_add_f32", [ST, ST+1, ST+2, ST+3], (XOR1, XOR2, ROR4))
        a(f"""
        v_mul_f32 v{ST}, 0x3a800000, v{ST}
        v_mul_f32 v{ST+2}, 0x3a800000, v{ST+2}
        v_mul_f32 v{ST+1}, 0x3a800000, v{ST+1}
        v_mul_f32 v{ST+3}, 0x3a800000, v{ST+3}
        v_cndmask_b32 v{MEANB}, v{ST}, v{ST+2}, {sp(sMHI)}
        v_fma_f32 v{ST+1}, -v{ST}, v{ST}, v{ST+1}
        v_fma_f32 v{ST+3}, -v{ST+2}, v{ST+2}, v{ST+3}
        v_max_f32 v{ST+1}, 0, v{ST+1}
        v_max_f32 v{ST+3}, 0, v{ST+3}
        v_add_f32 v{ST+1}, 0x3727c5ac, v{ST+1}
        v_add_f32 v{ST+3}, 0x3727c5ac, v{ST+3}
        v_rsq_f32 v{RS0}, v{ST+1}
        v_rsq_f32 v{RS1}, v{ST+3}
        s_nop 0
        v_cndmask_b32 v{GA+35}, v{RS0}, v{RS1}, {sp(sMB)}
        """)
    sweep("gC", issC, [GA+4*i for i in range(4)], shadowC, o.get("csleep", 1))
    a.stamp(15)
    RSB = GA + 40
    for t in range(4):
        a(f"v_add_f32 v{GA+t}, v{GA+t}, v{GA+4+t}\n v_add_f32 v{GA+8+t}, v{GA+8+t}, v{GA+12+t}")
    for t in range(4):
        a(f"v_fma_f32 v{GA+t}, -v{MEANB}, v{GA+8+t}, v{GA+t}")
    a(f"v_mov_b32 v{RSB}, v{GA+35}")
    exchange(L_XA_C)
    for e in range(8):
        a(f"v_mul_f32 v{vals[e]}, v{vals[e]}, v{RSB}")
    E = GA + 8
    for e in range(8):
        a(f"v_mul_f32 v{E+e}, 0xbfb8aa3b, v{vals[e]}      ; -log2e * x")
    for e in range(8):
        a(f"v_exp_f32 v{E+e}, v{E+e}")
    for e in range(8):
        a(f"v_add_f32 v{E+e}, 1.0, v{E+e}")
    for e in range(8):
        a(f"v_rcp_f32 v{E+e}, v{E+e}")
    for e in range(8):
        a(f"v_mul_f32 v{vals[e]}, v{vals[e]}, v{E+e}")
    for q in range(4):
        a(f"v_cvt_pk_bf16_f32 v{AOP+q}, v{vals[2*q]}, v{vals[2*q+1]}")
    a("s_nop 1")
    a.mfma8(D, AOP, RAWA)
    a.mfma8(RAWB, AOP, T)
    a(f"s_lshl_b32 s{sTMP}, s{sU}, 10\n v_lshl_add_u32 v{vA0}, v{vLane}, 4, s{sTMP}")
    red_pub2("c", RAWB, L_RD0, L_RD1, lambda: a(f"""
        s_and_b32 s{sTMP}, s{sSLOT}, 3
        s_lshl_b32 s{sTMP}, s{sTMP}, 1
        s_add_u32 s{sTMP}, s{sTMP}, s{sU}          ; cc
        s_mul_i32 s{sTMP}, s{sTMP}, 56
        s_add_u32 s{sTMP}, s{sTMP}, s{sFC}
        s_lshl_b32 s{sTMP}, s{sTMP}, 9
        s_add_u32 s{sTMP}, s{sTMP}, {WS_O2}
        v_and_b32 v{vA0}, 1, v{vG}
        v_mul_u32_u24 v{vA0}, {28*512}, v{vA0}
        v_add3_u32 v{vA0}, v{vA0}, v{vPubH}, s{sTMP}"""))
    a("L_skipC1:")
    a.stamp(16)
    a("s_branch L_D")
    a("L_Y:")
    a.stamp(6)
    a.guard(lambda: a("s_barrier      ; B3\n s_barrier      ; B4"))
    a.stamp(7)
    a(f"""
    s_cmp_ge_u32 s{sFCP}, 14
    s_cbranch_scc1 L_D
    """)
    if o.get("ytrig", 1):
        o_hint_setup(sHA)
        a(f"""
        v_bfe_u32 v{vA1}, v{vLane}, 3, 1
        v_and_b32 v{vA0}, 7, v{vLane}
        v_lshlrev_b32 v{vA0}, 9, v{vA0}
        v_lshl_add_u32 v{vA0}, v{vA1}, 19, v{vA0}
        """)
        a.mask("0xffff", "0")
        a.pspin("hY", lambda r: a(f"global_load_dwordx4 {vr(r,4)}, v{vA0}, {sp(sWQ)} sc1"), HS, ACC, sleep=o.get("ysleep", 3), thr=o.get("ythr", 0))
        a.full()
    a.stamp(8)
    wpair(RAWA, RAWB, sW1, f"""
        s_lshl_b32 s{sTMP}, s{sKSB}, 7
        s_lshl_b32 s{sTMP2}, s{u}, 5
        s_add_u32 s{sTMP}, s{sTMP}, s{sTMP2}
        s_mul_i32 s{sTMP}, s{sTMP}, 7168
        s_lshl_b32 s{sTMP2}, s{sFCP}, 9
        s_add_u32 s{sTMP}, s{sTMP}, s{sTMP2}""", 7168, f"""
        v_mul_u32_u24 v{vA1}, {4*7168}, v{vG}
        v_lshl_add_u32 v{vA1}, v{vM}, 4, v{vA1}""", STD_ROW)
    a(f"""
    s_lshl_b32 s{sTMP}, s{sKSB}, 15            ; ks*2*32*512
    s_lshl_b32 s{sTMP2}, s{u}, 12
    s_add_u32 s{sTMP}, s{sTMP}, s{sTMP2}
    s_add_u32 s{sTMP}, s{sTMP}, {WS_AP}
    s_add_u32 s{sWQ}, s{sWS}, s{sTMP}
    s_addc_u32 s{sWQ+1}, s{sWS+1}, 0
    v_lshrrev_b32 v{vA1}, 5, v{vLane}
    v_lshl_add_u32 v{vA2}, v{vA1}, 14, v{vBG}
    """)
    if o.get("fullhint", 0):
        a(f"""
        v_bfe_u32 v{vA0}, v{vLane}, 2, 3
        v_lshlrev_b32 v{vA0}, 9, v{vA0}
        v_and_b32 v{GA+30}, 3, v{vLane}
        v_lshl_add_u32 v{vA0}, v{GA+30}, 7, v{vA0}
        v_lshl_add_u32 v{vA0}, v{vA1}, 14, v{vA0}
        """)
    else:
        a(f"""
        v_bfe_u32 v{vA1}, v{vLane}, 3, 1
        v_and_b32 v{vA0}, 7, v{vLane}
        v_lshlrev_b32 v{vA0}, 9, v{vA0}
        v_lshl_add_u32 v{vA0}, v{vA1}, 14, v{vA0}
        """)
    a.guard(lambda: a("s_waitcnt vmcnt(0)"))
    a.perm_unit(RAWA, T)
    a.perm_unit(RAWB, RAWA)
    a.stamp(10)
    if not o.get("fullhint", 0): a.mask("0xffff", "0")
    a.pspin("hB", lambda r: a(f"global_load_dwordx4 {vr(r,4)}, v{vA0}, {sp(sWQ)} sc1"), HS, ACC, sleep=psl)
    a.full()
    a.stamp(11)
    def issB():
        for i in range(8):
            a(f"global_load_dwordx4 {vr(GA+4*i,4)}, v{vA2}, {sp(sWQ)} offset:{i*512} sc1")
    XF = GA + 48 - 8
    sweep("gB", issB, [GA+4*i for i in range(8)], lambda: None, o.get("bsleep", 1))
    a.stamp(12)
    for k in (0, 8, 16, 24):
        a(f"v_pk_add_f32 {vr(GA+k,2)}, {vr(GA+k,2)}, {vr(GA+k+4,2)}\n v_pk_add_f32 {vr(GA+k+2,2)}, {vr(GA+k+2,2)}, {vr(GA+k+6,2)}")
    for k in (0, 16):
        a(f"v_pk_add_f32 {vr(GA+k,2)}, {vr(GA+k,2)}, {vr(GA+k+8,2)}\n v_pk_add_f32 {vr(GA+k+2,2)}, {vr(GA+k+2,2)}, {vr(GA+k+10,2)}")
    a(f"v_pk_add_f32 {vr(GA,2)}, {vr(GA,2)}, {vr(GA+16,2)}\n v_pk_add_f32 {vr(GA+2,2)}, {vr(GA+2,2)}, {vr(GA+18,2)}")
    a(f"ds_write_b128 v{vXW}, {vr(GA,4)} offset:{L_XA_B}")
    for q in range(4):
        a(f"v_lshlrev_b32 v{XF+2*q}, 16, v{XR+q}\n v_and_b32 v{XF+2*q+1}, 0xffff0000, v{XR+q}")
    a.gbarrier()
    a(f"""
    ds_read_b128 {vr(vals[0],4)}, v{vXR} offset:{L_XA_B}
    ds_read_b128 {vr(vals[4],4)}, v{vXR} offset:{L_XA_B + 64}
    v_mov_b32 v{ACC}, 0x3f803f80
    s_waitcnt lgkmcnt(0)""")
    a.dpp("v_add_f32", vals, (XOR1, XOR2))
    for e in range(0, 8, 2):
        a(f"v_pk_add_f32 {vr(XF+e,2)}, {vr(XF+e,2)}, {vr(vals[e],2)}")
    HP_ = XR
    for q in range(4):
        a(f"v_cvt_pk_bf16_f32 v{HP_+q}, v{XF+2*q}, v{XF+2*q+1}")
    a("s_nop 0")
    for q in range(4):
        a(f"v_cndmask_b32 v{AOP+q}, v{HP_+q}, v{ACC}, {sp(sM1)}")
    a("s_nop 1")
    DX = GA + 44
    a(f"v_mfma_f32_16x16x32_bf16 {vr(DX,4)}, {vr(AOP,4)}, {vr(AOP,4)}, 0")
    a.mfma8(D, AOP, T)
    a.mfma8(RAWB, AOP, RAWA)
    a(f"""
    s_lshl_b32 s{sTMP}, s{u}, 10
    v_lshl_add_u32 v{vA0}, v{vLane}, 4, s{sTMP}
    v_lshrrev_b32 v{vA1}, 4, v{vLane}
    v_lshlrev_b32 v{vA1}, 3, v{vA1}
    v_not_b32 v{vA2}, v{vLane}
    v_and_b32 v{vA2}, 1, v{vA2}
    v_lshl_add_u32 v{vA1}, v{vA2}, 2, v{vA1}
    s_lshl_b32 s{sTMP}, s{u}, 4
    v_add_u32 v{vA1}, s{sTMP}, v{vA1}
    """)
    a.select(ACC, D, 0)
    a(f"ds_write_b128 v{vA0}, {vr(ACC,4)} offset:{L_RA0}")
    a.select(AOP, D, 1)
    a(f"ds_write_b128 v{vA0}, {vr(AOP,4)} offset:{L_RD0}")
    a.select(GA+32, RAWB, 0)
    a(f"ds_write_b128 v{vA0}, {vr(GA+32,4)} offset:{L_RA1}")
    a.select(GA+36, RAWB, 1)
    a(f"ds_write_b128 v{vA0}, {vr(GA+36,4)} offset:{L_RD1}")
    a.mask("0x00300003", "0")
    a(f"ds_write_b32 v{vA1}, v{DX} offset:{L_REDS}")
    a.full()
    a.gbarrier()
    R2 = GA + 16
    a(f"""
    s_cmp_eq_u32 s{u}, 3
    s_cbranch_scc1 L_b_st
    s_cmp_eq_u32 s{u}, 2
    s_cbranch_scc1 L_b_cs
    s_mul_i32 s{sTMP}, s{u}, {L_RA1 - L_RA0}
    v_lshl_add_u32 v{vA0}, v{vLane}, 4, s{sTMP}
    """)
    for w in range(4):
        a(f"ds_read_b128 {vr(R2+4*w,4)}, v{vA0} offset:{L_RA0 + w*1024}")
    a(f"""
    s_lshl_b32 s{sTMP}, s{sFCP}, 1
    s_add_u32 s{sTMP}, s{sTMP}, s{u}           ; fc
    s_lshl_b32 s{sTMP}, s{sTMP}, 4             ; fc*2*8
    s_add_u32 s{sTMP}, s{sTMP}, s{sKSB}
    s_lshl_b32 s{sTMP}, s{sTMP}, 9
    s_add_u32 s{sTMP}, s{sTMP}, {WS_FPP}
    v_and_b32 v{vA0}, 1, v{vG}
    v_lshl_add_u32 v{vA0}, v{vA0}, 12, v{vPubH}
    v_add_u32 v{vA0}, s{sTMP}, v{vA0}
    s_waitcnt lgkmcnt(0)""")
    reduce4(a, R2, ACC, vN)
    a.guard(lambda: a(f"global_store_dwordx4 v{vA0}, {vr(ACC,4)}, {sp(sWS)} sc1"))
    a(f"""
    s_branch L_b_done
    L_b_cs:
    v_and_b32 v{vA1}, 1, v{vG}
    v_mul_u32_u24 v{vA0}, {L_RD1 - L_RD0}, v{vA1}
    v_lshl_add_u32 v{vA0}, v{vLane}, 4, v{vA0}
    """)
    for w in range(4):
        a(f"ds_read_b128 {vr(R2+4*w,4)}, v{vA0} offset:{L_RD0 + w*1024}")
    a(f"""
    s_lshl_b32 s{sTMP}, s{sFCP}, 4             ; fc0*8
    s_add_u32 s{sTMP}, s{sTMP}, s{sKSB}
    s_lshl_b32 s{sTMP}, s{sTMP}, 9
    s_add_u32 s{sTMP}, s{sTMP}, {WS_FPC}
    v_lshl_add_u32 v{vA0}, v{vA1}, 12, v{vPubH}     ; + (g&1)*8*512
    v_add_u32 v{vA0}, s{sTMP}, v{vA0}
    s_waitcnt lgkmcnt(0)""")
    reduce4(a, R2, ACC, vN)
    a.guard(lambda: a(f"global_store_dwordx4 v{vA0}, {vr(ACC,4)}, {sp(sWS)} sc1"))
    a(f"""
    s_branch L_b_done
    L_b_st:
    v_mov_b32 v{vA0}, 0
    """)
    for w in range(4):
        a(f"ds_read_b128 {vr(R2+4*w,4)}, v{vA0} offset:{L_REDS + w*16}")
    a(f"""
    s_lshl_b32 s{sTMP}, s{sFCP}, 4
    s_add_u32 s{sTMP}, s{sTMP}, s{sKSB}
    s_lshl_b32 s{sTMP}, s{sTMP}, 4
    s_add_u32 s{sTMP}, s{sTMP}, {WS_FPS}
    v_lshl_add_u32 v{vA0}, v{vLane}, 7, s{sTMP}
    s_waitcnt lgkmcnt(0)
    """)
    for t in (0, 2):
        a(f"v_pk_add_f32 {vr(R2+t,2)}, {vr(R2+t,2)}, {vr(R2+4+t,2)}\n v_pk_add_f32 {vr(R2+8+t,2)}, {vr(R2+8+t,2)}, {vr(R2+12+t,2)}")
    for t in (0, 2):
        a(f"v_pk_add_f32 {vr(R2+t,2)}, {vr(R2+t,2)}, {vr(R2+8+t,2)}")
    a.tag(ACC, R2, vN)
    a.mask("3", "0")
    a.guard(lambda: a(f"global_store_dwordx4 v{vA0}, {vr(ACC,4)}, {sp(sWS)} sc1"))
    a.full()
    a("L_b_done:")
    a(f"""
    s_cmp_lg_u32 s{sFCP}, 0
    s_cbranch_scc1 L_nohp""")
    XF2 = GA + 32
    for q in range(4):
        a(f"v_lshlrev_b32 v{XF2+2*q}, 16, v{HP_+q}\n v_and_b32 v{XF2+2*q+1}, 0xffff0000, v{HP_+q}")
    a.tag(GA+4, XF2, vN)
    a.tag(GA+8, XF2+4, vN)
    a(f"""
    s_lshl_b32 s{sTMP}, s{sKSB}, 5
    s_lshl_b32 s{sTMP2}, s{u}, 3
    s_add_u32 s{sTMP}, s{sTMP}, s{sTMP2}
    s_lshl_b32 s{sTMP}, s{sTMP}, 4
    s_add_u32 s{sTMP}, s{sTMP}, {WS_HP}
    v_lshlrev_b32 v{vA1}, 4, v{vG}
    v_lshl_add_u32 v{vA1}, v{vB}, 12, v{vA1}
    v_add_u32 v{vA1}, s{sTMP}, v{vA1}""")
    a.mask("0x00110011", "0x00110011")
    a.guard(lambda: a(f"""global_store_dwordx4 v{vA1}, {vr(GA+4,4)}, {sp(sWS)} sc1
    global_store_dwordx4 v{vA1}, {vr(GA+8,4)}, {sp(sWS)} offset:64 sc1"""))
    a.full()
    a("L_nohp:")
    a.stamp(13)
    if o.get("ydpre", 0): a.guard(lambda: a("\n".join([f"s_sleep {min(127, o['ydpre'] - 127*k)}" for k in range((o['ydpre'] + 126)//127)])))
    a("L_D:")
    a(f"""
    s_cmp_lg_u32 s{u}, 0
    s_cbranch_scc1 L_G_done
    s_and_b32 s{sX}, s2, 7
    s_lshl_b32 s{sX}, s{sX}, 5
    s_lshr_b32 s{sX+1}, s2, 3
    s_add_u32 s{sX}, s{sX}, s{sX+1}
    s_lshr_b32 s{sB0}, s{sX}, 7                ; b2
    s_bfe_u32 s{sB0+1}, s{sX}, 0x30004         ; cc2
    s_and_b32 s{sB1}, s{sX}, 15
    s_lshl_b32 s{sB1}, s{sB1}, 5               ; gi0*16
    s_lshl_b32 s{sTMP}, s{sB0+1}, 1
    s_add_u32 s{sTMP}, s{sTMP}, s{sB0}
    s_mul_i32 s{sTMP}, s{sTMP}, {28*512}
    s_add_u32 s{sTMP}, s{sTMP}, s{sB1}
    s_add_u32 s{sTMP}, s{sTMP}, {WS_O2}
    v_lshrrev_b32 v{vA0}, 1, v{vLane}
    v_lshlrev_b32 v{vA0}, 9, v{vA0}
    v_and_b32 v{vA1}, 1, v{vLane}
    v_lshl_add_u32 v{vA0}, v{vA1}, 4, v{vA0}
    v_add_u32 v{vA0}, s{sTMP}, v{vA0}
    s_lshl_b32 s{sTMP}, s{sB0}, 12             ; b*256*16
    s_lshl_b32 s{sTMP2}, s{sB0+1}, 9           ; cc*32*16
    s_add_u32 s{sTMP}, s{sTMP}, s{sTMP2}
    s_add_u32 s{sTMP}, s{sTMP}, s{sB1}
    s_add_u32 s{sTMP}, s{sTMP}, {WS_HP}
    v_lshl_add_u32 v{vA2}, v{vA1}, 4, s{sTMP}
    v_cmp_le_u32 vcc, 56, v{vLane}
    s_nop 1
    v_cndmask_b32 v{vA0}, v{vA0}, v{vA2}, vcc
    """)
    DS = [GA, GA+4, GA+8]
    a.mask("-1", "0x03ffffff")
    if o.get("dpre", 0): a.guard(lambda: a(f"s_sleep {o['dpre']}"))
    a.pspin("gd", lambda r: a(f"global_load_dwordx4 {vr(r,4)}, v{vA0}, {sp(sWS)} sc1"), DS, ACC, dst=GA+12, sleep=o.get("dsleep", 1))
    a.full()
    a.stamp(17)
    fv = [GA+12+i for i in range(4)]
    a.mask("0", "0xfc000000")
    for r in fv: a(f"v_mov_b32 v{r}, 0")
    a.full()
    a.dpp("v_add_f32", fv, (XOR2, ROR4, ROR8))
    a.allreduce_g(fv, [GA+16+i for i in range(4)])
    a(f"""
    v_cvt_pk_bf16_f32 v{GA+20}, v{GA+12}, v{GA+13}
    v_cvt_pk_bf16_f32 v{GA+21}, v{GA+14}, v{GA+15}
    s_lshl_b32 s{sTMP}, s{sX}, 4
    v_lshl_add_u32 v{vA0}, v{vA1}, 3, s{sTMP}
    """)
    a.mask("3", "0")
    a.guard(lambda: a(f"global_store_dwordx2 v{vA0}, {vr(GA+20,2)}, {sp(sOUT)}"))
    a(f"""
    s_cmp_lg_u32 s2, 0
    s_cbranch_scc1 L_G_done
    """)
    a.full()
    a(f"v_mov_b32 v{vA0}, 0")
    a.mask("1", "0")
    a.guard(lambda: a(f"global_store_dword v{vA0}, v{vN}, {sp(sWS)} sc1"))
    a("L_G_done:")
    if o.get("dry", 1):
        a("s_cbranch_execz L_dry_done")
    a.stamp(18)
    a.dump_stamps(19, 7)
    a("s_endpgm")

def gen_A(a):
    o = a.o
    vLane, vG, vM, vN = 0, 2, 3, 4
    vKs = 5
    vV = 9
    vT0, vT1, vT2 = 10, 11, 12
    MX, LS = 13, 14
    VR = 16
    QO = 80
    KS = 96
    S = 128
    P = 144
    TB = 80
    ACCD = 112
    sA = sU
    sP, sS = 52, 53
    a(f"""
    L_A:
    ; ---------------- A waves ----------------
    s_setprio 2
    s_sub_u32 s{sA}, s{sWAVE}, 4
    s_and_b32 s{sP}, s2, 7
    s_lshr_b32 s{sS}, s2, 3
    s_lshl_b32 s{sTMP}, s{sP}, 22
    s_lshl_b32 s{sTMP2}, s{sS}, 17
    s_add_u32 s{sTMP}, s{sTMP}, s{sTMP2}
    s_lshl_b32 s{sTMP2}, s{sA}, {12 if o.get("ilv", 1) else 14}
    s_add_u32 s{sTMP}, s{sTMP}, s{sTMP2}
    s_lshl_b32 s{sTMP2}, s{sA}, 14
    """)
    TS = 32768 if o.get("ilv", 1) else 4096
    for r in range(4):
        a(f"v_add_u32 v{vT0}, {4*r}, v{vG}\n v_xor_b32 v{vT0}, v{vT0}, v{vM}\n v_lshlrev_b32 v{vT0}, 4, v{vT0}\n v_lshl_add_u32 v{vKs+r}, v{vG}, 8, v{vT0}")
    a(f"""
    v_lshlrev_b32 v{vT0}, 4, v{vM}
    v_lshl_add_u32 v{vV}, v{vG}, 10, v{vT0}
    v_mov_b32 v{vT1}, 0
    s_mov_b32 s{sM8}, 0xff00ff00
    s_mov_b32 s{sM8+1}, 0xff00ff00
    s_waitcnt lgkmcnt(0)
    s_add_u32 s{sB0}, s{sK}, s{sTMP}
    s_addc_u32 s{sB0+1}, s{sK+1}, 0
    s_add_u32 s{sB1}, s{sV}, s{sTMP}
    s_addc_u32 s{sB1+1}, s{sV+1}, 0
    s_add_u32 m0, s{sTMP2}, {L_K}
    s_barrier       ; B0
    global_load_dword v{vN}, v{vT1}, {sp(sWS)} sc1
    """)
    KW = o.get("kwin", 3)
    for i in range(16):
        r = i % 4
        if KW and i >= KW: a(f"s_waitcnt vmcnt({KW-1})")
        a(f"global_load_lds_dwordx4 v{vKs+r}, {sp(sB0)} offset:{r*1024} nt")
        if r == 3 and i < 15:
            a(f"s_add_u32 s{sB0}, s{sB0}, {TS}\n s_addc_u32 s{sB0+1}, s{sB0+1}, 0\n s_add_u32 m0, m0, 4096")
    a.stamp(1)
    a(f"s_setprio {o.get('vprio', 1)}")
    VW = o.get("vwin", 0)
    for uu in range(2):
        for i in range(8):
            reg = VR + (uu*8+i)*4
            if VW and uu*8+i < o.get("vwn", 16): a(f"s_waitcnt vmcnt({VW-1})")
            a(f"global_load_dwordx4 {vr(reg,4)}, v{vV}, {sp(sB1)} offset:{(i%4)*256} nt")
            if i % 4 == 3 and not (uu == 1 and i == 7):
                a(f"s_add_u32 s{sB1}, s{sB1}, {TS}\n s_addc_u32 s{sB1+1}, s{sB1+1}, 0")
    a.stamp(2)
    a(f"""
    v_mov_b32 v{vT1}, 0
    v_mov_b32 v{vT2}, 1
    s_mov_b64 exec, 1
    ds_add_u32 v{vT1}, v{vT2} offset:{L_CNT+4}
    s_mov_b64 exec, -1""")
    a(f"s_lshl_b32 s{sTMP}, s{sA}, 14\n s_add_u32 s{sTMP}, s{sTMP}, {L_K}")
    for s in range(4):
        a(f"v_add_u32 v{vT0}, {4*s}, v{vG}\n v_xor_b32 v{vT0}, v{vT0}, v{vM}\n v_lshlrev_b32 v{vT0}, 4, v{vT0}\n v_lshl_add_u32 v{vT0}, v{vM}, 8, v{vT0}\n v_add_u32 v{vKs+s}, s{sTMP}, v{vT0}")
    a.ldswait("Aq", vT1, vT2, L_CNT, 4, sleep=4)
    a(f"""
    v_and_b32 v{vT0}, 7, v{vM}
    v_mul_u32_u24 v{vT0}, 272, v{vT0}
    v_lshl_add_u32 v{vT0}, v{vG}, 4, v{vT0}
    """)
    a.stamp(3)
    for s in range(4):
        a(f"ds_read_b128 {vr(QO+4*s,4)}, v{vT0} offset:{L_Q + s*64}")
    a("s_waitcnt vmcnt(16)")
    a.nonce_from(vN)
    def kread(t, buf):
        for s in range(4):
            a(f"ds_read_b128 {vr(KS+16*buf+4*s,4)}, v{vKs+s} offset:{t*4096}")
    kread(0, 0); kread(1, 1)
    for t in range(4):
        buf = t % 2
        a("s_waitcnt lgkmcnt(4)" if t < 3 else "s_waitcnt lgkmcnt(0)")
        for s in range(4):
            c = "0" if s == 0 else vr(S+4*t, 4)
            a(f"v_mfma_f32_16x16x32_bf16 {vr(S+4*t,4)}, {vr(KS+16*buf+4*s,4)}, {vr(QO+4*s,4)}, {c}")
        if t + 2 < 4:
            kread(t + 2, buf)
    a("s_nop 7")
    a(f"v_max3_f32 v{MX}, v{S}, v{S+1}, v{S+2}")
    for k in range(3, 15, 2):
        a(f"v_max3_f32 v{MX}, v{MX}, v{S+k}, v{S+k+1}")
    a(f"v_max_f32 v{MX}, v{MX}, v{S+15}")
    a.allreduce_g([MX], [vT2], "v_max_f32")
    a(f"""
    s_mov_b32 s{sC}, 0x3e0293ee                   ; 128^-0.5 * log2(e)
    v_mul_f32 v{MX}, s{sC}, v{MX}""")
    for k in range(16):
        a(f"v_fma_f32 v{S+k}, v{S+k}, s{sC}, -v{MX}")
    for k in range(16):
        a(f"v_exp_f32 v{S+k}, v{S+k}")
    a("s_nop 0")
    for uu in range(2):
        for q in range(4):
            k = 8*uu + 2*q
            a(f"v_cvt_pk_bf16_f32 v{P+4*uu+q}, v{S+k}, v{S+k+1}")
    a(f"v_add_f32 v{LS}, v{S}, v{S+1}")
    for k in range(2, 16):
        a(f"v_add_f32 v{LS}, v{LS}, v{S+k}")
    a.allreduce_g([LS], [KS])
    a(f"""
    v_and_b32 v{vT0}, 7, v{vM}
    v_lshlrev_b32 v{vT0}, 5, v{vT0}             ; head*32
    s_lshl_b32 s{sTMP}, s{sA}, 2
    v_add_u32 v{vT0}, s{sTMP}, v{vT0}            ; head*32 + a*4
    s_mov_b64 exec, 0xff
    ds_write_b32 v{vT0}, v{MX} offset:{L_MX}
    ds_write_b32 v{vT0}, v{LS} offset:{L_LS}
    s_mov_b64 exec, 1
    v_mov_b32 v{vT1}, 0
    v_mov_b32 v{vT2}, 1
    s_waitcnt lgkmcnt(0)
    ds_add_rtn_u32 v{vT2}, v{vT1}, v{vT2} offset:{L_CNT+8}
    s_waitcnt lgkmcnt(0)
    s_mov_b64 exec, -1
    v_readfirstlane_b32 s{sTMP}, v{vT2}
    s_mov_b32 s{sSPIN}, 0
    s_cmp_lg_u32 s{sTMP}, 7
    s_cbranch_scc1 L_A_noml
    v_and_b32 v{vT0}, 7, v{vLane}
    v_lshlrev_b32 v{vT1}, 5, v{vT0}
    ds_read_b128 {vr(KS,4)}, v{vT1} offset:{L_MX}
    ds_read_b128 {vr(KS+4,4)}, v{vT1} offset:{L_MX+16}
    ds_read_b128 {vr(KS+8,4)}, v{vT1} offset:{L_LS}
    ds_read_b128 {vr(KS+12,4)}, v{vT1} offset:{L_LS+16}
    s_lshl_b32 s{sTMP}, s{sP}, 8                   ; p*8*32
    s_add_u32 s{sTMP}, s{sTMP}, s{sS}
    s_lshl_b32 s{sTMP}, s{sTMP}, 4
    s_add_u32 s{sTMP}, s{sTMP}, {WS_ML}
    v_lshl_add_u32 v{vT1}, v{vT0}, 9, s{sTMP}       ; + head*32*16
    s_waitcnt lgkmcnt(0)
    v_max3_f32 v{KS+16}, v{KS}, v{KS+1}, v{KS+2}
    v_max3_f32 v{KS+17}, v{KS+3}, v{KS+4}, v{KS+5}
    v_max3_f32 v{KS+16}, v{KS+16}, v{KS+6}, v{KS+7}
    v_max_f32 v{KS+16}, v{KS+16}, v{KS+17}
    v_perm_b32 v{KS+16}, v{KS+16}, v{vN}, s{sSEL[0]}
    """)
    for w in range(8):
        a(f"v_sub_f32 v{KS+w}, v{KS+w}, v{KS+16}")
    for w in range(8):
        a(f"v_exp_f32 v{KS+w}, v{KS+w}")
    a(f"s_nop 0\n v_mul_f32 v{KS+17}, v{KS}, v{KS+8}")
    for w in range(1, 8):
        a(f"v_fmac_f32 v{KS+17}, v{KS+w}, v{KS+8+w}")
    a(f"v_mov_b32 v{KS+18}, v{KS+16}\n v_mov_b32 v{KS+19}, v{KS+16}")
    a.tag(KS+20, KS+16, vN)
    a(f"""
    s_mov_b64 exec, 0xff
    global_store_dwordx4 v{vT1}, {vr(KS+20,4)}, {sp(sWS)} sc1
    s_mov_b64 exec, -1
    s_mov_b32 s{sPEND}, 1
    s_branch L_A_ml2
    L_A_noml:
    s_mov_b32 s{sPEND}, 0
    L_A_ml2:
    """)
    a.stamp(4)
    def pwait(n):
        L0, L1 = a.lab("pw"), a.lab("pw")
        a(f"s_cmp_eq_u32 s{sPEND}, 0\n s_cbranch_scc1 {L0}\n s_waitcnt vmcnt({n+1})\n s_branch {L1}\n {L0}:\n s_waitcnt vmcnt({n})\n {L1}:")
    F = VR
    a("s_waitcnt vmcnt(8)")
    raw = VR
    for t in range(4):
        tb = TB + 8*t
        for par, sel in ((0, sPLO), (1, sPHI)):
            for q in range(4):
                a(f"v_perm_b32 v{tb+4*par+q}, v{raw+4*(2*q+1)+t}, v{raw+4*(2*q)+t}, s{sel}")
        if t > 0:
            for par in range(2):
                j = 2*(t-1) + par
                a(f"v_mfma_f32_16x16x32_bf16 {vr(ACCD+4*j,4)}, {vr(TB+8*(t-1)+4*par,4)}, {vr(P,4)}, 0")
    a("s_nop 1")
    for par in range(2):
        j = 6 + par
        a(f"v_mfma_f32_16x16x32_bf16 {vr(ACCD+4*j,4)}, {vr(TB+24+4*par,4)}, {vr(P,4)}, 0")
    a(f"""
    s_lshl_b32 s{sTMP}, s{sA}, 14
    s_add_u32 s{sTMP}, s{sTMP}, {L_OB}
    v_mul_u32_u24 v{vT0}, 17, v{vG}
    v_add_u32 v{vT0}, v{vT0}, v{vM}
    v_lshl_add_u32 v{vT0}, v{vT0}, 4, s{sTMP}
    v_bfe_u32 v{vT1}, v{vLane}, 3, 2            ; g'
    v_and_b32 v{vKs}, 3, v{vLane}               ; j'&3
    v_bfe_u32 v{vKs+1}, v{vLane}, 2, 1          ; j'>>2
    v_lshl_add_u32 v{vKs}, v{vKs}, 1, v{vKs+1}  ; j
    v_and_b32 v{vKs+1}, 3, v{vKs}               ; jj
    v_lshrrev_b32 v{vKs}, 2, v{vKs}             ; nh
    v_lshl_add_u32 v{vT1}, v{vKs+1}, 2, v{vT1}  ; jj*4+g'
    v_mul_u32_u24 v{vT1}, 17, v{vT1}
    v_lshl_add_u32 v{vT1}, v{vKs}, 3, v{vT1}
    v_add_u32 v{vT1}, s{sA}, v{vT1}
    v_lshlrev_b32 v{vT1}, 4, v{vT1}
    v_lshrrev_b32 v{vKs}, 5, v{vLane}           ; ph
    v_lshl_add_u32 v{vT1}, v{vKs}, 16, v{vT1}   ; + ph*4*16384
    v_add_u32 v{vT1}, {L_OB}, v{vT1}
    s_lshl_b32 s{sTMP}, s{sA}, 5
    v_lshl_add_u32 v{vKs+1}, v{vKs}, 4, s{sTMP}
    v_xor_b32 v{vKs+2}, 16, v{vKs+1}
    s_lshl_b32 s{sTMP}, s{sP}, 3
    s_add_u32 s{sTMP}, s{sTMP}, s{sA}
    s_lshl_b32 s{sTMP}, s{sTMP}, 5
    s_add_u32 s{sTMP}, s{sTMP}, s{sS}            ; (p*8+head)*32 + s
    s_lshl_b32 s{sTMP2}, s{sTMP}, 9
    s_add_u32 s{sTMP2}, s{sTMP2}, {WS_OP}
    v_and_b32 v{vKs+3}, 31, v{vLane}
    v_lshl_add_u32 v{vV}, v{vKs+3}, 4, s{sTMP2}
    v_mov_b32 v{vKs}, 0
    """)
    a.ldswait("Amx", vKs, vT2, L_CNT+8, 8, sleep=1)
    MO, MT = VR, VR+4
    a(f"""
    ds_read_b128 {vr(MO,4)}, v{vKs+1} offset:{L_MX}
    ds_read_b128 {vr(MT,4)}, v{vKs+2} offset:{L_MX}
    s_setprio 3
    s_waitcnt lgkmcnt(0)
    v_max3_f32 v{MX}, v{MO}, v{MO+1}, v{MO+2}
    v_max3_f32 v{MT}, v{MT}, v{MT+1}, v{MT+2}
    v_max3_f32 v{MX}, v{MX}, v{MO+3}, v{MT+3}
    v_max_f32 v{MX}, v{MX}, v{MT}
    v_perm_b32 v{MX}, v{MX}, v{vN}, s{sSEL[0]}
    """)
    for w in range(4):
        a(f"v_sub_f32 v{F+w}, v{MO+w}, v{MX}")
    for w in range(4):
        a(f"v_exp_f32 v{F+w}, v{F+w}")
    raw = VR + 32
    pwait(4)
    for t in range(4):
        for par, sel in ((0, sPLO), (1, sPHI)):
            for q in range(2):
                a(f"v_perm_b32 v{TB+8*t+4*par+q}, v{raw+4*(2*q+1)+t}, v{raw+4*(2*q)+t}, s{sel}")
    pwait(0)
    a.stamp(5)
    for t in range(4):
        for par, sel in ((0, sPLO), (1, sPHI)):
            for q in (2, 3):
                a(f"v_perm_b32 v{TB+8*t+4*par+q}, v{raw+4*(2*q+1)+t}, v{raw+4*(2*q)+t}, s{sel}")
        if t > 0:
            for par in range(2):
                j = 2*(t-1) + par
                a(f"v_mfma_f32_16x16x32_bf16 {vr(ACCD+4*j,4)}, {vr(TB+8*(t-1)+4*par,4)}, {vr(P+4,4)}, {vr(ACCD+4*j,4)}")
    a("s_nop 1")
    for par in range(2):
        j = 6 + par
        a(f"v_mfma_f32_16x16x32_bf16 {vr(ACCD+4*j,4)}, {vr(TB+24+4*par,4)}, {vr(P+4,4)}, {vr(ACCD+4*j,4)}")
    XB = TB
    a("s_nop 3")
    for jj in range(4):
        if jj == 2: a("s_nop 1")
        for r in range(4):
            a(f"v_cndmask_b32 v{XB+4*jj+r}, v{ACCD+4*jj+r}, v{ACCD+4*(jj+4)+r}, {sp(sM8)}")
        a(f"ds_write_b128 v{vT0}, {vr(XB+4*jj,4)} offset:{jj*1088}")
    a("s_waitcnt lgkmcnt(0)")
    if o.get("adry", 1):
        a(f"""
        s_cmp_ge_u32 s{sA}, 4
        s_cbranch_scc1 L_A_b3
        s_mov_b64 exec, 0
        s_branch L_A_post
        L_A_postret:
        s_mov_b64 exec, -1
        L_A_b3:
        """)
    a("s_barrier     ; B3")
    a.stamp(6)
    a("L_A_post:")
    R = KS
    for w in range(4):
        a(f"ds_read_b128 {vr(R+4*w,4)}, v{vT1} offset:{w*OB_STRIDE}")
    a("s_waitcnt lgkmcnt(2)")
    for t in range(4):
        a(f"v_mul_f32 v{R+t}, v{R+t}, v{F}")
    for t in range(4):
        a(f"v_fmac_f32 v{R+t}, v{R+4+t}, v{F+1}")
    a("s_waitcnt lgkmcnt(0)")
    for w in range(2, 4):
        for t in range(4):
            a(f"v_fmac_f32 v{R+t}, v{R+4*w+t}, v{F+w}")
    a.allreduce_g([R, R+1, R+2, R+3], [R+4, R+5, R+6, R+7], steps=("v_permlane32_swap_b32",))
    a.tag(R+8, R, vN)
    a("s_mov_b32 exec_hi, 0")
    a.guard(lambda: a(f"global_store_dwordx4 v{vV}, {vr(R+8,4)}, {sp(sWS)} sc1"))
    if o.get("adry", 1): a("s_cbranch_execz L_A_postret")
    a.stamp(7)
    a("s_barrier     ; B4")
    a.dump_stamps(8, 10)
    a("s_endpgm")

if __name__ == "__main__":
    out = sys.argv[1]
    stamps = len(sys.argv) > 2 and sys.argv[2] == "1"
    opts = {}
    for kv in sys.argv[3:]:
        k, v = kv.split("="); opts[k] = int(v)
    open(out, "w").write(build(stamps, **opts))
```

```python
import sys
from gen_common import *

WS_EPOCH = 0
WS_QP   = 0x010000
WS_ML   = 0x080000
WS_HP   = 0x090000
WS_OP   = 0x100000
WS_AP   = 0x200000
WS_FPP  = 0x240000
WS_FPC  = 0x280000
WS_FPS  = 0x2A0000
WS_O2   = 0x2C0000
WS_STAMP = 0x800000
L_Q   = 0
L_MX  = 2304
L_LS  = L_MX + 256
L_REDQ = L_LS + 256
L_CNT = 6912
L_K   = 8192
L_OB  = L_K
OB_STRIDE = 16384
LDS_BYTES = L_K + 131072
L_XA_A = 12544
L_FAC  = 16896
L_XA_C = 17920
L_RA0, L_RA1 = 28928, 33024
L_RD0, L_RD1 = 45312, 49408
L_XA_B = 12544
L_REDS = 16896

SPIN_LIMIT = 4000

sX, sK, sV, sWQ, sWO, sW1, sW2, sOUT, sDBG, sWS = 4, 6, 8, 10, 12, 16, 18, 20, 22, 24
sFULL = 14
sWAVE, sU = 26, 27
sNONCE = 28
sT = [29, 30, 31, 32]
sSEL = [33, 34, 35, 36]
sPLO, sPHI = 37, 38
sC = 39
sMHI = 40
sM8 = 42
sB0 = 44
sB1 = 46
sMB = 48
sM1 = 50
sSPIN = 60
sTMP, sTMP2 = 61, 62
sPEND = 63
sSTAMP = 64

def sp(r): return f"s[{r}:{r+1}]"
def vr(r, n): return f"v[{r}:{r+n-1}]" if n > 1 else f"v{r}"
XOR1, XOR2, ROR4, ROR8 = "quad_perm:[1,0,3,2]", "quad_perm:[2,3,0,1]", "row_ror:4", "row_ror:8"
DM = "row_mask:0xf bank_mask:0xf"

class Gen(Asm):
    def __init__(self, stamps=False, opts=None):
        super().__init__()
        self.stamps = stamps
        self.o = opts or {}
        self.uid = 0
    def lab(self, base):
        self.uid += 1
        return f"L_{base}_{self.uid}"
    def stamp(self, idx):
        if self.stamps:
            self(f"s_memrealtime {sp(sSTAMP + 2 * idx)}")
    def dump_stamps(self, n, tmpv):
        if not self.stamps: return
        if self.o.get("dbgst", 0) == 2:
            if n <= 10: return
            L = self.lab("nodbg")
            self(f"s_cmp_lg_u32 s2, {self.o.get('dbgwg', 0)}\n s_cbranch_scc1 {L}\n s_cmp_lg_u32 s{sWAVE}, 0\n s_cbranch_scc1 {L}")
            self(f"s_waitcnt lgkmcnt(0)\n s_mov_b64 exec, 1\n v_mov_b32 v{tmpv}, 0")
            for k, i in enumerate((1, 2, 3, 4, 5, 6, 7, 8, 9, 10, 11, 12, 13, 15, 16, 18)):
                self(f"s_sub_u32 s{sTMP}, s{sSTAMP+2*i}, s{sSTAMP}\n v_mov_b32 v{tmpv+1}, s{sTMP}\n global_store_dword v{tmpv}, v{tmpv+1}, {sp(sDBG)} offset:{4*k}\n s_nop 1")
            self.label(L)
            return
        self(f"""s_waitcnt lgkmcnt(0)
        s_lshl_b32 s{sTMP}, s2, 4
        s_add_u32 s{sTMP}, s{sTMP}, s{sWAVE}
        s_lshl_b32 s{sTMP}, s{sTMP}, 7
        s_add_u32 s{sTMP}, s{sTMP}, {WS_STAMP}
        s_mov_b64 exec, 1
        v_mov_b32 v{tmpv}, s{sTMP}""")
        for i in range(n):
            self(f"v_mov_b32 v{tmpv+1}, s{sSTAMP+2*i}\n global_store_dword v{tmpv}, v{tmpv+1}, {sp(sWS)} offset:{4*i}\n s_nop 1")
    def full(self): self(f"s_mov_b64 exec, {sp(sFULL)}")
    def mask(self, lo, hi): self(f"s_and_b32 exec_lo, s{sFULL}, {lo}\n s_and_b32 exec_hi, s{sFULL+1}, {hi}")
    def guard(self, fn):
        L = self.lab("grd")
        self(f"s_cbranch_execz {L}")
        fn()
        self.label(L)
    def gbarrier(self):
        self("s_waitcnt lgkmcnt(0)")
        self.guard(lambda: self("s_barrier"))
    def dpp(self, op, regs, ctrls):
        n = len(regs)
        for ctrl in ctrls:
            if n < 3: self(f"s_nop {2 - n}" if n < 2 else "s_nop 0")
            for r in regs:
                self(f"{op}_dpp v{r}, v{r}, v{r} {ctrl} {DM}")
    def allreduce_g(self, regs, tmps, op="v_add_f32", steps=("v_permlane16_swap_b32", "v_permlane32_swap_b32")):
        n = len(regs)
        for swap in steps:
            for r, t in zip(regs, tmps):
                self(f"v_mov_b32 v{t}, v{r}")
            self("s_nop 1" if n < 2 else "s_nop 0")
            for r, t in zip(regs, tmps):
                self(f"{swap} v{r}, v{t}")
            self("s_nop 1" if n < 2 else "s_nop 0")
            for r, t in zip(regs, tmps):
                self(f"{op} v{r}, v{r}, v{t}")
    def tag(self, dst, src, vN):
        for i in range(4):
            self(f"v_perm_b32 v{dst+i}, v{src+i}, v{vN}, s{sSEL[i]}")
    def check(self, grans, acc):
        for gi, gbase in enumerate(grans):
            for i in range(4):
                if gi == 0:
                    self(f"v_xor_b32 v{acc+i}, s{sT[i]}, v{gbase+i}")
                else:
                    self(f"v_bitop3_b32 v{acc+i}, v{gbase+i}, s{sT[i]}, v{acc+i} bitop3:0xbe")
        self(f"v_or3_b32 v{acc}, v{acc}, v{acc+1}, v{acc+2}")
        self(f"v_or_b32 v{acc}, v{acc}, v{acc+3}")
        self(f"v_and_b32 v{acc}, 0xff, v{acc}")
        self(f"v_cmp_ne_u32 vcc, 0, v{acc}")
    def spin(self, name, issue, grans, acc, waitstr="s_waitcnt vmcnt(0)", sleep=0):
        L = self.lab(name); Lok = self.lab(name + "ok")
        self(f"s_mov_b32 s{sSPIN}, 0")
        self.label(L)
        self.guard(issue)
        self.guard(lambda: self(waitstr))
        self.check(grans, acc)
        self("s_nop 0")
        self(f"s_cbranch_vccz {Lok}")
        self(f"s_add_u32 s{sSPIN}, s{sSPIN}, 1")
        if sleep: self(f"s_sleep {sleep}")
        self(f"s_cmp_lt_u32 s{sSPIN}, {SPIN_LIMIT}")
        self(f"s_cbranch_scc1 {L}")
        self("s_branch L_abort")
        self.label(Lok)
    def pspin(self, name, load, sets, acc, dst=None, ncopy=4, sleep=0, thr=0, stag=0):
        L = self.lab(name); Lok = self.lab(name + "ok")
        oks = [self.lab(name + f"k{i}") for i in range(3)]
        self(f"s_mov_b32 s{sSPIN}, 0")
        if stag:
            self.guard(lambda: (load(sets[0]), self(f"s_sleep {stag}"), load(sets[1]), self(f"s_sleep {stag}")))
        else:
            self.guard(lambda: (load(sets[0]), load(sets[1])))
        self.label(L)
        for k in range(3):
            self.guard(lambda k=k: (load(sets[(k + 2) % 3]), self("s_waitcnt vmcnt(2)")))
            self.check([sets[k]], acc)
            if thr:
                self(f"s_nop 0\n s_bcnt1_i32_b64 s{sTMP}, vcc\n s_cmp_le_u32 s{sTMP}, {thr}\n s_cbranch_scc1 {oks[k]}")
            else:
                self("s_nop 0")
                self(f"s_cbranch_vccz {oks[k]}")
            if sleep: self(f"s_sleep {sleep}")
        self(f"s_add_u32 s{sSPIN}, s{sSPIN}, 1")
        self(f"s_cmp_lt_u32 s{sSPIN}, {SPIN_LIMIT}")
        self(f"s_cbranch_scc1 {L}")
        self("s_branch L_abort")
        for k in range(3):
            self.label(oks[k])
            if dst is not None and sets[k] != dst:
                for t in range(ncopy): self(f"v_mov_b32 v{dst+t}, v{sets[k]+t}")
            if k < 2: self(f"s_branch {Lok}")
        self.label(Lok)
    def ldswait(self, name, vaddr, vtmp, off, count, sleep=2):
        L = self.lab(name); Lok = self.lab(name + "ok")
        self(f"""
        s_mov_b32 s{sSPIN}, 0
        s_cbranch_execz {Lok}
        {L}:
        ds_read_b32 v{vtmp}, v{vaddr} offset:{off}
        s_waitcnt lgkmcnt(0)
        v_readfirstlane_b32 s{sTMP}, v{vtmp}
        s_cmp_ge_u32 s{sTMP}, {count}
        s_cbranch_scc1 {Lok}
        s_add_u32 s{sSPIN}, s{sSPIN}, 1""")
        if sleep: self(f"s_sleep {sleep}")
        self(f"""
        s_cmp_lt_u32 s{sSPIN}, 400000
        s_cbranch_scc1 {L}
        s_branch L_abort
        {Lok}:""")
    def perm_unit(self, raw, T):
        for t in range(4):
            for par, sel in ((0, sPLO), (1, sPHI)):
                j = 2 * t + par
                for q in range(4):
                    self(f"v_perm_b32 v{T + 4*j + q}, v{raw + 4*(2*q+1) + t}, v{raw + 4*(2*q) + t}, s{sel}")
    def wload(self, dst, sbase, voff, rowfn, rs, nt=True):
        prev = 0
        for i in range(8):
            d = rowfn(i) - prev
            if d > 0:
                self(f"s_add_u32 s{sbase}, s{sbase}, {d*rs}\n s_addc_u32 s{sbase+1}, s{sbase+1}, 0")
            elif d < 0:
                self(f"s_sub_u32 s{sbase}, s{sbase}, {-d*rs}\n s_subb_u32 s{sbase+1}, s{sbase+1}, 0")
            prev = rowfn(i)
            self(f"global_load_dwordx4 {vr(dst+4*i, 4)}, v{voff}, {sp(sbase)}" + (" nt" if nt else ""))
    def mfma8(self, D, AOP, T):
        for j in range(8):
            self(f"v_mfma_f32_16x16x32_bf16 {vr(D+4*j,4)}, {vr(AOP,4)}, {vr(T+4*j,4)}, 0")
    def select(self, X, D, r):
        for jj in range(4):
            self(f"v_cndmask_b32 v{X+jj}, v{D+4*jj+r}, v{D+4*(4+jj)+r}, {sp(sMHI)}")
    def nonce_from(self, vN):
        self(f"""
        v_readfirstlane_b32 s{sNONCE}, v{vN}
        s_add_u32 s{sNONCE}, s{sNONCE}, 0x01010101
        s_or_b32 s{sNONCE}, s{sNONCE}, 1
        s_mov_b32 s{sT[0]}, s{sNONCE}
        s_lshr_b32 s{sT[1]}, s{sNONCE}, 8
        s_lshr_b32 s{sT[2]}, s{sNONCE}, 16
        s_lshr_b32 s{sT[3]}, s{sNONCE}, 24
        v_mov_b32 v{vN}, s{sNONCE}
        """)

STD_ROW = lambda i: 16 * (i // 4) + (i % 4)
WO_ROW = lambda i: 8 * (i % 4) + (i // 4)

def reduce4(a, R, X, vN):
    for t in (0, 2):
        a(f"v_pk_add_f32 {vr(R+t,2)}, {vr(R+t,2)}, {vr(R+4+t,2)}\n v_pk_add_f32 {vr(R+8+t,2)}, {vr(R+8+t,2)}, {vr(R+12+t,2)}")
    for t in (0, 2):
        a(f"v_pk_add_f32 {vr(R+t,2)}, {vr(R+t,2)}, {vr(R+8+t,2)}")
    a.tag(X, R, vN)

def build(stamps=False, **o):
    a = Gen(stamps, o)
    a(f"""
    s_cmp_ge_u32 s2, 256
    s_cbranch_scc1 L_end""")
    a.stamp(0)
    a(f"""
    s_load_dwordx8 s[4:11], s[0:1], 0
    s_load_dwordx2 s[12:13], s[0:1], 32
    s_load_dwordx4 s[16:19], s[0:1], 48
    s_load_dwordx4 s[20:23], s[0:1], 64
    s_load_dwordx2 s[24:25], s[0:1], 80
    v_lshrrev_b32 v1, 6, v0
    v_and_b32 v0, 63, v0
    s_mov_b32 s{sPLO}, 0x05040100
    v_readfirstlane_b32 s{sWAVE}, v1
    s_mov_b32 s{sPHI}, 0x07060302
    s_mov_b32 s{sSEL[0]}, 0x07060500
    s_mov_b32 s{sSEL[1]}, 0x07060501
    s_mov_b32 s{sSEL[2]}, 0x07060502
    s_mov_b32 s{sSEL[3]}, 0x07060503
    s_mov_b64 {sp(sFULL)}, -1
    v_lshrrev_b32 v2, 4, v0            ; g
    v_and_b32 v3, 15, v0               ; m / c
    s_cmp_ge_u32 s{sWAVE}, 4
    s_cbranch_scc1 L_A
    """)
    gen_G(a)
    gen_A(a)
    a("""
    L_abort:
    L_end:
    s_endpgm
    """)
    return kernel_wrap(a.text(), 256, 768, LDS_BYTES, 168)

def gen_G(a):
    o = a.o
    vLane, vG, vM, vB, vN = 0, 2, 3, 4, 6
    vBG = 1
    vPP = 5
    vA0, vA1, vA2 = 7, 8, 9
    vPubH = 10
    vXW = 11
    vXR = vPP
    XR = 12
    AOP = 16
    ACC = 20
    RAWA, RAWB, T, GA = 24, 56, 88, 120
    u = sU
    sKS, sHQ, sP, sBA, sHKV, sFC2, sH, sCC = 52, 53, 54, 55, 56, 57, 58, 59
    a(f"""
    ; ---------------- G waves ----------------
    s_setprio 3
    s_mov_b32 s{u}, s{sWAVE}
    v_bfe_u32 v{vB}, v{vM}, 2, 1
    v_and_b32 v{vPP}, 3, v{vM}
    v_lshrrev_b32 v{vA0}, 3, v{vM}
    v_lshl_or_b32 v{vPP}, v{vA0}, 2, v{vPP}
    s_and_b32 s{sKS}, s2, 7
    s_lshr_b32 s{sHQ}, s2, 3
    v_mov_b32 v{vA0}, 0
    v_lshl_add_u32 v{vA1}, v{vPP}, 2, v{vG}
    v_lshlrev_b32 v{vA1}, 4, v{vA1}
    v_lshl_add_u32 v{vA1}, v{vB}, 11, v{vA1}
    s_lshl_b32 s{sTMP}, s{sKS}, 8
    s_lshl_b32 s{sTMP2}, s{u}, 6
    s_add_u32 s{sTMP}, s{sTMP}, s{sTMP2}
    v_lshlrev_b32 v{vA2}, 3, v{vG}
    v_lshl_add_u32 v{vA2}, v{vB}, 11, v{vA2}
    v_add_u32 v{vA2}, s{sTMP}, v{vA2}
    s_lshl_b32 s{sTMP}, s{sKS}, 7
    s_lshl_b32 s{sTMP2}, s{u}, 5
    s_add_u32 s{sTMP}, s{sTMP}, s{sTMP2}
    s_lshl_b32 s{sTMP}, s{sTMP}, 13          ; *8192
    s_lshl_b32 s{sTMP2}, s{sHQ}, 8
    s_add_u32 s{sTMP}, s{sTMP}, s{sTMP2}
    v_lshlrev_b32 v{vPubH}, 15, v{vG}          ; 4g*8192
    v_lshl_add_u32 v{vPubH}, v{vM}, 4, v{vPubH}
    s_waitcnt lgkmcnt(0)
    s_add_u32 s{sB0}, s{sWQ}, s{sTMP}
    s_addc_u32 s{sB0+1}, s{sWQ+1}, 0
    global_load_dword v{vN}, v{vA0}, {sp(sWS)} sc1
    """)
    for i in range(4):
        a(f"global_load_dwordx4 {vr(GA+4*i,4)}, v{vA1}, {sp(sX)} offset:{i*512}")
    a(f"global_load_dwordx2 {vr(XR,2)}, v{vA2}, {sp(sX)}")
    a(f"global_load_dwordx2 {vr(XR+2,2)}, v{vA2}, {sp(sX)} offset:32")
    if o.get("cpf", 0):
        a(f"""
        s_getpc_b64 {sp(sB1)}
        L_pc_here:
        s_sub_u32 s{sB1}, s{sB1}, L_pc_here-{KNAME}
        s_subb_u32 s{sB1+1}, s{sB1+1}, 0
        s_lshl_b32 s{sTMP}, s{u}, 13
        v_lshlrev_b32 v{vA0}, 7, v{vLane}
        v_add_u32 v{vA0}, s{sTMP}, v{vA0}
        v_min_u32 v{vA0}, L_end-{KNAME}, v{vA0}
        global_load_dword v{GA+44}, v{vA0}, {sp(sB1)}
        """)
    tch = o.get("touch", 0)
    if tch:
        a(f"""
        s_lshr_b32 s{sTMP2}, s{sKS}, 1               ; xi
        v_mov_b32 v{vA0}, 0x3f0000
        global_load_dword v{GA+44}, v{vA0}, {sp(sWS)}
        v_mov_b32 v{vA0}, 0
        """)
        if tch & 2: a(f"global_load_dword v{GA+45}, v{vA0}, {sp(sOUT)}")
        if tch & 4:
            a(f"""
            s_lshl_b32 s{sTMP}, s{sTMP2}, 3
            s_and_b32 s{sB1}, s{sHQ}, 7
            s_add_u32 s{sTMP}, s{sTMP}, s{sB1}
            s_lshl_b32 s{sTMP}, s{sTMP}, 18
            v_mov_b32 v{vA0}, s{sTMP}
            global_load_dword v{GA+46}, v{vA0}, {sp(sWO)}
            s_lshl_b32 s{sTMP}, s{sTMP2}, 1
            s_and_b32 s{sB1}, s{sHQ}, 1
            s_add_u32 s{sTMP}, s{sTMP}, s{sB1}
            s_mul_i32 s{sTMP}, s{sTMP}, {128*7168}
            v_mov_b32 v{vA0}, s{sTMP}
            global_load_dword v{GA+47}, v{vA0}, {sp(sW1)}
            s_mul_i32 s{sTMP}, s{sTMP2}, 7
            s_lshr_b32 s{sB1}, s{sHQ}, 2
            s_add_u32 s{sTMP}, s{sTMP}, s{sB1}
            s_min_u32 s{sTMP}, s{sTMP}, 27
            s_lshl_b32 s{sTMP}, s{sTMP}, 18
            v_mov_b32 v{vA0}, s{sTMP}
            global_load_dword v{GA+43}, v{vA0}, {sp(sW2)}
            """)
    ntouch = (1 + (1 if tch & 2 else 0) + (3 if tch & 4 else 0)) if tch else 0
    a.wload(RAWA, sB0, vPubH, STD_ROW, 8192)
    a(f"""
    s_mov_b32 s{sMHI}, 0
    s_mov_b32 s{sMHI+1}, -1
    s_mov_b32 s{sMB}, 0xf0f0f0f0
    s_mov_b32 s{sMB+1}, 0xf0f0f0f0
    s_mov_b32 s{sM1}, 0x22222222
    s_mov_b32 s{sM1+1}, 0x22222222
    v_mov_b32 v{ACC}, 0
    v_mov_b32 v{ACC+1}, 0
    v_mov_b32 v{ACC+2}, 0
    v_mov_b32 v{ACC+3}, 0
    s_lshl_b32 s{sTMP}, s{u}, 10
    v_lshl_add_u32 v{vA0}, v{vLane}, 4, s{sTMP}
    ds_write_b128 v{vA0}, {vr(ACC,4)} offset:{L_REDQ}
    v_and_b32 v{vA1}, 1, v{vLane}
    v_lshlrev_b32 v{vA1}, 4, v{vA1}
    ds_write_b128 v{vA1}, {vr(ACC,4)} offset:{L_CNT}
    s_waitcnt lgkmcnt(0)
    s_barrier        ; B0
    v_lshrrev_b32 v{vPubH}, 1, v{vG}
    v_lshl_add_u32 v{vPubH}, v{vM}, 1, v{vPubH}
    v_lshlrev_b32 v{vPubH}, 4, v{vPubH}      ; (2c+half)*16
    s_waitcnt vmcnt(8)
    """)
    a.stamp(1)
    a.nonce_from(vN)
    S0, S1, Q0, Q1, LO, HI = RAWB, RAWB+1, RAWB+2, RAWB+3, RAWB+4, RAWB+5
    for k in range(16):
        w = GA + k
        a(f"v_lshlrev_b32 v{LO}, 16, v{w}\n v_and_b32 v{HI}, 0xffff0000, v{w}")
        if k == 0:
            a(f"v_mov_b32 v{S0}, v{LO}\n v_mov_b32 v{S1}, v{HI}\n v_mul_f32 v{Q0}, v{LO}, v{LO}\n v_mul_f32 v{Q1}, v{HI}, v{HI}")
        else:
            a(f"v_add_f32 v{S0}, v{S0}, v{LO}\n v_add_f32 v{S1}, v{S1}, v{HI}\n v_fmac_f32 v{Q0}, v{LO}, v{LO}\n v_fmac_f32 v{Q1}, v{HI}, v{HI}")
    a(f"v_add_f32 v{S0}, v{S0}, v{S1}\n v_add_f32 v{S1}, v{Q0}, v{Q1}")
    a.dpp("v_add_f32", [S0, S1], (XOR1, XOR2, ROR8))
    a.allreduce_g([S0, S1], [Q0, Q1])
    MEAN, RSTD = S0, S1
    a(f"""
    v_mul_f32 v{MEAN}, 0x3a800000, v{S0}        ; /1024
    v_mul_f32 v{Q0}, 0x3a800000, v{S1}
    v_fma_f32 v{Q0}, -v{MEAN}, v{MEAN}, v{Q0}
    v_max_f32 v{Q0}, 0, v{Q0}
    v_add_f32 v{Q0}, 0x3727c5ac, v{Q0}           ; + 1e-5
    v_rsq_f32 v{RSTD}, v{Q0}
    """)
    XF = RAWB + 8
    for q in range(4):
        a(f"v_lshlrev_b32 v{XF+2*q}, 16, v{XR+q}\n v_and_b32 v{XF+2*q+1}, 0xffff0000, v{XR+q}")
    for e in range(8):
        a(f"v_sub_f32 v{XF+e}, v{XF+e}, v{MEAN}")
    for e in range(8):
        a(f"v_mul_f32 v{XF+e}, v{XF+e}, v{RSTD}")
    for q in range(4):
        a(f"v_cvt_pk_bf16_f32 v{AOP+q}, v{XF+2*q}, v{XF+2*q+1}")
    a("s_waitcnt vmcnt(0)")
    a.stamp(2)
    a.perm_unit(RAWA, T)
    a("s_nop 1")
    a.mfma8(RAWB, AOP, T)
    a("s_nop 7")
    X = ACC
    a.select(X, RAWB, 0)
    a.tag(X, X, vN)
    a(f"""
    ds_write_b128 v{vA0}, {vr(X,4)} offset:{L_REDQ}
    s_cmp_lg_u32 s{u}, 0
    s_cbranch_scc1 L_q_nored
    v_lshlrev_b32 v{vA0}, 4, v{vLane}
    """)
    def iss():
        for w in range(4):
            a(f"ds_read_b128 {vr(GA+4*w,4)}, v{vA0} offset:{L_REDQ + w*1024}")
    a.spin("redq", iss, [GA, GA+4, GA+8, GA+12], ACC, waitstr="s_waitcnt lgkmcnt(0)")
    reduce4(a, GA, X, vN)
    a(f"""
    s_lshl_b32 s{sTMP}, s{sHQ}, 13
    s_lshl_b32 s{sTMP2}, s{sKS}, 9
    s_add_u32 s{sTMP}, s{sTMP}, s{sTMP2}
    s_add_u32 s{sTMP}, s{sTMP}, {WS_QP}
    v_and_b32 v{vA0}, 1, v{vG}
    v_lshl_add_u32 v{vA0}, v{vA0}, 12, v{vPubH}
    v_add_u32 v{vA0}, s{sTMP}, v{vA0}
    global_store_dwordx4 v{vA0}, {vr(X,4)}, {sp(sWS)} sc1
    L_q_nored:
    """)
    a.stamp(3)
    sXI, sSLOT, sCCP, sKSB, sFCP = 54, 55, 56, 57, 59
    sHA, sFC = 58, 53
    a(f"""
    s_and_b32 s{sTMP}, s2, 7
    s_lshr_b32 s{sB1}, s{sTMP}, 2
    s_and_b32 s{sB1+1}, s{sTMP}, 3
    {'s_and_b32 s%d, s%d, 3' % (sXI, sTMP) if o.get("xmap", 0) == 2 else 's_lshr_b32 s%d, s%d, 1' % (sXI, sTMP)}
    s_lshr_b32 s{sSLOT}, s2, 3
    s_lshl_b32 s{sHA}, s{sXI}, 3
    s_and_b32 s{sTMP}, s{sSLOT}, 7
    s_add_u32 s{sHA}, s{sHA}, s{sTMP}
    s_and_b32 s{sTMP}, s{sSLOT}, 1
    s_lshl_b32 s{sKSB}, s{sXI}, 1
    s_add_u32 s{sKSB}, s{sKSB}, s{sTMP}
    s_lshr_b32 s{sFCP}, s{sSLOT}, 1
    s_lshr_b32 s{sTMP}, s{sSLOT}, 2
    s_mul_i32 s{sFC}, s{sXI}, 7
    s_add_u32 s{sFC}, s{sFC}, s{sTMP}
    s_lshl_b32 s{sTMP}, s{sKSB}, 8
    s_lshl_b32 s{sTMP2}, s{u}, 6
    s_add_u32 s{sTMP}, s{sTMP}, s{sTMP2}
    v_lshlrev_b32 v{vA2}, 3, v{vG}
    v_lshl_add_u32 v{vA2}, v{vB}, 11, v{vA2}
    v_add_u32 v{vA2}, s{sTMP}, v{vA2}
    global_load_dwordx2 {vr(XR,2)}, v{vA2}, {sp(sX)}
    global_load_dwordx2 {vr(XR+2,2)}, v{vA2}, {sp(sX)} offset:32
    v_and_b32 v{vBG}, 31, v{vLane}
    v_lshlrev_b32 v{vBG}, 4, v{vBG}             ; gi*16
    v_lshrrev_b32 v{vA0}, 5, v{vLane}
    v_mul_u32_u24 v{vA0}, 544, v{vA0}
    v_add_u32 v{vXW}, v{vA0}, v{vBG}
    v_and_b32 v{vA0}, 3, v{vM}
    v_mul_u32_u24 v{vA0}, 1088, v{vA0}
    v_mul_u32_u24 v{vA1}, 544, v{vB}
    v_add_u32 v{vA0}, v{vA0}, v{vA1}
    v_lshl_add_u32 v{vXR}, v{vG}, 4, v{vA0}
    s_mul_i32 s{sTMP}, s{u}, 1088
    v_add_u32 v{vXW}, s{sTMP}, v{vXW}
    s_lshl_b32 s{sTMP}, s{u}, 7
    v_add_u32 v{vXR}, s{sTMP}, v{vXR}
    """)
    if o.get("dry", 1):
        a(f"""
        s_mov_b64 {sp(sFULL)}, 0
        s_mov_b64 exec, 0
        s_branch L_tail
        L_dry_done:
        s_mov_b64 {sp(sFULL)}, -1
        s_mov_b64 exec, -1
        s_setprio 3
        """)
    a.stamp(4)
    QG = RAWB
    a(f"""
    s_and_b32 s{sTMP}, s2, 3                   ; hkv
    s_lshl_b32 s{sTMP}, s{sTMP}, 3
    s_lshl_b32 s{sTMP2}, s{u}, 1
    s_add_u32 s{sTMP}, s{sTMP}, s{sTMP2}
    s_lshl_b32 s{sTMP}, s{sTMP}, 1
    s_bfe_u32 s{sTMP2}, s2, 0x10002            ; b = (wg>>2)&1
    s_add_u32 s{sTMP}, s{sTMP}, s{sTMP2}
    s_lshl_b32 s{sTMP}, s{sTMP}, 12
    s_add_u32 s{sTMP}, s{sTMP}, {WS_QP}
    s_add_u32 s{sWQ}, s{sWS}, s{sTMP}
    s_addc_u32 s{sWQ+1}, s{sWS+1}, 0
    s_add_u32 s{sB1}, s{sWQ}, 8192
    s_addc_u32 s{sB1+1}, s{sWQ+1}, 0
    v_lshlrev_b32 v{vA2}, 4, v{vLane}
    """)
    def issq():
        for hh, sb in ((0, sWQ), (1, sB1)):
            for i in range(4):
                a(f"global_load_dwordx4 {vr(QG+16*hh+4*i,4)}, v{vA2}, {sp(sb)} offset:{i*1024} sc1")
    a.spin("qg", issq, [QG+4*i for i in range(8)], ACC, sleep=o.get("qsleep", 4))
    for hh in range(2):
        base = QG + 16*hh
        for t in range(4):
            a(f"v_add_f32 v{base+t}, v{base+t}, v{base+4+t}\n v_add_f32 v{base+8+t}, v{base+8+t}, v{base+12+t}")
        for t in range(4):
            a(f"v_add_f32 v{base+t}, v{base+t}, v{base+8+t}")
    a("s_nop 1")
    for t in range(4):
        a(f"v_permlane32_swap_b32 v{QG+t}, v{QG+16+t}")
    a("s_nop 1")
    for t in range(4):
        a(f"v_add_f32 v{QG+t}, v{QG+t}, v{QG+16+t}")
    a(f"""
    v_cvt_pk_bf16_f32 v{QG+4}, v{QG}, v{QG+1}
    v_cvt_pk_bf16_f32 v{QG+5}, v{QG+2}, v{QG+3}
    v_lshrrev_b32 v{vA0}, 5, v{vLane}            ; kq
    s_lshl_b32 s{sTMP}, s{u}, 1
    v_add_u32 v{vA0}, s{sTMP}, v{vA0}            ; head
    v_mul_u32_u24 v{vA0}, 272, v{vA0}
    v_and_b32 v{vA1}, 31, v{vLane}
    v_lshl_add_u32 v{vA0}, v{vA1}, 3, v{vA0}
    ds_write_b64 v{vA0}, {vr(QG+4,2)} offset:{L_Q}
    v_mov_b32 v{vA1}, 0
    v_mov_b32 v{vA2}, 1
    s_waitcnt lgkmcnt(0)
    s_mov_b64 exec, 1
    ds_add_u32 v{vA1}, v{vA2} offset:{L_CNT}
    s_mov_b64 exec, -1
    """)
    a.stamp(5)
    a(f"s_setprio {o.get('gprio', 1)}")

    def wunit(dst, sptr, voffn, rowfn, rs):
        prev = 0
        for i in range(8):
            d = rowfn(i) - prev
            if d > 0: a(f"s_add_u32 s{sptr}, s{sptr}, {d*rs}\n s_addc_u32 s{sptr+1}, s{sptr+1}, 0")
            elif d < 0: a(f"s_sub_u32 s{sptr}, s{sptr}, {-d*rs}\n s_subb_u32 s{sptr+1}, s{sptr+1}, 0")
            prev = rowfn(i)
            a(f"global_load_dwordx4 {vr(dst+4*i, 4)}, v{voffn}, {sp(sptr)} nt")
    def wpair(dst0, dst1, sptr_src, rowbase_code, rs, gshift_code, rowfn):
        a(rowbase_code)
        a(f"""
        s_add_u32 s{sB0}, s{sptr_src}, s{sTMP}
        s_addc_u32 s{sB0+1}, s{sptr_src+1}, 0
        s_add_u32 s{sR1}, s{sB0}, 256
        s_addc_u32 s{sR1+1}, s{sB0+1}, 0""")
        a(gshift_code)
        a.guard(lambda: (wunit(dst0, sB0, vA1, rowfn, rs), wunit(dst1, sR1, vA1, rowfn, rs)))
    sR1 = 6
    def sweep(name, issue, grans, shadow, sleep, prog=None):
        L = a.lab(name); Lc = a.lab(name + "c"); Lok = a.lab(name + "ok")
        a(f"s_mov_b32 s{sSPIN}, 0")
        a.guard(issue)
        shadow()
        a(f"s_branch {Lc}")
        a.label(L)
        a.guard(issue)
        a.label(Lc)
        if prog is None:
            a.guard(lambda: a("s_waitcnt vmcnt(0)"))
            a.check(grans, ACC)
        else:
            n = len(grans)
            for gi, gbase in enumerate(grans):
                a.guard(lambda gi=gi: a(f"s_waitcnt vmcnt({n-1-gi})"))
                for i in range(4):
                    if gi == 0: a(f"v_xor_b32 v{ACC+i}, s{sT[i]}, v{gbase+i}")
                    else: a(f"v_bitop3_b32 v{ACC+i}, v{gbase+i}, s{sT[i]}, v{ACC+i} bitop3:0xbe")
                prog(gi)
            a(f"v_or3_b32 v{ACC}, v{ACC}, v{ACC+1}, v{ACC+2}\n v_or_b32 v{ACC}, v{ACC}, v{ACC+3}\n v_and_b32 v{ACC}, 0xff, v{ACC}\n v_cmp_ne_u32 vcc, 0, v{ACC}")
        a("s_nop 0")
        a(f"s_cbranch_vccz {Lok}")
        a(f"s_add_u32 s{sSPIN}, s{sSPIN}, 1")
        if sleep: a(f"s_sleep {sleep}")
        a(f"s_cmp_lt_u32 s{sSPIN}, {SPIN_LIMIT}")
        a(f"s_cbranch_scc1 {L}")
        a("s_branch L_abort")
        a.label(Lok)
    HS = [AOP, GA+40, GA+44]
    D = GA
    vals = [GA + 32 + e for e in range(8)]
    psl = o.get("psleep", 1)
    def exchange(lbuf):
        a(f"ds_write_b128 v{vXW}, {vr(GA,4)} offset:{lbuf}")
        a.gbarrier()
        a(f"""
        ds_read_b128 {vr(vals[0],4)}, v{vXR} offset:{lbuf}
        ds_read_b128 {vr(vals[4],4)}, v{vXR} offset:{lbuf + 64}
        s_waitcnt lgkmcnt(0)""")
        a.dpp("v_add_f32", vals, (XOR1, XOR2))
    def red_pub2(name, D1, lb0, lb1, addr):
        L = a.lab("nored" + name)
        R = GA + 32
        a.select(ACC, D, 0)
        a(f"ds_write_b128 v{vA0}, {vr(ACC,4)} offset:{lb0}")
        a.select(AOP, D1, 0)
        a(f"ds_write_b128 v{vA0}, {vr(AOP,4)} offset:{lb1}")
        a.gbarrier()
        a(f"""
        s_cmp_ge_u32 s{sU}, 2
        s_cbranch_scc1 {L}
        s_mul_i32 s{sTMP}, s{sU}, {lb1 - lb0}
        v_lshl_add_u32 v{vA0}, v{vLane}, 4, s{sTMP}""")
        for w in range(4):
            a(f"ds_read_b128 {vr(R+4*w,4)}, v{vA0} offset:{lb0 + w*1024}")
        addr()
        a("s_waitcnt lgkmcnt(0)")
        reduce4(a, R, ACC, vN)
        a.guard(lambda: a(f"global_store_dwordx4 v{vA0}, {vr(ACC,4)}, {sp(sWS)} sc1"))
        a.label(L)
    def o_hint_setup(hreg):
        a(f"""
        s_lshl_b32 s{sTMP2}, s{hreg}, 14                ; h*32*512
        s_lshl_b32 s{sTMP}, s{u}, 12                  ; 8u*512
        s_add_u32 s{sTMP2}, s{sTMP2}, s{sTMP}
        s_add_u32 s{sTMP2}, s{sTMP2}, {WS_OP}
        s_add_u32 s{sWQ}, s{sWS}, s{sTMP2}
        s_addc_u32 s{sWQ+1}, s{sWS+1}, 0
        v_lshrrev_b32 v{vA1}, 5, v{vLane}
        v_lshl_add_u32 v{vA2}, v{vA1}, 19, v{vBG}      ; b<<19 + gi*16
        """)
        if o.get("fullhint", 0):
            a(f"""
            v_bfe_u32 v{vA0}, v{vLane}, 2, 3            ; row i = (l>>2)&7
            v_lshlrev_b32 v{vA0}, 9, v{vA0}
            v_and_b32 v{GA+30}, 3, v{vLane}
            v_lshl_add_u32 v{vA0}, v{GA+30}, 7, v{vA0}   ; + line*128
            v_lshl_add_u32 v{vA0}, v{vA1}, 19, v{vA0}    ; + b<<19   (b = l>>5)
            """)
        else:
            a(f"""
            v_bfe_u32 v{vA1}, v{vLane}, 3, 1
            v_and_b32 v{vA0}, 7, v{vLane}
            v_lshlrev_b32 v{vA0}, 9, v{vA0}
            v_lshl_add_u32 v{vA0}, v{vA1}, 19, v{vA0}
            """)
    a("L_tail:")
    a(f"""
    s_bitcmp1_b32 s2, {2 if o.get("xmap", 0) == 2 else 0}
    s_cbranch_scc{(1 if o.get("xpar", 1) else 0) if o.get("xmap", 0) == 2 else (0 if o.get("xpar", 1) else 1)} L_Y
    """)
    def load_wo(which=(0, 1)):
        code = f"""
            s_lshl_b32 s{sTMP}, s{sHA}, 7
            s_lshl_b32 s{sTMP2}, s{u}, 5
            s_add_u32 s{sTMP}, s{sTMP}, s{sTMP2}
            s_lshl_b32 s{sTMP}, s{sTMP}, 11
            s_lshr_b32 s{sTMP2}, s{sSLOT}, 3
            s_lshl_b32 s{sTMP2}, s{sTMP2}, 9
            s_add_u32 s{sTMP}, s{sTMP}, s{sTMP2}"""
        a(code)
        a(f"""
        s_add_u32 s{sB0}, s{sWO}, s{sTMP}
        s_addc_u32 s{sB0+1}, s{sWO+1}, 0
        s_add_u32 s{sR1}, s{sB0}, 256
        s_addc_u32 s{sR1+1}, s{sB0+1}, 0
        v_lshlrev_b32 v{vA1}, 12, v{vG}             ; 2g*2048
        v_lshl_add_u32 v{vA1}, v{vM}, 4, v{vA1}""")
        def body():
            if 0 in which: wunit(RAWA, sB0, vA1, WO_ROW, 2048)
            if 1 in which: wunit(RAWB, sR1, vA1, WO_ROW, 2048)
        a.guard(body)
    wop = o.get("wop", 0)
    if wop in (0, 2):
        a(f"v_mov_b32 v{vA1}, 0")
        a.ldswait("vw", vA1, vA2, L_CNT+4, 8)
        a(f"s_setprio {o.get('woprio', 0)}")
        load_wo((0, 1) if wop == 0 else (0,))
    a(f"s_setprio {o.get('gprio', 1)}")
    a.stamp(6)
    a.guard(lambda: a("s_barrier      ; B3\n s_barrier      ; B4"))
    if wop == 1: load_wo()
    if wop == 2: load_wo((1,))
    a.stamp(7)
    a(f"""
    s_lshl_b32 s{sTMP}, s{sHA}, 9
    s_add_u32 s{sTMP}, s{sTMP}, {WS_ML}
    v_lshrrev_b32 v{vA1}, 5, v{vLane}             ; b
    v_lshl_add_u32 v{GA+47}, v{vA1}, 14, v{vBG}
    v_add_u32 v{GA+47}, s{sTMP}, v{GA+47}
    """)
    o_hint_setup(sHA)
    HSA = [AOP, GA+36, GA+40]
    if not o.get("fullhint", 0): a.mask("0xffff", "0")
    a.pspin("hO", lambda r: a(f"global_load_dwordx4 {vr(r,4)}, v{vA0}, {sp(sWQ)} sc1"), HSA, ACC, sleep=psl)
    a.full()
    a.stamp(8)
    MLR = GA + 32
    def issA():
        a(f"v_mov_b32 v{vA1}, v{GA+47}")
        a(f"global_load_dwordx4 {vr(MLR,4)}, v{vA1}, {sp(sWS)} sc1")
        for i in range(8):
            a(f"global_load_dwordx4 {vr(GA+4*i,4)}, v{vA2}, {sp(sWQ)} offset:{i*512} sc1")
    MM, LLr, TT = GA+44, GA+45, GA+46
    def factors():
        a(f"v_mov_b32 v{MM}, v{MLR}")
        a.dpp("v_max_f32", [MM], (XOR1, XOR2, ROR4, ROR8))
        a.allreduce_g([MM], [TT], "v_max_f32", steps=("v_permlane16_swap_b32",))
        a(f"""
        v_sub_f32 v{MM}, v{MLR}, v{MM}
        v_exp_f32 v{MM}, v{MM}
        s_nop 0
        v_mul_f32 v{LLr}, v{MM}, v{MLR+1}""")
        a.dpp("v_add_f32", [LLr], (XOR1, XOR2, ROR4, ROR8))
        a.allreduce_g([LLr], [TT], "v_add_f32", steps=("v_permlane16_swap_b32",))
        a(f"""
        v_rcp_f32 v{LLr}, v{LLr}
        s_nop 0
        v_mul_f32 v{MM}, v{MM}, v{LLr}
        s_lshl_b32 s{sTMP}, s{u}, 8
        v_lshl_add_u32 v{vA0}, v{vLane}, 2, s{sTMP}
        ds_write_b32 v{vA0}, v{MM} offset:{L_FAC}
        v_lshrrev_b32 v{vA1}, 5, v{vLane}
        s_lshl_b32 s{sTMP2}, s{u}, 5
        s_add_u32 s{sTMP}, s{sTMP}, s{sTMP2}
        v_lshl_add_u32 v{vA0}, v{vA1}, 7, s{sTMP}      ; u*256 + b*128 + 8u*4
        ds_read_b128 {vr(AOP,4)}, v{vA0} offset:{L_FAC}
        ds_read_b128 {vr(GA+40,4)}, v{vA0} offset:{L_FAC+16}
        """)
    L = a.lab("swA"); Lok = a.lab("swAok")
    a(f"s_mov_b32 s{sSPIN}, 0")
    a.guard(issA)
    a.perm_unit(RAWA, T)
    a.perm_unit(RAWB, RAWA)
    a.label(L)
    a.guard(lambda: a("s_waitcnt vmcnt(8)"))
    for t in range(4):
        a(f"v_xor_b32 v{ACC+t}, s{sT[t]}, v{MLR+t}")
    a(f"v_or3_b32 v{GA+39}, v{ACC}, v{ACC+1}, v{ACC+2}")
    a(f"v_or_b32 v{GA+39}, v{GA+39}, v{ACC+3}")
    factors()
    FACR = [AOP, AOP+1, AOP+2, AOP+3, GA+40, GA+41, GA+42, GA+43]
    progA = o.get("prog", 0) & 1
    if progA: a("s_waitcnt lgkmcnt(0)")
    else: a.guard(lambda: a("s_waitcnt vmcnt(0)"))
    for gi in range(8):
        if progA: a.guard(lambda gi=gi: a(f"s_waitcnt vmcnt({7-gi})"))
        for i in range(4):
            if gi == 0:
                a(f"v_xor_b32 v{ACC+i}, s{sT[i]}, v{GA+i}")
            else:
                a(f"v_bitop3_b32 v{ACC+i}, v{GA+4*gi+i}, s{sT[i]}, v{ACC+i} bitop3:0xbe")
        if progA:
            for t in range(4):
                if gi == 0: a(f"v_mul_f32 v{GA+t}, v{GA+t}, v{FACR[0]}")
                else: a(f"v_fmac_f32 v{GA+t}, v{GA+4*gi+t}, v{FACR[gi]}")
    a(f"v_or3_b32 v{ACC}, v{ACC}, v{ACC+1}, v{ACC+2}\n v_or3_b32 v{ACC}, v{ACC}, v{ACC+3}, v{GA+39}\n v_and_b32 v{ACC}, 0xff, v{ACC}\n v_cmp_ne_u32 vcc, 0, v{ACC}")
    a(f"s_nop 0\n s_cbranch_vccz {Lok}")
    a(f"s_add_u32 s{sSPIN}, s{sSPIN}, 1\n s_sleep 1\n s_waitcnt lgkmcnt(0)")
    a.guard(issA)
    a(f"s_cmp_lt_u32 s{sSPIN}, {SPIN_LIMIT}\n s_cbranch_scc1 {L}\n s_branch L_abort")
    a.label(Lok)
    a.stamp(9)
    if not progA:
        a("s_waitcnt lgkmcnt(0)")
        for t in range(4):
            a(f"v_mul_f32 v{GA+t}, v{GA+t}, v{FACR[0]}")
        for i in range(1, 8):
            for t in range(4):
                a(f"v_fmac_f32 v{GA+t}, v{GA+4*i+t}, v{FACR[i]}")
    exchange(L_XA_A)
    for q in range(4):
        a(f"v_cvt_pk_bf16_f32 v{AOP+q}, v{vals[2*q]}, v{vals[2*q+1]}")
    a("s_nop 1")
    a.mfma8(D, AOP, T)
    a.mfma8(RAWB, AOP, RAWA)
    a(f"s_lshl_b32 s{sTMP}, s{sU}, 10\n v_lshl_add_u32 v{vA0}, v{vLane}, 4, s{sTMP}")
    red_pub2("a", RAWB, L_RA0, L_RA1, lambda: a(f"""
        s_lshr_b32 s{sTMP}, s{sSLOT}, 3
        s_lshl_b32 s{sTMP}, s{sTMP}, 1
        s_add_u32 s{sTMP}, s{sTMP}, s{sU}          ; cc
        s_lshl_b32 s{sTMP}, s{sTMP}, 6
        s_add_u32 s{sTMP}, s{sTMP}, s{sHA}
        s_lshl_b32 s{sTMP}, s{sTMP}, 9
        s_add_u32 s{sTMP}, s{sTMP}, {WS_AP}
        v_and_b32 v{vA0}, 1, v{vG}
        v_lshl_add_u32 v{vA0}, v{vA0}, 14, v{vPubH}
        v_add_u32 v{vA0}, s{sTMP}, v{vA0}"""))
    a.stamp(10)
    a.gbarrier()
    a(f"""
    s_cmp_ge_u32 s{sSLOT}, 28
    s_cbranch_scc1 L_skipC1
    """)
    wpair(T, RAWB, sW2, f"""
        s_lshl_b32 s{sTMP}, s{sFC}, 7
        s_lshl_b32 s{sTMP2}, s{u}, 5
        s_add_u32 s{sTMP}, s{sTMP}, s{sTMP2}
        s_lshl_b32 s{sTMP}, s{sTMP}, 11
        s_and_b32 s{sTMP2}, s{sSLOT}, 3
        s_lshl_b32 s{sTMP2}, s{sTMP2}, 9
        s_add_u32 s{sTMP}, s{sTMP}, s{sTMP2}""", 2048, f"""
        v_lshlrev_b32 v{vA1}, 13, v{vG}           ; 4g*2048
        v_lshl_add_u32 v{vA1}, v{vM}, 4, v{vA1}""", STD_ROW)
    a(f"""
    s_lshl_b32 s{sTMP}, s{sFC}, 7
    s_add_u32 s{sTMP}, s{sTMP}, {WS_FPS}
    v_and_b32 v{vA0}, 7, v{vLane}
    v_lshl_add_u32 v{vA0}, v{vA0}, 4, s{sTMP}
    s_lshl_b32 s{sTMP}, s{sFC}, 13           ; fc*2*8*512
    s_lshl_b32 s{sTMP2}, s{u}, 10             ; 2u*512
    s_add_u32 s{sTMP}, s{sTMP}, s{sTMP2}
    s_add_u32 s{sTMP}, s{sTMP}, {WS_FPP}
    s_add_u32 s{sWQ}, s{sWS}, s{sTMP}
    s_addc_u32 s{sWQ+1}, s{sWS+1}, 0
    s_lshl_b32 s{sTMP}, s{sFC}, 12           ; fc*8*512
    s_add_u32 s{sTMP}, s{sTMP}, s{sTMP2}
    s_add_u32 s{sTMP}, s{sTMP}, {WS_FPC}
    s_add_u32 s{sB1}, s{sWS}, s{sTMP}
    s_addc_u32 s{sB1+1}, s{sWS+1}, 0
    v_lshrrev_b32 v{vA1}, 5, v{vLane}
    v_lshl_add_u32 v{vA2}, v{vA1}, 12, v{vBG}   ; b*8*512 + gi*16
    """)
    a.guard(lambda: a("s_waitcnt vmcnt(0)"))
    a.perm_unit(T, RAWA)
    a.perm_unit(RAWB, T)
    a.stamp(13)
    ST = GA + 36
    a.pspin("hC", lambda r: a(f"global_load_dwordx4 {vr(r,4)}, v{vA0}, {sp(sWS)} sc1"), HS, ACC, dst=ST, sleep=psl)
    a.stamp(14)
    MEANB, RS0, RS1 = GA+32, GA+33, GA+34
    def issC():
        for k in range(2):
            a(f"global_load_dwordx4 {vr(GA+4*k,4)}, v{vA2}, {sp(sWQ)} offset:{k*512} sc1")
        for k in range(2):
            a(f"global_load_dwordx4 {vr(GA+8+4*k,4)}, v{vBG}, {sp(sB1)} offset:{k*512} sc1")
    def shadowC():
        a.dpp("v_add_f32", [ST, ST+1, ST+2, ST+3], (XOR1, XOR2, ROR4))
        a(f"""
        v_mul_f32 v{ST}, 0x3a800000, v{ST}
        v_mul_f32 v{ST+2}, 0x3a800000, v{ST+2}
        v_mul_f32 v{ST+1}, 0x3a800000, v{ST+1}
        v_mul_f32 v{ST+3}, 0x3a800000, v{ST+3}
        v_cndmask_b32 v{MEANB}, v{ST}, v{ST+2}, {sp(sMHI)}
        v_fma_f32 v{ST+1}, -v{ST}, v{ST}, v{ST+1}
        v_fma_f32 v{ST+3}, -v{ST+2}, v{ST+2}, v{ST+3}
        v_max_f32 v{ST+1}, 0, v{ST+1}
        v_max_f32 v{ST+3}, 0, v{ST+3}
        v_add_f32 v{ST+1}, 0x3727c5ac, v{ST+1}
        v_add_f32 v{ST+3}, 0x3727c5ac, v{ST+3}
        v_rsq_f32 v{RS0}, v{ST+1}
        v_rsq_f32 v{RS1}, v{ST+3}
        s_nop 0
        v_cndmask_b32 v{GA+35}, v{RS0}, v{RS1}, {sp(sMB)}
        """)
    dsilu = o.get("dsilu", 0)
    XC = GA + 16
    def shadowC2():
        shadowC()
        if dsilu:
            a(f"""
            v_and_b32 v{XC+1}, 3, v{vM}
            v_mul_u32_u24 v{XC+2}, 1088, v{XC+1}
            v_sub_u32 v{XC}, v{vXR}, v{XC+2}
            v_and_b32 v{XC+2}, 1, v{XC+1}
            v_lshl_add_u32 v{XC}, v{XC+2}, 3, v{XC}
            v_lshrrev_b32 v{XC+2}, 1, v{XC+1}
            v_lshl_add_u32 v{XC}, v{XC+2}, 6, v{XC}
            """)
    progC = o.get("prog", 0) & 4
    def accC(i):
        if i == 1:
            for t in (0, 2): a(f"v_pk_add_f32 {vr(GA+t,2)}, {vr(GA+t,2)}, {vr(GA+4+t,2)}")
        if i == 3:
            for t in (0, 2): a(f"v_pk_add_f32 {vr(GA+8+t,2)}, {vr(GA+8+t,2)}, {vr(GA+12+t,2)}")
            for t in range(4): a(f"v_fma_f32 v{GA+t}, -v{MEANB}, v{GA+8+t}, v{GA+t}")
    sweep("gC", issC, [GA+4*i for i in range(4)], shadowC2, o.get("csleep", 1), prog=accC if progC else None)
    a.stamp(15)
    RSB = GA + 40
    if not progC:
        for t in range(4):
            a(f"v_add_f32 v{GA+t}, v{GA+t}, v{GA+4+t}\n v_add_f32 v{GA+8+t}, v{GA+8+t}, v{GA+12+t}")
        for t in range(4):
            a(f"v_fma_f32 v{GA+t}, -v{MEANB}, v{GA+8+t}, v{GA+t}")
    if dsilu:
        RSB = GA + 35
        a(f"ds_write_b128 v{vXW}, {vr(GA,4)} offset:{L_XA_C}")
        a.gbarrier()
        Y0 = GA + 20
        for w in range(4):
            a(f"ds_read_b64 {vr(Y0+2*w,2)}, v{XC} offset:{L_XA_C + w*1088}")
        a(f"""
        s_waitcnt lgkmcnt(2)
        v_pk_add_f32 {vr(Y0,2)}, {vr(Y0,2)}, {vr(Y0+2,2)}
        s_waitcnt lgkmcnt(0)
        v_pk_add_f32 {vr(Y0+4,2)}, {vr(Y0+4,2)}, {vr(Y0+6,2)}
        v_pk_add_f32 {vr(Y0,2)}, {vr(Y0,2)}, {vr(Y0+4,2)}
        v_mul_f32 v{Y0}, v{Y0}, v{RSB}
        v_mul_f32 v{Y0+1}, v{Y0+1}, v{RSB}
        v_mul_f32 v{Y0+2}, 0xbfb8aa3b, v{Y0}      ; -log2e * x
        v_mul_f32 v{Y0+3}, 0xbfb8aa3b, v{Y0+1}
        v_exp_f32 v{Y0+2}, v{Y0+2}
        v_exp_f32 v{Y0+3}, v{Y0+3}
        s_nop 0
        v_add_f32 v{Y0+2}, 1.0, v{Y0+2}
        v_add_f32 v{Y0+3}, 1.0, v{Y0+3}
        v_rcp_f32 v{Y0+2}, v{Y0+2}
        v_rcp_f32 v{Y0+3}, v{Y0+3}
        s_nop 0
        v_mul_f32 v{Y0}, v{Y0}, v{Y0+2}
        v_mul_f32 v{Y0+1}, v{Y0+1}, v{Y0+3}
        v_cvt_pk_bf16_f32 v{Y0+4}, v{Y0}, v{Y0+1}
        s_nop 1
        """)
        for q in range(4):
            a(f"v_mov_b32_dpp v{AOP+q}, v{Y0+4} quad_perm:[{q},{q},{q},{q}] {DM}")
        a("s_nop 1")
    else:
        a(f"v_mov_b32 v{RSB}, v{GA+35}")
        exchange(L_XA_C)
        for e in range(8):
            a(f"v_mul_f32 v{vals[e]}, v{vals[e]}, v{RSB}")
        E = GA + 8
        for e in range(8):
            a(f"v_mul_f32 v{E+e}, 0xbfb8aa3b, v{vals[e]}      ; -log2e * x")
        for e in range(8):
            a(f"v_exp_f32 v{E+e}, v{E+e}")
        for e in range(8):
            a(f"v_add_f32 v{E+e}, 1.0, v{E+e}")
        for e in range(8):
            a(f"v_rcp_f32 v{E+e}, v{E+e}")
        for e in range(8):
            a(f"v_mul_f32 v{vals[e]}, v{vals[e]}, v{E+e}")
        for q in range(4):
            a(f"v_cvt_pk_bf16_f32 v{AOP+q}, v{vals[2*q]}, v{vals[2*q+1]}")
        a("s_nop 1")
    a.mfma8(D, AOP, RAWA)
    a.mfma8(RAWB, AOP, T)
    a(f"s_lshl_b32 s{sTMP}, s{sU}, 10\n v_lshl_add_u32 v{vA0}, v{vLane}, 4, s{sTMP}")
    red_pub2("c", RAWB, L_RD0, L_RD1, lambda: a(f"""
        s_and_b32 s{sTMP}, s{sSLOT}, 3
        s_lshl_b32 s{sTMP}, s{sTMP}, 1
        s_add_u32 s{sTMP}, s{sTMP}, s{sU}          ; cc
        s_mul_i32 s{sTMP}, s{sTMP}, 56
        s_add_u32 s{sTMP}, s{sTMP}, s{sFC}
        s_lshl_b32 s{sTMP}, s{sTMP}, 9
        s_add_u32 s{sTMP}, s{sTMP}, {WS_O2}
        v_and_b32 v{vA0}, 1, v{vG}
        v_mul_u32_u24 v{vA0}, {28*512}, v{vA0}
        v_add3_u32 v{vA0}, v{vA0}, v{vPubH}, s{sTMP}"""))
    a("L_skipC1:")
    a.stamp(16)
    a("s_branch L_D")
    a("L_Y:")
    a.stamp(6)
    a.guard(lambda: a("s_barrier      ; B3\n s_barrier      ; B4"))
    a.stamp(7)
    a(f"""
    s_cmp_ge_u32 s{sFCP}, 14
    s_cbranch_scc1 L_D
    """)
    if o.get("ytrig", 1):
        o_hint_setup(sHA)
        a(f"""
        v_bfe_u32 v{vA1}, v{vLane}, 3, 1
        v_and_b32 v{vA0}, 7, v{vLane}
        v_lshlrev_b32 v{vA0}, 9, v{vA0}
        v_lshl_add_u32 v{vA0}, v{vA1}, 19, v{vA0}
        """)
        a.mask("0xffff", "0")
        a.pspin("hY", lambda r: a(f"global_load_dwordx4 {vr(r,4)}, v{vA0}, {sp(sWQ)} sc1"), HS, ACC, sleep=o.get("ysleep", 3), thr=o.get("ythr", 0))
        a.full()
    a.stamp(8)
    wpair(RAWA, RAWB, sW1, f"""
        s_lshl_b32 s{sTMP}, s{sKSB}, 7
        s_lshl_b32 s{sTMP2}, s{u}, 5
        s_add_u32 s{sTMP}, s{sTMP}, s{sTMP2}
        s_mul_i32 s{sTMP}, s{sTMP}, 7168
        s_lshl_b32 s{sTMP2}, s{sFCP}, 9
        s_add_u32 s{sTMP}, s{sTMP}, s{sTMP2}""", 7168, f"""
        v_mul_u32_u24 v{vA1}, {4*7168}, v{vG}
        v_lshl_add_u32 v{vA1}, v{vM}, 4, v{vA1}""", STD_ROW)
    a(f"""
    s_lshl_b32 s{sTMP}, s{sKSB}, 15            ; ks*2*32*512
    s_lshl_b32 s{sTMP2}, s{u}, 12
    s_add_u32 s{sTMP}, s{sTMP}, s{sTMP2}
    s_add_u32 s{sTMP}, s{sTMP}, {WS_AP}
    s_add_u32 s{sWQ}, s{sWS}, s{sTMP}
    s_addc_u32 s{sWQ+1}, s{sWS+1}, 0
    v_lshrrev_b32 v{vA1}, 5, v{vLane}
    v_lshl_add_u32 v{vA2}, v{vA1}, 14, v{vBG}
    """)
    if o.get("fullhint", 0):
        a(f"""
        v_bfe_u32 v{vA0}, v{vLane}, 2, 3
        v_lshlrev_b32 v{vA0}, 9, v{vA0}
        v_and_b32 v{GA+30}, 3, v{vLane}
        v_lshl_add_u32 v{vA0}, v{GA+30}, 7, v{vA0}
        v_lshl_add_u32 v{vA0}, v{vA1}, 14, v{vA0}
        """)
    else:
        a(f"""
        v_bfe_u32 v{vA1}, v{vLane}, 3, 1
        v_and_b32 v{vA0}, 7, v{vLane}
        v_lshlrev_b32 v{vA0}, 9, v{vA0}
        v_lshl_add_u32 v{vA0}, v{vA1}, 14, v{vA0}
        """)
    a.guard(lambda: a("s_waitcnt vmcnt(0)"))
    a.perm_unit(RAWA, T)
    a.perm_unit(RAWB, RAWA)
    a.stamp(10)
    if not o.get("fullhint", 0): a.mask("0xffff", "0")
    a.pspin("hB", lambda r: a(f"global_load_dwordx4 {vr(r,4)}, v{vA0}, {sp(sWQ)} sc1"), HS, ACC, sleep=psl)
    a.full()
    a.stamp(11)
    def issB():
        for i in range(8):
            a(f"global_load_dwordx4 {vr(GA+4*i,4)}, v{vA2}, {sp(sWQ)} offset:{i*512} sc1")
    XF = GA + 48 - 8
    progB = o.get("prog", 0) & 2
    def accB(i):
        if i: a(f"v_pk_add_f32 {vr(GA,2)}, {vr(GA,2)}, {vr(GA+4*i,2)}\n v_pk_add_f32 {vr(GA+2,2)}, {vr(GA+2,2)}, {vr(GA+4*i+2,2)}")
    sweep("gB", issB, [GA+4*i for i in range(8)], lambda: None, o.get("bsleep", 1), prog=accB if progB else None)
    a.stamp(12)
    if not progB:
        for k in (0, 8, 16, 24):
            a(f"v_pk_add_f32 {vr(GA+k,2)}, {vr(GA+k,2)}, {vr(GA+k+4,2)}\n v_pk_add_f32 {vr(GA+k+2,2)}, {vr(GA+k+2,2)}, {vr(GA+k+6,2)}")
        for k in (0, 16):
            a(f"v_pk_add_f32 {vr(GA+k,2)}, {vr(GA+k,2)}, {vr(GA+k+8,2)}\n v_pk_add_f32 {vr(GA+k+2,2)}, {vr(GA+k+2,2)}, {vr(GA+k+10,2)}")
        a(f"v_pk_add_f32 {vr(GA,2)}, {vr(GA,2)}, {vr(GA+16,2)}\n v_pk_add_f32 {vr(GA+2,2)}, {vr(GA+2,2)}, {vr(GA+18,2)}")
    a(f"ds_write_b128 v{vXW}, {vr(GA,4)} offset:{L_XA_B}")
    for q in range(4):
        a(f"v_lshlrev_b32 v{XF+2*q}, 16, v{XR+q}\n v_and_b32 v{XF+2*q+1}, 0xffff0000, v{XR+q}")
    a.gbarrier()
    a(f"""
    ds_read_b128 {vr(vals[0],4)}, v{vXR} offset:{L_XA_B}
    ds_read_b128 {vr(vals[4],4)}, v{vXR} offset:{L_XA_B + 64}
    v_mov_b32 v{ACC}, 0x3f803f80
    s_waitcnt lgkmcnt(0)""")
    a.dpp("v_add_f32", vals, (XOR1, XOR2))
    for e in range(0, 8, 2):
        a(f"v_pk_add_f32 {vr(XF+e,2)}, {vr(XF+e,2)}, {vr(vals[e],2)}")
    HP_ = XR
    for q in range(4):
        a(f"v_cvt_pk_bf16_f32 v{HP_+q}, v{XF+2*q}, v{XF+2*q+1}")
    a("s_nop 0")
    for q in range(4):
        a(f"v_cndmask_b32 v{AOP+q}, v{HP_+q}, v{ACC}, {sp(sM1)}")
    a("s_nop 1")
    DX = GA + 44
    a(f"v_mfma_f32_16x16x32_bf16 {vr(DX,4)}, {vr(AOP,4)}, {vr(AOP,4)}, 0")
    a.mfma8(D, AOP, T)
    a.mfma8(RAWB, AOP, RAWA)
    a(f"""
    s_lshl_b32 s{sTMP}, s{u}, 10
    v_lshl_add_u32 v{vA0}, v{vLane}, 4, s{sTMP}
    v_lshrrev_b32 v{vA1}, 4, v{vLane}
    v_lshlrev_b32 v{vA1}, 3, v{vA1}
    v_not_b32 v{vA2}, v{vLane}
    v_and_b32 v{vA2}, 1, v{vA2}
    v_lshl_add_u32 v{vA1}, v{vA2}, 2, v{vA1}
    s_lshl_b32 s{sTMP}, s{u}, 4
    v_add_u32 v{vA1}, s{sTMP}, v{vA1}
    """)
    a.select(ACC, D, 0)
    a(f"ds_write_b128 v{vA0}, {vr(ACC,4)} offset:{L_RA0}")
    a.select(AOP, D, 1)
    a(f"ds_write_b128 v{vA0}, {vr(AOP,4)} offset:{L_RD0}")
    a.select(GA+32, RAWB, 0)
    a(f"ds_write_b128 v{vA0}, {vr(GA+32,4)} offset:{L_RA1}")
    a.select(GA+36, RAWB, 1)
    a(f"ds_write_b128 v{vA0}, {vr(GA+36,4)} offset:{L_RD1}")
    a.mask("0x00300003", "0")
    a(f"ds_write_b32 v{vA1}, v{DX} offset:{L_REDS}")
    a.full()
    a.gbarrier()
    R2 = GA + 16
    a(f"""
    s_cmp_eq_u32 s{u}, 3
    s_cbranch_scc1 L_b_st
    s_cmp_eq_u32 s{u}, 2
    s_cbranch_scc1 L_b_cs
    s_mul_i32 s{sTMP}, s{u}, {L_RA1 - L_RA0}
    v_lshl_add_u32 v{vA0}, v{vLane}, 4, s{sTMP}
    """)
    for w in range(4):
        a(f"ds_read_b128 {vr(R2+4*w,4)}, v{vA0} offset:{L_RA0 + w*1024}")
    a(f"""
    s_lshl_b32 s{sTMP}, s{sFCP}, 1
    s_add_u32 s{sTMP}, s{sTMP}, s{u}           ; fc
    s_lshl_b32 s{sTMP}, s{sTMP}, 4             ; fc*2*8
    s_add_u32 s{sTMP}, s{sTMP}, s{sKSB}
    s_lshl_b32 s{sTMP}, s{sTMP}, 9
    s_add_u32 s{sTMP}, s{sTMP}, {WS_FPP}
    v_and_b32 v{vA0}, 1, v{vG}
    v_lshl_add_u32 v{vA0}, v{vA0}, 12, v{vPubH}
    v_add_u32 v{vA0}, s{sTMP}, v{vA0}
    s_waitcnt lgkmcnt(0)""")
    reduce4(a, R2, ACC, vN)
    a.guard(lambda: a(f"global_store_dwordx4 v{vA0}, {vr(ACC,4)}, {sp(sWS)} sc1"))
    a(f"""
    s_branch L_b_done
    L_b_cs:
    v_and_b32 v{vA1}, 1, v{vG}
    v_mul_u32_u24 v{vA0}, {L_RD1 - L_RD0}, v{vA1}
    v_lshl_add_u32 v{vA0}, v{vLane}, 4, v{vA0}
    """)
    for w in range(4):
        a(f"ds_read_b128 {vr(R2+4*w,4)}, v{vA0} offset:{L_RD0 + w*1024}")
    a(f"""
    s_lshl_b32 s{sTMP}, s{sFCP}, 4             ; fc0*8
    s_add_u32 s{sTMP}, s{sTMP}, s{sKSB}
    s_lshl_b32 s{sTMP}, s{sTMP}, 9
    s_add_u32 s{sTMP}, s{sTMP}, {WS_FPC}
    v_lshl_add_u32 v{vA0}, v{vA1}, 12, v{vPubH}     ; + (g&1)*8*512
    v_add_u32 v{vA0}, s{sTMP}, v{vA0}
    s_waitcnt lgkmcnt(0)""")
    reduce4(a, R2, ACC, vN)
    a.guard(lambda: a(f"global_store_dwordx4 v{vA0}, {vr(ACC,4)}, {sp(sWS)} sc1"))
    a(f"""
    s_branch L_b_done
    L_b_st:
    v_mov_b32 v{vA0}, 0
    """)
    for w in range(4):
        a(f"ds_read_b128 {vr(R2+4*w,4)}, v{vA0} offset:{L_REDS + w*16}")
    a(f"""
    s_lshl_b32 s{sTMP}, s{sFCP}, 4
    s_add_u32 s{sTMP}, s{sTMP}, s{sKSB}
    s_lshl_b32 s{sTMP}, s{sTMP}, 4
    s_add_u32 s{sTMP}, s{sTMP}, {WS_FPS}
    v_lshl_add_u32 v{vA0}, v{vLane}, 7, s{sTMP}
    s_waitcnt lgkmcnt(0)
    """)
    for t in (0, 2):
        a(f"v_pk_add_f32 {vr(R2+t,2)}, {vr(R2+t,2)}, {vr(R2+4+t,2)}\n v_pk_add_f32 {vr(R2+8+t,2)}, {vr(R2+8+t,2)}, {vr(R2+12+t,2)}")
    for t in (0, 2):
        a(f"v_pk_add_f32 {vr(R2+t,2)}, {vr(R2+t,2)}, {vr(R2+8+t,2)}")
    a.tag(ACC, R2, vN)
    a.mask("3", "0")
    a.guard(lambda: a(f"global_store_dwordx4 v{vA0}, {vr(ACC,4)}, {sp(sWS)} sc1"))
    a.full()
    a("L_b_done:")
    a(f"""
    s_cmp_lg_u32 s{sFCP}, 0
    s_cbranch_scc1 L_nohp""")
    XF2 = GA + 32
    for q in range(4):
        a(f"v_lshlrev_b32 v{XF2+2*q}, 16, v{HP_+q}\n v_and_b32 v{XF2+2*q+1}, 0xffff0000, v{HP_+q}")
    a.tag(GA+4, XF2, vN)
    a.tag(GA+8, XF2+4, vN)
    a(f"""
    s_lshl_b32 s{sTMP}, s{sKSB}, 5
    s_lshl_b32 s{sTMP2}, s{u}, 3
    s_add_u32 s{sTMP}, s{sTMP}, s{sTMP2}
    s_lshl_b32 s{sTMP}, s{sTMP}, 4
    s_add_u32 s{sTMP}, s{sTMP}, {WS_HP}
    v_lshlrev_b32 v{vA1}, 4, v{vG}
    v_lshl_add_u32 v{vA1}, v{vB}, 12, v{vA1}
    v_add_u32 v{vA1}, s{sTMP}, v{vA1}""")
    a.mask("0x00110011", "0x00110011")
    a.guard(lambda: a(f"""global_store_dwordx4 v{vA1}, {vr(GA+4,4)}, {sp(sWS)} sc1
    global_store_dwordx4 v{vA1}, {vr(GA+8,4)}, {sp(sWS)} offset:64 sc1"""))
    a.full()
    a("L_nohp:")
    a.stamp(13)
    if o.get("ydpre", 0): a.guard(lambda: a("\n".join([f"s_sleep {min(127, o['ydpre'] - 127*k)}" for k in range((o['ydpre'] + 126)//127)])))
    a("L_D:")
    a(f"""
    s_cmp_lg_u32 s{u}, 0
    s_cbranch_scc1 L_G_done
    s_and_b32 s{sX}, s2, 7
    s_lshl_b32 s{sX}, s{sX}, 5
    s_lshr_b32 s{sX+1}, s2, 3
    s_add_u32 s{sX}, s{sX}, s{sX+1}
    s_lshr_b32 s{sB0}, s{sX}, 7                ; b2
    s_bfe_u32 s{sB0+1}, s{sX}, 0x30004         ; cc2
    s_and_b32 s{sB1}, s{sX}, 15
    s_lshl_b32 s{sB1}, s{sB1}, 5               ; gi0*16
    s_lshl_b32 s{sTMP}, s{sB0+1}, 1
    s_add_u32 s{sTMP}, s{sTMP}, s{sB0}
    s_mul_i32 s{sTMP}, s{sTMP}, {28*512}
    s_add_u32 s{sTMP}, s{sTMP}, s{sB1}
    s_add_u32 s{sTMP}, s{sTMP}, {WS_O2}
    v_lshrrev_b32 v{vA0}, 1, v{vLane}
    v_lshlrev_b32 v{vA0}, 9, v{vA0}
    v_and_b32 v{vA1}, 1, v{vLane}
    v_lshl_add_u32 v{vA0}, v{vA1}, 4, v{vA0}
    v_add_u32 v{vA0}, s{sTMP}, v{vA0}
    s_lshl_b32 s{sTMP}, s{sB0}, 12             ; b*256*16
    s_lshl_b32 s{sTMP2}, s{sB0+1}, 9           ; cc*32*16
    s_add_u32 s{sTMP}, s{sTMP}, s{sTMP2}
    s_add_u32 s{sTMP}, s{sTMP}, s{sB1}
    s_add_u32 s{sTMP}, s{sTMP}, {WS_HP}
    v_lshl_add_u32 v{vA2}, v{vA1}, 4, s{sTMP}
    v_cmp_le_u32 vcc, 56, v{vLane}
    s_nop 1
    v_cndmask_b32 v{vA0}, v{vA0}, v{vA2}, vcc
    """)
    DS = [GA, GA+4, GA+8]
    a.mask("-1", "0x03ffffff")
    if o.get("dpre", 0): a.guard(lambda: a(f"s_sleep {o['dpre']}"))
    a.pspin("gd", lambda r: a(f"global_load_dwordx4 {vr(r,4)}, v{vA0}, {sp(sWS)} sc1"), DS, ACC, dst=GA+12, sleep=o.get("dsleep", 1), stag=o.get("dstag", 0))
    a.full()
    a.stamp(17)
    fv = [GA+12+i for i in range(4)]
    a.mask("0", "0xfc000000")
    for r in fv: a(f"v_mov_b32 v{r}, 0")
    a.full()
    a.dpp("v_add_f32", fv, (XOR2, ROR4, ROR8))
    a.allreduce_g(fv, [GA+16+i for i in range(4)])
    a(f"""
    v_cvt_pk_bf16_f32 v{GA+20}, v{GA+12}, v{GA+13}
    v_cvt_pk_bf16_f32 v{GA+21}, v{GA+14}, v{GA+15}
    s_lshl_b32 s{sTMP}, s{sX}, 4
    v_lshl_add_u32 v{vA0}, v{vA1}, 3, s{sTMP}
    """)
    a.mask("3", "0")
    a.guard(lambda: a(f"global_store_dwordx2 v{vA0}, {vr(GA+20,2)}, {sp(sOUT)}"))
    a(f"""
    s_cmp_lg_u32 s2, 0
    s_cbranch_scc1 L_G_done
    """)
    a.full()
    a(f"v_mov_b32 v{vA0}, 0")
    a.mask("1", "0")
    a.guard(lambda: a(f"global_store_dword v{vA0}, v{vN}, {sp(sWS)} sc1"))
    a("L_G_done:")
    if o.get("dry", 1):
        a("s_cbranch_execz L_dry_done")
    a.stamp(18)
    a.dump_stamps(19, 7)
    a("s_endpgm")

def gen_A(a):
    o = a.o
    vLane, vG, vM, vN = 0, 2, 3, 4
    vKs = 5
    vV = 9
    vT0, vT1, vT2 = 10, 11, 12
    MX, LS = 13, 14
    VR = 16
    QO = 80
    KS = 96
    S = 128
    P = 144
    TB = 80
    ACCD = 112
    sA = sU
    sP, sS = 52, 53
    a(f"""
    L_A:
    ; ---------------- A waves ----------------
    s_setprio 2
    s_sub_u32 s{sA}, s{sWAVE}, 4
    s_and_b32 s{sP}, s2, 7
    s_lshr_b32 s{sS}, s2, 3
    s_lshl_b32 s{sTMP}, s{sP}, 22
    s_lshl_b32 s{sTMP2}, s{sS}, 17
    s_add_u32 s{sTMP}, s{sTMP}, s{sTMP2}
    s_lshl_b32 s{sTMP2}, s{sA}, {12 if o.get("ilv", 1) else 14}
    s_add_u32 s{sTMP}, s{sTMP}, s{sTMP2}
    s_lshl_b32 s{sTMP2}, s{sA}, 14
    """)
    TS = 32768 if o.get("ilv", 1) else 4096
    for r in range(4):
        a(f"v_add_u32 v{vT0}, {4*r}, v{vG}\n v_xor_b32 v{vT0}, v{vT0}, v{vM}\n v_lshlrev_b32 v{vT0}, 4, v{vT0}\n v_lshl_add_u32 v{vKs+r}, v{vG}, 8, v{vT0}")
    a(f"""
    v_lshlrev_b32 v{vT0}, 4, v{vM}
    v_lshl_add_u32 v{vV}, v{vG}, 10, v{vT0}
    v_mov_b32 v{vT1}, 0
    s_mov_b32 s{sM8}, 0xff00ff00
    s_mov_b32 s{sM8+1}, 0xff00ff00
    s_waitcnt lgkmcnt(0)
    s_add_u32 s{sB0}, s{sK}, s{sTMP}
    s_addc_u32 s{sB0+1}, s{sK+1}, 0
    s_add_u32 s{sB1}, s{sV}, s{sTMP}
    s_addc_u32 s{sB1+1}, s{sV+1}, 0
    s_add_u32 m0, s{sTMP2}, {L_K}
    s_barrier       ; B0
    global_load_dword v{vN}, v{vT1}, {sp(sWS)} sc1
    """)
    KW = o.get("kwin", 3)
    for i in range(16):
        r = i % 4
        if KW and i >= KW: a(f"s_waitcnt vmcnt({KW-1})")
        a(f"global_load_lds_dwordx4 v{vKs+r}, {sp(sB0)} offset:{r*1024} nt")
        if r == 3 and i < 15:
            a(f"s_add_u32 s{sB0}, s{sB0}, {TS}\n s_addc_u32 s{sB0+1}, s{sB0+1}, 0\n s_add_u32 m0, m0, 4096")
    a.stamp(1)
    a(f"s_setprio {o.get('vprio', 1)}")
    VW = o.get("vwin", 0)
    for uu in range(2):
        for i in range(8):
            reg = VR + (uu*8+i)*4
            if VW and uu*8+i < o.get("vwn", 16): a(f"s_waitcnt vmcnt({VW-1})")
            a(f"global_load_dwordx4 {vr(reg,4)}, v{vV}, {sp(sB1)} offset:{(i%4)*256} nt")
            if i % 4 == 3 and not (uu == 1 and i == 7):
                a(f"s_add_u32 s{sB1}, s{sB1}, {TS}\n s_addc_u32 s{sB1+1}, s{sB1+1}, 0")
    a.stamp(2)
    a(f"""
    v_mov_b32 v{vT1}, 0
    v_mov_b32 v{vT2}, 1
    s_mov_b64 exec, 1
    ds_add_u32 v{vT1}, v{vT2} offset:{L_CNT+4}
    s_mov_b64 exec, -1""")
    a(f"s_lshl_b32 s{sTMP}, s{sA}, 14\n s_add_u32 s{sTMP}, s{sTMP}, {L_K}")
    for s in range(4):
        a(f"v_add_u32 v{vT0}, {4*s}, v{vG}\n v_xor_b32 v{vT0}, v{vT0}, v{vM}\n v_lshlrev_b32 v{vT0}, 4, v{vT0}\n v_lshl_add_u32 v{vT0}, v{vM}, 8, v{vT0}\n v_add_u32 v{vKs+s}, s{sTMP}, v{vT0}")
    a.ldswait("Aq", vT1, vT2, L_CNT, 4, sleep=4)
    a(f"""
    v_and_b32 v{vT0}, 7, v{vM}
    v_mul_u32_u24 v{vT0}, 272, v{vT0}
    v_lshl_add_u32 v{vT0}, v{vG}, 4, v{vT0}
    """)
    a.stamp(3)
    for s in range(4):
        a(f"ds_read_b128 {vr(QO+4*s,4)}, v{vT0} offset:{L_Q + s*64}")
    a("s_waitcnt vmcnt(16)")
    a.nonce_from(vN)
    def kread(t, buf):
        for s in range(4):
            a(f"ds_read_b128 {vr(KS+16*buf+4*s,4)}, v{vKs+s} offset:{t*4096}")
    kread(0, 0); kread(1, 1)
    for t in range(4):
        buf = t % 2
        a("s_waitcnt lgkmcnt(4)" if t < 3 else "s_waitcnt lgkmcnt(0)")
        for s in range(4):
            c = "0" if s == 0 else vr(S+4*t, 4)
            a(f"v_mfma_f32_16x16x32_bf16 {vr(S+4*t,4)}, {vr(KS+16*buf+4*s,4)}, {vr(QO+4*s,4)}, {c}")
        if t + 2 < 4:
            kread(t + 2, buf)
    a("s_nop 7")
    a(f"v_max3_f32 v{MX}, v{S}, v{S+1}, v{S+2}")
    for k in range(3, 15, 2):
        a(f"v_max3_f32 v{MX}, v{MX}, v{S+k}, v{S+k+1}")
    a(f"v_max_f32 v{MX}, v{MX}, v{S+15}")
    a.allreduce_g([MX], [vT2], "v_max_f32")
    a(f"""
    s_mov_b32 s{sC}, 0x3e0293ee                   ; 128^-0.5 * log2(e)
    v_mul_f32 v{MX}, s{sC}, v{MX}""")
    for k in range(16):
        a(f"v_fma_f32 v{S+k}, v{S+k}, s{sC}, -v{MX}")
    for k in range(16):
        a(f"v_exp_f32 v{S+k}, v{S+k}")
    a("s_nop 0")
    for uu in range(2):
        for q in range(4):
            k = 8*uu + 2*q
            a(f"v_cvt_pk_bf16_f32 v{P+4*uu+q}, v{S+k}, v{S+k+1}")
    a(f"v_add_f32 v{LS}, v{S}, v{S+1}")
    for k in range(2, 16):
        a(f"v_add_f32 v{LS}, v{LS}, v{S+k}")
    a.allreduce_g([LS], [KS])
    a(f"""
    v_and_b32 v{vT0}, 7, v{vM}
    v_lshlrev_b32 v{vT0}, 5, v{vT0}             ; head*32
    s_lshl_b32 s{sTMP}, s{sA}, 2
    v_add_u32 v{vT0}, s{sTMP}, v{vT0}            ; head*32 + a*4
    s_mov_b64 exec, 0xff
    ds_write_b32 v{vT0}, v{MX} offset:{L_MX}
    ds_write_b32 v{vT0}, v{LS} offset:{L_LS}
    s_mov_b64 exec, 1
    v_mov_b32 v{vT1}, 0
    v_mov_b32 v{vT2}, 1
    s_waitcnt lgkmcnt(0)
    ds_add_rtn_u32 v{vT2}, v{vT1}, v{vT2} offset:{L_CNT+8}
    s_waitcnt lgkmcnt(0)
    s_mov_b64 exec, -1
    v_readfirstlane_b32 s{sTMP}, v{vT2}
    s_mov_b32 s{sSPIN}, 0
    s_cmp_lg_u32 s{sTMP}, 7
    s_cbranch_scc1 L_A_noml
    v_and_b32 v{vT0}, 7, v{vLane}
    v_lshlrev_b32 v{vT1}, 5, v{vT0}
    ds_read_b128 {vr(KS,4)}, v{vT1} offset:{L_MX}
    ds_read_b128 {vr(KS+4,4)}, v{vT1} offset:{L_MX+16}
    ds_read_b128 {vr(KS+8,4)}, v{vT1} offset:{L_LS}
    ds_read_b128 {vr(KS+12,4)}, v{vT1} offset:{L_LS+16}
    s_lshl_b32 s{sTMP}, s{sP}, 8                   ; p*8*32
    s_add_u32 s{sTMP}, s{sTMP}, s{sS}
    s_lshl_b32 s{sTMP}, s{sTMP}, 4
    s_add_u32 s{sTMP}, s{sTMP}, {WS_ML}
    v_lshl_add_u32 v{vT1}, v{vT0}, 9, s{sTMP}       ; + head*32*16
    s_waitcnt lgkmcnt(0)
    v_max3_f32 v{KS+16}, v{KS}, v{KS+1}, v{KS+2}
    v_max3_f32 v{KS+17}, v{KS+3}, v{KS+4}, v{KS+5}
    v_max3_f32 v{KS+16}, v{KS+16}, v{KS+6}, v{KS+7}
    v_max_f32 v{KS+16}, v{KS+16}, v{KS+17}
    v_perm_b32 v{KS+16}, v{KS+16}, v{vN}, s{sSEL[0]}
    """)
    for w in range(8):
        a(f"v_sub_f32 v{KS+w}, v{KS+w}, v{KS+16}")
    for w in range(8):
        a(f"v_exp_f32 v{KS+w}, v{KS+w}")
    a(f"s_nop 0\n v_mul_f32 v{KS+17}, v{KS}, v{KS+8}")
    for w in range(1, 8):
        a(f"v_fmac_f32 v{KS+17}, v{KS+w}, v{KS+8+w}")
    a(f"v_mov_b32 v{KS+18}, v{KS+16}\n v_mov_b32 v{KS+19}, v{KS+16}")
    a.tag(KS+20, KS+16, vN)
    a(f"""
    s_mov_b64 exec, 0xff
    global_store_dwordx4 v{vT1}, {vr(KS+20,4)}, {sp(sWS)} sc1
    s_mov_b64 exec, -1
    s_mov_b32 s{sPEND}, 1
    s_branch L_A_ml2
    L_A_noml:
    s_mov_b32 s{sPEND}, 0
    L_A_ml2:
    """)
    a.stamp(4)
    def pwait(n):
        L0, L1 = a.lab("pw"), a.lab("pw")
        a(f"s_cmp_eq_u32 s{sPEND}, 0\n s_cbranch_scc1 {L0}\n s_waitcnt vmcnt({n+1})\n s_branch {L1}\n {L0}:\n s_waitcnt vmcnt({n})\n {L1}:")
    F = VR
    a("s_waitcnt vmcnt(8)")
    raw = VR
    for t in range(4):
        tb = TB + 8*t
        for par, sel in ((0, sPLO), (1, sPHI)):
            for q in range(4):
                a(f"v_perm_b32 v{tb+4*par+q}, v{raw+4*(2*q+1)+t}, v{raw+4*(2*q)+t}, s{sel}")
        if t > 0:
            for par in range(2):
                j = 2*(t-1) + par
                a(f"v_mfma_f32_16x16x32_bf16 {vr(ACCD+4*j,4)}, {vr(TB+8*(t-1)+4*par,4)}, {vr(P,4)}, 0")
    a("s_nop 1")
    for par in range(2):
        j = 6 + par
        a(f"v_mfma_f32_16x16x32_bf16 {vr(ACCD+4*j,4)}, {vr(TB+24+4*par,4)}, {vr(P,4)}, 0")
    a(f"""
    s_lshl_b32 s{sTMP}, s{sA}, 14
    s_add_u32 s{sTMP}, s{sTMP}, {L_OB}
    v_mul_u32_u24 v{vT0}, 17, v{vG}
    v_add_u32 v{vT0}, v{vT0}, v{vM}
    v_lshl_add_u32 v{vT0}, v{vT0}, 4, s{sTMP}
    v_bfe_u32 v{vT1}, v{vLane}, 3, 2            ; g'
    v_and_b32 v{vKs}, 3, v{vLane}               ; j'&3
    v_bfe_u32 v{vKs+1}, v{vLane}, 2, 1          ; j'>>2
    v_lshl_add_u32 v{vKs}, v{vKs}, 1, v{vKs+1}  ; j
    v_and_b32 v{vKs+1}, 3, v{vKs}               ; jj
    v_lshrrev_b32 v{vKs}, 2, v{vKs}             ; nh
    v_lshl_add_u32 v{vT1}, v{vKs+1}, 2, v{vT1}  ; jj*4+g'
    v_mul_u32_u24 v{vT1}, 17, v{vT1}
    v_lshl_add_u32 v{vT1}, v{vKs}, 3, v{vT1}
    v_add_u32 v{vT1}, s{sA}, v{vT1}
    v_lshlrev_b32 v{vT1}, 4, v{vT1}
    v_lshrrev_b32 v{vKs}, 5, v{vLane}           ; ph
    v_lshl_add_u32 v{vT1}, v{vKs}, 16, v{vT1}   ; + ph*4*16384
    v_add_u32 v{vT1}, {L_OB}, v{vT1}
    s_lshl_b32 s{sTMP}, s{sA}, 5
    v_lshl_add_u32 v{vKs+1}, v{vKs}, 4, s{sTMP}
    v_xor_b32 v{vKs+2}, 16, v{vKs+1}
    s_lshl_b32 s{sTMP}, s{sP}, 3
    s_add_u32 s{sTMP}, s{sTMP}, s{sA}
    s_lshl_b32 s{sTMP}, s{sTMP}, 5
    s_add_u32 s{sTMP}, s{sTMP}, s{sS}            ; (p*8+head)*32 + s
    s_lshl_b32 s{sTMP2}, s{sTMP}, 9
    s_add_u32 s{sTMP2}, s{sTMP2}, {WS_OP}
    v_and_b32 v{vKs+3}, 31, v{vLane}
    v_lshl_add_u32 v{vV}, v{vKs+3}, 4, s{sTMP2}
    v_mov_b32 v{vKs}, 0
    """)
    a.ldswait("Amx", vKs, vT2, L_CNT+8, 8, sleep=1)
    MO, MT = VR, VR+4
    a(f"""
    ds_read_b128 {vr(MO,4)}, v{vKs+1} offset:{L_MX}
    ds_read_b128 {vr(MT,4)}, v{vKs+2} offset:{L_MX}
    s_setprio 3
    s_waitcnt lgkmcnt(0)
    v_max3_f32 v{MX}, v{MO}, v{MO+1}, v{MO+2}
    v_max3_f32 v{MT}, v{MT}, v{MT+1}, v{MT+2}
    v_max3_f32 v{MX}, v{MX}, v{MO+3}, v{MT+3}
    v_max_f32 v{MX}, v{MX}, v{MT}
    v_perm_b32 v{MX}, v{MX}, v{vN}, s{sSEL[0]}
    """)
    for w in range(4):
        a(f"v_sub_f32 v{F+w}, v{MO+w}, v{MX}")
    for w in range(4):
        a(f"v_exp_f32 v{F+w}, v{F+w}")
    raw = VR + 32
    pwait(4)
    for t in range(4):
        for par, sel in ((0, sPLO), (1, sPHI)):
            for q in range(2):
                a(f"v_perm_b32 v{TB+8*t+4*par+q}, v{raw+4*(2*q+1)+t}, v{raw+4*(2*q)+t}, s{sel}")
    pwait(0)
    a.stamp(5)
    for t in range(4):
        for par, sel in ((0, sPLO), (1, sPHI)):
            for q in (2, 3):
                a(f"v_perm_b32 v{TB+8*t+4*par+q}, v{raw+4*(2*q+1)+t}, v{raw+4*(2*q)+t}, s{sel}")
        if t > 0:
            for par in range(2):
                j = 2*(t-1) + par
                a(f"v_mfma_f32_16x16x32_bf16 {vr(ACCD+4*j,4)}, {vr(TB+8*(t-1)+4*par,4)}, {vr(P+4,4)}, {vr(ACCD+4*j,4)}")
    a("s_nop 1")
    for par in range(2):
        j = 6 + par
        a(f"v_mfma_f32_16x16x32_bf16 {vr(ACCD+4*j,4)}, {vr(TB+24+4*par,4)}, {vr(P+4,4)}, {vr(ACCD+4*j,4)}")
    XB = TB
    a("s_nop 3")
    for jj in range(4):
        if jj == 2: a("s_nop 1")
        for r in range(4):
            a(f"v_cndmask_b32 v{XB+4*jj+r}, v{ACCD+4*jj+r}, v{ACCD+4*(jj+4)+r}, {sp(sM8)}")
        a(f"ds_write_b128 v{vT0}, {vr(XB+4*jj,4)} offset:{jj*1088}")
    a("s_waitcnt lgkmcnt(0)")
    if o.get("adry", 1):
        a(f"""
        s_cmp_ge_u32 s{sA}, 4
        s_cbranch_scc1 L_A_b3
        s_mov_b64 exec, 0
        s_branch L_A_post
        L_A_postret:
        s_mov_b64 exec, -1
        L_A_b3:
        """)
    a("s_barrier     ; B3")
    a.stamp(6)
    a("L_A_post:")
    R = KS
    for w in range(4):
        a(f"ds_read_b128 {vr(R+4*w,4)}, v{vT1} offset:{w*OB_STRIDE}")
    a("s_waitcnt lgkmcnt(2)")
    for t in range(4):
        a(f"v_mul_f32 v{R+t}, v{R+t}, v{F}")
    for t in range(4):
        a(f"v_fmac_f32 v{R+t}, v{R+4+t}, v{F+1}")
    a("s_waitcnt lgkmcnt(0)")
    for w in range(2, 4):
        for t in range(4):
            a(f"v_fmac_f32 v{R+t}, v{R+4*w+t}, v{F+w}")
    a.allreduce_g([R, R+1, R+2, R+3], [R+4, R+5, R+6, R+7], steps=("v_permlane32_swap_b32",))
    a.tag(R+8, R, vN)
    a("s_mov_b32 exec_hi, 0")
    a.guard(lambda: a(f"global_store_dwordx4 v{vV}, {vr(R+8,4)}, {sp(sWS)} sc1"))
    if o.get("adry", 1): a("s_cbranch_execz L_A_postret")
    a.stamp(7)
    a("s_barrier     ; B4")
    a.dump_stamps(8, 10)
    a("s_endpgm")

if __name__ == "__main__":
    out = sys.argv[1]
    stamps = len(sys.argv) > 2 and sys.argv[2] == "1"
    opts = {}
    for kv in sys.argv[3:]:
        k, v = kv.split("="); opts[k] = int(v)
    open(out, "w").write(build(stamps, **opts))
```

```python
import sys
from gen_common import *

WS_EPOCH = 0
WS_QP   = 0x010000
WS_ML   = 0x080000
WS_HP   = 0x090000
WS_OP   = 0x100000
WS_AP   = 0x200000
WS_FPP  = 0x240000
WS_FPC  = 0x280000
WS_FPS  = 0x2A0000
WS_O2   = 0x2C0000
WS_STAMP = 0x800000
L_Q   = 0
L_MX  = 2304
L_LS  = L_MX + 256
L_REDQ = L_LS + 256
L_CNT = 6912
L_K   = 8192
L_OB  = L_K
OB_STRIDE = 16384
LDS_BYTES = L_K + 131072
L_XA_A = 12544
L_FAC  = 16896
L_XA_C = 17920
L_RA0, L_RA1 = 28928, 33024
L_RD0, L_RD1 = 45312, 49408
L_XA_B = 12544
L_REDS = 16896

SPIN_LIMIT = 4000

sX, sK, sV, sWQ, sWO, sW1, sW2, sOUT, sDBG, sWS = 4, 6, 8, 10, 12, 16, 18, 20, 22, 24
sFULL = 14
sWAVE, sU = 26, 27
sNONCE = 28
sT = [29, 30, 31, 32]
sSEL = [33, 34, 35, 36]
sPLO, sPHI = 37, 38
sC = 39
sMHI = 40
sM8 = 42
sB0 = 44
sB1 = 46
sMB = 48
sM1 = 50
sSPIN = 60
sTMP, sTMP2 = 61, 62
sPEND = 63
sSTAMP = 64

def sp(r): return f"s[{r}:{r+1}]"
def vr(r, n): return f"v[{r}:{r+n-1}]" if n > 1 else f"v{r}"
XOR1, XOR2, ROR4, ROR8 = "quad_perm:[1,0,3,2]", "quad_perm:[2,3,0,1]", "row_ror:4", "row_ror:8"
DM = "row_mask:0xf bank_mask:0xf"

class Gen(Asm):
    def __init__(self, stamps=False, opts=None):
        super().__init__()
        self.stamps = stamps
        self.o = opts or {}
        self.uid = 0
    def lab(self, base):
        self.uid += 1
        return f"L_{base}_{self.uid}"
    def stamp(self, idx):
        if self.stamps:
            self(f"s_memrealtime {sp(sSTAMP + 2 * idx)}")
    def dump_stamps(self, n, tmpv):
        if not self.stamps: return
        if self.o.get("dbgst", 0) == 2:
            if n <= 10: return
            L = self.lab("nodbg")
            self(f"s_cmp_lg_u32 s2, {self.o.get('dbgwg', 0)}\n s_cbranch_scc1 {L}\n s_cmp_lg_u32 s{sWAVE}, 0\n s_cbranch_scc1 {L}")
            self(f"s_waitcnt lgkmcnt(0)\n s_mov_b64 exec, 1\n v_mov_b32 v{tmpv}, 0")
            for k, i in enumerate((1, 2, 3, 4, 5, 6, 7, 8, 9, 10, 11, 12, 13, 15, 16, 18)):
                self(f"s_sub_u32 s{sTMP}, s{sSTAMP+2*i}, s{sSTAMP}\n v_mov_b32 v{tmpv+1}, s{sTMP}\n global_store_dword v{tmpv}, v{tmpv+1}, {sp(sDBG)} offset:{4*k}\n s_nop 1")
            self.label(L)
            return
        self(f"""s_waitcnt lgkmcnt(0)
        s_lshl_b32 s{sTMP}, s2, 4
        s_add_u32 s{sTMP}, s{sTMP}, s{sWAVE}
        s_lshl_b32 s{sTMP}, s{sTMP}, 7
        s_add_u32 s{sTMP}, s{sTMP}, {WS_STAMP}
        s_mov_b64 exec, 1
        v_mov_b32 v{tmpv}, s{sTMP}""")
        for i in range(n):
            self(f"v_mov_b32 v{tmpv+1}, s{sSTAMP+2*i}\n global_store_dword v{tmpv}, v{tmpv+1}, {sp(sWS)} offset:{4*i}\n s_nop 1")
    def full(self): self(f"s_mov_b64 exec, {sp(sFULL)}")
    def mask(self, lo, hi): self(f"s_and_b32 exec_lo, s{sFULL}, {lo}\n s_and_b32 exec_hi, s{sFULL+1}, {hi}")
    def guard(self, fn):
        L = self.lab("grd")
        self(f"s_cbranch_execz {L}")
        fn()
        self.label(L)
    def gbarrier(self):
        self("s_waitcnt lgkmcnt(0)")
        self.guard(lambda: self("s_barrier"))
    def dpp(self, op, regs, ctrls):
        n = len(regs)
        for ctrl in ctrls:
            if n < 3: self(f"s_nop {2 - n}" if n < 2 else "s_nop 0")
            for r in regs:
                self(f"{op}_dpp v{r}, v{r}, v{r} {ctrl} {DM}")
    def allreduce_g(self, regs, tmps, op="v_add_f32", steps=("v_permlane16_swap_b32", "v_permlane32_swap_b32")):
        n = len(regs)
        for swap in steps:
            for r, t in zip(regs, tmps):
                self(f"v_mov_b32 v{t}, v{r}")
            self("s_nop 1" if n < 2 else "s_nop 0")
            for r, t in zip(regs, tmps):
                self(f"{swap} v{r}, v{t}")
            self("s_nop 1" if n < 2 else "s_nop 0")
            for r, t in zip(regs, tmps):
                self(f"{op} v{r}, v{r}, v{t}")
    def tag(self, dst, src, vN):
        for i in range(4):
            self(f"v_perm_b32 v{dst+i}, v{src+i}, v{vN}, s{sSEL[i]}")
    def check(self, grans, acc):
        for gi, gbase in enumerate(grans):
            for i in range(4):
                if gi == 0:
                    self(f"v_xor_b32 v{acc+i}, s{sT[i]}, v{gbase+i}")
                else:
                    self(f"v_bitop3_b32 v{acc+i}, v{gbase+i}, s{sT[i]}, v{acc+i} bitop3:0xbe")
        self(f"v_or3_b32 v{acc}, v{acc}, v{acc+1}, v{acc+2}")
        self(f"v_or_b32 v{acc}, v{acc}, v{acc+3}")
        self(f"v_and_b32 v{acc}, 0xff, v{acc}")
        self(f"v_cmp_ne_u32 vcc, 0, v{acc}")
    def spin(self, name, issue, grans, acc, waitstr="s_waitcnt vmcnt(0)", sleep=0):
        L = self.lab(name); Lok = self.lab(name + "ok")
        self(f"s_mov_b32 s{sSPIN}, 0")
        self.label(L)
        self.guard(issue)
        self.guard(lambda: self(waitstr))
        self.check(grans, acc)
        self("s_nop 0")
        self(f"s_cbranch_vccz {Lok}")
        self(f"s_add_u32 s{sSPIN}, s{sSPIN}, 1")
        if sleep: self(f"s_sleep {sleep}")
        self(f"s_cmp_lt_u32 s{sSPIN}, {SPIN_LIMIT}")
        self(f"s_cbranch_scc1 {L}")
        self("s_branch L_abort")
        self.label(Lok)
    def pspin(self, name, load, sets, acc, dst=None, ncopy=4, sleep=0, thr=0, stag=0):
        L = self.lab(name); Lok = self.lab(name + "ok")
        oks = [self.lab(name + f"k{i}") for i in range(3)]
        self(f"s_mov_b32 s{sSPIN}, 0")
        if stag:
            self.guard(lambda: (load(sets[0]), self(f"s_sleep {stag}"), load(sets[1]), self(f"s_sleep {stag}")))
        else:
            self.guard(lambda: (load(sets[0]), load(sets[1])))
        self.label(L)
        for k in range(3):
            self.guard(lambda k=k: (load(sets[(k + 2) % 3]), self("s_waitcnt vmcnt(2)")))
            self.check([sets[k]], acc)
            if thr:
                self(f"s_nop 0\n s_bcnt1_i32_b64 s{sTMP}, vcc\n s_cmp_le_u32 s{sTMP}, {thr}\n s_cbranch_scc1 {oks[k]}")
            else:
                self("s_nop 0")
                self(f"s_cbranch_vccz {oks[k]}")
            if sleep: self(f"s_sleep {sleep}")
        self(f"s_add_u32 s{sSPIN}, s{sSPIN}, 1")
        self(f"s_cmp_lt_u32 s{sSPIN}, {SPIN_LIMIT}")
        self(f"s_cbranch_scc1 {L}")
        self("s_branch L_abort")
        for k in range(3):
            self.label(oks[k])
            if dst is not None and sets[k] != dst:
                for t in range(ncopy): self(f"v_mov_b32 v{dst+t}, v{sets[k]+t}")
            if k < 2: self(f"s_branch {Lok}")
        self.label(Lok)
    def ldswait(self, name, vaddr, vtmp, off, count, sleep=2):
        L = self.lab(name); Lok = self.lab(name + "ok")
        self(f"""
        s_mov_b32 s{sSPIN}, 0
        s_cbranch_execz {Lok}
        {L}:
        ds_read_b32 v{vtmp}, v{vaddr} offset:{off}
        s_waitcnt lgkmcnt(0)
        v_readfirstlane_b32 s{sTMP}, v{vtmp}
        s_cmp_ge_u32 s{sTMP}, {count}
        s_cbranch_scc1 {Lok}
        s_add_u32 s{sSPIN}, s{sSPIN}, 1""")
        if sleep: self(f"s_sleep {sleep}")
        self(f"""
        s_cmp_lt_u32 s{sSPIN}, 400000
        s_cbranch_scc1 {L}
        s_branch L_abort
        {Lok}:""")
    def perm_unit(self, raw, T):
        for t in range(4):
            for par, sel in ((0, sPLO), (1, sPHI)):
                j = 2 * t + par
                for q in range(4):
                    self(f"v_perm_b32 v{T + 4*j + q}, v{raw + 4*(2*q+1) + t}, v{raw + 4*(2*q) + t}, s{sel}")
    def wload(self, dst, sbase, voff, rowfn, rs, nt=True):
        prev = 0
        for i in range(8):
            d = rowfn(i) - prev
            if d > 0:
                self(f"s_add_u32 s{sbase}, s{sbase}, {d*rs}\n s_addc_u32 s{sbase+1}, s{sbase+1}, 0")
            elif d < 0:
                self(f"s_sub_u32 s{sbase}, s{sbase}, {-d*rs}\n s_subb_u32 s{sbase+1}, s{sbase+1}, 0")
            prev = rowfn(i)
            self(f"global_load_dwordx4 {vr(dst+4*i, 4)}, v{voff}, {sp(sbase)}" + (" nt" if nt else ""))
    def mfma8(self, D, AOP, T):
        for j in range(8):
            self(f"v_mfma_f32_16x16x32_bf16 {vr(D+4*j,4)}, {vr(AOP,4)}, {vr(T+4*j,4)}, 0")
    def select(self, X, D, r):
        for jj in range(4):
            self(f"v_cndmask_b32 v{X+jj}, v{D+4*jj+r}, v{D+4*(4+jj)+r}, {sp(sMHI)}")
    def nonce_from(self, vN):
        self(f"""
        v_readfirstlane_b32 s{sNONCE}, v{vN}
        s_add_u32 s{sNONCE}, s{sNONCE}, 0x01010101
        s_or_b32 s{sNONCE}, s{sNONCE}, 1
        s_mov_b32 s{sT[0]}, s{sNONCE}
        s_lshr_b32 s{sT[1]}, s{sNONCE}, 8
        s_lshr_b32 s{sT[2]}, s{sNONCE}, 16
        s_lshr_b32 s{sT[3]}, s{sNONCE}, 24
        v_mov_b32 v{vN}, s{sNONCE}
        """)

STD_ROW = lambda i: 16 * (i // 4) + (i % 4)
WO_ROW = lambda i: 8 * (i % 4) + (i // 4)

def reduce4(a, R, X, vN):
    for t in (0, 2):
        a(f"v_pk_add_f32 {vr(R+t,2)}, {vr(R+t,2)}, {vr(R+4+t,2)}\n v_pk_add_f32 {vr(R+8+t,2)}, {vr(R+8+t,2)}, {vr(R+12+t,2)}")
    for t in (0, 2):
        a(f"v_pk_add_f32 {vr(R+t,2)}, {vr(R+t,2)}, {vr(R+8+t,2)}")
    a.tag(X, R, vN)

def build(stamps=False, **o):
    a = Gen(stamps, o)
    a(f"""
    s_cmp_ge_u32 s2, 256
    s_cbranch_scc1 L_end""")
    a.stamp(0)
    a(f"""
    s_load_dwordx8 s[4:11], s[0:1], 0
    s_load_dwordx2 s[12:13], s[0:1], 32
    s_load_dwordx4 s[16:19], s[0:1], 48
    s_load_dwordx4 s[20:23], s[0:1], 64
    s_load_dwordx2 s[24:25], s[0:1], 80
    v_lshrrev_b32 v1, 6, v0
    v_and_b32 v0, 63, v0
    s_mov_b32 s{sPLO}, 0x05040100
    v_readfirstlane_b32 s{sWAVE}, v1
    s_mov_b32 s{sPHI}, 0x07060302
    s_mov_b32 s{sSEL[0]}, 0x07060500
    s_mov_b32 s{sSEL[1]}, 0x07060501
    s_mov_b32 s{sSEL[2]}, 0x07060502
    s_mov_b32 s{sSEL[3]}, 0x07060503
    s_mov_b64 {sp(sFULL)}, -1
    v_lshrrev_b32 v2, 4, v0            ; g
    v_and_b32 v3, 15, v0               ; m / c
    s_cmp_ge_u32 s{sWAVE}, 4
    s_cbranch_scc1 L_A
    """)
    gen_G(a)
    gen_A(a)
    a("""
    L_abort:
    L_end:
    s_endpgm
    """)
    return kernel_wrap(a.text(), 256, 768, LDS_BYTES, 168)

def gen_G(a):
    o = a.o
    vLane, vG, vM, vB, vN = 0, 2, 3, 4, 6
    vBG = 1
    vPP = 5
    vA0, vA1, vA2 = 7, 8, 9
    vPubH = 10
    vXW = 11
    vXR = vPP
    XR = 12
    AOP = 16
    ACC = 20
    RAWA, RAWB, T, GA = 24, 56, 88, 120
    u = sU
    sKS, sHQ, sP, sBA, sHKV, sFC2, sH, sCC = 52, 53, 54, 55, 56, 57, 58, 59
    a(f"""
    ; ---------------- G waves ----------------
    s_setprio 3
    s_mov_b32 s{u}, s{sWAVE}
    v_bfe_u32 v{vB}, v{vM}, 2, 1
    v_and_b32 v{vPP}, 3, v{vM}
    v_lshrrev_b32 v{vA0}, 3, v{vM}
    v_lshl_or_b32 v{vPP}, v{vA0}, 2, v{vPP}
    s_and_b32 s{sKS}, s2, 7
    s_lshr_b32 s{sHQ}, s2, 3
    v_mov_b32 v{vA0}, 0
    v_lshl_add_u32 v{vA1}, v{vPP}, 2, v{vG}
    v_lshlrev_b32 v{vA1}, 4, v{vA1}
    v_lshl_add_u32 v{vA1}, v{vB}, 11, v{vA1}
    s_lshl_b32 s{sTMP}, s{sKS}, 8
    s_lshl_b32 s{sTMP2}, s{u}, 6
    s_add_u32 s{sTMP}, s{sTMP}, s{sTMP2}
    v_lshlrev_b32 v{vA2}, 3, v{vG}
    v_lshl_add_u32 v{vA2}, v{vB}, 11, v{vA2}
    v_add_u32 v{vA2}, s{sTMP}, v{vA2}
    s_lshl_b32 s{sTMP}, s{sKS}, 7
    s_lshl_b32 s{sTMP2}, s{u}, 5
    s_add_u32 s{sTMP}, s{sTMP}, s{sTMP2}
    s_lshl_b32 s{sTMP}, s{sTMP}, 13          ; *8192
    s_lshl_b32 s{sTMP2}, s{sHQ}, 8
    s_add_u32 s{sTMP}, s{sTMP}, s{sTMP2}
    v_lshlrev_b32 v{vPubH}, 15, v{vG}          ; 4g*8192
    v_lshl_add_u32 v{vPubH}, v{vM}, 4, v{vPubH}
    s_waitcnt lgkmcnt(0)
    s_add_u32 s{sB0}, s{sWQ}, s{sTMP}
    s_addc_u32 s{sB0+1}, s{sWQ+1}, 0
    global_load_dword v{vN}, v{vA0}, {sp(sWS)} sc1
    """)
    for i in range(4):
        a(f"global_load_dwordx4 {vr(GA+4*i,4)}, v{vA1}, {sp(sX)} offset:{i*512}")
    a(f"global_load_dwordx2 {vr(XR,2)}, v{vA2}, {sp(sX)}")
    a(f"global_load_dwordx2 {vr(XR+2,2)}, v{vA2}, {sp(sX)} offset:32")
    if o.get("cpf", 0):
        a(f"""
        s_getpc_b64 {sp(sB1)}
        L_pc_here:
        s_sub_u32 s{sB1}, s{sB1}, L_pc_here-{KNAME}
        s_subb_u32 s{sB1+1}, s{sB1+1}, 0
        s_lshl_b32 s{sTMP}, s{u}, 13
        v_lshlrev_b32 v{vA0}, 7, v{vLane}
        v_add_u32 v{vA0}, s{sTMP}, v{vA0}
        v_min_u32 v{vA0}, L_end-{KNAME}, v{vA0}
        global_load_dword v{GA+44}, v{vA0}, {sp(sB1)}
        """)
    tch = o.get("touch", 0)
    if tch:
        a(f"""
        s_lshr_b32 s{sTMP2}, s{sKS}, 1               ; xi
        v_mov_b32 v{vA0}, 0x3f0000
        global_load_dword v{GA+44}, v{vA0}, {sp(sWS)}
        v_mov_b32 v{vA0}, 0
        """)
        if tch & 2: a(f"global_load_dword v{GA+45}, v{vA0}, {sp(sOUT)}")
        if tch & 4:
            a(f"""
            s_lshl_b32 s{sTMP}, s{sTMP2}, 3
            s_and_b32 s{sB1}, s{sHQ}, 7
            s_add_u32 s{sTMP}, s{sTMP}, s{sB1}
            s_lshl_b32 s{sTMP}, s{sTMP}, 18
            v_mov_b32 v{vA0}, s{sTMP}
            global_load_dword v{GA+46}, v{vA0}, {sp(sWO)}
            s_lshl_b32 s{sTMP}, s{sTMP2}, 1
            s_and_b32 s{sB1}, s{sHQ}, 1
            s_add_u32 s{sTMP}, s{sTMP}, s{sB1}
            s_mul_i32 s{sTMP}, s{sTMP}, {128*7168}
            v_mov_b32 v{vA0}, s{sTMP}
            global_load_dword v{GA+47}, v{vA0}, {sp(sW1)}
            s_mul_i32 s{sTMP}, s{sTMP2}, 7
            s_lshr_b32 s{sB1}, s{sHQ}, 2
            s_add_u32 s{sTMP}, s{sTMP}, s{sB1}
            s_min_u32 s{sTMP}, s{sTMP}, 27
            s_lshl_b32 s{sTMP}, s{sTMP}, 18
            v_mov_b32 v{vA0}, s{sTMP}
            global_load_dword v{GA+43}, v{vA0}, {sp(sW2)}
            """)
    ntouch = (1 + (1 if tch & 2 else 0) + (3 if tch & 4 else 0)) if tch else 0
    a.wload(RAWA, sB0, vPubH, STD_ROW, 8192)
    a(f"""
    s_mov_b32 s{sMHI}, 0
    s_mov_b32 s{sMHI+1}, -1
    s_mov_b32 s{sMB}, 0xf0f0f0f0
    s_mov_b32 s{sMB+1}, 0xf0f0f0f0
    s_mov_b32 s{sM1}, 0x22222222
    s_mov_b32 s{sM1+1}, 0x22222222
    v_mov_b32 v{ACC}, 0
    v_mov_b32 v{ACC+1}, 0
    v_mov_b32 v{ACC+2}, 0
    v_mov_b32 v{ACC+3}, 0
    s_lshl_b32 s{sTMP}, s{u}, 10
    v_lshl_add_u32 v{vA0}, v{vLane}, 4, s{sTMP}
    ds_write_b128 v{vA0}, {vr(ACC,4)} offset:{L_REDQ}
    v_and_b32 v{vA1}, 1, v{vLane}
    v_lshlrev_b32 v{vA1}, 4, v{vA1}
    ds_write_b128 v{vA1}, {vr(ACC,4)} offset:{L_CNT}
    s_waitcnt lgkmcnt(0)
    s_barrier        ; B0
    v_lshrrev_b32 v{vPubH}, 1, v{vG}
    v_lshl_add_u32 v{vPubH}, v{vM}, 1, v{vPubH}
    v_lshlrev_b32 v{vPubH}, 4, v{vPubH}      ; (2c+half)*16
    s_waitcnt vmcnt(8)
    """)
    a.stamp(1)
    a.nonce_from(vN)
    S0, S1, Q0, Q1, LO, HI = RAWB, RAWB+1, RAWB+2, RAWB+3, RAWB+4, RAWB+5
    for k in range(16):
        w = GA + k
        a(f"v_lshlrev_b32 v{LO}, 16, v{w}\n v_and_b32 v{HI}, 0xffff0000, v{w}")
        if k == 0:
            a(f"v_mov_b32 v{S0}, v{LO}\n v_mov_b32 v{S1}, v{HI}\n v_mul_f32 v{Q0}, v{LO}, v{LO}\n v_mul_f32 v{Q1}, v{HI}, v{HI}")
        else:
            a(f"v_add_f32 v{S0}, v{S0}, v{LO}\n v_add_f32 v{S1}, v{S1}, v{HI}\n v_fmac_f32 v{Q0}, v{LO}, v{LO}\n v_fmac_f32 v{Q1}, v{HI}, v{HI}")
    a(f"v_add_f32 v{S0}, v{S0}, v{S1}\n v_add_f32 v{S1}, v{Q0}, v{Q1}")
    a.dpp("v_add_f32", [S0, S1], (XOR1, XOR2, ROR8))
    a.allreduce_g([S0, S1], [Q0, Q1])
    MEAN, RSTD = S0, S1
    a(f"""
    v_mul_f32 v{MEAN}, 0x3a800000, v{S0}        ; /1024
    v_mul_f32 v{Q0}, 0x3a800000, v{S1}
    v_fma_f32 v{Q0}, -v{MEAN}, v{MEAN}, v{Q0}
    v_max_f32 v{Q0}, 0, v{Q0}
    v_add_f32 v{Q0}, 0x3727c5ac, v{Q0}           ; + 1e-5
    v_rsq_f32 v{RSTD}, v{Q0}
    """)
    XF = RAWB + 8
    for q in range(4):
        a(f"v_lshlrev_b32 v{XF+2*q}, 16, v{XR+q}\n v_and_b32 v{XF+2*q+1}, 0xffff0000, v{XR+q}")
    for e in range(8):
        a(f"v_sub_f32 v{XF+e}, v{XF+e}, v{MEAN}")
    for e in range(8):
        a(f"v_mul_f32 v{XF+e}, v{XF+e}, v{RSTD}")
    for q in range(4):
        a(f"v_cvt_pk_bf16_f32 v{AOP+q}, v{XF+2*q}, v{XF+2*q+1}")
    a("s_waitcnt vmcnt(0)")
    a.stamp(2)
    a.perm_unit(RAWA, T)
    a("s_nop 1")
    a.mfma8(RAWB, AOP, T)
    a("s_nop 7")
    X = ACC
    a.select(X, RAWB, 0)
    a.tag(X, X, vN)
    a(f"""
    ds_write_b128 v{vA0}, {vr(X,4)} offset:{L_REDQ}
    s_cmp_lg_u32 s{u}, 0
    s_cbranch_scc1 L_q_nored
    v_lshlrev_b32 v{vA0}, 4, v{vLane}
    """)
    def iss():
        for w in range(4):
            a(f"ds_read_b128 {vr(GA+4*w,4)}, v{vA0} offset:{L_REDQ + w*1024}")
    a.spin("redq", iss, [GA, GA+4, GA+8, GA+12], ACC, waitstr="s_waitcnt lgkmcnt(0)")
    reduce4(a, GA, X, vN)
    a(f"""
    s_lshl_b32 s{sTMP}, s{sHQ}, 13
    s_lshl_b32 s{sTMP2}, s{sKS}, 9
    s_add_u32 s{sTMP}, s{sTMP}, s{sTMP2}
    s_add_u32 s{sTMP}, s{sTMP}, {WS_QP}
    v_and_b32 v{vA0}, 1, v{vG}
    v_lshl_add_u32 v{vA0}, v{vA0}, 12, v{vPubH}
    v_add_u32 v{vA0}, s{sTMP}, v{vA0}
    global_store_dwordx4 v{vA0}, {vr(X,4)}, {sp(sWS)} sc1
    L_q_nored:
    """)
    a.stamp(3)
    sXI, sSLOT, sCCP, sKSB, sFCP = 54, 55, 56, 57, 59
    sHA, sFC = 58, 53
    dx = o.get("dx", 0)
    if dx:
        xres_code = f"""v_and_b32 v{vA0}, 1, v{vM}
    v_lshl_add_u32 v{vA2}, v{vA0}, 2, v{vA2}
    v_bfe_u32 v{vA0}, v{vM}, 1, 1
    v_lshl_add_u32 v{vA2}, v{vA0}, 5, v{vA2}
    global_load_dword v{XR}, v{vA2}, {sp(sX)}"""
        xr_code = f"""v_mul_u32_u24 v{vA1}, 544, v{vB}
    v_lshl_add_u32 v{vXR}, v{vG}, 4, v{vA1}
    v_and_b32 v{vA1}, 1, v{vM}
    v_lshl_add_u32 v{vXR}, v{vA1}, 3, v{vXR}
    v_bfe_u32 v{vA1}, v{vM}, 1, 1
    v_lshl_add_u32 v{vXR}, v{vA1}, 6, v{vXR}"""
    else:
        xres_code = f"""global_load_dwordx2 {vr(XR,2)}, v{vA2}, {sp(sX)}
    global_load_dwordx2 {vr(XR+2,2)}, v{vA2}, {sp(sX)} offset:32"""
        xr_code = ""
    a(f"""
    s_and_b32 s{sTMP}, s2, 7
    s_lshr_b32 s{sB1}, s{sTMP}, 2
    s_and_b32 s{sB1+1}, s{sTMP}, 3
    {'s_and_b32 s%d, s%d, 3' % (sXI, sTMP) if o.get("xmap", 0) == 2 else 's_lshr_b32 s%d, s%d, 1' % (sXI, sTMP)}
    s_lshr_b32 s{sSLOT}, s2, 3
    s_lshl_b32 s{sHA}, s{sXI}, 3
    s_and_b32 s{sTMP}, s{sSLOT}, 7
    s_add_u32 s{sHA}, s{sHA}, s{sTMP}
    s_and_b32 s{sTMP}, s{sSLOT}, 1
    s_lshl_b32 s{sKSB}, s{sXI}, 1
    s_add_u32 s{sKSB}, s{sKSB}, s{sTMP}
    s_lshr_b32 s{sFCP}, s{sSLOT}, 1
    s_lshr_b32 s{sTMP}, s{sSLOT}, 2
    s_mul_i32 s{sFC}, s{sXI}, 7
    s_add_u32 s{sFC}, s{sFC}, s{sTMP}
    s_lshl_b32 s{sTMP}, s{sKSB}, 8
    s_lshl_b32 s{sTMP2}, s{u}, 6
    s_add_u32 s{sTMP}, s{sTMP}, s{sTMP2}
    v_lshlrev_b32 v{vA2}, 3, v{vG}
    v_lshl_add_u32 v{vA2}, v{vB}, 11, v{vA2}
    v_add_u32 v{vA2}, s{sTMP}, v{vA2}
    {xres_code}
    v_and_b32 v{vBG}, 31, v{vLane}
    v_lshlrev_b32 v{vBG}, 4, v{vBG}             ; gi*16
    v_lshrrev_b32 v{vA0}, 5, v{vLane}
    v_mul_u32_u24 v{vA0}, 544, v{vA0}
    v_add_u32 v{vXW}, v{vA0}, v{vBG}
    v_and_b32 v{vA0}, 3, v{vM}
    v_mul_u32_u24 v{vA0}, 1088, v{vA0}
    v_mul_u32_u24 v{vA1}, 544, v{vB}
    v_add_u32 v{vA0}, v{vA0}, v{vA1}
    v_lshl_add_u32 v{vXR}, v{vG}, 4, v{vA0}
    {xr_code}
    s_mul_i32 s{sTMP}, s{u}, 1088
    v_add_u32 v{vXW}, s{sTMP}, v{vXW}
    s_lshl_b32 s{sTMP}, s{u}, 7
    v_add_u32 v{vXR}, s{sTMP}, v{vXR}
    """)
    if o.get("dry", 1):
        a(f"""
        s_mov_b64 {sp(sFULL)}, 0
        s_mov_b64 exec, 0
        s_branch L_tail
        L_dry_done:
        s_mov_b64 {sp(sFULL)}, -1
        s_mov_b64 exec, -1
        s_setprio 3
        """)
    a.stamp(4)
    QG = RAWB
    a(f"""
    s_and_b32 s{sTMP}, s2, 3                   ; hkv
    s_lshl_b32 s{sTMP}, s{sTMP}, 3
    s_lshl_b32 s{sTMP2}, s{u}, 1
    s_add_u32 s{sTMP}, s{sTMP}, s{sTMP2}
    s_lshl_b32 s{sTMP}, s{sTMP}, 1
    s_bfe_u32 s{sTMP2}, s2, 0x10002            ; b = (wg>>2)&1
    s_add_u32 s{sTMP}, s{sTMP}, s{sTMP2}
    s_lshl_b32 s{sTMP}, s{sTMP}, 12
    s_add_u32 s{sTMP}, s{sTMP}, {WS_QP}
    s_add_u32 s{sWQ}, s{sWS}, s{sTMP}
    s_addc_u32 s{sWQ+1}, s{sWS+1}, 0
    s_add_u32 s{sB1}, s{sWQ}, 8192
    s_addc_u32 s{sB1+1}, s{sWQ+1}, 0
    v_lshlrev_b32 v{vA2}, 4, v{vLane}
    """)
    def issq():
        for hh, sb in ((0, sWQ), (1, sB1)):
            for i in range(4):
                a(f"global_load_dwordx4 {vr(QG+16*hh+4*i,4)}, v{vA2}, {sp(sb)} offset:{i*1024} sc1")
    a.spin("qg", issq, [QG+4*i for i in range(8)], ACC, sleep=o.get("qsleep", 4))
    for hh in range(2):
        base = QG + 16*hh
        for t in range(4):
            a(f"v_add_f32 v{base+t}, v{base+t}, v{base+4+t}\n v_add_f32 v{base+8+t}, v{base+8+t}, v{base+12+t}")
        for t in range(4):
            a(f"v_add_f32 v{base+t}, v{base+t}, v{base+8+t}")
    a("s_nop 1")
    for t in range(4):
        a(f"v_permlane32_swap_b32 v{QG+t}, v{QG+16+t}")
    a("s_nop 1")
    for t in range(4):
        a(f"v_add_f32 v{QG+t}, v{QG+t}, v{QG+16+t}")
    a(f"""
    v_cvt_pk_bf16_f32 v{QG+4}, v{QG}, v{QG+1}
    v_cvt_pk_bf16_f32 v{QG+5}, v{QG+2}, v{QG+3}
    v_lshrrev_b32 v{vA0}, 5, v{vLane}            ; kq
    s_lshl_b32 s{sTMP}, s{u}, 1
    v_add_u32 v{vA0}, s{sTMP}, v{vA0}            ; head
    v_mul_u32_u24 v{vA0}, 272, v{vA0}
    v_and_b32 v{vA1}, 31, v{vLane}
    v_lshl_add_u32 v{vA0}, v{vA1}, 3, v{vA0}
    ds_write_b64 v{vA0}, {vr(QG+4,2)} offset:{L_Q}
    v_mov_b32 v{vA1}, 0
    v_mov_b32 v{vA2}, 1
    s_waitcnt lgkmcnt(0)
    s_mov_b64 exec, 1
    ds_add_u32 v{vA1}, v{vA2} offset:{L_CNT}
    s_mov_b64 exec, -1
    """)
    a.stamp(5)
    a(f"s_setprio {o.get('gprio', 1)}")

    def wunit(dst, sptr, voffn, rowfn, rs):
        prev = 0
        for i in range(8):
            d = rowfn(i) - prev
            if d > 0: a(f"s_add_u32 s{sptr}, s{sptr}, {d*rs}\n s_addc_u32 s{sptr+1}, s{sptr+1}, 0")
            elif d < 0: a(f"s_sub_u32 s{sptr}, s{sptr}, {-d*rs}\n s_subb_u32 s{sptr+1}, s{sptr+1}, 0")
            prev = rowfn(i)
            a(f"global_load_dwordx4 {vr(dst+4*i, 4)}, v{voffn}, {sp(sptr)} nt")
    def wpair(dst0, dst1, sptr_src, rowbase_code, rs, gshift_code, rowfn):
        a(rowbase_code)
        a(f"""
        s_add_u32 s{sB0}, s{sptr_src}, s{sTMP}
        s_addc_u32 s{sB0+1}, s{sptr_src+1}, 0
        s_add_u32 s{sR1}, s{sB0}, 256
        s_addc_u32 s{sR1+1}, s{sB0+1}, 0""")
        a(gshift_code)
        a.guard(lambda: (wunit(dst0, sB0, vA1, rowfn, rs), wunit(dst1, sR1, vA1, rowfn, rs)))
    sR1 = 6
    def sweep(name, issue, grans, shadow, sleep, prog=None):
        L = a.lab(name); Lc = a.lab(name + "c"); Lok = a.lab(name + "ok")
        a(f"s_mov_b32 s{sSPIN}, 0")
        a.guard(issue)
        shadow()
        a(f"s_branch {Lc}")
        a.label(L)
        a.guard(issue)
        a.label(Lc)
        if prog is None:
            a.guard(lambda: a("s_waitcnt vmcnt(0)"))
            a.check(grans, ACC)
        else:
            n = len(grans)
            for gi, gbase in enumerate(grans):
                a.guard(lambda gi=gi: a(f"s_waitcnt vmcnt({n-1-gi})"))
                for i in range(4):
                    if gi == 0: a(f"v_xor_b32 v{ACC+i}, s{sT[i]}, v{gbase+i}")
                    else: a(f"v_bitop3_b32 v{ACC+i}, v{gbase+i}, s{sT[i]}, v{ACC+i} bitop3:0xbe")
                prog(gi)
            a(f"v_or3_b32 v{ACC}, v{ACC}, v{ACC+1}, v{ACC+2}\n v_or_b32 v{ACC}, v{ACC}, v{ACC+3}\n v_and_b32 v{ACC}, 0xff, v{ACC}\n v_cmp_ne_u32 vcc, 0, v{ACC}")
        a("s_nop 0")
        a(f"s_cbranch_vccz {Lok}")
        a(f"s_add_u32 s{sSPIN}, s{sSPIN}, 1")
        if sleep: a(f"s_sleep {sleep}")
        a(f"s_cmp_lt_u32 s{sSPIN}, {SPIN_LIMIT}")
        a(f"s_cbranch_scc1 {L}")
        a("s_branch L_abort")
        a.label(Lok)
    HS = [AOP, GA+40, GA+44]
    D = GA
    vals = [GA + 32 + e for e in range(8)]
    psl = o.get("psleep", 1)
    def exchange(lbuf):
        a(f"ds_write_b128 v{vXW}, {vr(GA,4)} offset:{lbuf}")
        a.gbarrier()
        a(f"""
        ds_read_b128 {vr(vals[0],4)}, v{vXR} offset:{lbuf}
        ds_read_b128 {vr(vals[4],4)}, v{vXR} offset:{lbuf + 64}
        s_waitcnt lgkmcnt(0)""")
        a.dpp("v_add_f32", vals, (XOR1, XOR2))
    def red_pub2(name, D1, lb0, lb1, addr):
        L = a.lab("nored" + name)
        R = GA + 32
        a.select(ACC, D, 0)
        a(f"ds_write_b128 v{vA0}, {vr(ACC,4)} offset:{lb0}")
        a.select(AOP, D1, 0)
        a(f"ds_write_b128 v{vA0}, {vr(AOP,4)} offset:{lb1}")
        a.gbarrier()
        a(f"""
        s_cmp_ge_u32 s{sU}, 2
        s_cbranch_scc1 {L}
        s_mul_i32 s{sTMP}, s{sU}, {lb1 - lb0}
        v_lshl_add_u32 v{vA0}, v{vLane}, 4, s{sTMP}""")
        for w in range(4):
            a(f"ds_read_b128 {vr(R+4*w,4)}, v{vA0} offset:{lb0 + w*1024}")
        addr()
        a("s_waitcnt lgkmcnt(0)")
        reduce4(a, R, ACC, vN)
        a.guard(lambda: a(f"global_store_dwordx4 v{vA0}, {vr(ACC,4)}, {sp(sWS)} sc1"))
        a.label(L)
    Y0 = GA + 20
    def dread(lbuf, areg):
        for w in range(4):
            a(f"ds_read_b64 {vr(Y0+2*w,2)}, v{areg} offset:{lbuf + w*1088}")
    def dsum():
        a(f"""
        s_waitcnt lgkmcnt(2)
        v_pk_add_f32 {vr(Y0,2)}, {vr(Y0,2)}, {vr(Y0+2,2)}
        s_waitcnt lgkmcnt(0)
        v_pk_add_f32 {vr(Y0+4,2)}, {vr(Y0+4,2)}, {vr(Y0+6,2)}
        v_pk_add_f32 {vr(Y0,2)}, {vr(Y0,2)}, {vr(Y0+4,2)}""")
    def dbcast(dst):
        a(f"v_cvt_pk_bf16_f32 v{Y0+4}, v{Y0}, v{Y0+1}\n s_nop 1")
        for q in range(4):
            a(f"v_mov_b32_dpp v{dst+q}, v{Y0+4} quad_perm:[{q},{q},{q},{q}] {DM}")
    def o_hint_setup(hreg):
        a(f"""
        s_lshl_b32 s{sTMP2}, s{hreg}, 14                ; h*32*512
        s_lshl_b32 s{sTMP}, s{u}, 12                  ; 8u*512
        s_add_u32 s{sTMP2}, s{sTMP2}, s{sTMP}
        s_add_u32 s{sTMP2}, s{sTMP2}, {WS_OP}
        s_add_u32 s{sWQ}, s{sWS}, s{sTMP2}
        s_addc_u32 s{sWQ+1}, s{sWS+1}, 0
        v_lshrrev_b32 v{vA1}, 5, v{vLane}
        v_lshl_add_u32 v{vA2}, v{vA1}, 19, v{vBG}      ; b<<19 + gi*16
        """)
        if o.get("fullhint", 0):
            a(f"""
            v_bfe_u32 v{vA0}, v{vLane}, 2, 3            ; row i = (l>>2)&7
            v_lshlrev_b32 v{vA0}, 9, v{vA0}
            v_and_b32 v{GA+30}, 3, v{vLane}
            v_lshl_add_u32 v{vA0}, v{GA+30}, 7, v{vA0}   ; + line*128
            v_lshl_add_u32 v{vA0}, v{vA1}, 19, v{vA0}    ; + b<<19   (b = l>>5)
            """)
        else:
            a(f"""
            v_bfe_u32 v{vA1}, v{vLane}, 3, 1
            v_and_b32 v{vA0}, 7, v{vLane}
            v_lshlrev_b32 v{vA0}, 9, v{vA0}
            v_lshl_add_u32 v{vA0}, v{vA1}, 19, v{vA0}
            """)
    a("L_tail:")
    a(f"""
    s_bitcmp1_b32 s2, {2 if o.get("xmap", 0) == 2 else 0}
    s_cbranch_scc{(1 if o.get("xpar", 1) else 0) if o.get("xmap", 0) == 2 else (0 if o.get("xpar", 1) else 1)} L_Y
    """)
    def load_wo(which=(0, 1)):
        code = f"""
            s_lshl_b32 s{sTMP}, s{sHA}, 7
            s_lshl_b32 s{sTMP2}, s{u}, 5
            s_add_u32 s{sTMP}, s{sTMP}, s{sTMP2}
            s_lshl_b32 s{sTMP}, s{sTMP}, 11
            s_lshr_b32 s{sTMP2}, s{sSLOT}, 3
            s_lshl_b32 s{sTMP2}, s{sTMP2}, 9
            s_add_u32 s{sTMP}, s{sTMP}, s{sTMP2}"""
        a(code)
        a(f"""
        s_add_u32 s{sB0}, s{sWO}, s{sTMP}
        s_addc_u32 s{sB0+1}, s{sWO+1}, 0
        s_add_u32 s{sR1}, s{sB0}, 256
        s_addc_u32 s{sR1+1}, s{sB0+1}, 0
        v_lshlrev_b32 v{vA1}, 12, v{vG}             ; 2g*2048
        v_lshl_add_u32 v{vA1}, v{vM}, 4, v{vA1}""")
        def body():
            if 0 in which: wunit(RAWA, sB0, vA1, WO_ROW, 2048)
            if 1 in which: wunit(RAWB, sR1, vA1, WO_ROW, 2048)
        a.guard(body)
    wop = o.get("wop", 0)
    if wop in (0, 2):
        a(f"v_mov_b32 v{vA1}, 0")
        a.ldswait("vw", vA1, vA2, L_CNT+4, 8)
        a(f"s_setprio {o.get('woprio', 0)}")
        load_wo((0, 1) if wop == 0 else (0,))
    a(f"s_setprio {o.get('gprio', 1)}")
    a.stamp(6)
    a.guard(lambda: a("s_barrier      ; B3\n s_barrier      ; B4"))
    if wop == 1: load_wo()
    if wop == 2: load_wo((1,))
    a.stamp(7)
    a(f"""
    s_lshl_b32 s{sTMP}, s{sHA}, 9
    s_add_u32 s{sTMP}, s{sTMP}, {WS_ML}
    v_lshrrev_b32 v{vA1}, 5, v{vLane}             ; b
    v_lshl_add_u32 v{GA+47}, v{vA1}, 14, v{vBG}
    v_add_u32 v{GA+47}, s{sTMP}, v{GA+47}
    """)
    o_hint_setup(sHA)
    HSA = [AOP, GA+36, GA+40]
    if not o.get("fullhint", 0): a.mask("0xffff", "0")
    a.pspin("hO", lambda r: a(f"global_load_dwordx4 {vr(r,4)}, v{vA0}, {sp(sWQ)} sc1"), HSA, ACC, sleep=psl)
    a.full()
    a.stamp(8)
    MLR = GA + 32
    def issA():
        a(f"v_mov_b32 v{vA1}, v{GA+47}")
        a(f"global_load_dwordx4 {vr(MLR,4)}, v{vA1}, {sp(sWS)} sc1")
        for i in range(8):
            a(f"global_load_dwordx4 {vr(GA+4*i,4)}, v{vA2}, {sp(sWQ)} offset:{i*512} sc1")
    MM, LLr, TT = GA+44, GA+45, GA+46
    def factors():
        a(f"v_mov_b32 v{MM}, v{MLR}")
        a.dpp("v_max_f32", [MM], (XOR1, XOR2, ROR4, ROR8))
        a.allreduce_g([MM], [TT], "v_max_f32", steps=("v_permlane16_swap_b32",))
        a(f"""
        v_sub_f32 v{MM}, v{MLR}, v{MM}
        v_exp_f32 v{MM}, v{MM}
        s_nop 0
        v_mul_f32 v{LLr}, v{MM}, v{MLR+1}""")
        a.dpp("v_add_f32", [LLr], (XOR1, XOR2, ROR4, ROR8))
        a.allreduce_g([LLr], [TT], "v_add_f32", steps=("v_permlane16_swap_b32",))
        a(f"""
        v_rcp_f32 v{LLr}, v{LLr}
        s_nop 0
        v_mul_f32 v{MM}, v{MM}, v{LLr}
        s_lshl_b32 s{sTMP}, s{u}, 8
        v_lshl_add_u32 v{vA0}, v{vLane}, 2, s{sTMP}
        ds_write_b32 v{vA0}, v{MM} offset:{L_FAC}
        v_lshrrev_b32 v{vA1}, 5, v{vLane}
        s_lshl_b32 s{sTMP2}, s{u}, 5
        s_add_u32 s{sTMP}, s{sTMP}, s{sTMP2}
        v_lshl_add_u32 v{vA0}, v{vA1}, 7, s{sTMP}      ; u*256 + b*128 + 8u*4
        ds_read_b128 {vr(AOP,4)}, v{vA0} offset:{L_FAC}
        ds_read_b128 {vr(GA+40,4)}, v{vA0} offset:{L_FAC+16}
        """)
    L = a.lab("swA"); Lok = a.lab("swAok")
    a(f"s_mov_b32 s{sSPIN}, 0")
    a.guard(issA)
    a.perm_unit(RAWA, T)
    a.perm_unit(RAWB, RAWA)
    a.label(L)
    a.guard(lambda: a("s_waitcnt vmcnt(8)"))
    for t in range(4):
        a(f"v_xor_b32 v{ACC+t}, s{sT[t]}, v{MLR+t}")
    a(f"v_or3_b32 v{GA+39}, v{ACC}, v{ACC+1}, v{ACC+2}")
    a(f"v_or_b32 v{GA+39}, v{GA+39}, v{ACC+3}")
    factors()
    FACR = [AOP, AOP+1, AOP+2, AOP+3, GA+40, GA+41, GA+42, GA+43]
    progA = o.get("prog", 0) & 1
    if progA: a("s_waitcnt lgkmcnt(0)")
    else: a.guard(lambda: a("s_waitcnt vmcnt(0)"))
    for gi in range(8):
        if progA: a.guard(lambda gi=gi: a(f"s_waitcnt vmcnt({7-gi})"))
        for i in range(4):
            if gi == 0:
                a(f"v_xor_b32 v{ACC+i}, s{sT[i]}, v{GA+i}")
            else:
                a(f"v_bitop3_b32 v{ACC+i}, v{GA+4*gi+i}, s{sT[i]}, v{ACC+i} bitop3:0xbe")
        if progA:
            for t in range(4):
                if gi == 0: a(f"v_mul_f32 v{GA+t}, v{GA+t}, v{FACR[0]}")
                else: a(f"v_fmac_f32 v{GA+t}, v{GA+4*gi+t}, v{FACR[gi]}")
    a(f"v_or3_b32 v{ACC}, v{ACC}, v{ACC+1}, v{ACC+2}\n v_or3_b32 v{ACC}, v{ACC}, v{ACC+3}, v{GA+39}\n v_and_b32 v{ACC}, 0xff, v{ACC}\n v_cmp_ne_u32 vcc, 0, v{ACC}")
    a(f"s_nop 0\n s_cbranch_vccz {Lok}")
    a(f"s_add_u32 s{sSPIN}, s{sSPIN}, 1\n s_sleep 1\n s_waitcnt lgkmcnt(0)")
    a.guard(issA)
    a(f"s_cmp_lt_u32 s{sSPIN}, {SPIN_LIMIT}\n s_cbranch_scc1 {L}\n s_branch L_abort")
    a.label(Lok)
    a.stamp(9)
    if not progA:
        a("s_waitcnt lgkmcnt(0)")
        for t in range(4):
            a(f"v_mul_f32 v{GA+t}, v{GA+t}, v{FACR[0]}")
        for i in range(1, 8):
            for t in range(4):
                a(f"v_fmac_f32 v{GA+t}, v{GA+4*i+t}, v{FACR[i]}")
    if dx:
        a(f"ds_write_b128 v{vXW}, {vr(GA,4)} offset:{L_XA_A}")
        a.gbarrier()
        dread(L_XA_A, vXR)
        dsum()
        dbcast(AOP)
    else:
        exchange(L_XA_A)
        for q in range(4):
            a(f"v_cvt_pk_bf16_f32 v{AOP+q}, v{vals[2*q]}, v{vals[2*q+1]}")
    a("s_nop 1")
    a.mfma8(D, AOP, T)
    a.mfma8(RAWB, AOP, RAWA)
    a(f"s_lshl_b32 s{sTMP}, s{sU}, 10\n v_lshl_add_u32 v{vA0}, v{vLane}, 4, s{sTMP}")
    red_pub2("a", RAWB, L_RA0, L_RA1, lambda: a(f"""
        s_lshr_b32 s{sTMP}, s{sSLOT}, 3
        s_lshl_b32 s{sTMP}, s{sTMP}, 1
        s_add_u32 s{sTMP}, s{sTMP}, s{sU}          ; cc
        s_lshl_b32 s{sTMP}, s{sTMP}, 6
        s_add_u32 s{sTMP}, s{sTMP}, s{sHA}
        s_lshl_b32 s{sTMP}, s{sTMP}, 9
        s_add_u32 s{sTMP}, s{sTMP}, {WS_AP}
        v_and_b32 v{vA0}, 1, v{vG}
        v_lshl_add_u32 v{vA0}, v{vA0}, 14, v{vPubH}
        v_add_u32 v{vA0}, s{sTMP}, v{vA0}"""))
    a.stamp(10)
    a.gbarrier()
    a(f"""
    s_cmp_ge_u32 s{sSLOT}, 28
    s_cbranch_scc1 L_skipC1
    """)
    wpair(T, RAWB, sW2, f"""
        s_lshl_b32 s{sTMP}, s{sFC}, 7
        s_lshl_b32 s{sTMP2}, s{u}, 5
        s_add_u32 s{sTMP}, s{sTMP}, s{sTMP2}
        s_lshl_b32 s{sTMP}, s{sTMP}, 11
        s_and_b32 s{sTMP2}, s{sSLOT}, 3
        s_lshl_b32 s{sTMP2}, s{sTMP2}, 9
        s_add_u32 s{sTMP}, s{sTMP}, s{sTMP2}""", 2048, f"""
        v_lshlrev_b32 v{vA1}, 13, v{vG}           ; 4g*2048
        v_lshl_add_u32 v{vA1}, v{vM}, 4, v{vA1}""", STD_ROW)
    a(f"""
    s_lshl_b32 s{sTMP}, s{sFC}, 7
    s_add_u32 s{sTMP}, s{sTMP}, {WS_FPS}
    v_and_b32 v{vA0}, 7, v{vLane}
    v_lshl_add_u32 v{vA0}, v{vA0}, 4, s{sTMP}
    s_lshl_b32 s{sTMP}, s{sFC}, 13           ; fc*2*8*512
    s_lshl_b32 s{sTMP2}, s{u}, 10             ; 2u*512
    s_add_u32 s{sTMP}, s{sTMP}, s{sTMP2}
    s_add_u32 s{sTMP}, s{sTMP}, {WS_FPP}
    s_add_u32 s{sWQ}, s{sWS}, s{sTMP}
    s_addc_u32 s{sWQ+1}, s{sWS+1}, 0
    s_lshl_b32 s{sTMP}, s{sFC}, 12           ; fc*8*512
    s_add_u32 s{sTMP}, s{sTMP}, s{sTMP2}
    s_add_u32 s{sTMP}, s{sTMP}, {WS_FPC}
    s_add_u32 s{sB1}, s{sWS}, s{sTMP}
    s_addc_u32 s{sB1+1}, s{sWS+1}, 0
    v_lshrrev_b32 v{vA1}, 5, v{vLane}
    v_lshl_add_u32 v{vA2}, v{vA1}, 12, v{vBG}   ; b*8*512 + gi*16
    """)
    a.guard(lambda: a("s_waitcnt vmcnt(0)"))
    a.perm_unit(T, RAWA)
    a.perm_unit(RAWB, T)
    a.stamp(13)
    ST = GA + 36
    a.pspin("hC", lambda r: a(f"global_load_dwordx4 {vr(r,4)}, v{vA0}, {sp(sWS)} sc1"), HS, ACC, dst=ST, sleep=psl)
    a.stamp(14)
    MEANB, RS0, RS1 = GA+32, GA+33, GA+34
    def issC():
        for k in range(2):
            a(f"global_load_dwordx4 {vr(GA+4*k,4)}, v{vA2}, {sp(sWQ)} offset:{k*512} sc1")
        for k in range(2):
            a(f"global_load_dwordx4 {vr(GA+8+4*k,4)}, v{vBG}, {sp(sB1)} offset:{k*512} sc1")
    def shadowC():
        a.dpp("v_add_f32", [ST, ST+1, ST+2, ST+3], (XOR1, XOR2, ROR4))
        a(f"""
        v_mul_f32 v{ST}, 0x3a800000, v{ST}
        v_mul_f32 v{ST+2}, 0x3a800000, v{ST+2}
        v_mul_f32 v{ST+1}, 0x3a800000, v{ST+1}
        v_mul_f32 v{ST+3}, 0x3a800000, v{ST+3}
        v_cndmask_b32 v{MEANB}, v{ST}, v{ST+2}, {sp(sMHI)}
        v_fma_f32 v{ST+1}, -v{ST}, v{ST}, v{ST+1}
        v_fma_f32 v{ST+3}, -v{ST+2}, v{ST+2}, v{ST+3}
        v_max_f32 v{ST+1}, 0, v{ST+1}
        v_max_f32 v{ST+3}, 0, v{ST+3}
        v_add_f32 v{ST+1}, 0x3727c5ac, v{ST+1}
        v_add_f32 v{ST+3}, 0x3727c5ac, v{ST+3}
        v_rsq_f32 v{RS0}, v{ST+1}
        v_rsq_f32 v{RS1}, v{ST+3}
        s_nop 0
        v_cndmask_b32 v{GA+35}, v{RS0}, v{RS1}, {sp(sMB)}
        """)
    dsilu = o.get("dsilu", 0)
    XC = vXR if dx else GA + 16
    def shadowC2():
        shadowC()
        if dsilu and not dx:
            a(f"""
            v_and_b32 v{XC+1}, 3, v{vM}
            v_mul_u32_u24 v{XC+2}, 1088, v{XC+1}
            v_sub_u32 v{XC}, v{vXR}, v{XC+2}
            v_and_b32 v{XC+2}, 1, v{XC+1}
            v_lshl_add_u32 v{XC}, v{XC+2}, 3, v{XC}
            v_lshrrev_b32 v{XC+2}, 1, v{XC+1}
            v_lshl_add_u32 v{XC}, v{XC+2}, 6, v{XC}
            """)
    progC = o.get("prog", 0) & 4
    def accC(i):
        if i == 1:
            for t in (0, 2): a(f"v_pk_add_f32 {vr(GA+t,2)}, {vr(GA+t,2)}, {vr(GA+4+t,2)}")
        if i == 3:
            for t in (0, 2): a(f"v_pk_add_f32 {vr(GA+8+t,2)}, {vr(GA+8+t,2)}, {vr(GA+12+t,2)}")
            for t in range(4): a(f"v_fma_f32 v{GA+t}, -v{MEANB}, v{GA+8+t}, v{GA+t}")
    sweep("gC", issC, [GA+4*i for i in range(4)], shadowC2, o.get("csleep", 1), prog=accC if progC else None)
    a.stamp(15)
    RSB = GA + 40
    if not progC:
        for t in range(4):
            a(f"v_add_f32 v{GA+t}, v{GA+t}, v{GA+4+t}\n v_add_f32 v{GA+8+t}, v{GA+8+t}, v{GA+12+t}")
        for t in range(4):
            a(f"v_fma_f32 v{GA+t}, -v{MEANB}, v{GA+8+t}, v{GA+t}")
    if dsilu:
        RSB = GA + 35
        a(f"ds_write_b128 v{vXW}, {vr(GA,4)} offset:{L_XA_C}")
        a.gbarrier()
        Y0 = GA + 20
        for w in range(4):
            a(f"ds_read_b64 {vr(Y0+2*w,2)}, v{XC} offset:{L_XA_C + w*1088}")
        a(f"""
        s_waitcnt lgkmcnt(2)
        v_pk_add_f32 {vr(Y0,2)}, {vr(Y0,2)}, {vr(Y0+2,2)}
        s_waitcnt lgkmcnt(0)
        v_pk_add_f32 {vr(Y0+4,2)}, {vr(Y0+4,2)}, {vr(Y0+6,2)}
        v_pk_add_f32 {vr(Y0,2)}, {vr(Y0,2)}, {vr(Y0+4,2)}
        v_mul_f32 v{Y0}, v{Y0}, v{RSB}
        v_mul_f32 v{Y0+1}, v{Y0+1}, v{RSB}
        v_mul_f32 v{Y0+2}, 0xbfb8aa3b, v{Y0}      ; -log2e * x
        v_mul_f32 v{Y0+3}, 0xbfb8aa3b, v{Y0+1}
        v_exp_f32 v{Y0+2}, v{Y0+2}
        v_exp_f32 v{Y0+3}, v{Y0+3}
        s_nop 0
        v_add_f32 v{Y0+2}, 1.0, v{Y0+2}
        v_add_f32 v{Y0+3}, 1.0, v{Y0+3}
        v_rcp_f32 v{Y0+2}, v{Y0+2}
        v_rcp_f32 v{Y0+3}, v{Y0+3}
        s_nop 0
        v_mul_f32 v{Y0}, v{Y0}, v{Y0+2}
        v_mul_f32 v{Y0+1}, v{Y0+1}, v{Y0+3}
        v_cvt_pk_bf16_f32 v{Y0+4}, v{Y0}, v{Y0+1}
        s_nop 1
        """)
        for q in range(4):
            a(f"v_mov_b32_dpp v{AOP+q}, v{Y0+4} quad_perm:[{q},{q},{q},{q}] {DM}")
        a("s_nop 1")
    else:
        a(f"v_mov_b32 v{RSB}, v{GA+35}")
        exchange(L_XA_C)
        for e in range(8):
            a(f"v_mul_f32 v{vals[e]}, v{vals[e]}, v{RSB}")
        E = GA + 8
        for e in range(8):
            a(f"v_mul_f32 v{E+e}, 0xbfb8aa3b, v{vals[e]}      ; -log2e * x")
        for e in range(8):
            a(f"v_exp_f32 v{E+e}, v{E+e}")
        for e in range(8):
            a(f"v_add_f32 v{E+e}, 1.0, v{E+e}")
        for e in range(8):
            a(f"v_rcp_f32 v{E+e}, v{E+e}")
        for e in range(8):
            a(f"v_mul_f32 v{vals[e]}, v{vals[e]}, v{E+e}")
        for q in range(4):
            a(f"v_cvt_pk_bf16_f32 v{AOP+q}, v{vals[2*q]}, v{vals[2*q+1]}")
        a("s_nop 1")
    a.mfma8(D, AOP, RAWA)
    a.mfma8(RAWB, AOP, T)
    a(f"s_lshl_b32 s{sTMP}, s{sU}, 10\n v_lshl_add_u32 v{vA0}, v{vLane}, 4, s{sTMP}")
    red_pub2("c", RAWB, L_RD0, L_RD1, lambda: a(f"""
        s_and_b32 s{sTMP}, s{sSLOT}, 3
        s_lshl_b32 s{sTMP}, s{sTMP}, 1
        s_add_u32 s{sTMP}, s{sTMP}, s{sU}          ; cc
        s_mul_i32 s{sTMP}, s{sTMP}, 56
        s_add_u32 s{sTMP}, s{sTMP}, s{sFC}
        s_lshl_b32 s{sTMP}, s{sTMP}, 9
        s_add_u32 s{sTMP}, s{sTMP}, {WS_O2}
        v_and_b32 v{vA0}, 1, v{vG}
        v_mul_u32_u24 v{vA0}, {28*512}, v{vA0}
        v_add3_u32 v{vA0}, v{vA0}, v{vPubH}, s{sTMP}"""))
    a("L_skipC1:")
    a.stamp(16)
    a("s_branch L_D")
    a("L_Y:")
    a.stamp(6)
    a.guard(lambda: a("s_barrier      ; B3\n s_barrier      ; B4"))
    a.stamp(7)
    a(f"""
    s_cmp_ge_u32 s{sFCP}, 14
    s_cbranch_scc1 L_D
    """)
    if o.get("ytrig", 1):
        o_hint_setup(sHA)
        a(f"""
        v_bfe_u32 v{vA1}, v{vLane}, 3, 1
        v_and_b32 v{vA0}, 7, v{vLane}
        v_lshlrev_b32 v{vA0}, 9, v{vA0}
        v_lshl_add_u32 v{vA0}, v{vA1}, 19, v{vA0}
        """)
        a.mask("0xffff", "0")
        a.pspin("hY", lambda r: a(f"global_load_dwordx4 {vr(r,4)}, v{vA0}, {sp(sWQ)} sc1"), HS, ACC, sleep=o.get("ysleep", 3), thr=o.get("ythr", 0))
        a.full()
    a.stamp(8)
    wpair(RAWA, RAWB, sW1, f"""
        s_lshl_b32 s{sTMP}, s{sKSB}, 7
        s_lshl_b32 s{sTMP2}, s{u}, 5
        s_add_u32 s{sTMP}, s{sTMP}, s{sTMP2}
        s_mul_i32 s{sTMP}, s{sTMP}, 7168
        s_lshl_b32 s{sTMP2}, s{sFCP}, 9
        s_add_u32 s{sTMP}, s{sTMP}, s{sTMP2}""", 7168, f"""
        v_mul_u32_u24 v{vA1}, {4*7168}, v{vG}
        v_lshl_add_u32 v{vA1}, v{vM}, 4, v{vA1}""", STD_ROW)
    a(f"""
    s_lshl_b32 s{sTMP}, s{sKSB}, 15            ; ks*2*32*512
    s_lshl_b32 s{sTMP2}, s{u}, 12
    s_add_u32 s{sTMP}, s{sTMP}, s{sTMP2}
    s_add_u32 s{sTMP}, s{sTMP}, {WS_AP}
    s_add_u32 s{sWQ}, s{sWS}, s{sTMP}
    s_addc_u32 s{sWQ+1}, s{sWS+1}, 0
    v_lshrrev_b32 v{vA1}, 5, v{vLane}
    v_lshl_add_u32 v{vA2}, v{vA1}, 14, v{vBG}
    """)
    if o.get("fullhint", 0):
        a(f"""
        v_bfe_u32 v{vA0}, v{vLane}, 2, 3
        v_lshlrev_b32 v{vA0}, 9, v{vA0}
        v_and_b32 v{GA+30}, 3, v{vLane}
        v_lshl_add_u32 v{vA0}, v{GA+30}, 7, v{vA0}
        v_lshl_add_u32 v{vA0}, v{vA1}, 14, v{vA0}
        """)
    else:
        a(f"""
        v_bfe_u32 v{vA1}, v{vLane}, 3, 1
        v_and_b32 v{vA0}, 7, v{vLane}
        v_lshlrev_b32 v{vA0}, 9, v{vA0}
        v_lshl_add_u32 v{vA0}, v{vA1}, 14, v{vA0}
        """)
    a.guard(lambda: a("s_waitcnt vmcnt(0)"))
    a.perm_unit(RAWA, T)
    a.perm_unit(RAWB, RAWA)
    a.stamp(10)
    if not o.get("fullhint", 0): a.mask("0xffff", "0")
    a.pspin("hB", lambda r: a(f"global_load_dwordx4 {vr(r,4)}, v{vA0}, {sp(sWQ)} sc1"), HS, ACC, sleep=psl)
    a.full()
    a.stamp(11)
    def issB():
        for i in range(8):
            a(f"global_load_dwordx4 {vr(GA+4*i,4)}, v{vA2}, {sp(sWQ)} offset:{i*512} sc1")
    XF = GA + 48 - 8
    progB = o.get("prog", 0) & 2
    def accB(i):
        if i: a(f"v_pk_add_f32 {vr(GA,2)}, {vr(GA,2)}, {vr(GA+4*i,2)}\n v_pk_add_f32 {vr(GA+2,2)}, {vr(GA+2,2)}, {vr(GA+4*i+2,2)}")
    sweep("gB", issB, [GA+4*i for i in range(8)], lambda: None, o.get("bsleep", 1), prog=accB if progB else None)
    a.stamp(12)
    if not progB:
        for k in (0, 8, 16, 24):
            a(f"v_pk_add_f32 {vr(GA+k,2)}, {vr(GA+k,2)}, {vr(GA+k+4,2)}\n v_pk_add_f32 {vr(GA+k+2,2)}, {vr(GA+k+2,2)}, {vr(GA+k+6,2)}")
        for k in (0, 16):
            a(f"v_pk_add_f32 {vr(GA+k,2)}, {vr(GA+k,2)}, {vr(GA+k+8,2)}\n v_pk_add_f32 {vr(GA+k+2,2)}, {vr(GA+k+2,2)}, {vr(GA+k+10,2)}")
        a(f"v_pk_add_f32 {vr(GA,2)}, {vr(GA,2)}, {vr(GA+16,2)}\n v_pk_add_f32 {vr(GA+2,2)}, {vr(GA+2,2)}, {vr(GA+18,2)}")
    a(f"ds_write_b128 v{vXW}, {vr(GA,4)} offset:{L_XA_B}")
    HP_ = XR
    if dx:
        a(f"v_lshlrev_b32 v{XF}, 16, v{XR}\n v_and_b32 v{XF+1}, 0xffff0000, v{XR}")
        a.gbarrier()
        dread(L_XA_B, vXR)
        a(f"v_mov_b32 v{ACC}, 0x3f803f80")
        dsum()
        a(f"v_pk_add_f32 {vr(Y0,2)}, {vr(XF,2)}, {vr(Y0,2)}")
        dbcast(HP_)
    else:
        for q in range(4):
            a(f"v_lshlrev_b32 v{XF+2*q}, 16, v{XR+q}\n v_and_b32 v{XF+2*q+1}, 0xffff0000, v{XR+q}")
        a.gbarrier()
        a(f"""
        ds_read_b128 {vr(vals[0],4)}, v{vXR} offset:{L_XA_B}
        ds_read_b128 {vr(vals[4],4)}, v{vXR} offset:{L_XA_B + 64}
        v_mov_b32 v{ACC}, 0x3f803f80
        s_waitcnt lgkmcnt(0)""")
        a.dpp("v_add_f32", vals, (XOR1, XOR2))
        for e in range(0, 8, 2):
            a(f"v_pk_add_f32 {vr(XF+e,2)}, {vr(XF+e,2)}, {vr(vals[e],2)}")
        for q in range(4):
            a(f"v_cvt_pk_bf16_f32 v{HP_+q}, v{XF+2*q}, v{XF+2*q+1}")
    a("s_nop 0")
    for q in range(4):
        a(f"v_cndmask_b32 v{AOP+q}, v{HP_+q}, v{ACC}, {sp(sM1)}")
    a("s_nop 1")
    DX = GA + 44
    a(f"v_mfma_f32_16x16x32_bf16 {vr(DX,4)}, {vr(AOP,4)}, {vr(AOP,4)}, 0")
    a.mfma8(D, AOP, T)
    a.mfma8(RAWB, AOP, RAWA)
    a(f"""
    s_lshl_b32 s{sTMP}, s{u}, 10
    v_lshl_add_u32 v{vA0}, v{vLane}, 4, s{sTMP}
    v_lshrrev_b32 v{vA1}, 4, v{vLane}
    v_lshlrev_b32 v{vA1}, 3, v{vA1}
    v_not_b32 v{vA2}, v{vLane}
    v_and_b32 v{vA2}, 1, v{vA2}
    v_lshl_add_u32 v{vA1}, v{vA2}, 2, v{vA1}
    s_lshl_b32 s{sTMP}, s{u}, 4
    v_add_u32 v{vA1}, s{sTMP}, v{vA1}
    """)
    a.select(ACC, D, 0)
    a(f"ds_write_b128 v{vA0}, {vr(ACC,4)} offset:{L_RA0}")
    a.select(AOP, D, 1)
    a(f"ds_write_b128 v{vA0}, {vr(AOP,4)} offset:{L_RD0}")
    a.select(GA+32, RAWB, 0)
    a(f"ds_write_b128 v{vA0}, {vr(GA+32,4)} offset:{L_RA1}")
    a.select(GA+36, RAWB, 1)
    a(f"ds_write_b128 v{vA0}, {vr(GA+36,4)} offset:{L_RD1}")
    a.mask("0x00300003", "0")
    a(f"ds_write_b32 v{vA1}, v{DX} offset:{L_REDS}")
    a.full()
    a.gbarrier()
    R2 = GA + 16
    a(f"""
    s_cmp_eq_u32 s{u}, 3
    s_cbranch_scc1 L_b_st
    s_cmp_eq_u32 s{u}, 2
    s_cbranch_scc1 L_b_cs
    s_mul_i32 s{sTMP}, s{u}, {L_RA1 - L_RA0}
    v_lshl_add_u32 v{vA0}, v{vLane}, 4, s{sTMP}
    """)
    for w in range(4):
        a(f"ds_read_b128 {vr(R2+4*w,4)}, v{vA0} offset:{L_RA0 + w*1024}")
    a(f"""
    s_lshl_b32 s{sTMP}, s{sFCP}, 1
    s_add_u32 s{sTMP}, s{sTMP}, s{u}           ; fc
    s_lshl_b32 s{sTMP}, s{sTMP}, 4             ; fc*2*8
    s_add_u32 s{sTMP}, s{sTMP}, s{sKSB}
    s_lshl_b32 s{sTMP}, s{sTMP}, 9
    s_add_u32 s{sTMP}, s{sTMP}, {WS_FPP}
    v_and_b32 v{vA0}, 1, v{vG}
    v_lshl_add_u32 v{vA0}, v{vA0}, 12, v{vPubH}
    v_add_u32 v{vA0}, s{sTMP}, v{vA0}
    s_waitcnt lgkmcnt(0)""")
    reduce4(a, R2, ACC, vN)
    a.guard(lambda: a(f"global_store_dwordx4 v{vA0}, {vr(ACC,4)}, {sp(sWS)} sc1"))
    a(f"""
    s_branch L_b_done
    L_b_cs:
    v_and_b32 v{vA1}, 1, v{vG}
    v_mul_u32_u24 v{vA0}, {L_RD1 - L_RD0}, v{vA1}
    v_lshl_add_u32 v{vA0}, v{vLane}, 4, v{vA0}
    """)
    for w in range(4):
        a(f"ds_read_b128 {vr(R2+4*w,4)}, v{vA0} offset:{L_RD0 + w*1024}")
    a(f"""
    s_lshl_b32 s{sTMP}, s{sFCP}, 4             ; fc0*8
    s_add_u32 s{sTMP}, s{sTMP}, s{sKSB}
    s_lshl_b32 s{sTMP}, s{sTMP}, 9
    s_add_u32 s{sTMP}, s{sTMP}, {WS_FPC}
    v_lshl_add_u32 v{vA0}, v{vA1}, 12, v{vPubH}     ; + (g&1)*8*512
    v_add_u32 v{vA0}, s{sTMP}, v{vA0}
    s_waitcnt lgkmcnt(0)""")
    reduce4(a, R2, ACC, vN)
    a.guard(lambda: a(f"global_store_dwordx4 v{vA0}, {vr(ACC,4)}, {sp(sWS)} sc1"))
    a(f"""
    s_branch L_b_done
    L_b_st:
    v_mov_b32 v{vA0}, 0
    """)
    for w in range(4):
        a(f"ds_read_b128 {vr(R2+4*w,4)}, v{vA0} offset:{L_REDS + w*16}")
    a(f"""
    s_lshl_b32 s{sTMP}, s{sFCP}, 4
    s_add_u32 s{sTMP}, s{sTMP}, s{sKSB}
    s_lshl_b32 s{sTMP}, s{sTMP}, 4
    s_add_u32 s{sTMP}, s{sTMP}, {WS_FPS}
    v_lshl_add_u32 v{vA0}, v{vLane}, 7, s{sTMP}
    s_waitcnt lgkmcnt(0)
    """)
    for t in (0, 2):
        a(f"v_pk_add_f32 {vr(R2+t,2)}, {vr(R2+t,2)}, {vr(R2+4+t,2)}\n v_pk_add_f32 {vr(R2+8+t,2)}, {vr(R2+8+t,2)}, {vr(R2+12+t,2)}")
    for t in (0, 2):
        a(f"v_pk_add_f32 {vr(R2+t,2)}, {vr(R2+t,2)}, {vr(R2+8+t,2)}")
    a.tag(ACC, R2, vN)
    a.mask("3", "0")
    a.guard(lambda: a(f"global_store_dwordx4 v{vA0}, {vr(ACC,4)}, {sp(sWS)} sc1"))
    a.full()
    a("L_b_done:")
    a(f"""
    s_cmp_lg_u32 s{sFCP}, 0
    s_cbranch_scc1 L_nohp""")
    XF2 = GA + 32
    for q in range(4):
        a(f"v_lshlrev_b32 v{XF2+2*q}, 16, v{HP_+q}\n v_and_b32 v{XF2+2*q+1}, 0xffff0000, v{HP_+q}")
    a.tag(GA+4, XF2, vN)
    a.tag(GA+8, XF2+4, vN)
    a(f"""
    s_lshl_b32 s{sTMP}, s{sKSB}, 5
    s_lshl_b32 s{sTMP2}, s{u}, 3
    s_add_u32 s{sTMP}, s{sTMP}, s{sTMP2}
    s_lshl_b32 s{sTMP}, s{sTMP}, 4
    s_add_u32 s{sTMP}, s{sTMP}, {WS_HP}
    v_lshlrev_b32 v{vA1}, 4, v{vG}
    v_lshl_add_u32 v{vA1}, v{vB}, 12, v{vA1}
    v_add_u32 v{vA1}, s{sTMP}, v{vA1}""")
    a.mask("0x00110011", "0x00110011")
    a.guard(lambda: a(f"""global_store_dwordx4 v{vA1}, {vr(GA+4,4)}, {sp(sWS)} sc1
    global_store_dwordx4 v{vA1}, {vr(GA+8,4)}, {sp(sWS)} offset:64 sc1"""))
    a.full()
    a("L_nohp:")
    a.stamp(13)
    if o.get("ydpre", 0): a.guard(lambda: a("\n".join([f"s_sleep {min(127, o['ydpre'] - 127*k)}" for k in range((o['ydpre'] + 126)//127)])))
    a("L_D:")
    a(f"""
    s_cmp_lg_u32 s{u}, 0
    s_cbranch_scc1 L_G_done
    s_and_b32 s{sX}, s2, 7
    s_lshl_b32 s{sX}, s{sX}, 5
    s_lshr_b32 s{sX+1}, s2, 3
    s_add_u32 s{sX}, s{sX}, s{sX+1}
    s_lshr_b32 s{sB0}, s{sX}, 7                ; b2
    s_bfe_u32 s{sB0+1}, s{sX}, 0x30004         ; cc2
    s_and_b32 s{sB1}, s{sX}, 15
    s_lshl_b32 s{sB1}, s{sB1}, 5               ; gi0*16
    s_lshl_b32 s{sTMP}, s{sB0+1}, 1
    s_add_u32 s{sTMP}, s{sTMP}, s{sB0}
    s_mul_i32 s{sTMP}, s{sTMP}, {28*512}
    s_add_u32 s{sTMP}, s{sTMP}, s{sB1}
    s_add_u32 s{sTMP}, s{sTMP}, {WS_O2}
    v_lshrrev_b32 v{vA0}, 1, v{vLane}
    v_lshlrev_b32 v{vA0}, 9, v{vA0}
    v_and_b32 v{vA1}, 1, v{vLane}
    v_lshl_add_u32 v{vA0}, v{vA1}, 4, v{vA0}
    v_add_u32 v{vA0}, s{sTMP}, v{vA0}
    s_lshl_b32 s{sTMP}, s{sB0}, 12             ; b*256*16
    s_lshl_b32 s{sTMP2}, s{sB0+1}, 9           ; cc*32*16
    s_add_u32 s{sTMP}, s{sTMP}, s{sTMP2}
    s_add_u32 s{sTMP}, s{sTMP}, s{sB1}
    s_add_u32 s{sTMP}, s{sTMP}, {WS_HP}
    v_lshl_add_u32 v{vA2}, v{vA1}, 4, s{sTMP}
    v_cmp_le_u32 vcc, 56, v{vLane}
    s_nop 1
    v_cndmask_b32 v{vA0}, v{vA0}, v{vA2}, vcc
    """)
    DS = [GA, GA+4, GA+8]
    a.mask("-1", "0x03ffffff")
    if o.get("dpre", 0): a.guard(lambda: a(f"s_sleep {o['dpre']}"))
    a.pspin("gd", lambda r: a(f"global_load_dwordx4 {vr(r,4)}, v{vA0}, {sp(sWS)} sc1"), DS, ACC, dst=GA+12, sleep=o.get("dsleep", 1), stag=o.get("dstag", 0))
    a.full()
    a.stamp(17)
    fv = [GA+12+i for i in range(4)]
    a.mask("0", "0xfc000000")
    for r in fv: a(f"v_mov_b32 v{r}, 0")
    a.full()
    a.dpp("v_add_f32", fv, (XOR2, ROR4, ROR8))
    a.allreduce_g(fv, [GA+16+i for i in range(4)])
    a(f"""
    v_cvt_pk_bf16_f32 v{GA+20}, v{GA+12}, v{GA+13}
    v_cvt_pk_bf16_f32 v{GA+21}, v{GA+14}, v{GA+15}
    s_lshl_b32 s{sTMP}, s{sX}, 4
    v_lshl_add_u32 v{vA0}, v{vA1}, 3, s{sTMP}
    """)
    a.mask("3", "0")
    a.guard(lambda: a(f"global_store_dwordx2 v{vA0}, {vr(GA+20,2)}, {sp(sOUT)}"))
    a(f"""
    s_cmp_lg_u32 s2, 0
    s_cbranch_scc1 L_G_done
    """)
    a.full()
    a(f"v_mov_b32 v{vA0}, 0")
    a.mask("1", "0")
    a.guard(lambda: a(f"global_store_dword v{vA0}, v{vN}, {sp(sWS)} sc1"))
    a("L_G_done:")
    if o.get("dry", 1):
        a("s_cbranch_execz L_dry_done")
    a.stamp(18)
    a.dump_stamps(19, 7)
    a("s_endpgm")

def gen_A(a):
    o = a.o
    vLane, vG, vM, vN = 0, 2, 3, 4
    vKs = 5
    vV = 9
    vT0, vT1, vT2 = 10, 11, 12
    MX, LS = 13, 14
    VR = 16
    QO = 80
    KS = 96
    S = 128
    P = 144
    TB = 80
    ACCD = 112
    sA = sU
    sP, sS = 52, 53
    a(f"""
    L_A:
    ; ---------------- A waves ----------------
    s_setprio 2
    s_sub_u32 s{sA}, s{sWAVE}, 4
    s_and_b32 s{sP}, s2, 7
    s_lshr_b32 s{sS}, s2, 3
    s_lshl_b32 s{sTMP}, s{sP}, 22
    s_lshl_b32 s{sTMP2}, s{sS}, 17
    s_add_u32 s{sTMP}, s{sTMP}, s{sTMP2}
    s_lshl_b32 s{sTMP2}, s{sA}, {12 if o.get("ilv", 1) else 14}
    s_add_u32 s{sTMP}, s{sTMP}, s{sTMP2}
    s_lshl_b32 s{sTMP2}, s{sA}, 14
    """)
    TS = 32768 if o.get("ilv", 1) else 4096
    for r in range(4):
        a(f"v_add_u32 v{vT0}, {4*r}, v{vG}\n v_xor_b32 v{vT0}, v{vT0}, v{vM}\n v_lshlrev_b32 v{vT0}, 4, v{vT0}\n v_lshl_add_u32 v{vKs+r}, v{vG}, 8, v{vT0}")
    a(f"""
    v_lshlrev_b32 v{vT0}, 4, v{vM}
    v_lshl_add_u32 v{vV}, v{vG}, 10, v{vT0}
    v_mov_b32 v{vT1}, 0
    s_mov_b32 s{sM8}, 0xff00ff00
    s_mov_b32 s{sM8+1}, 0xff00ff00
    s_waitcnt lgkmcnt(0)
    s_add_u32 s{sB0}, s{sK}, s{sTMP}
    s_addc_u32 s{sB0+1}, s{sK+1}, 0
    s_add_u32 s{sB1}, s{sV}, s{sTMP}
    s_addc_u32 s{sB1+1}, s{sV+1}, 0
    s_add_u32 m0, s{sTMP2}, {L_K}
    s_barrier       ; B0
    global_load_dword v{vN}, v{vT1}, {sp(sWS)} sc1
    """)
    KW = o.get("kwin", 3)
    for i in range(16):
        r = i % 4
        if KW and i >= KW: a(f"s_waitcnt vmcnt({KW-1})")
        a(f"global_load_lds_dwordx4 v{vKs+r}, {sp(sB0)} offset:{r*1024} nt")
        if r == 3 and i < 15:
            a(f"s_add_u32 s{sB0}, s{sB0}, {TS}\n s_addc_u32 s{sB0+1}, s{sB0+1}, 0\n s_add_u32 m0, m0, 4096")
    a.stamp(1)
    a(f"s_setprio {o.get('vprio', 1)}")
    VW = o.get("vwin", 0)
    for uu in range(2):
        for i in range(8):
            reg = VR + (uu*8+i)*4
            if VW and uu*8+i < o.get("vwn", 16): a(f"s_waitcnt vmcnt({VW-1})")
            a(f"global_load_dwordx4 {vr(reg,4)}, v{vV}, {sp(sB1)} offset:{(i%4)*256} nt")
            if i % 4 == 3 and not (uu == 1 and i == 7):
                a(f"s_add_u32 s{sB1}, s{sB1}, {TS}\n s_addc_u32 s{sB1+1}, s{sB1+1}, 0")
    a.stamp(2)
    a(f"""
    v_mov_b32 v{vT1}, 0
    v_mov_b32 v{vT2}, 1
    s_mov_b64 exec, 1
    ds_add_u32 v{vT1}, v{vT2} offset:{L_CNT+4}
    s_mov_b64 exec, -1""")
    a(f"s_lshl_b32 s{sTMP}, s{sA}, 14\n s_add_u32 s{sTMP}, s{sTMP}, {L_K}")
    for s in range(4):
        a(f"v_add_u32 v{vT0}, {4*s}, v{vG}\n v_xor_b32 v{vT0}, v{vT0}, v{vM}\n v_lshlrev_b32 v{vT0}, 4, v{vT0}\n v_lshl_add_u32 v{vT0}, v{vM}, 8, v{vT0}\n v_add_u32 v{vKs+s}, s{sTMP}, v{vT0}")
    a.ldswait("Aq", vT1, vT2, L_CNT, 4, sleep=4)
    a(f"""
    v_and_b32 v{vT0}, 7, v{vM}
    v_mul_u32_u24 v{vT0}, 272, v{vT0}
    v_lshl_add_u32 v{vT0}, v{vG}, 4, v{vT0}
    """)
    a.stamp(3)
    for s in range(4):
        a(f"ds_read_b128 {vr(QO+4*s,4)}, v{vT0} offset:{L_Q + s*64}")
    a("s_waitcnt vmcnt(16)")
    a.nonce_from(vN)
    def kread(t, buf):
        for s in range(4):
            a(f"ds_read_b128 {vr(KS+16*buf+4*s,4)}, v{vKs+s} offset:{t*4096}")
    kread(0, 0); kread(1, 1)
    for t in range(4):
        buf = t % 2
        a("s_waitcnt lgkmcnt(4)" if t < 3 else "s_waitcnt lgkmcnt(0)")
        for s in range(4):
            c = "0" if s == 0 else vr(S+4*t, 4)
            a(f"v_mfma_f32_16x16x32_bf16 {vr(S+4*t,4)}, {vr(KS+16*buf+4*s,4)}, {vr(QO+4*s,4)}, {c}")
        if t + 2 < 4:
            kread(t + 2, buf)
    a("s_nop 7")
    a(f"v_max3_f32 v{MX}, v{S}, v{S+1}, v{S+2}")
    for k in range(3, 15, 2):
        a(f"v_max3_f32 v{MX}, v{MX}, v{S+k}, v{S+k+1}")
    a(f"v_max_f32 v{MX}, v{MX}, v{S+15}")
    a.allreduce_g([MX], [vT2], "v_max_f32")
    a(f"""
    s_mov_b32 s{sC}, 0x3e0293ee                   ; 128^-0.5 * log2(e)
    v_mul_f32 v{MX}, s{sC}, v{MX}""")
    for k in range(16):
        a(f"v_fma_f32 v{S+k}, v{S+k}, s{sC}, -v{MX}")
    for k in range(16):
        a(f"v_exp_f32 v{S+k}, v{S+k}")
    a("s_nop 0")
    for uu in range(2):
        for q in range(4):
            k = 8*uu + 2*q
            a(f"v_cvt_pk_bf16_f32 v{P+4*uu+q}, v{S+k}, v{S+k+1}")
    a(f"v_add_f32 v{LS}, v{S}, v{S+1}")
    for k in range(2, 16):
        a(f"v_add_f32 v{LS}, v{LS}, v{S+k}")
    a.allreduce_g([LS], [KS])
    a(f"""
    v_and_b32 v{vT0}, 7, v{vM}
    v_lshlrev_b32 v{vT0}, 5, v{vT0}             ; head*32
    s_lshl_b32 s{sTMP}, s{sA}, 2
    v_add_u32 v{vT0}, s{sTMP}, v{vT0}            ; head*32 + a*4
    s_mov_b64 exec, 0xff
    ds_write_b32 v{vT0}, v{MX} offset:{L_MX}
    ds_write_b32 v{vT0}, v{LS} offset:{L_LS}
    s_mov_b64 exec, 1
    v_mov_b32 v{vT1}, 0
    v_mov_b32 v{vT2}, 1
    s_waitcnt lgkmcnt(0)
    ds_add_rtn_u32 v{vT2}, v{vT1}, v{vT2} offset:{L_CNT+8}
    s_waitcnt lgkmcnt(0)
    s_mov_b64 exec, -1
    v_readfirstlane_b32 s{sTMP}, v{vT2}
    s_mov_b32 s{sSPIN}, 0
    s_cmp_lg_u32 s{sTMP}, 7
    s_cbranch_scc1 L_A_noml
    v_and_b32 v{vT0}, 7, v{vLane}
    v_lshlrev_b32 v{vT1}, 5, v{vT0}
    ds_read_b128 {vr(KS,4)}, v{vT1} offset:{L_MX}
    ds_read_b128 {vr(KS+4,4)}, v{vT1} offset:{L_MX+16}
    ds_read_b128 {vr(KS+8,4)}, v{vT1} offset:{L_LS}
    ds_read_b128 {vr(KS+12,4)}, v{vT1} offset:{L_LS+16}
    s_lshl_b32 s{sTMP}, s{sP}, 8                   ; p*8*32
    s_add_u32 s{sTMP}, s{sTMP}, s{sS}
    s_lshl_b32 s{sTMP}, s{sTMP}, 4
    s_add_u32 s{sTMP}, s{sTMP}, {WS_ML}
    v_lshl_add_u32 v{vT1}, v{vT0}, 9, s{sTMP}       ; + head*32*16
    s_waitcnt lgkmcnt(0)
    v_max3_f32 v{KS+16}, v{KS}, v{KS+1}, v{KS+2}
    v_max3_f32 v{KS+17}, v{KS+3}, v{KS+4}, v{KS+5}
    v_max3_f32 v{KS+16}, v{KS+16}, v{KS+6}, v{KS+7}
    v_max_f32 v{KS+16}, v{KS+16}, v{KS+17}
    v_perm_b32 v{KS+16}, v{KS+16}, v{vN}, s{sSEL[0]}
    """)
    for w in range(8):
        a(f"v_sub_f32 v{KS+w}, v{KS+w}, v{KS+16}")
    for w in range(8):
        a(f"v_exp_f32 v{KS+w}, v{KS+w}")
    a(f"s_nop 0\n v_mul_f32 v{KS+17}, v{KS}, v{KS+8}")
    for w in range(1, 8):
        a(f"v_fmac_f32 v{KS+17}, v{KS+w}, v{KS+8+w}")
    a(f"v_mov_b32 v{KS+18}, v{KS+16}\n v_mov_b32 v{KS+19}, v{KS+16}")
    a.tag(KS+20, KS+16, vN)
    a(f"""
    s_mov_b64 exec, 0xff
    global_store_dwordx4 v{vT1}, {vr(KS+20,4)}, {sp(sWS)} sc1
    s_mov_b64 exec, -1
    s_mov_b32 s{sPEND}, 1
    s_branch L_A_ml2
    L_A_noml:
    s_mov_b32 s{sPEND}, 0
    L_A_ml2:
    """)
    a.stamp(4)
    def pwait(n):
        L0, L1 = a.lab("pw"), a.lab("pw")
        a(f"s_cmp_eq_u32 s{sPEND}, 0\n s_cbranch_scc1 {L0}\n s_waitcnt vmcnt({n+1})\n s_branch {L1}\n {L0}:\n s_waitcnt vmcnt({n})\n {L1}:")
    F = VR
    a("s_waitcnt vmcnt(8)")
    raw = VR
    for t in range(4):
        tb = TB + 8*t
        for par, sel in ((0, sPLO), (1, sPHI)):
            for q in range(4):
                a(f"v_perm_b32 v{tb+4*par+q}, v{raw+4*(2*q+1)+t}, v{raw+4*(2*q)+t}, s{sel}")
        if t > 0:
            for par in range(2):
                j = 2*(t-1) + par
                a(f"v_mfma_f32_16x16x32_bf16 {vr(ACCD+4*j,4)}, {vr(TB+8*(t-1)+4*par,4)}, {vr(P,4)}, 0")
    a("s_nop 1")
    for par in range(2):
        j = 6 + par
        a(f"v_mfma_f32_16x16x32_bf16 {vr(ACCD+4*j,4)}, {vr(TB+24+4*par,4)}, {vr(P,4)}, 0")
    a(f"""
    s_lshl_b32 s{sTMP}, s{sA}, 14
    s_add_u32 s{sTMP}, s{sTMP}, {L_OB}
    v_mul_u32_u24 v{vT0}, 17, v{vG}
    v_add_u32 v{vT0}, v{vT0}, v{vM}
    v_lshl_add_u32 v{vT0}, v{vT0}, 4, s{sTMP}
    v_bfe_u32 v{vT1}, v{vLane}, 3, 2            ; g'
    v_and_b32 v{vKs}, 3, v{vLane}               ; j'&3
    v_bfe_u32 v{vKs+1}, v{vLane}, 2, 1          ; j'>>2
    v_lshl_add_u32 v{vKs}, v{vKs}, 1, v{vKs+1}  ; j
    v_and_b32 v{vKs+1}, 3, v{vKs}               ; jj
    v_lshrrev_b32 v{vKs}, 2, v{vKs}             ; nh
    v_lshl_add_u32 v{vT1}, v{vKs+1}, 2, v{vT1}  ; jj*4+g'
    v_mul_u32_u24 v{vT1}, 17, v{vT1}
    v_lshl_add_u32 v{vT1}, v{vKs}, 3, v{vT1}
    v_add_u32 v{vT1}, s{sA}, v{vT1}
    v_lshlrev_b32 v{vT1}, 4, v{vT1}
    v_lshrrev_b32 v{vKs}, 5, v{vLane}           ; ph
    v_lshl_add_u32 v{vT1}, v{vKs}, 16, v{vT1}   ; + ph*4*16384
    v_add_u32 v{vT1}, {L_OB}, v{vT1}
    s_lshl_b32 s{sTMP}, s{sA}, 5
    v_lshl_add_u32 v{vKs+1}, v{vKs}, 4, s{sTMP}
    v_xor_b32 v{vKs+2}, 16, v{vKs+1}
    s_lshl_b32 s{sTMP}, s{sP}, 3
    s_add_u32 s{sTMP}, s{sTMP}, s{sA}
    s_lshl_b32 s{sTMP}, s{sTMP}, 5
    s_add_u32 s{sTMP}, s{sTMP}, s{sS}            ; (p*8+head)*32 + s
    s_lshl_b32 s{sTMP2}, s{sTMP}, 9
    s_add_u32 s{sTMP2}, s{sTMP2}, {WS_OP}
    v_and_b32 v{vKs+3}, 31, v{vLane}
    v_lshl_add_u32 v{vV}, v{vKs+3}, 4, s{sTMP2}
    v_mov_b32 v{vKs}, 0
    """)
    a.ldswait("Amx", vKs, vT2, L_CNT+8, 8, sleep=1)
    MO, MT = VR, VR+4
    a(f"""
    ds_read_b128 {vr(MO,4)}, v{vKs+1} offset:{L_MX}
    ds_read_b128 {vr(MT,4)}, v{vKs+2} offset:{L_MX}
    s_setprio 3
    s_waitcnt lgkmcnt(0)
    v_max3_f32 v{MX}, v{MO}, v{MO+1}, v{MO+2}
    v_max3_f32 v{MT}, v{MT}, v{MT+1}, v{MT+2}
    v_max3_f32 v{MX}, v{MX}, v{MO+3}, v{MT+3}
    v_max_f32 v{MX}, v{MX}, v{MT}
    v_perm_b32 v{MX}, v{MX}, v{vN}, s{sSEL[0]}
    """)
    for w in range(4):
        a(f"v_sub_f32 v{F+w}, v{MO+w}, v{MX}")
    for w in range(4):
        a(f"v_exp_f32 v{F+w}, v{F+w}")
    raw = VR + 32
    pwait(4)
    for t in range(4):
        for par, sel in ((0, sPLO), (1, sPHI)):
            for q in range(2):
                a(f"v_perm_b32 v{TB+8*t+4*par+q}, v{raw+4*(2*q+1)+t}, v{raw+4*(2*q)+t}, s{sel}")
    pwait(0)
    a.stamp(5)
    for t in range(4):
        for par, sel in ((0, sPLO), (1, sPHI)):
            for q in (2, 3):
                a(f"v_perm_b32 v{TB+8*t+4*par+q}, v{raw+4*(2*q+1)+t}, v{raw+4*(2*q)+t}, s{sel}")
        if t > 0:
            for par in range(2):
                j = 2*(t-1) + par
                a(f"v_mfma_f32_16x16x32_bf16 {vr(ACCD+4*j,4)}, {vr(TB+8*(t-1)+4*par,4)}, {vr(P+4,4)}, {vr(ACCD+4*j,4)}")
    a("s_nop 1")
    for par in range(2):
        j = 6 + par
        a(f"v_mfma_f32_16x16x32_bf16 {vr(ACCD+4*j,4)}, {vr(TB+24+4*par,4)}, {vr(P+4,4)}, {vr(ACCD+4*j,4)}")
    XB = TB
    a("s_nop 3")
    for jj in range(4):
        if jj == 2: a("s_nop 1")
        for r in range(4):
            a(f"v_cndmask_b32 v{XB+4*jj+r}, v{ACCD+4*jj+r}, v{ACCD+4*(jj+4)+r}, {sp(sM8)}")
        a(f"ds_write_b128 v{vT0}, {vr(XB+4*jj,4)} offset:{jj*1088}")
    a("s_waitcnt lgkmcnt(0)")
    if o.get("adry", 1):
        a(f"""
        s_cmp_ge_u32 s{sA}, 4
        s_cbranch_scc1 L_A_b3
        s_mov_b64 exec, 0
        s_branch L_A_post
        L_A_postret:
        s_mov_b64 exec, -1
        L_A_b3:
        """)
    a("s_barrier     ; B3")
    a.stamp(6)
    a("L_A_post:")
    R = KS
    for w in range(4):
        a(f"ds_read_b128 {vr(R+4*w,4)}, v{vT1} offset:{w*OB_STRIDE}")
    a("s_waitcnt lgkmcnt(2)")
    for t in range(4):
        a(f"v_mul_f32 v{R+t}, v{R+t}, v{F}")
    for t in range(4):
        a(f"v_fmac_f32 v{R+t}, v{R+4+t}, v{F+1}")
    a("s_waitcnt lgkmcnt(0)")
    for w in range(2, 4):
        for t in range(4):
            a(f"v_fmac_f32 v{R+t}, v{R+4*w+t}, v{F+w}")
    a.allreduce_g([R, R+1, R+2, R+3], [R+4, R+5, R+6, R+7], steps=("v_permlane32_swap_b32",))
    a.tag(R+8, R, vN)
    a("s_mov_b32 exec_hi, 0")
    a.guard(lambda: a(f"global_store_dwordx4 v{vV}, {vr(R+8,4)}, {sp(sWS)} sc1"))
    if o.get("adry", 1): a("s_cbranch_execz L_A_postret")
    a.stamp(7)
    a("s_barrier     ; B4")
    a.dump_stamps(8, 10)
    a("s_endpgm")

if __name__ == "__main__":
    out = sys.argv[1]
    stamps = len(sys.argv) > 2 and sys.argv[2] == "1"
    opts = {}
    for kv in sys.argv[3:]:
        k, v = kv.split("="); opts[k] = int(v)
    open(out, "w").write(build(stamps, **opts))
```

```python
import sys
from gen_common import *

WS_EPOCH = 0
WS_QP   = 0x010000
WS_ML   = 0x080000
WS_HP   = 0x090000
WS_OP   = 0x100000
WS_AP   = 0x200000
WS_FPP  = 0x240000
WS_FPC  = 0x280000
WS_FPS  = 0x2A0000
WS_O2   = 0x2C0000
WS_STAMP = 0x800000
L_Q   = 0
L_MX  = 2304
L_LS  = L_MX + 256
L_REDQ = L_LS + 256
L_CNT = 6912
L_K   = 8192
L_OB  = L_K
OB_STRIDE = 16384
LDS_BYTES = L_K + 131072
L_XA_A = 12544
L_FAC  = 16896
L_XA_C = 17920
L_RA0, L_RA1 = 28928, 33024
L_RD0, L_RD1 = 45312, 49408
L_XA_B = 12544
L_REDS = 16896

SPIN_LIMIT = 4000

sX, sK, sV, sWQ, sWO, sW1, sW2, sOUT, sDBG, sWS = 4, 6, 8, 10, 12, 16, 18, 20, 22, 24
sFULL = 14
sWAVE, sU = 26, 27
sNONCE = 28
sT = [29, 30, 31, 32]
sSEL = [33, 34, 35, 36]
sPLO, sPHI = 37, 38
sC = 39
sMHI = 40
sM8 = 42
sB0 = 44
sB1 = 46
sMB = 48
sM1 = 50
sSPIN = 60
sTMP, sTMP2 = 61, 62
sPEND = 63
sSTAMP = 64

def sp(r): return f"s[{r}:{r+1}]"
def vr(r, n): return f"v[{r}:{r+n-1}]" if n > 1 else f"v{r}"
XOR1, XOR2, ROR4, ROR8 = "quad_perm:[1,0,3,2]", "quad_perm:[2,3,0,1]", "row_ror:4", "row_ror:8"
DM = "row_mask:0xf bank_mask:0xf"

class Gen(Asm):
    def __init__(self, stamps=False, opts=None):
        super().__init__()
        self.stamps = stamps
        self.o = opts or {}
        self.uid = 0
    def lab(self, base):
        self.uid += 1
        return f"L_{base}_{self.uid}"
    def stamp(self, idx):
        if self.stamps:
            self(f"s_memrealtime {sp(sSTAMP + 2 * idx)}")
    def dump_stamps(self, n, tmpv):
        if not self.stamps: return
        if self.o.get("dbgst", 0) == 2:
            if n <= 10: return
            L = self.lab("nodbg")
            self(f"s_cmp_lg_u32 s2, {self.o.get('dbgwg', 0)}\n s_cbranch_scc1 {L}\n s_cmp_lg_u32 s{sWAVE}, 0\n s_cbranch_scc1 {L}")
            self(f"s_waitcnt lgkmcnt(0)\n s_mov_b64 exec, 1\n v_mov_b32 v{tmpv}, 0")
            for k, i in enumerate((1, 2, 3, 4, 5, 6, 7, 8, 9, 10, 11, 12, 13, 15, 16, 18)):
                self(f"s_sub_u32 s{sTMP}, s{sSTAMP+2*i}, s{sSTAMP}\n v_mov_b32 v{tmpv+1}, s{sTMP}\n global_store_dword v{tmpv}, v{tmpv+1}, {sp(sDBG)} offset:{4*k}\n s_nop 1")
            self.label(L)
            return
        self(f"""s_waitcnt lgkmcnt(0)
        s_lshl_b32 s{sTMP}, s2, 4
        s_add_u32 s{sTMP}, s{sTMP}, s{sWAVE}
        s_lshl_b32 s{sTMP}, s{sTMP}, 7
        s_add_u32 s{sTMP}, s{sTMP}, {WS_STAMP}
        s_mov_b64 exec, 1
        v_mov_b32 v{tmpv}, s{sTMP}""")
        for i in range(n):
            self(f"v_mov_b32 v{tmpv+1}, s{sSTAMP+2*i}\n global_store_dword v{tmpv}, v{tmpv+1}, {sp(sWS)} offset:{4*i}\n s_nop 1")
    def full(self): self(f"s_mov_b64 exec, {sp(sFULL)}")
    def mask(self, lo, hi): self(f"s_and_b32 exec_lo, s{sFULL}, {lo}\n s_and_b32 exec_hi, s{sFULL+1}, {hi}")
    def guard(self, fn):
        L = self.lab("grd")
        self(f"s_cbranch_execz {L}")
        fn()
        self.label(L)
    def gbarrier(self):
        self("s_waitcnt lgkmcnt(0)")
        self.guard(lambda: self("s_barrier"))
    def dpp(self, op, regs, ctrls):
        n = len(regs)
        for ctrl in ctrls:
            if n < 3: self(f"s_nop {2 - n}" if n < 2 else "s_nop 0")
            for r in regs:
                self(f"{op}_dpp v{r}, v{r}, v{r} {ctrl} {DM}")
    def allreduce_g(self, regs, tmps, op="v_add_f32", steps=("v_permlane16_swap_b32", "v_permlane32_swap_b32")):
        n = len(regs)
        for swap in steps:
            for r, t in zip(regs, tmps):
                self(f"v_mov_b32 v{t}, v{r}")
            self("s_nop 1" if n < 2 else "s_nop 0")
            for r, t in zip(regs, tmps):
                self(f"{swap} v{r}, v{t}")
            self("s_nop 1" if n < 2 else "s_nop 0")
            for r, t in zip(regs, tmps):
                self(f"{op} v{r}, v{r}, v{t}")
    def tag(self, dst, src, vN):
        for i in range(4):
            self(f"v_perm_b32 v{dst+i}, v{src+i}, v{vN}, s{sSEL[i]}")
    def check(self, grans, acc):
        for gi, gbase in enumerate(grans):
            for i in range(4):
                if gi == 0:
                    self(f"v_xor_b32 v{acc+i}, s{sT[i]}, v{gbase+i}")
                else:
                    self(f"v_bitop3_b32 v{acc+i}, v{gbase+i}, s{sT[i]}, v{acc+i} bitop3:0xbe")
        self(f"v_or3_b32 v{acc}, v{acc}, v{acc+1}, v{acc+2}")
        self(f"v_or_b32 v{acc}, v{acc}, v{acc+3}")
        self(f"v_and_b32 v{acc}, 0xff, v{acc}")
        self(f"v_cmp_ne_u32 vcc, 0, v{acc}")
    def spin(self, name, issue, grans, acc, waitstr="s_waitcnt vmcnt(0)", sleep=0):
        L = self.lab(name); Lok = self.lab(name + "ok")
        self(f"s_mov_b32 s{sSPIN}, 0")
        self.label(L)
        self.guard(issue)
        self.guard(lambda: self(waitstr))
        self.check(grans, acc)
        self("s_nop 0")
        self(f"s_cbranch_vccz {Lok}")
        self(f"s_add_u32 s{sSPIN}, s{sSPIN}, 1")
        if sleep: self(f"s_sleep {sleep}")
        self(f"s_cmp_lt_u32 s{sSPIN}, {SPIN_LIMIT}")
        self(f"s_cbranch_scc1 {L}")
        self("s_branch L_abort")
        self.label(Lok)
    def pspin(self, name, load, sets, acc, dst=None, ncopy=4, sleep=0, thr=0, stag=0):
        L = self.lab(name); Lok = self.lab(name + "ok")
        oks = [self.lab(name + f"k{i}") for i in range(3)]
        self(f"s_mov_b32 s{sSPIN}, 0")
        if stag:
            self.guard(lambda: (load(sets[0]), self(f"s_sleep {stag}"), load(sets[1]), self(f"s_sleep {stag}")))
        else:
            self.guard(lambda: (load(sets[0]), load(sets[1])))
        self.label(L)
        for k in range(3):
            self.guard(lambda k=k: (load(sets[(k + 2) % 3]), self("s_waitcnt vmcnt(2)")))
            self.check([sets[k]], acc)
            if thr:
                self(f"s_nop 0\n s_bcnt1_i32_b64 s{sTMP}, vcc\n s_cmp_le_u32 s{sTMP}, {thr}\n s_cbranch_scc1 {oks[k]}")
            else:
                self("s_nop 0")
                self(f"s_cbranch_vccz {oks[k]}")
            if sleep: self(f"s_sleep {sleep}")
        self(f"s_add_u32 s{sSPIN}, s{sSPIN}, 1")
        self(f"s_cmp_lt_u32 s{sSPIN}, {SPIN_LIMIT}")
        self(f"s_cbranch_scc1 {L}")
        self("s_branch L_abort")
        for k in range(3):
            self.label(oks[k])
            if dst is not None and sets[k] != dst:
                for t in range(ncopy): self(f"v_mov_b32 v{dst+t}, v{sets[k]+t}")
            if k < 2: self(f"s_branch {Lok}")
        self.label(Lok)
    def ldswait(self, name, vaddr, vtmp, off, count, sleep=2):
        L = self.lab(name); Lok = self.lab(name + "ok")
        self(f"""
        s_mov_b32 s{sSPIN}, 0
        s_cbranch_execz {Lok}
        {L}:
        ds_read_b32 v{vtmp}, v{vaddr} offset:{off}
        s_waitcnt lgkmcnt(0)
        v_readfirstlane_b32 s{sTMP}, v{vtmp}
        s_cmp_ge_u32 s{sTMP}, {count}
        s_cbranch_scc1 {Lok}
        s_add_u32 s{sSPIN}, s{sSPIN}, 1""")
        if sleep: self(f"s_sleep {sleep}")
        self(f"""
        s_cmp_lt_u32 s{sSPIN}, 400000
        s_cbranch_scc1 {L}
        s_branch L_abort
        {Lok}:""")
    def perm_unit(self, raw, T):
        for t in range(4):
            for par, sel in ((0, sPLO), (1, sPHI)):
                j = 2 * t + par
                for q in range(4):
                    self(f"v_perm_b32 v{T + 4*j + q}, v{raw + 4*(2*q+1) + t}, v{raw + 4*(2*q) + t}, s{sel}")
    def wload(self, dst, sbase, voff, rowfn, rs, nt=True):
        prev = 0
        for i in range(8):
            d = rowfn(i) - prev
            if d > 0:
                self(f"s_add_u32 s{sbase}, s{sbase}, {d*rs}\n s_addc_u32 s{sbase+1}, s{sbase+1}, 0")
            elif d < 0:
                self(f"s_sub_u32 s{sbase}, s{sbase}, {-d*rs}\n s_subb_u32 s{sbase+1}, s{sbase+1}, 0")
            prev = rowfn(i)
            self(f"global_load_dwordx4 {vr(dst+4*i, 4)}, v{voff}, {sp(sbase)}" + (" nt" if nt else ""))
    def mfma8(self, D, AOP, T):
        for j in range(8):
            self(f"v_mfma_f32_16x16x32_bf16 {vr(D+4*j,4)}, {vr(AOP,4)}, {vr(T+4*j,4)}, 0")
    def select(self, X, D, r):
        for jj in range(4):
            self(f"v_cndmask_b32 v{X+jj}, v{D+4*jj+r}, v{D+4*(4+jj)+r}, {sp(sMHI)}")
    def nonce_from(self, vN):
        self(f"""
        v_readfirstlane_b32 s{sNONCE}, v{vN}
        s_add_u32 s{sNONCE}, s{sNONCE}, 0x01010101
        s_or_b32 s{sNONCE}, s{sNONCE}, 1
        s_mov_b32 s{sT[0]}, s{sNONCE}
        s_lshr_b32 s{sT[1]}, s{sNONCE}, 8
        s_lshr_b32 s{sT[2]}, s{sNONCE}, 16
        s_lshr_b32 s{sT[3]}, s{sNONCE}, 24
        v_mov_b32 v{vN}, s{sNONCE}
        """)

STD_ROW = lambda i: 16 * (i // 4) + (i % 4)
WO_ROW = lambda i: 8 * (i % 4) + (i // 4)

def reduce4(a, R, X, vN):
    for t in (0, 2):
        a(f"v_pk_add_f32 {vr(R+t,2)}, {vr(R+t,2)}, {vr(R+4+t,2)}\n v_pk_add_f32 {vr(R+8+t,2)}, {vr(R+8+t,2)}, {vr(R+12+t,2)}")
    for t in (0, 2):
        a(f"v_pk_add_f32 {vr(R+t,2)}, {vr(R+t,2)}, {vr(R+8+t,2)}")
    a.tag(X, R, vN)

def build(stamps=False, **o):
    a = Gen(stamps, o)
    a(f"""
    s_cmp_ge_u32 s2, 256
    s_cbranch_scc1 L_end""")
    a.stamp(0)
    a(f"""
    s_load_dwordx8 s[4:11], s[0:1], 0
    s_load_dwordx2 s[12:13], s[0:1], 32
    s_load_dwordx4 s[16:19], s[0:1], 48
    s_load_dwordx4 s[20:23], s[0:1], 64
    s_load_dwordx2 s[24:25], s[0:1], 80
    v_lshrrev_b32 v1, 6, v0
    v_and_b32 v0, 63, v0
    s_mov_b32 s{sPLO}, 0x05040100
    v_readfirstlane_b32 s{sWAVE}, v1
    s_mov_b32 s{sPHI}, 0x07060302
    s_mov_b32 s{sSEL[0]}, 0x07060500
    s_mov_b32 s{sSEL[1]}, 0x07060501
    s_mov_b32 s{sSEL[2]}, 0x07060502
    s_mov_b32 s{sSEL[3]}, 0x07060503
    s_mov_b64 {sp(sFULL)}, -1
    v_lshrrev_b32 v2, 4, v0            ; g
    v_and_b32 v3, 15, v0               ; m / c
    s_cmp_ge_u32 s{sWAVE}, 4
    s_cbranch_scc1 L_A
    """)
    gen_G(a)
    gen_A(a)
    a("""
    L_abort:
    L_end:
    s_endpgm
    """)
    return kernel_wrap(a.text(), 256, 768, LDS_BYTES, 168)

def gen_G(a):
    o = a.o
    vLane, vG, vM, vB, vN = 0, 2, 3, 4, 6
    vBG = 1
    vPP = 5
    vA0, vA1, vA2 = 7, 8, 9
    vPubH = 10
    vXW = 11
    vXR = vPP
    XR = 12
    AOP = 16
    ACC = 20
    RAWA, RAWB, T, GA = 24, 56, 88, 120
    u = sU
    sKS, sHQ, sP, sBA, sHKV, sFC2, sH, sCC = 52, 53, 54, 55, 56, 57, 58, 59
    a(f"""
    ; ---------------- G waves ----------------
    s_setprio 3
    s_mov_b32 s{u}, s{sWAVE}
    v_bfe_u32 v{vB}, v{vM}, 2, 1
    v_and_b32 v{vPP}, 3, v{vM}
    v_lshrrev_b32 v{vA0}, 3, v{vM}
    v_lshl_or_b32 v{vPP}, v{vA0}, 2, v{vPP}
    s_and_b32 s{sKS}, s2, {6 if o.get("qy", 0) == 1 else 7}
    s_lshr_b32 s{sHQ}, s2, 3
    v_mov_b32 v{vA0}, 0
    v_lshl_add_u32 v{vA1}, v{vPP}, 2, v{vG}
    v_lshlrev_b32 v{vA1}, 4, v{vA1}
    v_lshl_add_u32 v{vA1}, v{vB}, 11, v{vA1}
    s_lshl_b32 s{sTMP}, s{sKS}, 8
    s_lshl_b32 s{sTMP2}, s{u}, 6
    s_add_u32 s{sTMP}, s{sTMP}, s{sTMP2}
    v_lshlrev_b32 v{vA2}, 3, v{vG}
    v_lshl_add_u32 v{vA2}, v{vB}, 11, v{vA2}
    v_add_u32 v{vA2}, s{sTMP}, v{vA2}
    s_lshl_b32 s{sTMP}, s{sKS}, 7
    s_lshl_b32 s{sTMP2}, s{u}, 5
    s_add_u32 s{sTMP}, s{sTMP}, s{sTMP2}
    s_lshl_b32 s{sTMP}, s{sTMP}, 13          ; *8192
    s_lshl_b32 s{sTMP2}, s{sHQ}, 8
    s_add_u32 s{sTMP}, s{sTMP}, s{sTMP2}
    v_lshlrev_b32 v{vPubH}, 15, v{vG}          ; 4g*8192
    v_lshl_add_u32 v{vPubH}, v{vM}, 4, v{vPubH}
    s_waitcnt lgkmcnt(0)
    s_add_u32 s{sB0}, s{sWQ}, s{sTMP}
    s_addc_u32 s{sB0+1}, s{sWQ+1}, 0
    global_load_dword v{vN}, v{vA0}, {sp(sWS)} sc1
    """)
    qy = o.get("qy", 0)
    XR2, AOP2 = GA + 16, GA + 20
    sDBL = 57
    qlim = o.get("qlim", 128)
    qsk = 1 if o.get("xpar", 1) else 0
    if qy == 1: a(f"s_bitcmp1_b32 s2, 0\n s_cbranch_scc{qsk} L_qx1")
    if qy == 2:
        a(f"""
        s_and_b32 s{sDBL}, s2, 1
        s_add_u32 s{sDBL}, s{sDBL}, 1
        s_cmp_lt_u32 s2, {qlim}
        s_cselect_b32 s{sDBL}, s{sDBL}, 0
        s_cmp_eq_u32 s{sDBL}, 2
        s_cbranch_scc1 L_qx1""")
    if qy == 3:
        a(f"""
        s_and_b32 s{sDBL}, s2, 1
        s_add_u32 s{sDBL}, s{sDBL}, 1
        s_cmp_lt_u32 s{u}, {o.get("qun", 2)}
        s_cselect_b32 s{sDBL}, s{sDBL}, 0
        s_cmp_eq_u32 s{sDBL}, 2
        s_cbranch_scc1 L_qx1""")
    def ifdbl(fn, els=None):
        if qy == 1: fn(); return
        L1, L2 = a.lab("nd"), a.lab("nd")
        a(f"s_cmp_eq_u32 s{sDBL}, 1\n s_cbranch_scc0 {L1}")
        fn()
        if els: a(f"s_branch {L2}")
        a.label(L1)
        if els:
            els()
            a.label(L2)
    for i in range(4):
        a(f"global_load_dwordx4 {vr(GA+4*i,4)}, v{vA1}, {sp(sX)} offset:{i*512}")
    a(f"global_load_dwordx2 {vr(XR,2)}, v{vA2}, {sp(sX)}")
    a(f"global_load_dwordx2 {vr(XR+2,2)}, v{vA2}, {sp(sX)} offset:32")
    if qy:
        ifdbl(lambda: a(f"global_load_dwordx2 {vr(XR2,2)}, v{vA2}, {sp(sX)} offset:256\n global_load_dwordx2 {vr(XR2+2,2)}, v{vA2}, {sp(sX)} offset:288"))
    if o.get("cpf", 0):
        a(f"""
        s_getpc_b64 {sp(sB1)}
        L_pc_here:
        s_sub_u32 s{sB1}, s{sB1}, L_pc_here-{KNAME}
        s_subb_u32 s{sB1+1}, s{sB1+1}, 0
        s_lshl_b32 s{sTMP}, s{u}, 13
        v_lshlrev_b32 v{vA0}, 7, v{vLane}
        v_add_u32 v{vA0}, s{sTMP}, v{vA0}
        v_min_u32 v{vA0}, L_end-{KNAME}, v{vA0}
        global_load_dword v{GA+44}, v{vA0}, {sp(sB1)}
        """)
    tch = o.get("touch", 0)
    if tch:
        a(f"""
        s_lshr_b32 s{sTMP2}, s{sKS}, 1               ; xi
        v_mov_b32 v{vA0}, 0x3f0000
        global_load_dword v{GA+44}, v{vA0}, {sp(sWS)}
        v_mov_b32 v{vA0}, 0
        """)
        if tch & 2: a(f"global_load_dword v{GA+45}, v{vA0}, {sp(sOUT)}")
        if tch & 4:
            a(f"""
            s_lshl_b32 s{sTMP}, s{sTMP2}, 3
            s_and_b32 s{sB1}, s{sHQ}, 7
            s_add_u32 s{sTMP}, s{sTMP}, s{sB1}
            s_lshl_b32 s{sTMP}, s{sTMP}, 18
            v_mov_b32 v{vA0}, s{sTMP}
            global_load_dword v{GA+46}, v{vA0}, {sp(sWO)}
            s_lshl_b32 s{sTMP}, s{sTMP2}, 1
            s_and_b32 s{sB1}, s{sHQ}, 1
            s_add_u32 s{sTMP}, s{sTMP}, s{sB1}
            s_mul_i32 s{sTMP}, s{sTMP}, {128*7168}
            v_mov_b32 v{vA0}, s{sTMP}
            global_load_dword v{GA+47}, v{vA0}, {sp(sW1)}
            s_mul_i32 s{sTMP}, s{sTMP2}, 7
            s_lshr_b32 s{sB1}, s{sHQ}, 2
            s_add_u32 s{sTMP}, s{sTMP}, s{sB1}
            s_min_u32 s{sTMP}, s{sTMP}, 27
            s_lshl_b32 s{sTMP}, s{sTMP}, 18
            v_mov_b32 v{vA0}, s{sTMP}
            global_load_dword v{GA+43}, v{vA0}, {sp(sW2)}
            """)
    ntouch = (1 + (1 if tch & 2 else 0) + (3 if tch & 4 else 0)) if tch else 0
    if qy:
        a(f"s_add_u32 s{sB1}, s{sB0}, {128*8192}\n s_addc_u32 s{sB1+1}, s{sB0+1}, 0")
    a.wload(RAWA, sB0, vPubH, STD_ROW, 8192)
    if qy:
        ifdbl(lambda: a.wload(RAWB, sB1, vPubH, STD_ROW, 8192))
        a("L_qx1:")
    a(f"""
    s_mov_b32 s{sMHI}, 0
    s_mov_b32 s{sMHI+1}, -1
    s_mov_b32 s{sMB}, 0xf0f0f0f0
    s_mov_b32 s{sMB+1}, 0xf0f0f0f0
    s_mov_b32 s{sM1}, 0x22222222
    s_mov_b32 s{sM1+1}, 0x22222222
    v_mov_b32 v{ACC}, 0
    v_mov_b32 v{ACC+1}, 0
    v_mov_b32 v{ACC+2}, 0
    v_mov_b32 v{ACC+3}, 0
    s_lshl_b32 s{sTMP}, s{u}, 10
    v_lshl_add_u32 v{vA0}, v{vLane}, 4, s{sTMP}
    ds_write_b128 v{vA0}, {vr(ACC,4)} offset:{L_REDQ}
    v_and_b32 v{vA1}, 1, v{vLane}
    v_lshlrev_b32 v{vA1}, 4, v{vA1}
    ds_write_b128 v{vA1}, {vr(ACC,4)} offset:{L_CNT}
    s_waitcnt lgkmcnt(0)
    s_barrier        ; B0
    v_lshrrev_b32 v{vPubH}, 1, v{vG}
    v_lshl_add_u32 v{vPubH}, v{vM}, 1, v{vPubH}
    v_lshlrev_b32 v{vPubH}, 4, v{vPubH}      ; (2c+half)*16
    """)
    if qy:
        a(f"s_bitcmp1_b32 s2, 0\n s_cbranch_scc{1-qsk} L_qy2" if qy == 1 else f"s_cmp_eq_u32 s{sDBL}, 2\n s_cbranch_scc0 L_qy2")
        a("s_waitcnt vmcnt(0)")
        a.nonce_from(vN)
        if qy == 3:
            for t in range(4): a(f"v_mov_b32 v{ACC+t}, 0")
            a("s_branch L_q_tag\n L_qy2:")
        else:
            a("s_branch L_q_nored\n L_qy2:")
        ifdbl(lambda: a("s_waitcnt vmcnt(16)"), lambda: a("s_waitcnt vmcnt(8)"))
    else:
        a("s_waitcnt vmcnt(8)")
    a.stamp(1)
    a.nonce_from(vN)
    LT = T if qy else RAWB
    S0, S1, Q0, Q1, LO, HI = LT, LT+1, LT+2, LT+3, LT+4, LT+5
    for k in range(16):
        w = GA + k
        a(f"v_lshlrev_b32 v{LO}, 16, v{w}\n v_and_b32 v{HI}, 0xffff0000, v{w}")
        if k == 0:
            a(f"v_mov_b32 v{S0}, v{LO}\n v_mov_b32 v{S1}, v{HI}\n v_mul_f32 v{Q0}, v{LO}, v{LO}\n v_mul_f32 v{Q1}, v{HI}, v{HI}")
        else:
            a(f"v_add_f32 v{S0}, v{S0}, v{LO}\n v_add_f32 v{S1}, v{S1}, v{HI}\n v_fmac_f32 v{Q0}, v{LO}, v{LO}\n v_fmac_f32 v{Q1}, v{HI}, v{HI}")
    a(f"v_add_f32 v{S0}, v{S0}, v{S1}\n v_add_f32 v{S1}, v{Q0}, v{Q1}")
    a.dpp("v_add_f32", [S0, S1], (XOR1, XOR2, ROR8))
    a.allreduce_g([S0, S1], [Q0, Q1])
    MEAN, RSTD = S0, S1
    a(f"""
    v_mul_f32 v{MEAN}, 0x3a800000, v{S0}        ; /1024
    v_mul_f32 v{Q0}, 0x3a800000, v{S1}
    v_fma_f32 v{Q0}, -v{MEAN}, v{MEAN}, v{Q0}
    v_max_f32 v{Q0}, 0, v{Q0}
    v_add_f32 v{Q0}, 0x3727c5ac, v{Q0}           ; + 1e-5
    v_rsq_f32 v{RSTD}, v{Q0}
    """)
    def xop(xr, aop, XF):
        for q in range(4):
            a(f"v_lshlrev_b32 v{XF+2*q}, 16, v{xr+q}\n v_and_b32 v{XF+2*q+1}, 0xffff0000, v{xr+q}")
        for e in range(8):
            a(f"v_sub_f32 v{XF+e}, v{XF+e}, v{MEAN}")
        for e in range(8):
            a(f"v_mul_f32 v{XF+e}, v{XF+e}, v{RSTD}")
        for q in range(4):
            a(f"v_cvt_pk_bf16_f32 v{aop+q}, v{XF+2*q}, v{XF+2*q+1}")
    xop(XR, AOP, LT + 8)
    def q_double():
        xop(XR2, AOP2, LT + 16)
        a("s_waitcnt vmcnt(8)")
        a.perm_unit(RAWA, T)
        a("s_waitcnt vmcnt(0)")
        a.stamp(2)
        a.perm_unit(RAWB, RAWA)
        a("s_nop 1")
        a.mfma8(RAWB, AOP, T)
        for j in range(8):
            a(f"v_mfma_f32_16x16x32_bf16 {vr(RAWB+4*j,4)}, {vr(AOP2,4)}, {vr(RAWA+4*j,4)}, {vr(RAWB+4*j,4)}")
    def q_single():
        a("s_waitcnt vmcnt(0)")
        a.stamp(2)
        a.perm_unit(RAWA, T)
        a("s_nop 1")
        a.mfma8(RAWB, AOP, T)
    if qy: ifdbl(q_double, q_single)
    else: q_single()
    a("s_nop 7")
    X = ACC
    a.select(X, RAWB, 0)
    if qy == 3: a("L_q_tag:")
    a.tag(X, X, vN)
    a(f"""
    ds_write_b128 v{vA0}, {vr(X,4)} offset:{L_REDQ}
    s_cmp_lg_u32 s{u}, 0
    s_cbranch_scc1 L_q_nored
    v_lshlrev_b32 v{vA0}, 4, v{vLane}
    """)
    def iss():
        for w in range(4):
            a(f"ds_read_b128 {vr(GA+4*w,4)}, v{vA0} offset:{L_REDQ + w*1024}")
    a.spin("redq", iss, [GA, GA+4, GA+8, GA+12], ACC, waitstr="s_waitcnt lgkmcnt(0)")
    reduce4(a, GA, X, vN)
    a(f"""
    s_lshl_b32 s{sTMP}, s{sHQ}, 13
    s_lshl_b32 s{sTMP2}, s{sKS}, {8 if qy == 1 else 9}
    s_add_u32 s{sTMP}, s{sTMP}, s{sTMP2}
    s_add_u32 s{sTMP}, s{sTMP}, {WS_QP}
    v_and_b32 v{vA0}, 1, v{vG}
    v_lshl_add_u32 v{vA0}, v{vA0}, 12, v{vPubH}
    v_add_u32 v{vA0}, s{sTMP}, v{vA0}
    global_store_dwordx4 v{vA0}, {vr(X,4)}, {sp(sWS)} sc1
    """)
    if qy == 2:
        def zrow():
            for t in range(4): a(f"v_mov_b32 v{GA+t}, 0")
            a.tag(GA+4, GA, vN)
            a(f"global_store_dwordx4 v{vA0}, {vr(GA+4,4)}, {sp(sWS)} offset:512 sc1")
        ifdbl(zrow)
    a("L_q_nored:")
    a.stamp(3)
    sXI, sSLOT, sCCP, sKSB, sFCP = 54, 55, 56, 57, 59
    sHA, sFC = 58, 53
    dx = o.get("dx", 0)
    if dx:
        xres_code = f"""v_and_b32 v{vA0}, 1, v{vM}
    v_lshl_add_u32 v{vA2}, v{vA0}, 2, v{vA2}
    v_bfe_u32 v{vA0}, v{vM}, 1, 1
    v_lshl_add_u32 v{vA2}, v{vA0}, 5, v{vA2}
    global_load_dword v{XR}, v{vA2}, {sp(sX)}"""
        xr_code = f"""v_mul_u32_u24 v{vA1}, 544, v{vB}
    v_lshl_add_u32 v{vXR}, v{vG}, 4, v{vA1}
    v_and_b32 v{vA1}, 1, v{vM}
    v_lshl_add_u32 v{vXR}, v{vA1}, 3, v{vXR}
    v_bfe_u32 v{vA1}, v{vM}, 1, 1
    v_lshl_add_u32 v{vXR}, v{vA1}, 6, v{vXR}"""
    else:
        xres_code = f"""global_load_dwordx2 {vr(XR,2)}, v{vA2}, {sp(sX)}
    global_load_dwordx2 {vr(XR+2,2)}, v{vA2}, {sp(sX)} offset:32"""
        xr_code = ""
    a(f"""
    s_and_b32 s{sTMP}, s2, 7
    s_lshr_b32 s{sB1}, s{sTMP}, 2
    s_and_b32 s{sB1+1}, s{sTMP}, 3
    {'s_and_b32 s%d, s%d, 3' % (sXI, sTMP) if o.get("xmap", 0) == 2 else 's_lshr_b32 s%d, s%d, 1' % (sXI, sTMP)}
    s_lshr_b32 s{sSLOT}, s2, 3
    s_lshl_b32 s{sHA}, s{sXI}, 3
    s_and_b32 s{sTMP}, s{sSLOT}, 7
    s_add_u32 s{sHA}, s{sHA}, s{sTMP}
    s_and_b32 s{sTMP}, s{sSLOT}, 1
    s_lshl_b32 s{sKSB}, s{sXI}, 1
    s_add_u32 s{sKSB}, s{sKSB}, s{sTMP}
    s_lshr_b32 s{sFCP}, s{sSLOT}, 1
    s_lshr_b32 s{sTMP}, s{sSLOT}, 2
    s_mul_i32 s{sFC}, s{sXI}, 7
    s_add_u32 s{sFC}, s{sFC}, s{sTMP}
    s_lshl_b32 s{sTMP}, s{sKSB}, 8
    s_lshl_b32 s{sTMP2}, s{u}, 6
    s_add_u32 s{sTMP}, s{sTMP}, s{sTMP2}
    v_lshlrev_b32 v{vA2}, 3, v{vG}
    v_lshl_add_u32 v{vA2}, v{vB}, 11, v{vA2}
    v_add_u32 v{vA2}, s{sTMP}, v{vA2}
    {xres_code}
    v_and_b32 v{vBG}, 31, v{vLane}
    v_lshlrev_b32 v{vBG}, 4, v{vBG}             ; gi*16
    v_lshrrev_b32 v{vA0}, 5, v{vLane}
    v_mul_u32_u24 v{vA0}, 544, v{vA0}
    v_add_u32 v{vXW}, v{vA0}, v{vBG}
    v_and_b32 v{vA0}, 3, v{vM}
    v_mul_u32_u24 v{vA0}, 1088, v{vA0}
    v_mul_u32_u24 v{vA1}, 544, v{vB}
    v_add_u32 v{vA0}, v{vA0}, v{vA1}
    v_lshl_add_u32 v{vXR}, v{vG}, 4, v{vA0}
    {xr_code}
    s_mul_i32 s{sTMP}, s{u}, 1088
    v_add_u32 v{vXW}, s{sTMP}, v{vXW}
    s_lshl_b32 s{sTMP}, s{u}, 7
    v_add_u32 v{vXR}, s{sTMP}, v{vXR}
    """)
    if o.get("dry", 1):
        a(f"""
        s_mov_b64 {sp(sFULL)}, 0
        s_mov_b64 exec, 0
        s_branch L_tail
        L_dry_done:
        s_mov_b64 {sp(sFULL)}, -1
        s_mov_b64 exec, -1
        s_setprio 3
        """)
    a.stamp(4)
    QG = RAWB
    a(f"""
    s_and_b32 s{sTMP}, s2, 3                   ; hkv
    s_lshl_b32 s{sTMP}, s{sTMP}, 3
    s_lshl_b32 s{sTMP2}, s{u}, 1
    s_add_u32 s{sTMP}, s{sTMP}, s{sTMP2}
    s_lshl_b32 s{sTMP}, s{sTMP}, 1
    s_bfe_u32 s{sTMP2}, s2, 0x10002            ; b = (wg>>2)&1
    s_add_u32 s{sTMP}, s{sTMP}, s{sTMP2}
    s_lshl_b32 s{sTMP}, s{sTMP}, 12
    s_add_u32 s{sTMP}, s{sTMP}, {WS_QP}
    s_add_u32 s{sWQ}, s{sWS}, s{sTMP}
    s_addc_u32 s{sWQ+1}, s{sWS+1}, 0
    s_add_u32 s{sB1}, s{sWQ}, 8192
    s_addc_u32 s{sB1+1}, s{sWQ+1}, 0
    v_lshlrev_b32 v{vA2}, 4, v{vLane}
    """)
    nq = 2 if qy == 1 else 4
    def issq():
        for hh, sb in ((0, sWQ), (1, sB1)):
            for i in range(nq):
                a(f"global_load_dwordx4 {vr(QG+16*hh+4*i,4)}, v{vA2}, {sp(sb)} offset:{i*1024} sc1")
    a.spin("qg", issq, [QG+16*hh+4*i for hh in range(2) for i in range(nq)], ACC, sleep=o.get("qsleep", 4))
    for hh in range(2):
        base = QG + 16*hh
        if qy == 1:
            for t in range(4):
                a(f"v_add_f32 v{base+t}, v{base+t}, v{base+4+t}")
            continue
        for t in range(4):
            a(f"v_add_f32 v{base+t}, v{base+t}, v{base+4+t}\n v_add_f32 v{base+8+t}, v{base+8+t}, v{base+12+t}")
        for t in range(4):
            a(f"v_add_f32 v{base+t}, v{base+t}, v{base+8+t}")
    a("s_nop 1")
    for t in range(4):
        a(f"v_permlane32_swap_b32 v{QG+t}, v{QG+16+t}")
    a("s_nop 1")
    for t in range(4):
        a(f"v_add_f32 v{QG+t}, v{QG+t}, v{QG+16+t}")
    a(f"""
    v_cvt_pk_bf16_f32 v{QG+4}, v{QG}, v{QG+1}
    v_cvt_pk_bf16_f32 v{QG+5}, v{QG+2}, v{QG+3}
    v_lshrrev_b32 v{vA0}, 5, v{vLane}            ; kq
    s_lshl_b32 s{sTMP}, s{u}, 1
    v_add_u32 v{vA0}, s{sTMP}, v{vA0}            ; head
    v_mul_u32_u24 v{vA0}, 272, v{vA0}
    v_and_b32 v{vA1}, 31, v{vLane}
    v_lshl_add_u32 v{vA0}, v{vA1}, 3, v{vA0}
    ds_write_b64 v{vA0}, {vr(QG+4,2)} offset:{L_Q}
    v_mov_b32 v{vA1}, 0
    v_mov_b32 v{vA2}, 1
    s_waitcnt lgkmcnt(0)
    s_mov_b64 exec, 1
    ds_add_u32 v{vA1}, v{vA2} offset:{L_CNT}
    s_mov_b64 exec, -1
    """)
    a.stamp(5)
    a(f"s_setprio {o.get('gprio', 1)}")

    def wunit(dst, sptr, voffn, rowfn, rs):
        prev = 0
        for i in range(8):
            d = rowfn(i) - prev
            if d > 0: a(f"s_add_u32 s{sptr}, s{sptr}, {d*rs}\n s_addc_u32 s{sptr+1}, s{sptr+1}, 0")
            elif d < 0: a(f"s_sub_u32 s{sptr}, s{sptr}, {-d*rs}\n s_subb_u32 s{sptr+1}, s{sptr+1}, 0")
            prev = rowfn(i)
            a(f"global_load_dwordx4 {vr(dst+4*i, 4)}, v{voffn}, {sp(sptr)} nt")
    def wpair(dst0, dst1, sptr_src, rowbase_code, rs, gshift_code, rowfn):
        a(rowbase_code)
        a(f"""
        s_add_u32 s{sB0}, s{sptr_src}, s{sTMP}
        s_addc_u32 s{sB0+1}, s{sptr_src+1}, 0
        s_add_u32 s{sR1}, s{sB0}, 256
        s_addc_u32 s{sR1+1}, s{sB0+1}, 0""")
        a(gshift_code)
        a.guard(lambda: (wunit(dst0, sB0, vA1, rowfn, rs), wunit(dst1, sR1, vA1, rowfn, rs)))
    sR1 = 6
    def sweep(name, issue, grans, shadow, sleep, prog=None):
        L = a.lab(name); Lc = a.lab(name + "c"); Lok = a.lab(name + "ok")
        a(f"s_mov_b32 s{sSPIN}, 0")
        a.guard(issue)
        shadow()
        a(f"s_branch {Lc}")
        a.label(L)
        a.guard(issue)
        a.label(Lc)
        if prog is None:
            a.guard(lambda: a("s_waitcnt vmcnt(0)"))
            a.check(grans, ACC)
        else:
            n = len(grans)
            for gi, gbase in enumerate(grans):
                a.guard(lambda gi=gi: a(f"s_waitcnt vmcnt({n-1-gi})"))
                for i in range(4):
                    if gi == 0: a(f"v_xor_b32 v{ACC+i}, s{sT[i]}, v{gbase+i}")
                    else: a(f"v_bitop3_b32 v{ACC+i}, v{gbase+i}, s{sT[i]}, v{ACC+i} bitop3:0xbe")
                prog(gi)
            a(f"v_or3_b32 v{ACC}, v{ACC}, v{ACC+1}, v{ACC+2}\n v_or_b32 v{ACC}, v{ACC}, v{ACC+3}\n v_and_b32 v{ACC}, 0xff, v{ACC}\n v_cmp_ne_u32 vcc, 0, v{ACC}")
        a("s_nop 0")
        a(f"s_cbranch_vccz {Lok}")
        a(f"s_add_u32 s{sSPIN}, s{sSPIN}, 1")
        if sleep: a(f"s_sleep {sleep}")
        a(f"s_cmp_lt_u32 s{sSPIN}, {SPIN_LIMIT}")
        a(f"s_cbranch_scc1 {L}")
        a("s_branch L_abort")
        a.label(Lok)
    HS = [AOP, GA+40, GA+44]
    D = GA
    vals = [GA + 32 + e for e in range(8)]
    psl = o.get("psleep", 1)
    def exchange(lbuf):
        a(f"ds_write_b128 v{vXW}, {vr(GA,4)} offset:{lbuf}")
        a.gbarrier()
        a(f"""
        ds_read_b128 {vr(vals[0],4)}, v{vXR} offset:{lbuf}
        ds_read_b128 {vr(vals[4],4)}, v{vXR} offset:{lbuf + 64}
        s_waitcnt lgkmcnt(0)""")
        a.dpp("v_add_f32", vals, (XOR1, XOR2))
    def red_pub2(name, D1, lb0, lb1, addr):
        L = a.lab("nored" + name)
        R = GA + 32
        a.select(ACC, D, 0)
        a(f"ds_write_b128 v{vA0}, {vr(ACC,4)} offset:{lb0}")
        a.select(AOP, D1, 0)
        a(f"ds_write_b128 v{vA0}, {vr(AOP,4)} offset:{lb1}")
        a.gbarrier()
        a(f"""
        s_cmp_ge_u32 s{sU}, 2
        s_cbranch_scc1 {L}
        s_mul_i32 s{sTMP}, s{sU}, {lb1 - lb0}
        v_lshl_add_u32 v{vA0}, v{vLane}, 4, s{sTMP}""")
        for w in range(4):
            a(f"ds_read_b128 {vr(R+4*w,4)}, v{vA0} offset:{lb0 + w*1024}")
        addr()
        a("s_waitcnt lgkmcnt(0)")
        reduce4(a, R, ACC, vN)
        a.guard(lambda: a(f"global_store_dwordx4 v{vA0}, {vr(ACC,4)}, {sp(sWS)} sc1"))
        a.label(L)
    Y0 = GA + 20
    def dread(lbuf, areg):
        for w in range(4):
            a(f"ds_read_b64 {vr(Y0+2*w,2)}, v{areg} offset:{lbuf + w*1088}")
    def dsum():
        a(f"""
        s_waitcnt lgkmcnt(2)
        v_pk_add_f32 {vr(Y0,2)}, {vr(Y0,2)}, {vr(Y0+2,2)}
        s_waitcnt lgkmcnt(0)
        v_pk_add_f32 {vr(Y0+4,2)}, {vr(Y0+4,2)}, {vr(Y0+6,2)}
        v_pk_add_f32 {vr(Y0,2)}, {vr(Y0,2)}, {vr(Y0+4,2)}""")
    def dbcast(dst):
        a(f"v_cvt_pk_bf16_f32 v{Y0+4}, v{Y0}, v{Y0+1}\n s_nop 1")
        for q in range(4):
            a(f"v_mov_b32_dpp v{dst+q}, v{Y0+4} quad_perm:[{q},{q},{q},{q}] {DM}")
    def o_hint_setup(hreg):
        a(f"""
        s_lshl_b32 s{sTMP2}, s{hreg}, 14                ; h*32*512
        s_lshl_b32 s{sTMP}, s{u}, 12                  ; 8u*512
        s_add_u32 s{sTMP2}, s{sTMP2}, s{sTMP}
        s_add_u32 s{sTMP2}, s{sTMP2}, {WS_OP}
        s_add_u32 s{sWQ}, s{sWS}, s{sTMP2}
        s_addc_u32 s{sWQ+1}, s{sWS+1}, 0
        v_lshrrev_b32 v{vA1}, 5, v{vLane}
        v_lshl_add_u32 v{vA2}, v{vA1}, 19, v{vBG}      ; b<<19 + gi*16
        """)
        if o.get("fullhint", 0):
            a(f"""
            v_bfe_u32 v{vA0}, v{vLane}, 2, 3            ; row i = (l>>2)&7
            v_lshlrev_b32 v{vA0}, 9, v{vA0}
            v_and_b32 v{GA+30}, 3, v{vLane}
            v_lshl_add_u32 v{vA0}, v{GA+30}, 7, v{vA0}   ; + line*128
            v_lshl_add_u32 v{vA0}, v{vA1}, 19, v{vA0}    ; + b<<19   (b = l>>5)
            """)
        else:
            a(f"""
            v_bfe_u32 v{vA1}, v{vLane}, 3, 1
            v_and_b32 v{vA0}, 7, v{vLane}
            v_lshlrev_b32 v{vA0}, 9, v{vA0}
            v_lshl_add_u32 v{vA0}, v{vA1}, 19, v{vA0}
            """)
    a("L_tail:")
    a(f"""
    s_bitcmp1_b32 s2, {2 if o.get("xmap", 0) == 2 else 0}
    s_cbranch_scc{(1 if o.get("xpar", 1) else 0) if o.get("xmap", 0) == 2 else (0 if o.get("xpar", 1) else 1)} L_Y
    """)
    def load_wo(which=(0, 1)):
        code = f"""
            s_lshl_b32 s{sTMP}, s{sHA}, 7
            s_lshl_b32 s{sTMP2}, s{u}, 5
            s_add_u32 s{sTMP}, s{sTMP}, s{sTMP2}
            s_lshl_b32 s{sTMP}, s{sTMP}, 11
            s_lshr_b32 s{sTMP2}, s{sSLOT}, 3
            s_lshl_b32 s{sTMP2}, s{sTMP2}, 9
            s_add_u32 s{sTMP}, s{sTMP}, s{sTMP2}"""
        a(code)
        a(f"""
        s_add_u32 s{sB0}, s{sWO}, s{sTMP}
        s_addc_u32 s{sB0+1}, s{sWO+1}, 0
        s_add_u32 s{sR1}, s{sB0}, 256
        s_addc_u32 s{sR1+1}, s{sB0+1}, 0
        v_lshlrev_b32 v{vA1}, 12, v{vG}             ; 2g*2048
        v_lshl_add_u32 v{vA1}, v{vM}, 4, v{vA1}""")
        def body():
            if 0 in which: wunit(RAWA, sB0, vA1, WO_ROW, 2048)
            if 1 in which: wunit(RAWB, sR1, vA1, WO_ROW, 2048)
        a.guard(body)
    wop = o.get("wop", 0)
    if wop in (0, 2):
        a(f"v_mov_b32 v{vA1}, 0")
        a.ldswait("vw", vA1, vA2, L_CNT+4, 8)
        a(f"s_setprio {o.get('woprio', 0)}")
        load_wo((0, 1) if wop == 0 else (0,))
    a(f"s_setprio {o.get('gprio', 1)}")
    a.stamp(6)
    a.guard(lambda: a("s_barrier      ; B3\n s_barrier      ; B4"))
    if wop == 1: load_wo()
    if wop == 2: load_wo((1,))
    a.stamp(7)
    w2e = o.get("w2e", 0)
    def w2_units(which):
        a(f"""
        s_lshl_b32 s{sTMP}, s{sFC}, 7
        s_lshl_b32 s{sTMP2}, s{u}, 5
        s_add_u32 s{sTMP}, s{sTMP}, s{sTMP2}
        s_lshl_b32 s{sTMP}, s{sTMP}, 11
        s_and_b32 s{sTMP2}, s{sSLOT}, 3
        s_lshl_b32 s{sTMP2}, s{sTMP2}, 9
        s_add_u32 s{sTMP}, s{sTMP}, s{sTMP2}
        s_add_u32 s{sTMP}, s{sTMP}, {256*which}
        s_add_u32 s{sB0}, s{sW2}, s{sTMP}
        s_addc_u32 s{sB0+1}, s{sW2+1}, 0
        v_lshlrev_b32 v{vA1}, 13, v{vG}           ; 4g*2048
        v_lshl_add_u32 v{vA1}, v{vM}, 4, v{vA1}""")
        a.guard(lambda: wunit(RAWB if which else T, sB0, vA1, STD_ROW, 2048))
    if w2e:
        a.guard(lambda: a("s_waitcnt vmcnt(0)"))
        a.perm_unit(RAWA, T)
        a.perm_unit(RAWB, RAWA)
        Lw = a.lab("now2e")
        a(f"s_cmp_ge_u32 s{sSLOT}, 28\n s_cbranch_scc1 {Lw}")
        w2_units(1)
        a.label(Lw)
    a(f"""
    s_lshl_b32 s{sTMP}, s{sHA}, 9
    s_add_u32 s{sTMP}, s{sTMP}, {WS_ML}
    v_lshrrev_b32 v{vA1}, 5, v{vLane}             ; b
    v_lshl_add_u32 v{GA+47}, v{vA1}, 14, v{vBG}
    v_add_u32 v{GA+47}, s{sTMP}, v{GA+47}
    """)
    o_hint_setup(sHA)
    HSA = [AOP, GA+36, GA+40]
    if not o.get("fullhint", 0): a.mask("0xffff", "0")
    a.pspin("hO", lambda r: a(f"global_load_dwordx4 {vr(r,4)}, v{vA0}, {sp(sWQ)} sc1"), HSA, ACC, sleep=psl)
    a.full()
    a.stamp(8)
    MLR = GA + 32
    def issA():
        a(f"v_mov_b32 v{vA1}, v{GA+47}")
        a(f"global_load_dwordx4 {vr(MLR,4)}, v{vA1}, {sp(sWS)} sc1")
        for i in range(8):
            a(f"global_load_dwordx4 {vr(GA+4*i,4)}, v{vA2}, {sp(sWQ)} offset:{i*512} sc1")
    MM, LLr, TT = GA+44, GA+45, GA+46
    def factors():
        a(f"v_mov_b32 v{MM}, v{MLR}")
        a.dpp("v_max_f32", [MM], (XOR1, XOR2, ROR4, ROR8))
        a.allreduce_g([MM], [TT], "v_max_f32", steps=("v_permlane16_swap_b32",))
        a(f"""
        v_sub_f32 v{MM}, v{MLR}, v{MM}
        v_exp_f32 v{MM}, v{MM}
        s_nop 0
        v_mul_f32 v{LLr}, v{MM}, v{MLR+1}""")
        a.dpp("v_add_f32", [LLr], (XOR1, XOR2, ROR4, ROR8))
        a.allreduce_g([LLr], [TT], "v_add_f32", steps=("v_permlane16_swap_b32",))
        a(f"""
        v_rcp_f32 v{LLr}, v{LLr}
        s_nop 0
        v_mul_f32 v{MM}, v{MM}, v{LLr}
        s_lshl_b32 s{sTMP}, s{u}, 8
        v_lshl_add_u32 v{vA0}, v{vLane}, 2, s{sTMP}
        ds_write_b32 v{vA0}, v{MM} offset:{L_FAC}
        v_lshrrev_b32 v{vA1}, 5, v{vLane}
        s_lshl_b32 s{sTMP2}, s{u}, 5
        s_add_u32 s{sTMP}, s{sTMP}, s{sTMP2}
        v_lshl_add_u32 v{vA0}, v{vA1}, 7, s{sTMP}      ; u*256 + b*128 + 8u*4
        ds_read_b128 {vr(AOP,4)}, v{vA0} offset:{L_FAC}
        ds_read_b128 {vr(GA+40,4)}, v{vA0} offset:{L_FAC+16}
        """)
    L = a.lab("swA"); Lok = a.lab("swAok")
    a(f"s_mov_b32 s{sSPIN}, 0")
    a.guard(issA)
    if not w2e:
        a.perm_unit(RAWA, T)
        a.perm_unit(RAWB, RAWA)
    a.label(L)
    a.guard(lambda: a("s_waitcnt vmcnt(8)"))
    for t in range(4):
        a(f"v_xor_b32 v{ACC+t}, s{sT[t]}, v{MLR+t}")
    a(f"v_or3_b32 v{GA+39}, v{ACC}, v{ACC+1}, v{ACC+2}")
    a(f"v_or_b32 v{GA+39}, v{GA+39}, v{ACC+3}")
    factors()
    FACR = [AOP, AOP+1, AOP+2, AOP+3, GA+40, GA+41, GA+42, GA+43]
    progA = o.get("prog", 0) & 1
    if progA: a("s_waitcnt lgkmcnt(0)")
    else: a.guard(lambda: a("s_waitcnt vmcnt(0)"))
    for gi in range(8):
        if progA: a.guard(lambda gi=gi: a(f"s_waitcnt vmcnt({7-gi})"))
        for i in range(4):
            if gi == 0:
                a(f"v_xor_b32 v{ACC+i}, s{sT[i]}, v{GA+i}")
            else:
                a(f"v_bitop3_b32 v{ACC+i}, v{GA+4*gi+i}, s{sT[i]}, v{ACC+i} bitop3:0xbe")
        if progA:
            for t in range(4):
                if gi == 0: a(f"v_mul_f32 v{GA+t}, v{GA+t}, v{FACR[0]}")
                else: a(f"v_fmac_f32 v{GA+t}, v{GA+4*gi+t}, v{FACR[gi]}")
    a(f"v_or3_b32 v{ACC}, v{ACC}, v{ACC+1}, v{ACC+2}\n v_or3_b32 v{ACC}, v{ACC}, v{ACC+3}, v{GA+39}\n v_and_b32 v{ACC}, 0xff, v{ACC}\n v_cmp_ne_u32 vcc, 0, v{ACC}")
    a(f"s_nop 0\n s_cbranch_vccz {Lok}")
    a(f"s_add_u32 s{sSPIN}, s{sSPIN}, 1\n s_sleep 1\n s_waitcnt lgkmcnt(0)")
    a.guard(issA)
    a(f"s_cmp_lt_u32 s{sSPIN}, {SPIN_LIMIT}\n s_cbranch_scc1 {L}\n s_branch L_abort")
    a.label(Lok)
    a.stamp(9)
    if not progA:
        a("s_waitcnt lgkmcnt(0)")
        for t in range(4):
            a(f"v_mul_f32 v{GA+t}, v{GA+t}, v{FACR[0]}")
        for i in range(1, 8):
            for t in range(4):
                a(f"v_fmac_f32 v{GA+t}, v{GA+4*i+t}, v{FACR[i]}")
    if dx:
        a(f"ds_write_b128 v{vXW}, {vr(GA,4)} offset:{L_XA_A}")
        a.gbarrier()
        dread(L_XA_A, vXR)
        dsum()
        dbcast(AOP)
    else:
        exchange(L_XA_A)
        for q in range(4):
            a(f"v_cvt_pk_bf16_f32 v{AOP+q}, v{vals[2*q]}, v{vals[2*q+1]}")
    a("s_nop 1")
    DA1 = T if w2e else RAWB
    a.mfma8(D, AOP, T)
    a.mfma8(DA1, AOP, RAWA)
    a(f"s_lshl_b32 s{sTMP}, s{sU}, 10\n v_lshl_add_u32 v{vA0}, v{vLane}, 4, s{sTMP}")
    red_pub2("a", DA1, L_RA0, L_RA1, lambda: a(f"""
        s_lshr_b32 s{sTMP}, s{sSLOT}, 3
        s_lshl_b32 s{sTMP}, s{sTMP}, 1
        s_add_u32 s{sTMP}, s{sTMP}, s{sU}          ; cc
        s_lshl_b32 s{sTMP}, s{sTMP}, 6
        s_add_u32 s{sTMP}, s{sTMP}, s{sHA}
        s_lshl_b32 s{sTMP}, s{sTMP}, 9
        s_add_u32 s{sTMP}, s{sTMP}, {WS_AP}
        v_and_b32 v{vA0}, 1, v{vG}
        v_lshl_add_u32 v{vA0}, v{vA0}, 14, v{vPubH}
        v_add_u32 v{vA0}, s{sTMP}, v{vA0}"""))
    a.stamp(10)
    a.gbarrier()
    a(f"""
    s_cmp_ge_u32 s{sSLOT}, 28
    s_cbranch_scc1 L_skipC1
    """)
    if w2e: w2_units(0)
    else:
        wpair(T, RAWB, sW2, f"""
            s_lshl_b32 s{sTMP}, s{sFC}, 7
            s_lshl_b32 s{sTMP2}, s{u}, 5
            s_add_u32 s{sTMP}, s{sTMP}, s{sTMP2}
            s_lshl_b32 s{sTMP}, s{sTMP}, 11
            s_and_b32 s{sTMP2}, s{sSLOT}, 3
            s_lshl_b32 s{sTMP2}, s{sTMP2}, 9
            s_add_u32 s{sTMP}, s{sTMP}, s{sTMP2}""", 2048, f"""
            v_lshlrev_b32 v{vA1}, 13, v{vG}           ; 4g*2048
            v_lshl_add_u32 v{vA1}, v{vM}, 4, v{vA1}""", STD_ROW)
    a(f"""
    s_lshl_b32 s{sTMP}, s{sFC}, 7
    s_add_u32 s{sTMP}, s{sTMP}, {WS_FPS}
    v_and_b32 v{vA0}, 7, v{vLane}
    v_lshl_add_u32 v{vA0}, v{vA0}, 4, s{sTMP}
    s_lshl_b32 s{sTMP}, s{sFC}, 13           ; fc*2*8*512
    s_lshl_b32 s{sTMP2}, s{u}, 10             ; 2u*512
    s_add_u32 s{sTMP}, s{sTMP}, s{sTMP2}
    s_add_u32 s{sTMP}, s{sTMP}, {WS_FPP}
    s_add_u32 s{sWQ}, s{sWS}, s{sTMP}
    s_addc_u32 s{sWQ+1}, s{sWS+1}, 0
    s_lshl_b32 s{sTMP}, s{sFC}, 12           ; fc*8*512
    s_add_u32 s{sTMP}, s{sTMP}, s{sTMP2}
    s_add_u32 s{sTMP}, s{sTMP}, {WS_FPC}
    s_add_u32 s{sB1}, s{sWS}, s{sTMP}
    s_addc_u32 s{sB1+1}, s{sWS+1}, 0
    v_lshrrev_b32 v{vA1}, 5, v{vLane}
    v_lshl_add_u32 v{vA2}, v{vA1}, 12, v{vBG}   ; b*8*512 + gi*16
    """)
    a.guard(lambda: a("s_waitcnt vmcnt(0)"))
    a.perm_unit(T, RAWA)
    a.perm_unit(RAWB, T)
    a.stamp(13)
    ST = GA + 36
    a.pspin("hC", lambda r: a(f"global_load_dwordx4 {vr(r,4)}, v{vA0}, {sp(sWS)} sc1"), HS, ACC, dst=ST, sleep=psl)
    a.stamp(14)
    MEANB, RS0, RS1 = GA+32, GA+33, GA+34
    def issC():
        for k in range(2):
            a(f"global_load_dwordx4 {vr(GA+4*k,4)}, v{vA2}, {sp(sWQ)} offset:{k*512} sc1")
        for k in range(2):
            a(f"global_load_dwordx4 {vr(GA+8+4*k,4)}, v{vBG}, {sp(sB1)} offset:{k*512} sc1")
    def shadowC():
        a.dpp("v_add_f32", [ST, ST+1, ST+2, ST+3], (XOR1, XOR2, ROR4))
        a(f"""
        v_mul_f32 v{ST}, 0x3a800000, v{ST}
        v_mul_f32 v{ST+2}, 0x3a800000, v{ST+2}
        v_mul_f32 v{ST+1}, 0x3a800000, v{ST+1}
        v_mul_f32 v{ST+3}, 0x3a800000, v{ST+3}
        v_cndmask_b32 v{MEANB}, v{ST}, v{ST+2}, {sp(sMHI)}
        v_fma_f32 v{ST+1}, -v{ST}, v{ST}, v{ST+1}
        v_fma_f32 v{ST+3}, -v{ST+2}, v{ST+2}, v{ST+3}
        v_max_f32 v{ST+1}, 0, v{ST+1}
        v_max_f32 v{ST+3}, 0, v{ST+3}
        v_add_f32 v{ST+1}, 0x3727c5ac, v{ST+1}
        v_add_f32 v{ST+3}, 0x3727c5ac, v{ST+3}
        v_rsq_f32 v{RS0}, v{ST+1}
        v_rsq_f32 v{RS1}, v{ST+3}
        s_nop 0
        v_cndmask_b32 v{GA+35}, v{RS0}, v{RS1}, {sp(sMB)}
        """)
    dsilu = o.get("dsilu", 0)
    XC = vXR if dx else GA + 16
    def shadowC2():
        shadowC()
        if dsilu and not dx:
            a(f"""
            v_and_b32 v{XC+1}, 3, v{vM}
            v_mul_u32_u24 v{XC+2}, 1088, v{XC+1}
            v_sub_u32 v{XC}, v{vXR}, v{XC+2}
            v_and_b32 v{XC+2}, 1, v{XC+1}
            v_lshl_add_u32 v{XC}, v{XC+2}, 3, v{XC}
            v_lshrrev_b32 v{XC+2}, 1, v{XC+1}
            v_lshl_add_u32 v{XC}, v{XC+2}, 6, v{XC}
            """)
    progC = o.get("prog", 0) & 4
    def accC(i):
        if i == 1:
            for t in (0, 2): a(f"v_pk_add_f32 {vr(GA+t,2)}, {vr(GA+t,2)}, {vr(GA+4+t,2)}")
        if i == 3:
            for t in (0, 2): a(f"v_pk_add_f32 {vr(GA+8+t,2)}, {vr(GA+8+t,2)}, {vr(GA+12+t,2)}")
            for t in range(4): a(f"v_fma_f32 v{GA+t}, -v{MEANB}, v{GA+8+t}, v{GA+t}")
    sweep("gC", issC, [GA+4*i for i in range(4)], shadowC2, o.get("csleep", 1), prog=accC if progC else None)
    a.stamp(15)
    RSB = GA + 40
    if not progC:
        for t in range(4):
            a(f"v_add_f32 v{GA+t}, v{GA+t}, v{GA+4+t}\n v_add_f32 v{GA+8+t}, v{GA+8+t}, v{GA+12+t}")
        for t in range(4):
            a(f"v_fma_f32 v{GA+t}, -v{MEANB}, v{GA+8+t}, v{GA+t}")
    if dsilu:
        RSB = GA + 35
        a(f"ds_write_b128 v{vXW}, {vr(GA,4)} offset:{L_XA_C}")
        a.gbarrier()
        Y0 = GA + 20
        for w in range(4):
            a(f"ds_read_b64 {vr(Y0+2*w,2)}, v{XC} offset:{L_XA_C + w*1088}")
        a(f"""
        s_waitcnt lgkmcnt(2)
        v_pk_add_f32 {vr(Y0,2)}, {vr(Y0,2)}, {vr(Y0+2,2)}
        s_waitcnt lgkmcnt(0)
        v_pk_add_f32 {vr(Y0+4,2)}, {vr(Y0+4,2)}, {vr(Y0+6,2)}
        v_pk_add_f32 {vr(Y0,2)}, {vr(Y0,2)}, {vr(Y0+4,2)}
        v_mul_f32 v{Y0}, v{Y0}, v{RSB}
        v_mul_f32 v{Y0+1}, v{Y0+1}, v{RSB}
        v_mul_f32 v{Y0+2}, 0xbfb8aa3b, v{Y0}      ; -log2e * x
        v_mul_f32 v{Y0+3}, 0xbfb8aa3b, v{Y0+1}
        v_exp_f32 v{Y0+2}, v{Y0+2}
        v_exp_f32 v{Y0+3}, v{Y0+3}
        s_nop 0
        v_add_f32 v{Y0+2}, 1.0, v{Y0+2}
        v_add_f32 v{Y0+3}, 1.0, v{Y0+3}
        v_rcp_f32 v{Y0+2}, v{Y0+2}
        v_rcp_f32 v{Y0+3}, v{Y0+3}
        s_nop 0
        v_mul_f32 v{Y0}, v{Y0}, v{Y0+2}
        v_mul_f32 v{Y0+1}, v{Y0+1}, v{Y0+3}
        v_cvt_pk_bf16_f32 v{Y0+4}, v{Y0}, v{Y0+1}
        s_nop 1
        """)
        for q in range(4):
            a(f"v_mov_b32_dpp v{AOP+q}, v{Y0+4} quad_perm:[{q},{q},{q},{q}] {DM}")
        a("s_nop 1")
    else:
        a(f"v_mov_b32 v{RSB}, v{GA+35}")
        exchange(L_XA_C)
        for e in range(8):
            a(f"v_mul_f32 v{vals[e]}, v{vals[e]}, v{RSB}")
        E = GA + 8
        for e in range(8):
            a(f"v_mul_f32 v{E+e}, 0xbfb8aa3b, v{vals[e]}      ; -log2e * x")
        for e in range(8):
            a(f"v_exp_f32 v{E+e}, v{E+e}")
        for e in range(8):
            a(f"v_add_f32 v{E+e}, 1.0, v{E+e}")
        for e in range(8):
            a(f"v_rcp_f32 v{E+e}, v{E+e}")
        for e in range(8):
            a(f"v_mul_f32 v{vals[e]}, v{vals[e]}, v{E+e}")
        for q in range(4):
            a(f"v_cvt_pk_bf16_f32 v{AOP+q}, v{vals[2*q]}, v{vals[2*q+1]}")
        a("s_nop 1")
    a.mfma8(D, AOP, RAWA)
    a.mfma8(RAWB, AOP, T)
    a(f"s_lshl_b32 s{sTMP}, s{sU}, 10\n v_lshl_add_u32 v{vA0}, v{vLane}, 4, s{sTMP}")
    red_pub2("c", RAWB, L_RD0, L_RD1, lambda: a(f"""
        s_and_b32 s{sTMP}, s{sSLOT}, 3
        s_lshl_b32 s{sTMP}, s{sTMP}, 1
        s_add_u32 s{sTMP}, s{sTMP}, s{sU}          ; cc
        s_mul_i32 s{sTMP}, s{sTMP}, 56
        s_add_u32 s{sTMP}, s{sTMP}, s{sFC}
        s_lshl_b32 s{sTMP}, s{sTMP}, 9
        s_add_u32 s{sTMP}, s{sTMP}, {WS_O2}
        v_and_b32 v{vA0}, 1, v{vG}
        v_mul_u32_u24 v{vA0}, {28*512}, v{vA0}
        v_add3_u32 v{vA0}, v{vA0}, v{vPubH}, s{sTMP}"""))
    a("L_skipC1:")
    a.stamp(16)
    a("s_branch L_D")
    a("L_Y:")
    a.stamp(6)
    a.guard(lambda: a("s_barrier      ; B3\n s_barrier      ; B4"))
    a.stamp(7)
    a(f"""
    s_cmp_ge_u32 s{sFCP}, 14
    s_cbranch_scc1 L_D
    """)
    if o.get("ytrig", 1):
        o_hint_setup(sHA)
        a(f"""
        v_bfe_u32 v{vA1}, v{vLane}, 3, 1
        v_and_b32 v{vA0}, 7, v{vLane}
        v_lshlrev_b32 v{vA0}, 9, v{vA0}
        v_lshl_add_u32 v{vA0}, v{vA1}, 19, v{vA0}
        """)
        a.mask("0xffff", "0")
        a.pspin("hY", lambda r: a(f"global_load_dwordx4 {vr(r,4)}, v{vA0}, {sp(sWQ)} sc1"), HS, ACC, sleep=o.get("ysleep", 3), thr=o.get("ythr", 0))
        a.full()
    a.stamp(8)
    wpair(RAWA, RAWB, sW1, f"""
        s_lshl_b32 s{sTMP}, s{sKSB}, 7
        s_lshl_b32 s{sTMP2}, s{u}, 5
        s_add_u32 s{sTMP}, s{sTMP}, s{sTMP2}
        s_mul_i32 s{sTMP}, s{sTMP}, 7168
        s_lshl_b32 s{sTMP2}, s{sFCP}, 9
        s_add_u32 s{sTMP}, s{sTMP}, s{sTMP2}""", 7168, f"""
        v_mul_u32_u24 v{vA1}, {4*7168}, v{vG}
        v_lshl_add_u32 v{vA1}, v{vM}, 4, v{vA1}""", STD_ROW)
    a(f"""
    s_lshl_b32 s{sTMP}, s{sKSB}, 15            ; ks*2*32*512
    s_lshl_b32 s{sTMP2}, s{u}, 12
    s_add_u32 s{sTMP}, s{sTMP}, s{sTMP2}
    s_add_u32 s{sTMP}, s{sTMP}, {WS_AP}
    s_add_u32 s{sWQ}, s{sWS}, s{sTMP}
    s_addc_u32 s{sWQ+1}, s{sWS+1}, 0
    v_lshrrev_b32 v{vA1}, 5, v{vLane}
    v_lshl_add_u32 v{vA2}, v{vA1}, 14, v{vBG}
    """)
    if o.get("fullhint", 0):
        a(f"""
        v_bfe_u32 v{vA0}, v{vLane}, 2, 3
        v_lshlrev_b32 v{vA0}, 9, v{vA0}
        v_and_b32 v{GA+30}, 3, v{vLane}
        v_lshl_add_u32 v{vA0}, v{GA+30}, 7, v{vA0}
        v_lshl_add_u32 v{vA0}, v{vA1}, 14, v{vA0}
        """)
    else:
        a(f"""
        v_bfe_u32 v{vA1}, v{vLane}, 3, 1
        v_and_b32 v{vA0}, 7, v{vLane}
        v_lshlrev_b32 v{vA0}, 9, v{vA0}
        v_lshl_add_u32 v{vA0}, v{vA1}, 14, v{vA0}
        """)
    a.guard(lambda: a("s_waitcnt vmcnt(0)"))
    a.perm_unit(RAWA, T)
    a.perm_unit(RAWB, RAWA)
    a.stamp(10)
    if not o.get("fullhint", 0): a.mask("0xffff", "0")
    a.pspin("hB", lambda r: a(f"global_load_dwordx4 {vr(r,4)}, v{vA0}, {sp(sWQ)} sc1"), HS, ACC, sleep=psl)
    a.full()
    a.stamp(11)
    def issB():
        for i in range(8):
            a(f"global_load_dwordx4 {vr(GA+4*i,4)}, v{vA2}, {sp(sWQ)} offset:{i*512} sc1")
    XF = GA + 48 - 8
    progB = o.get("prog", 0) & 2
    def accB(i):
        if i: a(f"v_pk_add_f32 {vr(GA,2)}, {vr(GA,2)}, {vr(GA+4*i,2)}\n v_pk_add_f32 {vr(GA+2,2)}, {vr(GA+2,2)}, {vr(GA+4*i+2,2)}")
    sweep("gB", issB, [GA+4*i for i in range(8)], lambda: None, o.get("bsleep", 1), prog=accB if progB else None)
    a.stamp(12)
    if not progB:
        for k in (0, 8, 16, 24):
            a(f"v_pk_add_f32 {vr(GA+k,2)}, {vr(GA+k,2)}, {vr(GA+k+4,2)}\n v_pk_add_f32 {vr(GA+k+2,2)}, {vr(GA+k+2,2)}, {vr(GA+k+6,2)}")
        for k in (0, 16):
            a(f"v_pk_add_f32 {vr(GA+k,2)}, {vr(GA+k,2)}, {vr(GA+k+8,2)}\n v_pk_add_f32 {vr(GA+k+2,2)}, {vr(GA+k+2,2)}, {vr(GA+k+10,2)}")
        a(f"v_pk_add_f32 {vr(GA,2)}, {vr(GA,2)}, {vr(GA+16,2)}\n v_pk_add_f32 {vr(GA+2,2)}, {vr(GA+2,2)}, {vr(GA+18,2)}")
    a(f"ds_write_b128 v{vXW}, {vr(GA,4)} offset:{L_XA_B}")
    HP_ = XR
    if dx:
        a(f"v_lshlrev_b32 v{XF}, 16, v{XR}\n v_and_b32 v{XF+1}, 0xffff0000, v{XR}")
        a.gbarrier()
        dread(L_XA_B, vXR)
        a(f"v_mov_b32 v{ACC}, 0x3f803f80")
        dsum()
        a(f"v_pk_add_f32 {vr(Y0,2)}, {vr(XF,2)}, {vr(Y0,2)}")
        dbcast(HP_)
    else:
        for q in range(4):
            a(f"v_lshlrev_b32 v{XF+2*q}, 16, v{XR+q}\n v_and_b32 v{XF+2*q+1}, 0xffff0000, v{XR+q}")
        a.gbarrier()
        a(f"""
        ds_read_b128 {vr(vals[0],4)}, v{vXR} offset:{L_XA_B}
        ds_read_b128 {vr(vals[4],4)}, v{vXR} offset:{L_XA_B + 64}
        v_mov_b32 v{ACC}, 0x3f803f80
        s_waitcnt lgkmcnt(0)""")
        a.dpp("v_add_f32", vals, (XOR1, XOR2))
        for e in range(0, 8, 2):
            a(f"v_pk_add_f32 {vr(XF+e,2)}, {vr(XF+e,2)}, {vr(vals[e],2)}")
        for q in range(4):
            a(f"v_cvt_pk_bf16_f32 v{HP_+q}, v{XF+2*q}, v{XF+2*q+1}")
    a("s_nop 0")
    for q in range(4):
        a(f"v_cndmask_b32 v{AOP+q}, v{HP_+q}, v{ACC}, {sp(sM1)}")
    a("s_nop 1")
    DX = GA + 44
    a(f"v_mfma_f32_16x16x32_bf16 {vr(DX,4)}, {vr(AOP,4)}, {vr(AOP,4)}, 0")
    a.mfma8(D, AOP, T)
    a.mfma8(RAWB, AOP, RAWA)
    a(f"""
    s_lshl_b32 s{sTMP}, s{u}, 10
    v_lshl_add_u32 v{vA0}, v{vLane}, 4, s{sTMP}
    v_lshrrev_b32 v{vA1}, 4, v{vLane}
    v_lshlrev_b32 v{vA1}, 3, v{vA1}
    v_not_b32 v{vA2}, v{vLane}
    v_and_b32 v{vA2}, 1, v{vA2}
    v_lshl_add_u32 v{vA1}, v{vA2}, 2, v{vA1}
    s_lshl_b32 s{sTMP}, s{u}, 4
    v_add_u32 v{vA1}, s{sTMP}, v{vA1}
    """)
    a.select(ACC, D, 0)
    a(f"ds_write_b128 v{vA0}, {vr(ACC,4)} offset:{L_RA0}")
    a.select(AOP, D, 1)
    a(f"ds_write_b128 v{vA0}, {vr(AOP,4)} offset:{L_RD0}")
    a.select(GA+32, RAWB, 0)
    a(f"ds_write_b128 v{vA0}, {vr(GA+32,4)} offset:{L_RA1}")
    a.select(GA+36, RAWB, 1)
    a(f"ds_write_b128 v{vA0}, {vr(GA+36,4)} offset:{L_RD1}")
    a.mask("0x00300003", "0")
    a(f"ds_write_b32 v{vA1}, v{DX} offset:{L_REDS}")
    a.full()
    a.gbarrier()
    R2 = GA + 16
    a(f"""
    s_cmp_eq_u32 s{u}, 3
    s_cbranch_scc1 L_b_st
    s_cmp_eq_u32 s{u}, 2
    s_cbranch_scc1 L_b_cs
    s_mul_i32 s{sTMP}, s{u}, {L_RA1 - L_RA0}
    v_lshl_add_u32 v{vA0}, v{vLane}, 4, s{sTMP}
    """)
    for w in range(4):
        a(f"ds_read_b128 {vr(R2+4*w,4)}, v{vA0} offset:{L_RA0 + w*1024}")
    a(f"""
    s_lshl_b32 s{sTMP}, s{sFCP}, 1
    s_add_u32 s{sTMP}, s{sTMP}, s{u}           ; fc
    s_lshl_b32 s{sTMP}, s{sTMP}, 4             ; fc*2*8
    s_add_u32 s{sTMP}, s{sTMP}, s{sKSB}
    s_lshl_b32 s{sTMP}, s{sTMP}, 9
    s_add_u32 s{sTMP}, s{sTMP}, {WS_FPP}
    v_and_b32 v{vA0}, 1, v{vG}
    v_lshl_add_u32 v{vA0}, v{vA0}, 12, v{vPubH}
    v_add_u32 v{vA0}, s{sTMP}, v{vA0}
    s_waitcnt lgkmcnt(0)""")
    reduce4(a, R2, ACC, vN)
    a.guard(lambda: a(f"global_store_dwordx4 v{vA0}, {vr(ACC,4)}, {sp(sWS)} sc1"))
    a(f"""
    s_branch L_b_done
    L_b_cs:
    v_and_b32 v{vA1}, 1, v{vG}
    v_mul_u32_u24 v{vA0}, {L_RD1 - L_RD0}, v{vA1}
    v_lshl_add_u32 v{vA0}, v{vLane}, 4, v{vA0}
    """)
    for w in range(4):
        a(f"ds_read_b128 {vr(R2+4*w,4)}, v{vA0} offset:{L_RD0 + w*1024}")
    a(f"""
    s_lshl_b32 s{sTMP}, s{sFCP}, 4             ; fc0*8
    s_add_u32 s{sTMP}, s{sTMP}, s{sKSB}
    s_lshl_b32 s{sTMP}, s{sTMP}, 9
    s_add_u32 s{sTMP}, s{sTMP}, {WS_FPC}
    v_lshl_add_u32 v{vA0}, v{vA1}, 12, v{vPubH}     ; + (g&1)*8*512
    v_add_u32 v{vA0}, s{sTMP}, v{vA0}
    s_waitcnt lgkmcnt(0)""")
    reduce4(a, R2, ACC, vN)
    a.guard(lambda: a(f"global_store_dwordx4 v{vA0}, {vr(ACC,4)}, {sp(sWS)} sc1"))
    a(f"""
    s_branch L_b_done
    L_b_st:
    v_mov_b32 v{vA0}, 0
    """)
    for w in range(4):
        a(f"ds_read_b128 {vr(R2+4*w,4)}, v{vA0} offset:{L_REDS + w*16}")
    a(f"""
    s_lshl_b32 s{sTMP}, s{sFCP}, 4
    s_add_u32 s{sTMP}, s{sTMP}, s{sKSB}
    s_lshl_b32 s{sTMP}, s{sTMP}, 4
    s_add_u32 s{sTMP}, s{sTMP}, {WS_FPS}
    v_lshl_add_u32 v{vA0}, v{vLane}, 7, s{sTMP}
    s_waitcnt lgkmcnt(0)
    """)
    for t in (0, 2):
        a(f"v_pk_add_f32 {vr(R2+t,2)}, {vr(R2+t,2)}, {vr(R2+4+t,2)}\n v_pk_add_f32 {vr(R2+8+t,2)}, {vr(R2+8+t,2)}, {vr(R2+12+t,2)}")
    for t in (0, 2):
        a(f"v_pk_add_f32 {vr(R2+t,2)}, {vr(R2+t,2)}, {vr(R2+8+t,2)}")
    a.tag(ACC, R2, vN)
    a.mask("3", "0")
    a.guard(lambda: a(f"global_store_dwordx4 v{vA0}, {vr(ACC,4)}, {sp(sWS)} sc1"))
    a.full()
    a("L_b_done:")
    a(f"""
    s_cmp_lg_u32 s{sFCP}, 0
    s_cbranch_scc1 L_nohp""")
    XF2 = GA + 32
    for q in range(4):
        a(f"v_lshlrev_b32 v{XF2+2*q}, 16, v{HP_+q}\n v_and_b32 v{XF2+2*q+1}, 0xffff0000, v{HP_+q}")
    a.tag(GA+4, XF2, vN)
    a.tag(GA+8, XF2+4, vN)
    a(f"""
    s_lshl_b32 s{sTMP}, s{sKSB}, 5
    s_lshl_b32 s{sTMP2}, s{u}, 3
    s_add_u32 s{sTMP}, s{sTMP}, s{sTMP2}
    s_lshl_b32 s{sTMP}, s{sTMP}, 4
    s_add_u32 s{sTMP}, s{sTMP}, {WS_HP}
    v_lshlrev_b32 v{vA1}, 4, v{vG}
    v_lshl_add_u32 v{vA1}, v{vB}, 12, v{vA1}
    v_add_u32 v{vA1}, s{sTMP}, v{vA1}""")
    a.mask("0x00110011", "0x00110011")
    a.guard(lambda: a(f"""global_store_dwordx4 v{vA1}, {vr(GA+4,4)}, {sp(sWS)} sc1
    global_store_dwordx4 v{vA1}, {vr(GA+8,4)}, {sp(sWS)} offset:64 sc1"""))
    a.full()
    a("L_nohp:")
    a.stamp(13)
    if o.get("ydpre", 0): a.guard(lambda: a("\n".join([f"s_sleep {min(127, o['ydpre'] - 127*k)}" for k in range((o['ydpre'] + 126)//127)])))
    a("L_D:")
    a(f"""
    s_cmp_lg_u32 s{u}, 0
    s_cbranch_scc1 L_G_done
    s_and_b32 s{sX}, s2, 7
    s_lshl_b32 s{sX}, s{sX}, 5
    s_lshr_b32 s{sX+1}, s2, 3
    s_add_u32 s{sX}, s{sX}, s{sX+1}
    s_lshr_b32 s{sB0}, s{sX}, 7                ; b2
    s_bfe_u32 s{sB0+1}, s{sX}, 0x30004         ; cc2
    s_and_b32 s{sB1}, s{sX}, 15
    s_lshl_b32 s{sB1}, s{sB1}, 5               ; gi0*16
    s_lshl_b32 s{sTMP}, s{sB0+1}, 1
    s_add_u32 s{sTMP}, s{sTMP}, s{sB0}
    s_mul_i32 s{sTMP}, s{sTMP}, {28*512}
    s_add_u32 s{sTMP}, s{sTMP}, s{sB1}
    s_add_u32 s{sTMP}, s{sTMP}, {WS_O2}
    v_lshrrev_b32 v{vA0}, 1, v{vLane}
    v_lshlrev_b32 v{vA0}, 9, v{vA0}
    v_and_b32 v{vA1}, 1, v{vLane}
    v_lshl_add_u32 v{vA0}, v{vA1}, 4, v{vA0}
    v_add_u32 v{vA0}, s{sTMP}, v{vA0}
    s_lshl_b32 s{sTMP}, s{sB0}, 12             ; b*256*16
    s_lshl_b32 s{sTMP2}, s{sB0+1}, 9           ; cc*32*16
    s_add_u32 s{sTMP}, s{sTMP}, s{sTMP2}
    s_add_u32 s{sTMP}, s{sTMP}, s{sB1}
    s_add_u32 s{sTMP}, s{sTMP}, {WS_HP}
    v_lshl_add_u32 v{vA2}, v{vA1}, 4, s{sTMP}
    v_cmp_le_u32 vcc, 56, v{vLane}
    s_nop 1
    v_cndmask_b32 v{vA0}, v{vA0}, v{vA2}, vcc
    """)
    DS = [GA, GA+4, GA+8]
    a.mask("-1", "0x03ffffff")
    if o.get("dpre", 0): a.guard(lambda: a(f"s_sleep {o['dpre']}"))
    a.pspin("gd", lambda r: a(f"global_load_dwordx4 {vr(r,4)}, v{vA0}, {sp(sWS)} sc1"), DS, ACC, dst=GA+12, sleep=o.get("dsleep", 1), stag=o.get("dstag", 0))
    a.full()
    a.stamp(17)
    fv = [GA+12+i for i in range(4)]
    a.mask("0", "0xfc000000")
    for r in fv: a(f"v_mov_b32 v{r}, 0")
    a.full()
    a.dpp("v_add_f32", fv, (XOR2, ROR4, ROR8))
    a.allreduce_g(fv, [GA+16+i for i in range(4)])
    a(f"""
    v_cvt_pk_bf16_f32 v{GA+20}, v{GA+12}, v{GA+13}
    v_cvt_pk_bf16_f32 v{GA+21}, v{GA+14}, v{GA+15}
    s_lshl_b32 s{sTMP}, s{sX}, 4
    v_lshl_add_u32 v{vA0}, v{vA1}, 3, s{sTMP}
    """)
    a.mask("3", "0")
    a.guard(lambda: a(f"global_store_dwordx2 v{vA0}, {vr(GA+20,2)}, {sp(sOUT)}"))
    a(f"""
    s_cmp_lg_u32 s2, 0
    s_cbranch_scc1 L_G_done
    """)
    a.full()
    a(f"v_mov_b32 v{vA0}, 0")
    a.mask("1", "0")
    a.guard(lambda: a(f"global_store_dword v{vA0}, v{vN}, {sp(sWS)} sc1"))
    a("L_G_done:")
    if o.get("dry", 1):
        a("s_cbranch_execz L_dry_done")
    a.stamp(18)
    a.dump_stamps(19, 7)
    a("s_endpgm")

def gen_A(a):
    o = a.o
    vLane, vG, vM, vN = 0, 2, 3, 4
    vKs = 5
    vV = 9
    vT0, vT1, vT2 = 10, 11, 12
    MX, LS = 13, 14
    VR = 16
    QO = 80
    KS = 96
    S = 128
    P = 144
    TB = 80
    ACCD = 112
    sA = sU
    sP, sS = 52, 53
    a(f"""
    L_A:
    ; ---------------- A waves ----------------
    s_setprio 2
    s_sub_u32 s{sA}, s{sWAVE}, 4
    s_and_b32 s{sP}, s2, 7
    s_lshr_b32 s{sS}, s2, 3
    s_lshl_b32 s{sTMP}, s{sP}, 22
    s_lshl_b32 s{sTMP2}, s{sS}, 17
    s_add_u32 s{sTMP}, s{sTMP}, s{sTMP2}
    s_lshl_b32 s{sTMP2}, s{sA}, {12 if o.get("ilv", 1) else 14}
    s_add_u32 s{sTMP}, s{sTMP}, s{sTMP2}
    s_lshl_b32 s{sTMP2}, s{sA}, 14
    """)
    TS = 32768 if o.get("ilv", 1) else 4096
    for r in range(4):
        a(f"v_add_u32 v{vT0}, {4*r}, v{vG}\n v_xor_b32 v{vT0}, v{vT0}, v{vM}\n v_lshlrev_b32 v{vT0}, 4, v{vT0}\n v_lshl_add_u32 v{vKs+r}, v{vG}, 8, v{vT0}")
    a(f"""
    v_lshlrev_b32 v{vT0}, 4, v{vM}
    v_lshl_add_u32 v{vV}, v{vG}, 10, v{vT0}
    v_mov_b32 v{vT1}, 0
    s_mov_b32 s{sM8}, 0xff00ff00
    s_mov_b32 s{sM8+1}, 0xff00ff00
    s_waitcnt lgkmcnt(0)
    s_add_u32 s{sB0}, s{sK}, s{sTMP}
    s_addc_u32 s{sB0+1}, s{sK+1}, 0
    s_add_u32 s{sB1}, s{sV}, s{sTMP}
    s_addc_u32 s{sB1+1}, s{sV+1}, 0
    s_add_u32 m0, s{sTMP2}, {L_K}
    s_barrier       ; B0
    global_load_dword v{vN}, v{vT1}, {sp(sWS)} sc1
    """)
    KW = o.get("kwin", 3)
    for i in range(16):
        r = i % 4
        if KW and i >= KW: a(f"s_waitcnt vmcnt({KW-1})")
        a(f"global_load_lds_dwordx4 v{vKs+r}, {sp(sB0)} offset:{r*1024} nt")
        if r == 3 and i < 15:
            a(f"s_add_u32 s{sB0}, s{sB0}, {TS}\n s_addc_u32 s{sB0+1}, s{sB0+1}, 0\n s_add_u32 m0, m0, 4096")
    a.stamp(1)
    a(f"s_setprio {o.get('vprio', 1)}")
    VW = o.get("vwin", 0)
    for uu in range(2):
        for i in range(8):
            reg = VR + (uu*8+i)*4
            if VW and uu*8+i < o.get("vwn", 16): a(f"s_waitcnt vmcnt({VW-1})")
            a(f"global_load_dwordx4 {vr(reg,4)}, v{vV}, {sp(sB1)} offset:{(i%4)*256} nt")
            if i % 4 == 3 and not (uu == 1 and i == 7):
                a(f"s_add_u32 s{sB1}, s{sB1}, {TS}\n s_addc_u32 s{sB1+1}, s{sB1+1}, 0")
    a.stamp(2)
    a(f"""
    v_mov_b32 v{vT1}, 0
    v_mov_b32 v{vT2}, 1
    s_mov_b64 exec, 1
    ds_add_u32 v{vT1}, v{vT2} offset:{L_CNT+4}
    s_mov_b64 exec, -1""")
    a(f"s_lshl_b32 s{sTMP}, s{sA}, 14\n s_add_u32 s{sTMP}, s{sTMP}, {L_K}")
    for s in range(4):
        a(f"v_add_u32 v{vT0}, {4*s}, v{vG}\n v_xor_b32 v{vT0}, v{vT0}, v{vM}\n v_lshlrev_b32 v{vT0}, 4, v{vT0}\n v_lshl_add_u32 v{vT0}, v{vM}, 8, v{vT0}\n v_add_u32 v{vKs+s}, s{sTMP}, v{vT0}")
    a.ldswait("Aq", vT1, vT2, L_CNT, 4, sleep=4)
    a(f"""
    v_and_b32 v{vT0}, 7, v{vM}
    v_mul_u32_u24 v{vT0}, 272, v{vT0}
    v_lshl_add_u32 v{vT0}, v{vG}, 4, v{vT0}
    """)
    a.stamp(3)
    for s in range(4):
        a(f"ds_read_b128 {vr(QO+4*s,4)}, v{vT0} offset:{L_Q + s*64}")
    a("s_waitcnt vmcnt(16)")
    a.nonce_from(vN)
    def kread(t, buf):
        for s in range(4):
            a(f"ds_read_b128 {vr(KS+16*buf+4*s,4)}, v{vKs+s} offset:{t*4096}")
    kread(0, 0); kread(1, 1)
    for t in range(4):
        buf = t % 2
        a("s_waitcnt lgkmcnt(4)" if t < 3 else "s_waitcnt lgkmcnt(0)")
        for s in range(4):
            c = "0" if s == 0 else vr(S+4*t, 4)
            a(f"v_mfma_f32_16x16x32_bf16 {vr(S+4*t,4)}, {vr(KS+16*buf+4*s,4)}, {vr(QO+4*s,4)}, {c}")
        if t + 2 < 4:
            kread(t + 2, buf)
    a("s_nop 7")
    a(f"v_max3_f32 v{MX}, v{S}, v{S+1}, v{S+2}")
    for k in range(3, 15, 2):
        a(f"v_max3_f32 v{MX}, v{MX}, v{S+k}, v{S+k+1}")
    a(f"v_max_f32 v{MX}, v{MX}, v{S+15}")
    a.allreduce_g([MX], [vT2], "v_max_f32")
    a(f"""
    s_mov_b32 s{sC}, 0x3e0293ee                   ; 128^-0.5 * log2(e)
    v_mul_f32 v{MX}, s{sC}, v{MX}""")
    for k in range(16):
        a(f"v_fma_f32 v{S+k}, v{S+k}, s{sC}, -v{MX}")
    for k in range(16):
        a(f"v_exp_f32 v{S+k}, v{S+k}")
    a("s_nop 0")
    for uu in range(2):
        for q in range(4):
            k = 8*uu + 2*q
            a(f"v_cvt_pk_bf16_f32 v{P+4*uu+q}, v{S+k}, v{S+k+1}")
    a(f"v_add_f32 v{LS}, v{S}, v{S+1}")
    for k in range(2, 16):
        a(f"v_add_f32 v{LS}, v{LS}, v{S+k}")
    a.allreduce_g([LS], [KS])
    a(f"""
    v_and_b32 v{vT0}, 7, v{vM}
    v_lshlrev_b32 v{vT0}, 5, v{vT0}             ; head*32
    s_lshl_b32 s{sTMP}, s{sA}, 2
    v_add_u32 v{vT0}, s{sTMP}, v{vT0}            ; head*32 + a*4
    s_mov_b64 exec, 0xff
    ds_write_b32 v{vT0}, v{MX} offset:{L_MX}
    ds_write_b32 v{vT0}, v{LS} offset:{L_LS}
    s_mov_b64 exec, 1
    v_mov_b32 v{vT1}, 0
    v_mov_b32 v{vT2}, 1
    s_waitcnt lgkmcnt(0)
    ds_add_rtn_u32 v{vT2}, v{vT1}, v{vT2} offset:{L_CNT+8}
    s_waitcnt lgkmcnt(0)
    s_mov_b64 exec, -1
    v_readfirstlane_b32 s{sTMP}, v{vT2}
    s_mov_b32 s{sSPIN}, 0
    s_cmp_lg_u32 s{sTMP}, 7
    s_cbranch_scc1 L_A_noml
    v_and_b32 v{vT0}, 7, v{vLane}
    v_lshlrev_b32 v{vT1}, 5, v{vT0}
    ds_read_b128 {vr(KS,4)}, v{vT1} offset:{L_MX}
    ds_read_b128 {vr(KS+4,4)}, v{vT1} offset:{L_MX+16}
    ds_read_b128 {vr(KS+8,4)}, v{vT1} offset:{L_LS}
    ds_read_b128 {vr(KS+12,4)}, v{vT1} offset:{L_LS+16}
    s_lshl_b32 s{sTMP}, s{sP}, 8                   ; p*8*32
    s_add_u32 s{sTMP}, s{sTMP}, s{sS}
    s_lshl_b32 s{sTMP}, s{sTMP}, 4
    s_add_u32 s{sTMP}, s{sTMP}, {WS_ML}
    v_lshl_add_u32 v{vT1}, v{vT0}, 9, s{sTMP}       ; + head*32*16
    s_waitcnt lgkmcnt(0)
    v_max3_f32 v{KS+16}, v{KS}, v{KS+1}, v{KS+2}
    v_max3_f32 v{KS+17}, v{KS+3}, v{KS+4}, v{KS+5}
    v_max3_f32 v{KS+16}, v{KS+16}, v{KS+6}, v{KS+7}
    v_max_f32 v{KS+16}, v{KS+16}, v{KS+17}
    v_perm_b32 v{KS+16}, v{KS+16}, v{vN}, s{sSEL[0]}
    """)
    for w in range(8):
        a(f"v_sub_f32 v{KS+w}, v{KS+w}, v{KS+16}")
    for w in range(8):
        a(f"v_exp_f32 v{KS+w}, v{KS+w}")
    a(f"s_nop 0\n v_mul_f32 v{KS+17}, v{KS}, v{KS+8}")
    for w in range(1, 8):
        a(f"v_fmac_f32 v{KS+17}, v{KS+w}, v{KS+8+w}")
    a(f"v_mov_b32 v{KS+18}, v{KS+16}\n v_mov_b32 v{KS+19}, v{KS+16}")
    a.tag(KS+20, KS+16, vN)
    a(f"""
    s_mov_b64 exec, 0xff
    global_store_dwordx4 v{vT1}, {vr(KS+20,4)}, {sp(sWS)} sc1
    s_mov_b64 exec, -1
    s_mov_b32 s{sPEND}, 1
    s_branch L_A_ml2
    L_A_noml:
    s_mov_b32 s{sPEND}, 0
    L_A_ml2:
    """)
    a.stamp(4)
    def pwait(n):
        L0, L1 = a.lab("pw"), a.lab("pw")
        a(f"s_cmp_eq_u32 s{sPEND}, 0\n s_cbranch_scc1 {L0}\n s_waitcnt vmcnt({n+1})\n s_branch {L1}\n {L0}:\n s_waitcnt vmcnt({n})\n {L1}:")
    F = VR
    a("s_waitcnt vmcnt(8)")
    raw = VR
    for t in range(4):
        tb = TB + 8*t
        for par, sel in ((0, sPLO), (1, sPHI)):
            for q in range(4):
                a(f"v_perm_b32 v{tb+4*par+q}, v{raw+4*(2*q+1)+t}, v{raw+4*(2*q)+t}, s{sel}")
        if t > 0:
            for par in range(2):
                j = 2*(t-1) + par
                a(f"v_mfma_f32_16x16x32_bf16 {vr(ACCD+4*j,4)}, {vr(TB+8*(t-1)+4*par,4)}, {vr(P,4)}, 0")
    a("s_nop 1")
    for par in range(2):
        j = 6 + par
        a(f"v_mfma_f32_16x16x32_bf16 {vr(ACCD+4*j,4)}, {vr(TB+24+4*par,4)}, {vr(P,4)}, 0")
    a(f"""
    s_lshl_b32 s{sTMP}, s{sA}, 14
    s_add_u32 s{sTMP}, s{sTMP}, {L_OB}
    v_mul_u32_u24 v{vT0}, 17, v{vG}
    v_add_u32 v{vT0}, v{vT0}, v{vM}
    v_lshl_add_u32 v{vT0}, v{vT0}, 4, s{sTMP}
    v_bfe_u32 v{vT1}, v{vLane}, 3, 2            ; g'
    v_and_b32 v{vKs}, 3, v{vLane}               ; j'&3
    v_bfe_u32 v{vKs+1}, v{vLane}, 2, 1          ; j'>>2
    v_lshl_add_u32 v{vKs}, v{vKs}, 1, v{vKs+1}  ; j
    v_and_b32 v{vKs+1}, 3, v{vKs}               ; jj
    v_lshrrev_b32 v{vKs}, 2, v{vKs}             ; nh
    v_lshl_add_u32 v{vT1}, v{vKs+1}, 2, v{vT1}  ; jj*4+g'
    v_mul_u32_u24 v{vT1}, 17, v{vT1}
    v_lshl_add_u32 v{vT1}, v{vKs}, 3, v{vT1}
    v_add_u32 v{vT1}, s{sA}, v{vT1}
    v_lshlrev_b32 v{vT1}, 4, v{vT1}
    v_lshrrev_b32 v{vKs}, 5, v{vLane}           ; ph
    v_lshl_add_u32 v{vT1}, v{vKs}, 16, v{vT1}   ; + ph*4*16384
    v_add_u32 v{vT1}, {L_OB}, v{vT1}
    s_lshl_b32 s{sTMP}, s{sA}, 5
    v_lshl_add_u32 v{vKs+1}, v{vKs}, 4, s{sTMP}
    v_xor_b32 v{vKs+2}, 16, v{vKs+1}
    s_lshl_b32 s{sTMP}, s{sP}, 3
    s_add_u32 s{sTMP}, s{sTMP}, s{sA}
    s_lshl_b32 s{sTMP}, s{sTMP}, 5
    s_add_u32 s{sTMP}, s{sTMP}, s{sS}            ; (p*8+head)*32 + s
    s_lshl_b32 s{sTMP2}, s{sTMP}, 9
    s_add_u32 s{sTMP2}, s{sTMP2}, {WS_OP}
    v_and_b32 v{vKs+3}, 31, v{vLane}
    v_lshl_add_u32 v{vV}, v{vKs+3}, 4, s{sTMP2}
    v_mov_b32 v{vKs}, 0
    """)
    a.ldswait("Amx", vKs, vT2, L_CNT+8, 8, sleep=1)
    MO, MT = VR, VR+4
    a(f"""
    ds_read_b128 {vr(MO,4)}, v{vKs+1} offset:{L_MX}
    ds_read_b128 {vr(MT,4)}, v{vKs+2} offset:{L_MX}
    s_setprio 3
    s_waitcnt lgkmcnt(0)
    v_max3_f32 v{MX}, v{MO}, v{MO+1}, v{MO+2}
    v_max3_f32 v{MT}, v{MT}, v{MT+1}, v{MT+2}
    v_max3_f32 v{MX}, v{MX}, v{MO+3}, v{MT+3}
    v_max_f32 v{MX}, v{MX}, v{MT}
    v_perm_b32 v{MX}, v{MX}, v{vN}, s{sSEL[0]}
    """)
    for w in range(4):
        a(f"v_sub_f32 v{F+w}, v{MO+w}, v{MX}")
    for w in range(4):
        a(f"v_exp_f32 v{F+w}, v{F+w}")
    raw = VR + 32
    pwait(4)
    for t in range(4):
        for par, sel in ((0, sPLO), (1, sPHI)):
            for q in range(2):
                a(f"v_perm_b32 v{TB+8*t+4*par+q}, v{raw+4*(2*q+1)+t}, v{raw+4*(2*q)+t}, s{sel}")
    pwait(0)
    a.stamp(5)
    for t in range(4):
        for par, sel in ((0, sPLO), (1, sPHI)):
            for q in (2, 3):
                a(f"v_perm_b32 v{TB+8*t+4*par+q}, v{raw+4*(2*q+1)+t}, v{raw+4*(2*q)+t}, s{sel}")
        if t > 0:
            for par in range(2):
                j = 2*(t-1) + par
                a(f"v_mfma_f32_16x16x32_bf16 {vr(ACCD+4*j,4)}, {vr(TB+8*(t-1)+4*par,4)}, {vr(P+4,4)}, {vr(ACCD+4*j,4)}")
    a("s_nop 1")
    for par in range(2):
        j = 6 + par
        a(f"v_mfma_f32_16x16x32_bf16 {vr(ACCD+4*j,4)}, {vr(TB+24+4*par,4)}, {vr(P+4,4)}, {vr(ACCD+4*j,4)}")
    XB = TB
    a("s_nop 3")
    for jj in range(4):
        if jj == 2: a("s_nop 1")
        for r in range(4):
            a(f"v_cndmask_b32 v{XB+4*jj+r}, v{ACCD+4*jj+r}, v{ACCD+4*(jj+4)+r}, {sp(sM8)}")
        a(f"ds_write_b128 v{vT0}, {vr(XB+4*jj,4)} offset:{jj*1088}")
    a("s_waitcnt lgkmcnt(0)")
    if o.get("adry", 1):
        a(f"""
        s_cmp_ge_u32 s{sA}, 4
        s_cbranch_scc1 L_A_b3
        s_mov_b64 exec, 0
        s_branch L_A_post
        L_A_postret:
        s_mov_b64 exec, -1
        L_A_b3:
        """)
    a("s_barrier     ; B3")
    a.stamp(6)
    a("L_A_post:")
    R = KS
    for w in range(4):
        a(f"ds_read_b128 {vr(R+4*w,4)}, v{vT1} offset:{w*OB_STRIDE}")
    a("s_waitcnt lgkmcnt(2)")
    for t in range(4):
        a(f"v_mul_f32 v{R+t}, v{R+t}, v{F}")
    for t in range(4):
        a(f"v_fmac_f32 v{R+t}, v{R+4+t}, v{F+1}")
    a("s_waitcnt lgkmcnt(0)")
    for w in range(2, 4):
        for t in range(4):
            a(f"v_fmac_f32 v{R+t}, v{R+4*w+t}, v{F+w}")
    a.allreduce_g([R, R+1, R+2, R+3], [R+4, R+5, R+6, R+7], steps=("v_permlane32_swap_b32",))
    a.tag(R+8, R, vN)
    a("s_mov_b32 exec_hi, 0")
    a.guard(lambda: a(f"global_store_dwordx4 v{vV}, {vr(R+8,4)}, {sp(sWS)} sc1"))
    if o.get("adry", 1): a("s_cbranch_execz L_A_postret")
    a.stamp(7)
    a("s_barrier     ; B4")
    a.dump_stamps(8, 10)
    a("s_endpgm")

if __name__ == "__main__":
    out = sys.argv[1]
    stamps = len(sys.argv) > 2 and sys.argv[2] == "1"
    opts = {}
    for kv in sys.argv[3:]:
        k, v = kv.split("="); opts[k] = int(v)
    open(out, "w").write(build(stamps, **opts))
```
